```python
import torch

def _softmax(x, axis=-1):
    return torch.softmax(x, dim=axis)
def _gelu(x):
    return torch.nn.functional.gelu(x, approximate="tanh")
def _silu(x):
    return torch.nn.functional.silu(x)
def _sigmoid(x):
    return torch.sigmoid(x)
def _layernorm(x, axis=-1, eps=1e-5):
    m = x.mean(dim=axis, keepdim=True)
    v = x.var(dim=axis, keepdim=True, unbiased=False)
    return (x - m) / torch.sqrt(v + eps)
def _scatter_add(tgt, idx, src, axis=0):
    return tgt.clone().index_add_(axis, idx, src)
def _segment_sum(src, seg, n):
    out = torch.zeros((n,) + src.shape[1:], dtype=src.dtype)
    return out.index_add_(0, seg, src)
def _pad(x, pw):
    flat = tuple(v for pair in reversed(pw) for v in pair)
    return torch.nn.functional.pad(x, flat)

kernel_name = 'gated_mix__mha_block__ssm_conv_h3__prompt'

def setup_inputs():

    _w = (lambda a: (lambda t: t.to(torch.bfloat16) if t.is_floating_point() else t)(torch.as_tensor(a)))
    def _A_setup():
        B, S, D, H = 1, 2048, 512, 32
        return {
            "x": _w((lambda *s: torch.randn(*s, dtype=torch.bfloat16) * 0.05)(B, S, D)),
            "wqkv": _w((lambda *s: torch.randn(*s, dtype=torch.bfloat16) * 0.8)(D, 3 * D)),
            "wo": _w((lambda *s: torch.randn(*s, dtype=torch.bfloat16) * 0.05)(D, D)),
        }
    _A_in = _A_setup()

    def _B_setup():
        B, S, D = 1, 2048, 512
        ks = 4
        return {
            "q": _w((lambda *s: torch.randn(*s, dtype=torch.bfloat16) * 0.05)(B, S, D)),
            "k": _w((lambda *s: torch.randn(*s, dtype=torch.bfloat16) * 0.4)(B, S, D)),
            "v": _w((lambda *s: torch.randn(*s, dtype=torch.bfloat16) * 0.4)(B, S, D)),
            "shift_k": _w((lambda *s: torch.randn(*s, dtype=torch.bfloat16) * 0.4)(D, ks) * 0.5),
            "ssm_k": _w((lambda *s: torch.randn(*s, dtype=torch.bfloat16) * 1.6)(D, S) * (1.0 / S ** 0.5)),
            "ssm_D": _w((lambda *s: torch.randn(*s, dtype=torch.bfloat16) * 0.4)(D)),
        }
    _B_in = _B_setup()

    return {
        "A_x": _A_in["x"],
        "A_wqkv": _A_in["wqkv"],
        "A_wo": _A_in["wo"],
        "B_q": _B_in["q"],
        "B_k": _B_in["k"],
        "B_v": _B_in["v"],
        "B_shift_k": _B_in["shift_k"],
        "B_ssm_k": _B_in["ssm_k"],
        "B_ssm_D": _B_in["ssm_D"],
        "gate_w": _w((lambda *s: torch.randn(*s, dtype=torch.bfloat16) * 0.05)(512) * 16.0),
    }

def reference(A_x, A_wqkv, A_wo, B_q, B_k, B_v, B_shift_k, B_ssm_k, B_ssm_D, gate_w):
    def _A_ref(x, wqkv, wo):
        B, S, D = x.shape
        H = 32
        Dh = D // H
        qkv = (lambda x, *d: x.permute(*d))((x @ wqkv).reshape(B, S, 3, H, Dh), 2, 0, 3, 1, 4)
        q, k, v = qkv[0], qkv[1], qkv[2]
        scores = torch.einsum("bhqd,bhkd->bhqk", q, k) * (Dh ** -0.5)
        p = _softmax(scores, axis=-1)
        o = torch.einsum("bhqk,bhkd->bhqd", p, v)
        return (lambda x, *d: x.permute(*d))(o, 0, 2, 1, 3).reshape(B, S, D) @ wo

    def _B_ref(q, k, v, shift_k, ssm_k, ssm_D):
        B, S, D = q.shape
        ks = shift_k.shape[-1]
        k_pad = _pad(k, ((0, 0), (ks - 1, 0), (0, 0)))
        k_shift = torch.zeros_like(k)
        for t in range(ks):
            k_shift = k_shift + k_pad[:, t:t + S, :] * shift_k[:, ks - 1 - t][None, None, :]
        kv = k_shift * v
        L = 2 * S
        kv_pad = _pad(kv, ((0, 0), (0, S), (0, 0)))
        kf_pad = _pad(ssm_k, ((0, 0), (0, S)))
        kv_f = (lambda x, axes=(-2,-1): torch.fft.rfft2(x.float(), dim=axes))(kv_pad[:, None, :, :], axes=(1, 2))
        kf_f = (lambda x, axes=(-2,-1): torch.fft.rfft2(x.float(), dim=axes))(kf_pad[:, None, :], axes=(1, 2))
        kf_f = (lambda x, *d: x.permute(*d))(kf_f, 1, 2, 0)
        y_f = kv_f * kf_f[None, :, :, :]
        y = (lambda x, s, axes=(-2,-1): torch.fft.irfft2(x, s=s, dim=axes).to(torch.bfloat16))(y_f, (1, L), axes=(1, 2))[:, 0, :S, :]
        y = y + kv * ssm_D[None, None, :]
        return q * y

    x = A_x
    g = _sigmoid((x * gate_w).sum(-1, keepdims=True))
    a = _A_ref(x, A_wqkv, A_wo)
    b = _B_ref(x, B_k, B_v, B_shift_k, B_ssm_k, B_ssm_D)
    return g * a + (1 - g) * b
```

```python
import re

class Asm:
    def __init__(self):
        self.lines = []
    def __call__(self, s):
        for l in s.strip("\n").split("\n"):
            l = l.strip()
            if l:
                self.lines.append(l)
    def label(self, n):
        self.lines.append(n + ":")
    def comment(self, s):
        self.lines.append("; " + s)
    def text(self):
        out = []
        for l in self.lines:
            out.append(l if (l.endswith(":") or l.startswith(".") or l.startswith(";")) else "    " + l)
        return "\n".join(out) + "\n"

def vr(a, n=1):
    return f"v{a}" if n == 1 else f"v[{a}:{a+n-1}]"
def sr(a, n=1):
    return f"s{a}" if n == 1 else f"s[{a}:{a+n-1}]"

_REG = re.compile(r"\b([vas])(\d+)\b|\b([vas])\[(\d+):(\d+)\]|\b(vcc|exec|m0)\b")
def regs(tok):
    out = set()
    for m in _REG.finditer(tok):
        if m.group(1):
            out.add((m.group(1), int(m.group(2))))
        elif m.group(3):
            for i in range(int(m.group(4)), int(m.group(5)) + 1):
                out.add((m.group(3), i))
        else:
            out.add((m.group(6), 0))
    return out

TRANS = ("v_exp_", "v_log_", "v_rcp_", "v_rsq_", "v_sqrt_", "v_sin_", "v_cos_")
class Ins:
    def __init__(self, text):
        self.text = text
        t = text.split(";")[0].strip()
        sp = t.split(None, 1)
        self.op = sp[0]
        rest = sp[1] if len(sp) > 1 else ""
        ops = [o.strip() for o in re.split(r",(?![^\[]*\])", rest)] if rest else []
        self.ops = ops
        op = self.op
        self.w = set(); self.r = set(); self.srcc = set(); self.ab = set()
        self.kind = "other"; self.passes = 0; self.states = 1
        self.dpp = ("row_" in rest or "wave_" in rest or "quad_perm" in rest)
        if op == "s_nop":
            self.states = int(ops[0], 0) + 1
        elif op.startswith("v_mfma") or op.startswith("v_smfmac"):
            self.kind = "mfma"
            self.passes = 8 if "32x32" in op else 4
            self.w = regs(ops[0]); self.ab = regs(ops[1]) | regs(ops[2])
            if op.startswith("v_smfmac"):
                self.srcc = regs(ops[0]); self.ab |= regs(ops[3])
            else:
                self.srcc = regs(ops[3])
            self.r = self.ab | self.srcc
        elif op.startswith("v_"):
            self.kind = "valu"
            if op.startswith("v_permlane") and "swap" in op:
                self.w = regs(ops[0]) | regs(ops[1]); self.r = set(self.w)
            elif op.startswith("v_cmp"):
                self.w = regs(ops[0]); self.r = set().union(*[regs(o) for o in ops[1:]])
                if op.startswith("v_cmpx"): self.w |= {("exec", 0)}
            else:
                self.w = regs(ops[0]); self.r = set().union(*[regs(o) for o in ops[1:]]) if len(ops) > 1 else set()
                if op.startswith(("v_fmac", "v_pk_fmac", "v_dot2c", "v_writelane")) or self.dpp or "UNUSED_PRESERVE" in rest:
                    self.r |= self.w
                if "_co_" in op:
                    self.w |= regs(ops[1])
        elif op.startswith(("buffer_", "global_")):
            self.kind = "vmem"
            allr = [regs(o) for o in ops]
            if " lds" in (" " + rest) and "load" in op:
                self.r = set().union(*allr) | {("m0", 0)}; self.lds = True
            elif "load" in op:
                self.w = allr[0]; self.r = set().union(*allr[1:])
            else:
                self.r = set().union(*allr)
                self.wide = allr[0] if ("x4" in op or "x3" in op) and op.startswith("buffer_") else set()
        elif op.startswith("ds_"):
            self.kind = "ds"
            allr = [regs(o) for o in ops]
            if "read" in op or "permute" in op or "swizzle" in op or "_rtn" in op:
                self.w = allr[0]; self.r = set().union(*allr[1:]) if len(allr) > 1 else set()
            else:
                self.r = set().union(*allr)
        elif op.startswith("s_"):
            self.kind = "salu"
            if op.startswith(("s_cmp", "s_waitcnt", "s_barrier", "s_branch", "s_cbranch", "s_endpgm", "s_setprio", "s_sleep")):
                self.r = set().union(*[regs(o) for o in ops]) if ops else set()
            else:
                self.w = regs(ops[0]); self.r = set().union(*[regs(o) for o in ops[1:]]) if len(ops) > 1 else set()
                if "saveexec" in op: self.w |= {("exec", 0)}

def need(p, c):
    n = 0
    vw = {x for x in p.w if x[0] in "va"}
    sw = {x for x in p.w if x[0] in ("s", "vcc")}
    if p.kind == "valu":
        if c.kind == "mfma" and vw & c.r: n = max(n, 2)
        if c.kind == "valu" and p.op.startswith(TRANS) and not c.op.startswith(TRANS) and vw & c.r: n = max(n, 1)
        if c.op.startswith(("v_readfirstlane", "v_readlane")) and vw & c.r: n = max(n, 1)
        if c.op.startswith("v_permlane") and vw & c.r: n = max(n, 2)
        if c.kind == "valu" and c.dpp and vw & c.r: n = max(n, 2)
        if c.kind == "vmem" and sw & c.r: n = max(n, 5)
        if c.kind == "valu" and sw & c.r: n = max(n, 4 if c.op.startswith(("v_readlane", "v_writelane")) else 2)
        if c.op.startswith("s_cbranch_vcc") and ("vcc", 0) in p.w: n = max(n, 5)
        if ("exec", 0) in p.w and (c.kind == "mfma" or c.op.startswith(("v_readlane", "v_readfirstlane", "v_permlane"))): n = max(n, 4)
        if ("exec", 0) in p.w and c.dpp: n = max(n, 5)
        if ("sdwa" in p.op or "op_sel" in p.text) and c.kind in ("valu", "mfma") and vw & c.r and not p.op.startswith("v_pk_"): n = max(n, 1)
    if p.kind == "mfma":
        big = {4: 8, 8: 12}[p.passes]
        if c.kind == "mfma":
            if p.w & c.ab: n = max(n, big)
            if p.w & c.srcc and not (p.w == c.srcc and p.passes == c.passes): n = max(n, {4: 6, 8: 10}[p.passes])
            if p.w & c.w and not (p.w & c.srcc) : n = max(n, 0)
        elif c.kind in ("valu", "vmem", "ds"):
            if p.w & (c.r | c.w): n = max(n, big)
        if c.kind == "valu" and p.srcc & c.w: n = max(n, {4: 3, 8: 7}[p.passes])
    if p.kind == "vmem" and getattr(p, "wide", None):
        if c.kind == "valu" and p.wide & c.w: n = max(n, 2)
        elif p.wide & c.w: n = max(n, 1)
    if p.kind == "salu" and ("m0", 0) in p.w and getattr(c, "lds", False): n = max(n, 1)
    return n

def check(text, window=24):
    lines = [l.strip() for l in text.split("\n")]
    ins = []; labels = {}
    for l in lines:
        if not l or l.startswith((";", ".")): continue
        if l.endswith(":"):
            labels[l[:-1]] = len(ins); continue
        ins.append(Ins(l))
    def succ(i):
        x = ins[i]
        if x.op == "s_endpgm": return []
        if x.op == "s_branch": return [labels[x.ops[0]]]
        if x.op.startswith("s_cbranch"): return [labels[x.ops[0]], i + 1]
        return [i + 1]
    errs = []
    for i, p in enumerate(ins):
        if p.kind not in ("valu", "mfma", "vmem", "salu"): continue
        stack = [(j, 0) for j in succ(i)]; seen = set()
        while stack:
            j, d = stack.pop()
            if j >= len(ins) or d > window or (j, d) in seen: continue
            seen.add((j, d))
            c = ins[j]
            n = need(p, c)
            if n > d: errs.append(f"need {n} have {d}: [{i}] {p.text}  ->  [{j}] {c.text}")
            for k in succ(j): stack.append((k, d + c.states))
    return sorted(set(errs))
```

```python
import sys, struct
from asmlib import Asm, vr, sr, check

NAME = "gated_mix__mha_block__ssm_conv_h3__prompt"
QW, KW, VW, UW, OW, YW, GW = 0x000000, 0x200000, 0x400000, 0x600000, 0xA00000, 0xC00000, 0xE00000
WS_BYTES = 0xE02000
M32 = "v_mfma_f32_32x32x16_bf16"
M16 = "v_mfma_f32_16x16x32_bf16"
SM = "v_smfmac_f32_32x32x32_bf16"
LOG2E = 1.4426950408889634

def f32(x):
    return "0x%08x" % struct.unpack("<I", struct.pack("<f", x))[0]

def srd(a, d, b, nbytes):
    a(f"s_mov_b32 s{d}, s{b}\ns_mov_b32 s{d+1}, s{b+1}\ns_mov_b32 s{d+2}, {hex(nbytes)}\ns_mov_b32 s{d+3}, 0x20000")

def descriptor(name, nv, ns=96):
    ao = (nv + 3) // 4 * 4
    return f""".amdhsa_kernel {name}
  .amdhsa_next_free_vgpr {nv}
  .amdhsa_next_free_sgpr {ns}
  .amdhsa_accum_offset {ao}
  .amdhsa_group_segment_fixed_size 0
  .amdhsa_kernarg_size 104
  .amdhsa_user_sgpr_count 2
  .amdhsa_user_sgpr_kernarg_segment_ptr 1
  .amdhsa_system_sgpr_workgroup_id_x 1
  .amdhsa_float_denorm_mode_32 3
.end_amdhsa_kernel
"""

K1_SLOT = 28672
K1_LDS = 5 * K1_SLOT

def k1():
    a = Asm()
    a.label("qkv_kernel")
    a("""
    s_cmp_ge_u32 s2, 256
    s_cbranch_scc1 K1_end
    s_load_dwordx4 s[4:7], s[0:1], 0
    s_load_dwordx4 s[8:11], s[0:1], 32
    s_load_dwordx2 s[12:13], s[0:1], 48
    s_load_dwordx2 s[14:15], s[0:1], 72
    s_load_dwordx2 s[16:17], s[0:1], 96
    v_lshrrev_b32 v1, 6, v0
    v_and_b32 v0, 63, v0
    s_and_b32 s19, s2, 7
    v_readfirstlane_b32 s18, v1
    s_lshr_b32 s20, s2, 3
    s_lshr_b32 s21, s19, 1
    s_lshl_b32 s21, s21, 2
    s_lshr_b32 s22, s20, 3
    s_add_u32 s21, s21, s22
    s_and_b32 s22, s19, 1
    s_lshl_b32 s22, s22, 3
    s_and_b32 s23, s20, 7
    s_add_u32 s22, s22, s23
    s_cmp_ge_u32 s18, 4
    s_cbranch_scc1 K1_helper
    """)
    XA, WA = 2, 14
    ACC, FR = 20, 68
    a(f"""
    v_and_b32 v17, 31, v0
    v_lshrrev_b32 v18, 5, v0
    v_bfe_u32 v19, v0, 1, 3
    v_xor_b32 v19, v19, v18
    s_lshl_b32 s23, s18, 12
    v_lshlrev_b32 v17, 7, v17
    v_lshl_add_u32 v17, v19, 4, v17
    v_add_u32 v{XA}, s23, v17
    """)
    for ks in range(1, 4):
        a(f"v_xor_b32 v{XA+ks}, {ks*32}, v{XA}")
    for st in (1, 2):
        for ks in range(4):
            a(f"v_add_u32 v{XA+4*st+ks}, {st*2*K1_SLOT}, v{XA+ks}")
    a(f"""
    v_bfe_u32 v17, v0, 2, 2
    v_lshl_add_u32 v17, v18, 3, v17
    v_lshlrev_b32 v17, 6, v17
    v_bfe_u32 v19, v0, 4, 1
    v_lshl_add_u32 v17, v19, 5, v17
    v_and_b32 v19, 3, v0
    v_lshl_add_u32 v17, v19, 3, v17
    v_add_u32 v{WA}, 16384, v17
    v_add_u32 v{WA+1}, {16384+2*K1_SLOT}, v17
    v_add_u32 v{WA+2}, {16384+4*K1_SLOT}, v17
    """)
    def reads(g):
        st, ks = g >> 2, g & 3
        slot = st % 5
        bs, off = slot // 2, (slot % 2) * K1_SLOT
        f = FR + 16 * (g % 3)
        r = [f"ds_read_b128 {vr(f,4)}, v{XA+4*bs+ks} offset:{off}"]
        for ty in range(3):
            for j in range(2):
                r.append(f"ds_read_b64_tr_b16 {vr(f+4+4*ty+2*j,2)}, v{WA+bs} offset:{off+ks*3072+ty*1024+j*256}")
        return r
    def mfmas(g):
        f = FR + 16 * (g % 3)
        c = lambda t: "0" if g == 0 else vr(ACC+16*t, 16)
        return [f"{M32} {vr(ACC,16)}, {vr(f+4,4)}, {vr(f,4)}, {c(0)}",
                f"{M32} {vr(ACC+16,16)}, {vr(f+8,4)}, {vr(f,4)}, {c(1)}",
                f"{M32} {vr(ACC+32,16)}, {vr(f,4)}, {vr(f+12,4)}, {c(2)}"]
    a("s_waitcnt lgkmcnt(0)")
    srd(a, 48, 16, WS_BYTES)
    a(f"""
    s_lshl_b32 s24, s22, 17
    s_lshl_b32 s25, s21, 2
    s_add_u32 s25, s25, s18
    s_lshl_b32 s25, s25, 10
    s_add_u32 s24, s24, s25
    s_add_u32 s25, s24, 0x10000
    s_add_u32 s26, s24, {KW}
    s_add_u32 s27, s26, 0x10000
    s_add_u32 s28, s24, {VW}
    s_mov_b32 s29, {f32(0.25*LOG2E)}
    s_barrier
    """)
    for r in reads(0) + reads(1): a(r)
    for g in range(32):
        nxt = reads(g + 2) if g + 2 < 32 else []
        if nxt and (g + 2) % 4 == 0:
            a("s_waitcnt lgkmcnt(0)\ns_barrier")
        else:
            a(f"s_waitcnt lgkmcnt({7 if g < 31 else 0})")
        m = mfmas(g)
        a(m[0])
        for r in nxt[0:2]: a(r)
        a(m[1])
        for r in nxt[2:5]: a(r)
        a(m[2])
        for r in nxt[5:7]: a(r)
    T = FR
    a(f"""
    v_lshlrev_b32 v2, 4, v0
    v_and_b32 v3, 0x33, v0
    v_bfe_u32 v4, v0, 2, 1
    v_lshl_or_b32 v3, v4, 3, v3
    v_bfe_u32 v4, v0, 3, 1
    v_lshl_or_b32 v3, v4, 2, v3
    v_lshlrev_b32 v3, 4, v3
    v_and_b32 v4, 15, v0
    v_lshlrev_b32 v4, 4, v4
    v_lshl_add_u32 v4, v18, 8, v4
    v_bfe_u32 v5, v0, 4, 1
    v_lshl_add_u32 v4, v5, 16, v4
    """)
    for i in range(16): a(f"v_mul_f32 v{ACC+i}, s29, v{ACC+i}")
    for t in range(3):
        for i in range(8):
            a(f"v_cvt_pk_bf16_f32 v{T+8*t+i}, v{ACC+16*t+2*i}, v{ACC+16*t+2*i+1}")
        if t == 0:
            a(f"buffer_store_dwordx4 {vr(T,4)}, v2, s[48:51], s24 offen")
            a(f"buffer_store_dwordx4 {vr(T+4,4)}, v2, s[48:51], s25 offen")
        elif t == 1:
            a(f"buffer_store_dwordx4 {vr(T+8,4)}, v3, s[48:51], s26 offen")
            a(f"buffer_store_dwordx4 {vr(T+12,4)}, v3, s[48:51], s27 offen")
        else:
            a(f"buffer_store_dwordx4 {vr(T+16,4)}, v4, s[48:51], s28 offen")
            a(f"buffer_store_dwordx4 {vr(T+20,4)}, v4, s[48:51], s28 offen offset:512")
    a("s_endpgm")
    a.label("K1_helper")
    XV, WV = 2, 6
    a(f"""
    s_sub_u32 s18, s18, 4
    s_lshl_b32 s23, s21, 7
    s_lshl_b32 s24, s18, 5
    s_add_u32 s23, s23, s24
    v_lshrrev_b32 v10, 3, v0
    v_add_u32 v10, s23, v10
    v_lshlrev_b32 v10, 10, v10
    v_and_b32 v11, 7, v0
    v_lshrrev_b32 v12, 4, v0
    v_xor_b32 v13, v11, v12
    v_lshl_add_u32 v{XV}, v13, 4, v10
    v_xor_b32 v13, 4, v13
    v_lshl_add_u32 v{XV+1}, v13, 4, v10
    v_add_u32 v{XV+1}, 7168, v{XV+1}
    v_add_u32 v{XV+2}, {2*7168}, v{XV}
    v_add_u32 v{XV+3}, {2*7168}, v{XV+1}
    s_lshl_b32 s24, s18, 4
    v_lshrrev_b32 v10, 2, v0
    v_add_u32 v10, s24, v10
    v_mul_u32_u24 v10, 3072, v10
    v_and_b32 v11, 3, v0
    v_lshl_add_u32 v10, v11, 4, v10
    s_lshl_b32 s24, s22, 6
    v_add_u32 v{WV}, s24, v10
    s_lshl_b32 s52, s18, 12
    s_mul_i32 s53, s18, 3072
    s_add_u32 s53, s53, 16384
    s_waitcnt lgkmcnt(0)
    """)
    srd(a, 24, 4, 0x200000)
    srd(a, 28, 6, 0x180000)
    def dma(st):
        base = (st % 5) * K1_SLOT
        a(f"s_add_u32 m0, s52, {base}\ns_mov_b32 s54, {st*128}")
        for j in range(4):
            a(f"buffer_load_dwordx4 v{XV+j}, s[24:27], s54 offen offset:{j*1024} lds")
        a(f"s_add_u32 m0, s53, {base}\ns_mov_b32 s54, {st*196608}")
        for j in range(3):
            a(f"buffer_load_dwordx4 v{WV}, s[28:31], s54 offen offset:{j*1024} lds")
    dma(0); dma(1)
    srd(a, 32, 8, 0x200000)
    srd(a, 36, 10, 0x200000)
    srd(a, 40, 12, 4096)
    srd(a, 44, 14, 1024)
    srd(a, 48, 16, WS_BYTES)
    KR, VR, SK, GX, GG = 16, 28, 40, 44, 52
    a(f"""
    s_lshl_b32 s55, s2, 13
    s_lshl_b32 s56, s18, 8
    s_add_u32 s55, s55, s56
    v_lshl_add_u32 v8, v0, 2, s55
    v_add_u32 v7, -4096, v8
    v_add_u32 v9, 4096, v8
    v_add_u32 v10, -1024, v8
    s_lshl_b32 s56, s18, 10
    v_lshl_add_u32 v11, v0, 4, s56
    v_lshlrev_b32 v12, 4, v0
    s_lshl_b32 s57, s2, 13
    s_lshl_b32 s58, s18, 11
    s_add_u32 s57, s57, s58
    """)
    for i in range(12):
        a(f"buffer_load_dword v{KR+i}, v{7+i//4}, s[32:35], 0 offen offset:{(i%4)*1024}")
    a(f"buffer_load_dword v{VR}, v10, s[36:39], 0 offen")
    for i in range(8):
        a(f"buffer_load_dword v{VR+1+i}, v{8+i//4}, s[36:39], 0 offen offset:{(i%4)*1024}")
    a(f"""
    buffer_load_dwordx4 {vr(SK,4)}, v11, s[40:43], 0 offen
    buffer_load_dwordx4 {vr(GX,4)}, v12, s[24:27], s57 offen
    buffer_load_dwordx4 {vr(GX+4,4)}, v12, s[24:27], s57 offen offset:1024
    buffer_load_dwordx4 {vr(GG,4)}, v12, s[44:47], 0 offen
    """)
    dma(2); dma(3); dma(4)
    a("s_waitcnt vmcnt(53)\ns_barrier\ns_waitcnt vmcnt(46)\ns_barrier")
    dma(5)
    a("s_waitcnt vmcnt(28)")
    KF, VF, SF, U, PK = 56, 80, 98, 106, 16
    a("s_mov_b32 s59, 0xffff0000")
    for i in range(12):
        a(f"v_lshlrev_b32 v{KF+2*i}, 16, v{KR+i}\nv_and_b32 v{KF+2*i+1}, s59, v{KR+i}")
    for i in range(9):
        a(f"v_lshlrev_b32 v{VF+2*i}, 16, v{VR+i}\nv_and_b32 v{VF+2*i+1}, s59, v{VR+i}")
    for ch in range(2):
        for t in range(4):
            src = SK + 2*ch + t//2
            a(f"v_lshlrev_b32 v{SF+2*t+ch}, 16, v{src}" if t % 2 == 0 else f"v_and_b32 v{SF+2*t+ch}, s59, v{src}")
    a("s_waitcnt vmcnt(21)\ns_barrier")
    dma(6)
    for i in range(9):
        u = vr(U+2*i, 2)
        a(f"v_pk_mul_f32 {u}, {vr(KF+2*i,2)}, {vr(SF+6,2)}")
        for t in (2, 1, 0):
            a(f"v_pk_fma_f32 {u}, {vr(KF+2*(i+3-t),2)}, {vr(SF+2*t,2)}, {u}")
        a(f"v_pk_mul_f32 {u}, {u}, {vr(VF+2*i,2)}")
    a("s_waitcnt vmcnt(21)\ns_barrier")
    dma(7)
    uu = lambda t, ch: f"v{U+2*(t+1)+ch}"
    for ch in range(2):
        for rho in range(2):
            for i in range(4):
                a(f"v_cvt_pk_bf16_f32 v{PK+8*ch+4*rho+i}, {uu(6+rho-2*i,ch)}, {uu(5+rho-2*i,ch)}")
    a(f"""
    s_sub_u32 s55, 255, s2
    s_lshl_b32 s55, s55, 13
    s_add_u32 s55, s55, {UW}
    s_add_u32 s56, s55, 0x200000
    s_add_u32 s60, s55, 4096
    s_add_u32 s61, s56, 4096
    buffer_store_dwordx4 {vr(PK,4)}, v11, s[48:51], s55 offen
    buffer_store_dwordx4 {vr(PK+4,4)}, v11, s[48:51], s56 offen
    buffer_store_dwordx4 {vr(PK+8,4)}, v11, s[48:51], s60 offen
    buffer_store_dwordx4 {vr(PK+12,4)}, v11, s[48:51], s61 offen
    v_mov_b32 v56, 0
    v_mov_b32 v57, 0
    """)
    for i in range(4):
        a(f"v_dot2_f32_bf16 v56, v{GX+i}, v{GG+i}, v56\nv_dot2_f32_bf16 v57, v{GX+4+i}, v{GG+i}, v57")
    a("s_nop 2")
    for d in ("row_shr:1 row_mask:0xf bank_mask:0xf bound_ctrl:0", "row_shr:2 row_mask:0xf bank_mask:0xf bound_ctrl:0",
              "row_shr:4 row_mask:0xf bank_mask:0xf bound_ctrl:0", "row_shr:8 row_mask:0xf bank_mask:0xf bound_ctrl:0",
              "row_bcast:15 row_mask:0xa bank_mask:0xf", "row_bcast:31 row_mask:0xc bank_mask:0xf"):
        a(f"v_add_f32_dpp v56, v56, v56 {d}\nv_add_f32_dpp v57, v57, v57 {d}\ns_nop 0")
    a(f"""
    v_cvt_pk_bf16_f32 v58, v56, v57
    s_lshl_b32 s55, s2, 5
    s_lshl_b32 s56, s18, 3
    s_add_u32 s55, s55, s56
    s_add_u32 s55, s55, {GW}
    v_lshlrev_b32 v56, 16, v58
    v_and_b32 v57, s59, v58
    v_mul_f32 v56, {f32(-LOG2E)}, v56
    v_mul_f32 v57, {f32(-LOG2E)}, v57
    v_exp_f32 v56, v56
    v_exp_f32 v57, v57
    s_nop 0
    v_add_f32 v56, 1.0, v56
    v_add_f32 v57, 1.0, v57
    v_rcp_f32 v56, v56
    v_rcp_f32 v57, v57
    s_nop 0
    v_cvt_pk_bf16_f32 v58, v56, v57
    v_mov_b32 v59, 0
    v_lshlrev_b32 v56, 16, v58
    v_and_b32 v57, s59, v58
    s_mov_b32 exec_lo, 0
    s_mov_b32 exec_hi, 0x80000000
    buffer_store_dwordx2 v[56:57], v59, s[48:51], s55 offen
    s_mov_b64 exec, -1
    s_waitcnt vmcnt(26)
    s_barrier
    s_waitcnt vmcnt(19)
    s_barrier
    s_waitcnt vmcnt(12)
    s_barrier
    s_waitcnt vmcnt(5)
    s_barrier
    """)
    a.label("K1_end")
    a("s_endpgm")
    return a, 128

PSL = 2304
K2_U = 24 * PSL
USZ = 4576
K2_X = K2_U + 8 * USZ
K2_LDS = K2_X + 4 * 4096

def k2():
    a = Asm()
    Q, ACC, S, KS, VS = 16, 32, 96, 160, 176
    IDX, L16, VOF = 2, 3, 4
    a.label("attn_kernel")
    a(f"""
    s_cmp_ge_u32 s2, 256
    s_cbranch_scc1 K2_end
    s_load_dwordx2 s[4:5], s[0:1], 96
    s_load_dwordx4 s[12:15], s[0:1], 56
    v_lshrrev_b32 v1, 6, v0
    v_and_b32 v0, 63, v0
    s_and_b32 s19, s2, 7
    v_readfirstlane_b32 s18, v1
    s_lshr_b32 s20, s2, 3
    s_and_b32 s21, s20, 3
    s_lshl_b32 s22, s19, 2
    s_add_u32 s21, s21, s22
    s_lshr_b32 s22, s20, 2
    s_and_b32 s23, s18, 1
    s_lshr_b32 s24, s18, 1
    s_lshl_b32 s25, s22, 3
    s_lshl_b32 s26, s23, 2
    s_add_u32 s25, s25, s26
    s_lshl_b32 s26, s21, 16
    s_lshl_b32 s27, s25, 10
    s_add_u32 s27, s27, s26
    s_cmp_eq_u32 s24, 2
    s_cselect_b32 s28, 2048, 0
    s_xor_b32 s29, s28, 2048
    s_add_u32 s28, s28, s27
    s_add_u32 s29, s29, s27
    s_lshl_b32 s30, s24, 14
    s_add_u32 s30, s30, s26
    s_add_u32 s31, s30, {VW}
    s_add_u32 s30, s30, {KW}
    s_mov_b32 s32, 0xffff
    s_mov_b32 s33, 0xffff
    v_lshlrev_b32 v{L16}, 4, v0
    v_and_b32 v5, 15, v0
    v_lshrrev_b32 v6, 5, v0
    v_lshlrev_b32 v5, 4, v5
    v_lshl_add_u32 v{VOF}, v6, 8, v5
    v_mov_b32 v{IDX}, 0xdddd
    """)
    for i in range(32): a(f"v_mov_b32 v{VS+i}, 0x3f803f80")
    a("s_waitcnt lgkmcnt(0)")
    srd(a, 8, 4, WS_BYTES)
    def ldk(st, so, off): return f"buffer_load_dwordx4 {vr(KS+4*st,4)}, v{L16}, s[8:11], {so} offen offset:{off}"
    def ldv(st, so, off):
        return ["s_mov_b64 exec, s[32:33]",
                f"buffer_load_dwordx4 {vr(VS+8*st,4)}, v{VOF}, s[8:11], {so} offen offset:{off}",
                f"buffer_load_dwordx4 {vr(VS+8*st+4,4)}, v{VOF}, s[8:11], {so} offen offset:{off+512}",
                "s_mov_b64 exec, -1"]
    ldq = lambda j: f"buffer_load_dwordx4 {vr(Q+4*j,4)}, v{L16}, s[8:11], s{28+j//2} offen offset:{(j%2)*1024}"
    a(ldq(0)); a(ldk(0, "s30", 0)); a(ldq(1)); a(ldq(2)); a(ldq(3))
    for m in range(3):
        for x in ldv(m, "s31", m*1024): a(x)
        a(ldk(m+1, "s30", (m+1)*1024))
    a("""
    s_add_u32 s30, s30, 4096
    s_add_u32 s31, s31, 3072
    s_mov_b32 s34, 3
    s_cmp_lt_u32 s18, 4
    s_cbranch_scc0 K2_noprio
    s_setprio 1
    """)
    a.label("K2_noprio")
    for i in range(64): a(f"v_mov_b32 v{ACC+i}, 0")
    for i in range(16): a(f"v_mov_b32 v{S+48+i}, 0")
    qk = lambda j, st: f"{M32} {vr(S+16*j,16)}, {vr(KS+4*st,4)}, {vr(Q+4*j,4)}, 0"
    pv = lambda j, st, s: f"{SM} {vr(ACC+16*j,16)}, {vr(VS+8*st+4*s,4)}, {vr(S+16*j+8*s,8)}, v{IDX}"
    a("s_waitcnt vmcnt(12)"); a(qk(0, 0))
    a("s_waitcnt vmcnt(11)"); a(qk(1, 0))
    a("s_waitcnt vmcnt(9)\ns_nop 9")

    def body(last, extras):
        for m in range(4):
            for j in range(4):
                jp, mp = (j - 1) % 4, (m if j else (m - 1) % 4)
                ins = {}
                def put(p, x): ins.setdefault(p, []).extend(x if isinstance(x, list) else [x])
                if j == 1:
                    put(1, f"s_waitcnt vmcnt({[8,5,2,0][m] if last else 8})")
                put(1, pv(jp, mp, 0))
                put(6, pv(jp, mp, 1))
                if j == 0 and (not last or m == 0):
                    put(8, ldv((m + 3) % 4, "s31", m*1024))
                if not (last and m == 3 and j >= 2):
                    put(11, qk((j + 2) % 4, m if j < 2 else (m + 1) % 4))
                if j == 1 and not last:
                    put(13, ldk(m, "s30", m*1024))
                for p, x in extras.get((m, j), []): put(p, x)
                for e in range(16):
                    for x in ins.get(e, []): a(x)
                    a(f"v_exp_f32 v{S+16*j+e}, v{S+16*j+e}")
                for x in ins.get(16, []): a(x)
    a(".p2align 6")
    a.label("K2_loop")
    body(False, {(3, 2): [(14, ["s_add_u32 s30, s30, 4096", "s_add_u32 s31, s31, 4096", "s_sub_u32 s34, s34, 1"])],
                 (3, 3): [(14, "s_cmp_lg_u32 s34, 0")]})
    a("""
    s_cbranch_scc1 K2_loop
    s_cmp_lt_u32 s18, 4
    s_cbranch_scc0 K2_young
    """)
    body(True, {})
    a(f"s_nop 1\n{pv(3,3,0)}\n{pv(3,3,1)}")
    a(f"""
    s_mul_i32 s35, s18, {4*PSL}
    v_add_u32 v5, s35, v{L16}
    v_lshl_add_u32 v6, v0, 2, s35
    s_lshl_b32 s36, s19, 6
    s_lshl_b32 s37, s20, 1
    s_add_u32 s36, s36, s37
    s_lshr_b32 s37, s18, 1
    s_add_u32 s36, s36, s37
    s_and_b32 s38, s36, -2
    s_lshl_b32 s38, s38, 1
    s_load_dword s39, s[14:15], s38
    s_mul_i32 s40, s18, {2*USZ}
    s_add_u32 s40, s40, {K2_U}
    s_and_b32 s41, s36, 1
    s_lshl_b32 s41, s41, 12
    s_lshr_b32 s42, s36, 1
    s_lshl_b32 s42, s42, 4
    s_add_u32 s41, s41, s42
    s_add_u32 s41, s41, {UW}
    v_lshlrev_b32 v7, 13, v0
    """)
    for rho in range(2):
        for q in range(4):
            a(f"""
            s_add_u32 m0, s40, {rho*USZ+q*1024}
            s_add_u32 s42, s41, {rho*0x200000+q*524288}
            buffer_load_dwordx4 v7, s[8:11], s42 offen lds
            """)
    for j in range(4):
        a(f"""
        ds_write_b128 v5, {vr(ACC+16*j,4)} offset:{j*PSL}
        ds_write_b128 v5, {vr(ACC+16*j+4,4)} offset:{j*PSL+1024}
        ds_write_b32 v6, v{ACC+16*j+8} offset:{j*PSL+2048}
        """)
    CA, AB, BB, DF = 32, 64, 128, 192
    a(f"""
    s_lshl_b32 s42, s36, 12
    s_add_u32 s44, s12, s42
    s_addc_u32 s45, s13, 0
    s_mov_b32 s46, 4096
    s_mov_b32 s47, 0x20000
    s_and_b32 s43, s18, 1
    s_lshl_b32 s43, s43, 8
    v_and_b32 v8, 15, v0
    v_lshrrev_b32 v9, 4, v0
    v_lshlrev_b32 v10, 4, v9
    v_lshl_add_u32 v11, v8, 2, v10
    s_sub_u32 s42, s43, 60
    v_add_u32 v11, s42, v11
    v_add_u32 v12, 4, v11
    v_add_u32 v13, 8, v11
    v_add_u32 v14, 12, v11
    v_add_u32 v15, 512, v11
    s_waitcnt lgkmcnt(0)
    """)
    def lda(rr):
        b = AB + 32 * (rr % 2)
        o = []
        if rr == 0:
            for i in range(4): o.append(f"buffer_load_dword v{b+i}, v{11+i}, s[44:47], 0 offen")
        else:
            o.append(f"buffer_load_dwordx4 {vr(b,4)}, v12, s[44:47], 0 offen offset:{64*(rr-1)}")
        for aa in range(1, 8):
            o.append(f"buffer_load_dwordx4 {vr(b+4*aa,4)}, v15, s[44:47], 0 offen offset:{512*(aa-1)+64*rr}")
        return o
    def ldb(rr):
        b = BB + 32 * (rr % 2)
        return [f"ds_read_b128 {vr(b+4*bb,4)}, v16 offset:{64*rr+512*(7-bb)}" for bb in range(8)]
    for x in lda(0): a(x)
    a(f"""
    v_add_u32 v12, 64, v11
    v_and_b32 v17, 31, v0
    v_min_u32 v17, 29, v17
    v_lshlrev_b32 v17, 4, v17
    v_lshrrev_b32 v18, 5, v0
    v_mul_u32_u24 v18, {USZ}, v18
    v_add3_u32 v17, v17, v18, s40
    v_mov_b32 v20, 0
    v_mov_b32 v21, 0
    v_mov_b32 v22, 0
    v_mov_b32 v23, 0
    ds_write_b128 v17, v[20:23] offset:4096
    v_and_b32 v17, 1, v0
    v_mul_u32_u24 v17, {USZ}, v17
    v_bfe_u32 v18, v0, 1, 3
    v_lshlrev_b32 v18, 6, v18
    v_sub_u32 v17, v17, v18
    s_add_u32 s42, s40, 448
    s_add_u32 s42, s42, s43
    v_add3_u32 v16, v17, v10, s42
    v_lshl_add_u32 v18, v9, 2, v8
    s_waitcnt lgkmcnt(0)
    s_and_b32 s42, s36, 1
    s_lshl_b32 s42, s42, 4
    s_lshr_b32 s39, s39, s42
    s_and_b32 s39, s39, 0xffff
    v_mov_b32 v19, s39
    """)
    for i in range(4):
        a(f"v_cmp_eq_u32 vcc, {15-i}, v18\ns_nop 1\nv_cndmask_b32 v{DF+i}, 0, v19, vcc")
    for i in range(32): a(f"v_mov_b32 v{CA+i}, 0")
    for x in lda(1): a(x)
    a("s_waitcnt vmcnt(19)")
    for x in ldb(0): a(x)
    for rr in range(4):
        ab, bb_ = AB + 32 * (rr % 2), BB + 32 * (rr % 2)
        nb = ldb(rr + 1) if rr < 3 else []
        a(f"s_waitcnt vmcnt({8 if rr < 3 else 0}) lgkmcnt(0)")
        if rr == 0:
            a("s_cmp_lg_u32 s43, 0\ns_cbranch_scc1 K2_nodiag")
            for b in range(8): a(f"{M16} {vr(CA+4*b,4)}, {vr(DF,4)}, {vr(bb_+4*b,4)}, {vr(CA+4*b,4)}")
            a.label("K2_nodiag")
        cnt = 0
        na = lda(rr + 2) if rr < 2 else []
        for aa in range(8):
            for b in range(8 - aa):
                a(f"{M16} {vr(CA+4*(aa+b),4)}, {vr(ab+4*aa,4)}, {vr(bb_+4*b,4)}, {vr(CA+4*(aa+b),4)}")
                cnt += 1
                if cnt % 3 == 0 and nb: a(nb.pop(0))
            if na: a(na.pop(0))
    a(f"""
    s_lshl_b32 s42, s18, 12
    s_add_u32 s42, s42, {K2_X}
    v_add_u32 v5, s42, v{L16}
    s_xor_b32 s42, s42, 4096
    v_add_u32 v6, s42, v{L16}
    s_cmp_lg_u32 s43, 0
    s_cbranch_scc1 K2_odd
    s_nop 1
    """)
    for n in range(4): a(f"ds_write_b128 v5, {vr(CA+16+4*n,4)} offset:{n*1024}")
    a("s_branch K2_xch")
    a.label("K2_odd")
    a("s_nop 1")
    for n in range(4): a(f"ds_write_b128 v5, {vr(CA+4*n,4)} offset:{n*1024}")
    a("s_waitcnt lgkmcnt(0)")
    for i in range(16): a(f"v_mov_b32 v{CA+i}, v{CA+16+i}")
    a.label("K2_xch")
    a(f"""
    s_setprio 0
    s_waitcnt lgkmcnt(0)
    s_barrier
    """)
    for n in range(4): a(f"ds_read_b128 {vr(AB+4*n,4)}, v6 offset:{n*1024}")
    a(f"""
    v_bfe_u32 v10, v0, 1, 3
    v_lshlrev_b32 v10, 15, v10
    v_and_b32 v11, 1, v0
    v_lshl_add_u32 v10, v11, 14, v10
    v_lshrrev_b32 v11, 5, v0
    v_lshl_add_u32 v10, v11, 13, v10
    v_bfe_u32 v11, v0, 4, 1
    v_lshl_add_u32 v10, v11, 3, v10
    s_lshl_b32 s42, s43, 12
    s_lshl_b32 s41, s36, 4
    s_add_u32 s42, s42, s41
    s_add_u32 s42, s42, {YW}
    s_waitcnt lgkmcnt(0)
    """)
    for n in range(4):
        for i in range(4): a(f"v_add_f32 v{CA+4*n+i}, v{CA+4*n+i}, v{AB+4*n+i}")
        a(f"v_cvt_pk_bf16_f32 v{BB+2*n}, v{CA+4*n}, v{CA+4*n+1}\nv_cvt_pk_bf16_f32 v{BB+2*n+1}, v{CA+4*n+2}, v{CA+4*n+3}")
        a(f"buffer_store_dwordx2 {vr(BB+2*n,2)}, v10, s[8:11], s42 offen")
        if n < 3: a("s_add_u32 s42, s42, 0x40000")
    a("s_barrier\ns_endpgm")
    a.label("K2_young")
    a(f"""
    s_and_b32 s35, s24, 1
    s_lshl_b32 s35, s35, 1
    s_lshl_b32 s36, s23, 2
    s_add_u32 s36, s36, s35
    s_mul_i32 s36, s36, {PSL}
    v_add_u32 v5, s36, v{L16}
    v_lshl_add_u32 v6, v0, 2, s36
    s_sub_u32 s36, s18, 4
    s_lshl_b32 s36, s36, 1
    s_add_u32 s36, s36, 16
    s_xor_b32 s37, s36, 4
    s_mul_i32 s36, s36, {PSL}
    s_mul_i32 s37, s37, {PSL}
    v_add_u32 v7, s36, v{L16}
    v_lshl_add_u32 v8, v0, 2, s36
    v_add_u32 v9, s37, v{L16}
    v_lshl_add_u32 v10, v0, 2, s37
    s_add_u32 s38, s25, s35
    s_lshl_b32 s38, s38, 15
    s_lshl_b32 s39, s21, 10
    s_add_u32 s38, s38, s39
    s_add_u32 s38, s38, {OW}
    s_add_u32 s39, s38, 0x8000
    """)
    PT = 208
    def rdp(dst, a16, a4, off):
        return [f"ds_read_b128 {vr(dst,4)}, v{a16} offset:{off}", f"ds_read_b128 {vr(dst+4,4)}, v{a16} offset:{off+1024}",
                f"ds_read_b32 v{dst+8}, v{a4} offset:{off+2048}"]
    def wrp(j):
        return [f"ds_write_b128 v7, {vr(ACC+16*j,4)} offset:{j*PSL}", f"ds_write_b128 v7, {vr(ACC+16*j+4,4)} offset:{j*PSL+1024}",
                f"ds_write_b32 v8, v{ACC+16*j+8} offset:{j*PSL+2048}"]
    PA = [PT, PT+10, PT+20, PT+30]
    PB = [KS, KS+10]
    r0 = rdp(PA[0], 5, 6, 0); r1 = rdp(PA[1], 5, 6, 8*PSL); r2 = rdp(PA[2], 5, 6, PSL); r3 = rdp(PA[3], 5, 6, 9*PSL)
    w0, w1 = wrp(0), wrp(1)
    ex = {(3, 0): [(9, "s_barrier"), (12, r0[0]), (13, r0[1]), (14, r0[2])],
          (3, 1): [(3, r1[0]), (4, r1[1]), (8, r1[2]), (9, r2[0]), (13, r2[1]), (14, r2[2])],
          (3, 2): [(2, r3[0]), (3, w0[0]), (4, r3[1]), (8, w0[1]), (9, r3[2]), (10, w0[2])],
          (3, 3): [(3, w1[0]), (4, w1[1]), (5, w1[2]), (10, ["s_waitcnt lgkmcnt(0)", "s_barrier"] + rdp(PB[0], 9, 10, 0)),
                   (12, rdp(PB[1], 9, 10, PSL))]}
    body(True, ex)
    for i in range(9): a(f"v_add_f32 v{PA[0]+i}, v{PA[0]+i}, v{PA[1]+i}")
    a(f"{pv(3,3,0)}\n{pv(3,3,1)}")
    for i in range(9): a(f"v_add_f32 v{PA[2]+i}, v{PA[2]+i}, v{PA[3]+i}")
    a("s_waitcnt lgkmcnt(0)")
    for i in range(9): a(f"v_add_f32 v{PA[0]+i}, v{PA[0]+i}, v{PB[0]+i}")
    for i in range(9): a(f"v_add_f32 v{PA[2]+i}, v{PA[2]+i}, v{PB[1]+i}")
    for jj in range(2):
        for i in range(9): a(f"v_add_f32 v{ACC+32+16*jj+i}, v{ACC+32+16*jj+i}, v{PA[2*jj]+i}")
    for jj in range(2):
        o = ACC + 32 + 16*jj
        a(f"v_fma_f32 v{11+jj}, v{o}, 0, v{o+8}")
        for i in range(1, 8): a(f"v_fma_f32 v{11+jj}, v{o+i}, 0, v{11+jj}")
    a(f"""
    v_cmp_lt_f32 vcc, {f32(2.0**-60)}, v11
    s_mov_b64 s[40:41], vcc
    v_cmp_gt_f32 vcc, {f32(2.0**60)}, v11
    s_and_b64 s[40:41], s[40:41], vcc
    v_cmp_lt_f32 vcc, {f32(2.0**-60)}, v12
    s_and_b64 s[40:41], s[40:41], vcc
    v_cmp_gt_f32 vcc, {f32(2.0**60)}, v12
    s_and_b64 s[40:41], s[40:41], vcc
    s_cmp_eq_u64 s[40:41], exec
    s_cbranch_scc0 K2_slow
    """)
    a.label("K2_fin")
    a(f"v_rcp_f32 v11, v{ACC+40}\nv_rcp_f32 v12, v{ACC+56}\ns_nop 0")
    for jj in range(2):
        o = ACC + 32 + 16*jj
        for i in range(8): a(f"v_mul_f32 v{o+i}, v{o+i}, v{11+jj}")
        for i in range(4): a(f"v_cvt_pk_bf16_f32 v{PT+4*jj+i}, v{o+2*i}, v{o+2*i+1}")
        a(f"buffer_store_dwordx4 {vr(PT+4*jj,4)}, v{L16}, s[8:11], s{38+jj} offen")
    a("s_endpgm")
    a.label("K2_slow")
    a(f"""
    s_add_u32 s30, s26, {KW}
    s_add_u32 s31, s26, {VW}
    s_mov_b32 s34, 0
    v_mov_b32 v11, 0xff800000
    v_mov_b32 v12, 0xff800000
    """)
    a.label("K2_slow1")
    a(f"""
    s_add_u32 s42, s30, s34
    {ldk(0, "s42", 0)}
    s_waitcnt vmcnt(0)
    {M32} {vr(S,16)}, {vr(KS,4)}, {vr(Q+8,4)}, 0
    {M32} {vr(S+16,16)}, {vr(KS,4)}, {vr(Q+12,4)}, 0
    s_nop 11
    """)
    for jj in range(2):
        for i in range(8): a(f"v_max3_f32 v{11+jj}, v{S+16*jj+2*i}, v{S+16*jj+2*i+1}, v{11+jj}")
    a("""
    s_add_u32 s34, s34, 1024
    s_cmp_lt_u32 s34, 0x10000
    s_cbranch_scc1 K2_slow1
    v_mov_b32 v13, v11
    v_mov_b32 v14, v12
    s_nop 1
    v_permlane32_swap_b32 v11, v13
    v_permlane32_swap_b32 v12, v14
    v_max_f32 v11, v11, v13
    v_max_f32 v12, v12, v14
    s_mov_b32 s34, 0
    """)
    for jj in range(2):
        for i in range(16): a(f"v_sub_f32 v{S+32+16*jj+i}, 0, v{11+jj}\nv_mov_b32 v{ACC+32+16*jj+i}, 0")
    for i in range(8): a(f"v_mov_b32 v{VS+i}, 0x3f803f80")
    a.label("K2_slow2")
    a(f"s_add_u32 s42, s30, s34\ns_add_u32 s43, s31, s34\n{ldk(0, 's42', 0)}")
    for x in ldv(0, "s43", 0): a(x)
    a(f"""
    s_waitcnt vmcnt(0)
    {M32} {vr(S,16)}, {vr(KS,4)}, {vr(Q+8,4)}, {vr(S+32,16)}
    {M32} {vr(S+16,16)}, {vr(KS,4)}, {vr(Q+12,4)}, {vr(S+48,16)}
    s_nop 11
    """)
    for i in range(32): a(f"v_exp_f32 v{S+i}, v{S+i}")
    a("s_nop 1")
    for jj in range(2):
        for s in range(2):
            a(f"{SM} {vr(ACC+32+16*jj,16)}, {vr(VS+4*s,4)}, {vr(S+16*jj+8*s,8)}, v{IDX}")
    a("""
    s_add_u32 s34, s34, 1024
    s_cmp_lt_u32 s34, 0x10000
    s_cbranch_scc1 K2_slow2
    s_nop 11
    s_branch K2_fin
    """)
    a.label("K2_end")
    a("s_endpgm")
    return a, 248

K3_O, K3_XL = 65536, 131072
K3_LDS = K3_XL + 8192

def k3():
    a = Asm()
    a.label("out_kernel")
    a(f"""
    s_cmp_ge_u32 s2, 256
    s_cbranch_scc1 K3_end
    s_load_dwordx2 s[4:5], s[0:1], 0
    s_load_dwordx2 s[6:7], s[0:1], 16
    s_load_dwordx2 s[8:9], s[0:1], 80
    s_load_dwordx2 s[10:11], s[0:1], 96
    v_lshrrev_b32 v1, 6, v0
    v_and_b32 v0, 63, v0
    s_and_b32 s19, s2, 7
    v_readfirstlane_b32 s18, v1
    s_lshr_b32 s20, s2, 3
    s_lshl_b32 s21, s19, 2
    s_lshr_b32 s22, s20, 3
    s_add_u32 s21, s21, s22
    s_and_b32 s22, s20, 7
    s_lshr_b32 s23, s18, 1
    s_and_b32 s40, s18, 1
    """)
    WV, XV, L16 = 2, 6, 8
    a(f"""
    s_lshl_b32 s41, s23, 16
    s_lshl_b32 s42, s22, 7
    s_add_u32 s41, s41, s42
    s_lshl_b32 s43, s40, 6
    s_add_u32 s41, s41, s43
    v_lshrrev_b32 v10, 2, v0
    v_lshlrev_b32 v10, 10, v10
    v_and_b32 v11, 3, v0
    v_lshl_add_u32 v10, v11, 4, v10
    v_add_u32 v{WV}, s41, v10
    v_add_u32 v{WV+1}, 15360, v{WV}
    v_add_u32 v{WV+2}, {2*15360}, v{WV}
    v_add_u32 v{WV+3}, {3*15360}, v{WV}
    v_lshlrev_b32 v{L16}, 4, v0
    s_lshl_b32 s44, s40, 13
    s_lshl_b32 s45, s23, 12
    s_add_u32 s44, s44, s45
    s_lshl_b32 s45, s23, 15
    s_lshl_b32 s46, s40, 12
    s_add_u32 s45, s45, s46
    s_lshl_b32 s47, s21, 16
    s_add_u32 s47, s47, s45
    s_add_u32 s47, s47, {OW}
    s_add_u32 s45, s45, {K3_O}
    s_lshl_b32 s48, s21, 6
    s_lshl_b32 s49, s18, 4
    s_add_u32 s49, s49, s48
    v_lshrrev_b32 v10, 3, v0
    v_add_u32 v10, s49, v10
    v_lshlrev_b32 v10, 10, v10
    v_add_u32 v10, s42, v10
    v_and_b32 v11, 7, v0
    v_lshrrev_b32 v12, 4, v0
    v_xor_b32 v11, v11, v12
    v_lshl_add_u32 v{XV}, v11, 4, v10
    v_xor_b32 v11, 4, v11
    v_lshl_add_u32 v{XV+1}, v11, 4, v10
    v_add_u32 v{XV+1}, 7168, v{XV+1}
    s_waitcnt lgkmcnt(0)
    """)
    srd(a, 24, 6, 0x80000)
    srd(a, 28, 10, WS_BYTES)
    def chunk(ch):
        a(f"s_add_u32 m0, s44, {ch*16384}\ns_mov_b32 s50, {ch*131072}")
        for q in range(4): a(f"buffer_load_dwordx4 v{WV+q}, s[24:27], s50 offen offset:{q*1024} lds")
        a(f"s_add_u32 m0, s45, {ch*8192}\ns_add_u32 s50, s47, {ch*8192}")
        for q in range(4): a(f"buffer_load_dwordx4 v{L16}, s[28:31], s50 offen offset:{q*1024} lds")
    chunk(0)
    srd(a, 32, 4, 0x200000)
    YF, G, PM, ACC, YA, XR, FR = 16, 24, 28, 36, 52, 68, 76
    a(f"""
    s_lshl_b32 s50, s18, 11
    s_add_u32 m0, s50, {K3_XL}
    v_and_b32 v10, 31, v0
    buffer_load_dwordx4 v{XV}, s[32:35], 0 offen lds
    buffer_load_dwordx4 v{XV+1}, s[32:35], 0 offen offset:1024 lds
    v_lshrrev_b32 v11, 5, v0
    v_lshlrev_b32 v12, 4, v10
    v_lshl_add_u32 v12, v11, 13, v12
    s_lshl_b32 s56, s21, 1
    s_add_u32 s56, s56, s23
    s_lshl_b32 s51, s56, 15
    s_lshl_b32 s52, s22, 10
    s_add_u32 s51, s51, s52
    s_lshl_b32 s52, s40, 9
    s_add_u32 s51, s51, s52
    s_add_u32 s51, s51, {YW}
    s_add_u32 s52, s51, 16384
    s_lshl_b32 s53, s56, 7
    s_add_u32 s53, s53, {GW}
    v_lshlrev_b32 v13, 2, v10
    buffer_load_dwordx4 {vr(YF,4)}, v12, s[28:31], s51 offen
    buffer_load_dwordx4 {vr(YF+4,4)}, v12, s[28:31], s52 offen
    buffer_load_dword v{G}, v13, s[28:31], s53 offen
    """)
    chunk(1); chunk(2); chunk(3)
    srd(a, 36, 8, 0x200000)
    WA, OA, XA, OV = 2, 3, 4, 9
    a(f"""
    v_bfe_u32 v12, v0, 2, 2
    v_lshl_add_u32 v12, v11, 2, v12
    v_lshlrev_b32 v12, 6, v12
    v_bfe_u32 v13, v0, 4, 1
    v_lshl_add_u32 v12, v13, 5, v12
    v_and_b32 v13, 3, v0
    v_lshl_add_u32 v12, v13, 3, v12
    s_lshl_b32 s54, s40, 13
    v_add_u32 v{WA}, s54, v12
    s_lshl_b32 s54, s23, 15
    s_add_u32 s54, s54, {K3_O}
    v_add_u32 v{OA}, s54, v{L16}
    v_bfe_u32 v12, v0, 1, 3
    s_lshl_b32 s54, s40, 2
    v_xor_b32 v12, s54, v12
    v_lshlrev_b32 v12, 4, v12
    v_lshl_add_u32 v12, v10, 7, v12
    v_lshl_add_u32 v12, v11, 3, v12
    s_lshl_b32 s54, s23, 12
    s_add_u32 s54, s54, {K3_XL}
    v_add_u32 v{XA}, s54, v12
    v_xor_b32 v{XA+1}, 16, v{XA}
    v_xor_b32 v{XA+2}, 32, v{XA}
    v_xor_b32 v{XA+3}, 48, v{XA}
    s_lshl_b32 s54, s56, 15
    s_add_u32 s54, s54, s42
    s_add_u32 s54, s54, s43
    v_lshlrev_b32 v12, 10, v10
    v_lshl_add_u32 v{OV}, v11, 4, v12
    v_bfe_u32 v12, v0, 2, 2
    v_and_b32 v13, 1, v0
    v_lshl_or_b32 v12, v13, 2, v12
    v_bfe_u32 v13, v0, 4, 1
    v_xor_b32 v13, v13, v11
    v_lshl_or_b32 v12, v13, 3, v12
    v_bfe_u32 v13, v0, 1, 1
    v_lshlrev_b32 v13, 4, v13
    v_mov_b32 v14, 0x3f80
    v_lshlrev_b32 v13, v13, v14
    s_mov_b32 s55, 0xffff0000
    """)
    for i in range(8):
        a(f"v_cmp_eq_u32 vcc, {i}, v12\ns_nop 1\nv_cndmask_b32 v{PM+i}, 0, v13, vcc")
    NS = 4
    def reads(h):
        f = FR + 8 * (h % NS)
        ch, hh = h >> 3, h & 7
        return [f"ds_read_b64_tr_b16 {vr(f,2)}, v{WA} offset:{ch*16384+hh*1024}",
                f"ds_read_b64_tr_b16 {vr(f+2,2)}, v{WA} offset:{ch*16384+hh*1024+512}",
                f"ds_read_b128 {vr(f+4,4)}, v{OA} offset:{h*1024}"]
    a("s_waitcnt vmcnt(24)\ns_barrier")
    for g in range(4): a(f"ds_read_b64 {vr(XR+2*g,2)}, v{XA+g}")
    for h in range(3):
        for r in reads(h): a(r)
    a(f"{M32} {vr(YA,16)}, {vr(YF,4)}, {vr(PM,4)}, 0")
    a(f"{M32} {vr(YA,16)}, {vr(YF+4,4)}, {vr(PM+4,4)}, {vr(YA,16)}")
    a(f"v_sub_f32 v{G+1}, 1.0, v{G}")
    fill = []
    for i in range(8):
        fill.append([f"v_lshlrev_b32 v14, 16, v{XR+i}", f"v_and_b32 v15, s55, v{XR+i}",
                     f"v_mul_f32 v14, v14, v{G+1}", f"v_mul_f32 v15, v15, v{G+1}",
                     f"v_mul_f32 v{YA+2*i}, v{YA+2*i}, v14", f"v_mul_f32 v{YA+2*i+1}, v{YA+2*i+1}, v15"])
    for h in range(32):
        nh = h + 3
        if nh < 32 and nh % 8 == 0:
            a(f"s_waitcnt vmcnt({24-nh}) lgkmcnt(6)\ns_barrier")
        else:
            a(f"s_waitcnt lgkmcnt({min(6, 3*(31-h))})")
        f = FR + 8 * (h % NS)
        a(f"{M32} {vr(ACC,16)}, {vr(f,4)}, {vr(f+4,4)}, {'0' if h == 0 else vr(ACC,16)}")
        if nh < 32:
            for r in reads(nh): a(r)
        if 4 <= h < 12:
            for x in fill[h-4]: a(x)
    a("s_nop 11")
    for i in range(16): a(f"v_fma_f32 v{ACC+i}, v{ACC+i}, v{G}, v{YA+i}")
    for i in range(8): a(f"v_cvt_pk_bf16_f32 v{FR+i}, v{ACC+2*i}, v{ACC+2*i+1}")
    a(f"""
    v_permlane32_swap_b32 v{FR}, v{FR+2}
    v_permlane32_swap_b32 v{FR+1}, v{FR+3}
    v_permlane32_swap_b32 v{FR+4}, v{FR+6}
    v_permlane32_swap_b32 v{FR+5}, v{FR+7}
    buffer_store_dwordx4 {vr(FR,4)}, v{OV}, s[36:39], s54 offen
    buffer_store_dwordx4 {vr(FR+4,4)}, v{OV}, s[36:39], s54 offen offset:32
    """)
    a.label("K3_end")
    a("s_endpgm")
    return a, 112

def build():
    ref = open(f"cdna_kernels/{NAME}.s.ref").read().split("\n")
    head = [l for l in ref if l.startswith(";") and "@launch" not in l and "Override" not in l and "grid=ceil" not in l]
    ks = [("qkv_kernel", k1(), 512, K1_LDS), ("attn_kernel", k2(), 512, K2_LDS), ("out_kernel", k3(), 256, K3_LDS)]
    out = "\n".join(head) + "\n"
    for n, _, blk, lds in ks:
        out += f"; @launch kernel={n} grid=(256,1,1) block=({blk},1,1) lds={lds}\n"
    out += '.amdgcn_target "amdgcn-amd-amdhsa--gfx950"\n.text\n'
    bad = []
    for n, (a, nv), _, _ in ks:
        t = a.text()
        bad += check(t)
        out += f".globl {n}\n.p2align 8\n.type {n},@function\n" + t
    out += '.section .rodata,"a"\n'
    for n, (a, nv), _, _ in ks:
        out += ".p2align 6\n" + descriptor(n, nv)
    return out, bad

if __name__ == "__main__":
    out, bad = build()
    for b in bad: print("HAZARD", b)
    path = sys.argv[1] if len(sys.argv) > 1 else f"cdna_kernels/{NAME}.s"
    open(path, "w").write(out)
    print("wrote", path, len(out), "bytes;", len(bad), "hazards")
```

```python
import sys, struct
from asmlib import Asm, vr, sr, check

NAME = "gated_mix__mha_block__ssm_conv_h3__prompt"
QW, KW, VW, UW, OW, YW, GW = 0x000000, 0x200000, 0x400000, 0x600000, 0xA00000, 0xC00000, 0xE00000
WS_BYTES = 0xE02000
M32 = "v_mfma_f32_32x32x16_bf16"
M16 = "v_mfma_f32_16x16x32_bf16"
SM = "v_smfmac_f32_32x32x32_bf16"
LOG2E = 1.4426950408889634

def f32(x):
    return "0x%08x" % struct.unpack("<I", struct.pack("<f", x))[0]

def srd(a, d, b, nbytes):
    a(f"s_mov_b32 s{d}, s{b}\ns_mov_b32 s{d+1}, s{b+1}\ns_mov_b32 s{d+2}, {hex(nbytes)}\ns_mov_b32 s{d+3}, 0x20000")

import os
STAMP = int(os.environ.get("STAMP", "0"))
PROBE = os.environ.get("PROBE")
TW = 0xF00000
def stamp_init(a, kidx, nwaves, wave="s18"):
    if not STAMP: return
    a(f"""
    s_load_dwordx2 s[64:65], s[0:1], 96
    s_mul_i32 s68, s2, {nwaves}
    s_add_u32 s68, s68, {wave}
    s_lshl_b32 s68, s68, 8
    s_add_u32 s68, s68, {TW + kidx*0x100000}
    s_mov_b32 s66, 0x1400000
    s_mov_b32 s67, 0x20000
    s_waitcnt lgkmcnt(0)
    """)
_slot = {}
def stamp(a, i):
    if not STAMP or (STAMP == 2 and i not in (0, 7)): return
    a(f"""
    s_memtime s[92:93]
    s_memrealtime s[94:95]
    s_waitcnt lgkmcnt(0)
    s_mov_b32 s{70+2*i}, s92
    s_mov_b32 s{71+2*i}, s94
    """)
def stamp_flush(a, n, v=1):
    if not STAMP: return
    a(f"v_mov_b32 v{v+1}, 0")
    for i in range(2*n):
        a(f"v_mov_b32 v{v}, s{70+i}\nbuffer_store_dword v{v}, v{v+1}, s[64:67], s68 offen offset:{4*i}")

def descriptor(name, nv, ns=96):
    ao = (nv + 3) // 4 * 4
    return f""".amdhsa_kernel {name}
  .amdhsa_next_free_vgpr {nv}
  .amdhsa_next_free_sgpr {ns}
  .amdhsa_accum_offset {ao}
  .amdhsa_group_segment_fixed_size 0
  .amdhsa_kernarg_size 104
  .amdhsa_user_sgpr_count 2
  .amdhsa_user_sgpr_kernarg_segment_ptr 1
  .amdhsa_system_sgpr_workgroup_id_x 1
  .amdhsa_float_denorm_mode_32 3
.end_amdhsa_kernel
"""

K1_SLOT = 28672
K1_LDS = 5 * K1_SLOT

def k1():
    a = Asm()
    a.label("qkv_kernel")
    a("""
    s_cmp_ge_u32 s2, 256
    s_cbranch_scc1 K1_end
    s_load_dwordx4 s[4:7], s[0:1], 0
    s_load_dwordx4 s[8:11], s[0:1], 32
    s_load_dwordx2 s[12:13], s[0:1], 48
    s_load_dwordx2 s[14:15], s[0:1], 72
    s_load_dwordx2 s[16:17], s[0:1], 96
    v_lshrrev_b32 v1, 6, v0
    v_and_b32 v0, 63, v0
    s_and_b32 s19, s2, 7
    v_readfirstlane_b32 s18, v1
    s_lshr_b32 s20, s2, 3
    s_lshr_b32 s21, s19, 1
    s_lshl_b32 s21, s21, 2
    s_lshr_b32 s22, s20, 3
    s_add_u32 s21, s21, s22
    s_and_b32 s22, s19, 1
    s_lshl_b32 s22, s22, 3
    s_and_b32 s23, s20, 7
    s_add_u32 s22, s22, s23
    """)
    stamp_init(a, 0, 8); stamp(a, 0)
    a("s_cmp_ge_u32 s18, 4\ns_cbranch_scc1 K1_helper")
    XA, WA = 2, 14
    ACC, FR = 20, 68
    a(f"""
    v_and_b32 v17, 31, v0
    v_lshrrev_b32 v18, 5, v0
    v_bfe_u32 v19, v0, 1, 3
    v_xor_b32 v19, v19, v18
    s_lshl_b32 s23, s18, 12
    v_lshlrev_b32 v17, 7, v17
    v_lshl_add_u32 v17, v19, 4, v17
    v_add_u32 v{XA}, s23, v17
    """)
    for ks in range(1, 4):
        a(f"v_xor_b32 v{XA+ks}, {ks*32}, v{XA}")
    for st in (1, 2):
        for ks in range(4):
            a(f"v_add_u32 v{XA+4*st+ks}, {st*2*K1_SLOT}, v{XA+ks}")
    a(f"""
    v_bfe_u32 v17, v0, 2, 2
    v_lshl_add_u32 v17, v18, 3, v17
    v_lshlrev_b32 v17, 6, v17
    v_bfe_u32 v19, v0, 4, 1
    v_lshl_add_u32 v17, v19, 5, v17
    v_and_b32 v19, 3, v0
    v_lshl_add_u32 v17, v19, 3, v17
    v_add_u32 v{WA}, 16384, v17
    v_add_u32 v{WA+1}, {16384+2*K1_SLOT}, v17
    v_add_u32 v{WA+2}, {16384+4*K1_SLOT}, v17
    """)
    def reads(g):
        st, ks = g >> 2, g & 3
        slot = st % 5
        bs, off = slot // 2, (slot % 2) * K1_SLOT
        f = FR + 16 * (g % 3)
        r = [f"ds_read_b128 {vr(f,4)}, v{XA+4*bs+ks} offset:{off}"]
        for ty in range(3):
            for j in range(2):
                r.append(f"ds_read_b64_tr_b16 {vr(f+4+4*ty+2*j,2)}, v{WA+bs} offset:{off+ks*3072+ty*1024+j*256}")
        return r
    def mfmas(g):
        f = FR + 16 * (g % 3)
        c = lambda t: "0" if g == 0 else vr(ACC+16*t, 16)
        return [f"{M32} {vr(ACC,16)}, {vr(f+4,4)}, {vr(f,4)}, {c(0)}",
                f"{M32} {vr(ACC+16,16)}, {vr(f+8,4)}, {vr(f,4)}, {c(1)}",
                f"{M32} {vr(ACC+32,16)}, {vr(f,4)}, {vr(f+12,4)}, {c(2)}"]
    a("s_waitcnt lgkmcnt(0)")
    srd(a, 48, 16, WS_BYTES)
    a(f"""
    s_lshl_b32 s24, s22, 17
    s_lshl_b32 s25, s21, 2
    s_add_u32 s25, s25, s18
    s_lshl_b32 s25, s25, 10
    s_add_u32 s24, s24, s25
    s_add_u32 s25, s24, 0x10000
    s_add_u32 s26, s24, {KW}
    s_add_u32 s27, s26, 0x10000
    s_add_u32 s28, s24, {VW}
    s_mov_b32 s29, {f32(0.25*LOG2E)}
    s_barrier
    """)
    stamp(a, 1)
    for r in reads(0) + reads(1): a(r)
    for g in range(32):
        if g in (8, 16, 24): stamp(a, 1 + g // 8)
        nxt = reads(g + 2) if g + 2 < 32 else []
        if nxt and (g + 2) % 4 == 0:
            a("s_waitcnt lgkmcnt(0)\ns_barrier")
        else:
            a(f"s_waitcnt lgkmcnt({7 if g < 31 else 0})")
        m = mfmas(g)
        a(m[0])
        for r in nxt[0:2]: a(r)
        a(m[1])
        for r in nxt[2:5]: a(r)
        a(m[2])
        for r in nxt[5:7]: a(r)
    T = FR
    stamp(a, 5)
    a(f"""
    v_lshlrev_b32 v2, 4, v0
    v_and_b32 v3, 0x33, v0
    v_bfe_u32 v4, v0, 2, 1
    v_lshl_or_b32 v3, v4, 3, v3
    v_bfe_u32 v4, v0, 3, 1
    v_lshl_or_b32 v3, v4, 2, v3
    v_lshlrev_b32 v3, 4, v3
    v_and_b32 v4, 15, v0
    v_lshlrev_b32 v4, 4, v4
    v_lshl_add_u32 v4, v18, 8, v4
    v_bfe_u32 v5, v0, 4, 1
    v_lshl_add_u32 v4, v5, 16, v4
    """)
    for i in range(16): a(f"v_mul_f32 v{ACC+i}, s29, v{ACC+i}")
    for t in range(3):
        for i in range(8):
            a(f"v_cvt_pk_bf16_f32 v{T+8*t+i}, v{ACC+16*t+2*i}, v{ACC+16*t+2*i+1}")
        if t == 0:
            a(f"buffer_store_dwordx4 {vr(T,4)}, v2, s[48:51], s24 offen")
            a(f"buffer_store_dwordx4 {vr(T+4,4)}, v2, s[48:51], s25 offen")
        elif t == 1:
            a(f"buffer_store_dwordx4 {vr(T+8,4)}, v3, s[48:51], s26 offen")
            a(f"buffer_store_dwordx4 {vr(T+12,4)}, v3, s[48:51], s27 offen")
        else:
            a(f"buffer_store_dwordx4 {vr(T+16,4)}, v4, s[48:51], s28 offen")
            a(f"buffer_store_dwordx4 {vr(T+20,4)}, v4, s[48:51], s28 offen offset:512")
    stamp(a, 6)
    if STAMP: a("s_waitcnt vmcnt(0)")
    stamp(a, 7); stamp_flush(a, 8)
    a("s_endpgm")
    a.label("K1_helper")
    XV, WV = 2, 6
    a(f"""
    s_sub_u32 s18, s18, 4
    s_lshl_b32 s23, s21, 7
    s_lshl_b32 s24, s18, 5
    s_add_u32 s23, s23, s24
    v_lshrrev_b32 v10, 3, v0
    v_add_u32 v10, s23, v10
    v_lshlrev_b32 v10, 10, v10
    v_and_b32 v11, 7, v0
    v_lshrrev_b32 v12, 4, v0
    v_xor_b32 v13, v11, v12
    v_lshl_add_u32 v{XV}, v13, 4, v10
    v_xor_b32 v13, 4, v13
    v_lshl_add_u32 v{XV+1}, v13, 4, v10
    v_add_u32 v{XV+1}, 7168, v{XV+1}
    v_add_u32 v{XV+2}, {2*7168}, v{XV}
    v_add_u32 v{XV+3}, {2*7168}, v{XV+1}
    s_lshl_b32 s24, s18, 4
    v_lshrrev_b32 v10, 2, v0
    v_add_u32 v10, s24, v10
    v_mul_u32_u24 v10, 3072, v10
    v_and_b32 v11, 3, v0
    v_lshl_add_u32 v10, v11, 4, v10
    s_lshl_b32 s24, s22, 6
    v_add_u32 v{WV}, s24, v10
    s_lshl_b32 s52, s18, 12
    s_mul_i32 s53, s18, 3072
    s_add_u32 s53, s53, 16384
    s_waitcnt lgkmcnt(0)
    """)
    srd(a, 24, 4, 0x200000)
    srd(a, 28, 6, 0x180000)
    def dma(st):
        base = (st % 5) * K1_SLOT
        a(f"s_add_u32 m0, s52, {base}\ns_mov_b32 s54, {st*128}")
        for j in range(4):
            a(f"buffer_load_dwordx4 v{XV+j}, s[24:27], s54 offen offset:{j*1024} lds")
        a(f"s_add_u32 m0, s53, {base}\ns_mov_b32 s54, {st*196608}")
        for j in range(3):
            a(f"buffer_load_dwordx4 v{WV}, s[28:31], s54 offen offset:{j*1024} lds")
    dma(0); dma(1)
    srd(a, 32, 8, 0x200000)
    srd(a, 36, 10, 0x200000)
    srd(a, 40, 12, 4096)
    srd(a, 44, 14, 1024)
    srd(a, 48, 16, WS_BYTES)
    KR, VR, SK, GX, GG = 16, 28, 40, 44, 52
    a(f"""
    s_lshl_b32 s55, s2, 13
    s_lshl_b32 s56, s18, 8
    s_add_u32 s55, s55, s56
    v_lshl_add_u32 v8, v0, 2, s55
    v_add_u32 v7, -4096, v8
    v_add_u32 v9, 4096, v8
    v_add_u32 v10, -1024, v8
    s_lshl_b32 s56, s18, 10
    v_lshl_add_u32 v11, v0, 4, s56
    v_lshlrev_b32 v12, 4, v0
    s_lshl_b32 s57, s2, 13
    s_lshl_b32 s58, s18, 11
    s_add_u32 s57, s57, s58
    """)
    for i in range(12):
        a(f"buffer_load_dword v{KR+i}, v{7+i//4}, s[32:35], 0 offen offset:{(i%4)*1024}")
    a(f"buffer_load_dword v{VR}, v10, s[36:39], 0 offen")
    for i in range(8):
        a(f"buffer_load_dword v{VR+1+i}, v{8+i//4}, s[36:39], 0 offen offset:{(i%4)*1024}")
    a(f"""
    buffer_load_dwordx4 {vr(SK,4)}, v11, s[40:43], 0 offen
    buffer_load_dwordx4 {vr(GX,4)}, v12, s[24:27], s57 offen
    buffer_load_dwordx4 {vr(GX+4,4)}, v12, s[24:27], s57 offen offset:1024
    buffer_load_dwordx4 {vr(GG,4)}, v12, s[44:47], 0 offen
    """)
    dma(2); dma(3); dma(4)
    a("s_waitcnt vmcnt(53)\ns_barrier\ns_waitcnt vmcnt(46)\ns_barrier")
    dma(5)
    a("s_waitcnt vmcnt(28)")
    KF, VF, SF, U, PK = 56, 80, 98, 106, 16
    a("s_mov_b32 s59, 0xffff0000")
    for i in range(12):
        a(f"v_lshlrev_b32 v{KF+2*i}, 16, v{KR+i}\nv_and_b32 v{KF+2*i+1}, s59, v{KR+i}")
    for i in range(9):
        a(f"v_lshlrev_b32 v{VF+2*i}, 16, v{VR+i}\nv_and_b32 v{VF+2*i+1}, s59, v{VR+i}")
    for ch in range(2):
        for t in range(4):
            src = SK + 2*ch + t//2
            a(f"v_lshlrev_b32 v{SF+2*t+ch}, 16, v{src}" if t % 2 == 0 else f"v_and_b32 v{SF+2*t+ch}, s59, v{src}")
    a("s_waitcnt vmcnt(21)\ns_barrier")
    dma(6)
    for i in range(9):
        u = vr(U+2*i, 2)
        a(f"v_pk_mul_f32 {u}, {vr(KF+2*i,2)}, {vr(SF+6,2)}")
        for t in (2, 1, 0):
            a(f"v_pk_fma_f32 {u}, {vr(KF+2*(i+3-t),2)}, {vr(SF+2*t,2)}, {u}")
        a(f"v_pk_mul_f32 {u}, {u}, {vr(VF+2*i,2)}")
    a("s_waitcnt vmcnt(21)\ns_barrier")
    dma(7)
    uu = lambda t, ch: f"v{U+2*(t+1)+ch}"
    for ch in range(2):
        for rho in range(2):
            for i in range(4):
                a(f"v_cvt_pk_bf16_f32 v{PK+8*ch+4*rho+i}, {uu(6+rho-2*i,ch)}, {uu(5+rho-2*i,ch)}")
    a(f"""
    s_sub_u32 s55, 255, s2
    s_lshl_b32 s55, s55, 13
    s_add_u32 s55, s55, {UW}
    s_add_u32 s56, s55, 0x200000
    s_add_u32 s60, s55, 4096
    s_add_u32 s61, s56, 4096
    buffer_store_dwordx4 {vr(PK,4)}, v11, s[48:51], s55 offen
    buffer_store_dwordx4 {vr(PK+4,4)}, v11, s[48:51], s56 offen
    buffer_store_dwordx4 {vr(PK+8,4)}, v11, s[48:51], s60 offen
    buffer_store_dwordx4 {vr(PK+12,4)}, v11, s[48:51], s61 offen
    v_mov_b32 v56, 0
    v_mov_b32 v57, 0
    """)
    for i in range(4):
        a(f"v_dot2_f32_bf16 v56, v{GX+i}, v{GG+i}, v56\nv_dot2_f32_bf16 v57, v{GX+4+i}, v{GG+i}, v57")
    a("s_nop 2")
    for d in ("row_shr:1 row_mask:0xf bank_mask:0xf bound_ctrl:0", "row_shr:2 row_mask:0xf bank_mask:0xf bound_ctrl:0",
              "row_shr:4 row_mask:0xf bank_mask:0xf bound_ctrl:0", "row_shr:8 row_mask:0xf bank_mask:0xf bound_ctrl:0",
              "row_bcast:15 row_mask:0xa bank_mask:0xf", "row_bcast:31 row_mask:0xc bank_mask:0xf"):
        a(f"v_add_f32_dpp v56, v56, v56 {d}\nv_add_f32_dpp v57, v57, v57 {d}\ns_nop 0")
    a(f"""
    v_cvt_pk_bf16_f32 v58, v56, v57
    s_lshl_b32 s55, s2, 5
    s_lshl_b32 s56, s18, 3
    s_add_u32 s55, s55, s56
    s_add_u32 s55, s55, {GW}
    v_lshlrev_b32 v56, 16, v58
    v_and_b32 v57, s59, v58
    v_mul_f32 v56, {f32(-LOG2E)}, v56
    v_mul_f32 v57, {f32(-LOG2E)}, v57
    v_exp_f32 v56, v56
    v_exp_f32 v57, v57
    s_nop 0
    v_add_f32 v56, 1.0, v56
    v_add_f32 v57, 1.0, v57
    v_rcp_f32 v56, v56
    v_rcp_f32 v57, v57
    s_nop 0
    v_cvt_pk_bf16_f32 v58, v56, v57
    v_mov_b32 v59, 0
    v_lshlrev_b32 v56, 16, v58
    v_and_b32 v57, s59, v58
    s_mov_b32 exec_lo, 0
    s_mov_b32 exec_hi, 0x80000000
    buffer_store_dwordx2 v[56:57], v59, s[48:51], s55 offen
    s_mov_b64 exec, -1
    s_waitcnt vmcnt(26)
    s_barrier
    s_waitcnt vmcnt(19)
    s_barrier
    s_waitcnt vmcnt(12)
    s_barrier
    s_waitcnt vmcnt(5)
    s_barrier
    """)
    a.label("K1_end")
    a("s_endpgm")
    return a, 128

PSL = 2304
K2_U = 24 * PSL
USZ = 4576
K2_X = K2_U + 8 * USZ
K2_LDS = K2_X + 4 * 4096

def k2():
    a = Asm()
    Q, ACC, S, KS, VS = 16, 32, 96, 160, 176
    IDX, L16, VOF = 2, 3, 4
    a.label("attn_kernel")
    a(f"""
    s_cmp_ge_u32 s2, 256
    s_cbranch_scc1 K2_end
    s_load_dwordx2 s[4:5], s[0:1], 96
    s_load_dwordx4 s[12:15], s[0:1], 56
    v_lshrrev_b32 v1, 6, v0
    v_and_b32 v0, 63, v0
    s_and_b32 s19, s2, 7
    v_readfirstlane_b32 s18, v1
    s_lshr_b32 s20, s2, 3
    s_and_b32 s21, s20, 3
    s_lshl_b32 s22, s19, 2
    s_add_u32 s21, s21, s22
    s_lshr_b32 s22, s20, 2
    s_and_b32 s23, s18, 1
    s_lshr_b32 s24, s18, 1
    s_lshl_b32 s25, s22, 3
    s_lshl_b32 s26, s23, 2
    s_add_u32 s25, s25, s26
    s_lshl_b32 s26, s21, 16
    s_lshl_b32 s27, s25, 10
    s_add_u32 s27, s27, s26
    s_cmp_eq_u32 s24, 2
    s_cselect_b32 s28, 2048, 0
    s_xor_b32 s29, s28, 2048
    s_add_u32 s28, s28, s27
    s_add_u32 s29, s29, s27
    s_lshl_b32 s30, s24, 14
    s_add_u32 s30, s30, s26
    s_add_u32 s31, s30, {VW}
    s_add_u32 s30, s30, {KW}
    s_mov_b32 s32, 0xffff
    s_mov_b32 s33, 0xffff
    v_lshlrev_b32 v{L16}, 4, v0
    v_and_b32 v5, 15, v0
    v_lshrrev_b32 v6, 5, v0
    v_lshlrev_b32 v5, 4, v5
    v_lshl_add_u32 v{VOF}, v6, 8, v5
    v_mov_b32 v{IDX}, 0xdddd
    """)
    stamp_init(a, 1, 8); stamp(a, 0)
    for i in range(32): a(f"v_mov_b32 v{VS+i}, 0x3f803f80")
    a("s_waitcnt lgkmcnt(0)")
    srd(a, 8, 4, WS_BYTES)
    def ldk(st, so, off): return f"buffer_load_dwordx4 {vr(KS+4*st,4)}, v{L16}, s[8:11], {so} offen offset:{off}"
    def ldv(st, so, off):
        return ["s_mov_b64 exec, s[32:33]",
                f"buffer_load_dwordx4 {vr(VS+8*st,4)}, v{VOF}, s[8:11], {so} offen offset:{off}",
                f"buffer_load_dwordx4 {vr(VS+8*st+4,4)}, v{VOF}, s[8:11], {so} offen offset:{off+512}",
                "s_mov_b64 exec, -1"]
    ldq = lambda j: f"buffer_load_dwordx4 {vr(Q+4*j,4)}, v{L16}, s[8:11], s{28+j//2} offen offset:{(j%2)*1024}"
    a(ldq(0)); a(ldk(0, "s30", 0)); a(ldq(1)); a(ldq(2)); a(ldq(3))
    for m in range(3):
        for x in ldv(m, "s31", m*1024): a(x)
        a(ldk(m+1, "s30", (m+1)*1024))
    a("""
    s_add_u32 s30, s30, 4096
    s_add_u32 s31, s31, 3072
    s_mov_b32 s34, 3
    s_cmp_lt_u32 s18, 4
    s_cbranch_scc0 K2_noprio
    s_setprio 1
    """)
    a.label("K2_noprio")
    for i in range(64): a(f"v_mov_b32 v{ACC+i}, 0")
    for i in range(16): a(f"v_mov_b32 v{S+48+i}, 0")
    qk = lambda j, st: f"{M32} {vr(S+16*j,16)}, {vr(KS+4*st,4)}, {vr(Q+4*j,4)}, 0"
    pv = lambda j, st, s: f"{SM} {vr(ACC+16*j,16)}, {vr(VS+8*st+4*s,4)}, {vr(S+16*j+8*s,8)}, v{IDX}"
    a("s_waitcnt vmcnt(12)"); a(qk(0, 0))
    a("s_waitcnt vmcnt(11)"); a(qk(1, 0))
    a("s_waitcnt vmcnt(9)\ns_nop 9")

    def body(last, extras):
        for m in range(4):
            for j in range(4):
                jp, mp = (j - 1) % 4, (m if j else (m - 1) % 4)
                ins = {}
                def put(p, x): ins.setdefault(p, []).extend(x if isinstance(x, list) else [x])
                if j == 1:
                    put(1, f"s_waitcnt vmcnt({[8,5,2,0][m] if last else 8})")
                put(1, pv(jp, mp, 0))
                put(6, pv(jp, mp, 1))
                if j == 0 and (not last or m == 0):
                    put(8, ldv((m + 3) % 4, "s31", m*1024))
                if not (last and m == 3 and j >= 2):
                    put(11, qk((j + 2) % 4, m if j < 2 else (m + 1) % 4))
                if j == 1 and not last:
                    put(13, ldk(m, "s30", m*1024))
                for p, x in extras.get((m, j), []): put(p, x)
                for e in range(16):
                    for x in ins.get(e, []): a(x)
                    a(f"v_exp_f32 v{S+16*j+e}, v{S+16*j+e}")
                for x in ins.get(16, []): a(x)
    stamp(a, 1)
    a(".p2align 6")
    a.label("K2_loop")
    body(False, {(3, 2): [(14, ["s_add_u32 s30, s30, 4096", "s_add_u32 s31, s31, 4096", "s_sub_u32 s34, s34, 1"])],
                 (3, 3): [(14, "s_cmp_lg_u32 s34, 0")]})
    a("""
    s_cbranch_scc1 K2_loop
    """)
    stamp(a, 2)
    a("""
    s_cmp_lt_u32 s18, 4
    s_cbranch_scc0 K2_young
    """)
    body(True, {})
    a(f"s_nop 1\n{pv(3,3,0)}\n{pv(3,3,1)}")
    stamp(a, 3)
    a(f"""
    s_mul_i32 s35, s18, {4*PSL}
    v_add_u32 v5, s35, v{L16}
    v_lshl_add_u32 v6, v0, 2, s35
    s_lshl_b32 s36, s19, 6
    s_lshl_b32 s37, s20, 1
    s_add_u32 s36, s36, s37
    s_lshr_b32 s37, s18, 1
    s_add_u32 s36, s36, s37
    s_and_b32 s38, s36, -2
    s_lshl_b32 s38, s38, 1
    s_load_dword s39, s[14:15], s38
    s_mul_i32 s40, s18, {2*USZ}
    s_add_u32 s40, s40, {K2_U}
    s_and_b32 s41, s36, 1
    s_lshl_b32 s41, s41, 12
    s_lshr_b32 s42, s36, 1
    s_lshl_b32 s42, s42, 4
    s_add_u32 s41, s41, s42
    s_add_u32 s41, s41, {UW}
    v_lshlrev_b32 v7, 13, v0
    """)
    for rho in range(2):
        for q in range(4):
            a(f"""
            s_add_u32 m0, s40, {rho*USZ+q*1024}
            s_add_u32 s42, s41, {rho*0x200000+q*524288}
            buffer_load_dwordx4 v7, s[8:11], s42 offen lds
            """)
    for j in range(4):
        a(f"""
        ds_write_b128 v5, {vr(ACC+16*j,4)} offset:{j*PSL}
        ds_write_b128 v5, {vr(ACC+16*j+4,4)} offset:{j*PSL+1024}
        ds_write_b32 v6, v{ACC+16*j+8} offset:{j*PSL+2048}
        """)
    CA, AB, BB, DF = 32, 64, 128, 192
    a(f"""
    s_lshl_b32 s42, s36, 12
    s_add_u32 s44, s12, s42
    s_addc_u32 s45, s13, 0
    s_mov_b32 s46, 4096
    s_mov_b32 s47, 0x20000
    s_and_b32 s43, s18, 1
    s_lshl_b32 s43, s43, 8
    v_and_b32 v8, 15, v0
    v_lshrrev_b32 v9, 4, v0
    v_lshlrev_b32 v10, 4, v9
    v_lshl_add_u32 v11, v8, 2, v10
    s_sub_u32 s42, s43, 60
    v_add_u32 v11, s42, v11
    v_add_u32 v12, 4, v11
    v_add_u32 v13, 8, v11
    v_add_u32 v14, 12, v11
    v_add_u32 v15, 512, v11
    s_waitcnt lgkmcnt(0)
    """)
    def lda(rr):
        b = AB + 32 * (rr % 2)
        o = []
        if rr == 0:
            for i in range(4): o.append(f"buffer_load_dword v{b+i}, v{11+i}, s[44:47], 0 offen")
        else:
            o.append(f"buffer_load_dwordx4 {vr(b,4)}, v12, s[44:47], 0 offen offset:{64*(rr-1)}")
        for aa in range(1, 8):
            o.append(f"buffer_load_dwordx4 {vr(b+4*aa,4)}, v15, s[44:47], 0 offen offset:{512*(aa-1)+64*rr}")
        return o
    def ldb(rr):
        b = BB + 32 * (rr % 2)
        return [f"ds_read_b128 {vr(b+4*bb,4)}, v16 offset:{64*rr+512*(7-bb)}" for bb in range(8)]
    for x in lda(0): a(x)
    a(f"""
    v_add_u32 v12, 64, v11
    v_and_b32 v17, 31, v0
    v_min_u32 v17, 29, v17
    v_lshlrev_b32 v17, 4, v17
    v_lshrrev_b32 v18, 5, v0
    v_mul_u32_u24 v18, {USZ}, v18
    v_add3_u32 v17, v17, v18, s40
    v_mov_b32 v20, 0
    v_mov_b32 v21, 0
    v_mov_b32 v22, 0
    v_mov_b32 v23, 0
    ds_write_b128 v17, v[20:23] offset:4096
    v_and_b32 v17, 1, v0
    v_mul_u32_u24 v17, {USZ}, v17
    v_bfe_u32 v18, v0, 1, 3
    v_lshlrev_b32 v18, 6, v18
    v_sub_u32 v17, v17, v18
    s_add_u32 s42, s40, 448
    s_add_u32 s42, s42, s43
    v_add3_u32 v16, v17, v10, s42
    v_lshl_add_u32 v18, v9, 2, v8
    s_waitcnt lgkmcnt(0)
    s_and_b32 s42, s36, 1
    s_lshl_b32 s42, s42, 4
    s_lshr_b32 s39, s39, s42
    s_and_b32 s39, s39, 0xffff
    v_mov_b32 v19, s39
    """)
    for i in range(4):
        a(f"v_cmp_eq_u32 vcc, {15-i}, v18\ns_nop 1\nv_cndmask_b32 v{DF+i}, 0, v19, vcc")
    for i in range(32): a(f"v_mov_b32 v{CA+i}, 0")
    for x in lda(1): a(x)
    a("s_waitcnt vmcnt(19)")
    stamp(a, 4)
    for x in ldb(0): a(x)
    for rr in range(4):
        ab, bb_ = AB + 32 * (rr % 2), BB + 32 * (rr % 2)
        nb = ldb(rr + 1) if rr < 3 else []
        a(f"s_waitcnt vmcnt({8 if rr < 3 else 0}) lgkmcnt(0)")
        if rr == 0:
            a("s_cmp_lg_u32 s43, 0\ns_cbranch_scc1 K2_nodiag")
            for b in range(8): a(f"{M16} {vr(CA+4*b,4)}, {vr(DF,4)}, {vr(bb_+4*b,4)}, {vr(CA+4*b,4)}")
            a.label("K2_nodiag")
        cnt = 0
        na = lda(rr + 2) if rr < 2 else []
        for aa in range(8):
            for b in range(8 - aa):
                a(f"{M16} {vr(CA+4*(aa+b),4)}, {vr(ab+4*aa,4)}, {vr(bb_+4*b,4)}, {vr(CA+4*(aa+b),4)}")
                cnt += 1
                if cnt % 3 == 0 and nb: a(nb.pop(0))
            if na: a(na.pop(0))
    a(f"""
    s_lshl_b32 s42, s18, 12
    s_add_u32 s42, s42, {K2_X}
    v_add_u32 v5, s42, v{L16}
    s_xor_b32 s42, s42, 4096
    v_add_u32 v6, s42, v{L16}
    s_cmp_lg_u32 s43, 0
    s_cbranch_scc1 K2_odd
    s_nop 1
    """)
    for n in range(4): a(f"ds_write_b128 v5, {vr(CA+16+4*n,4)} offset:{n*1024}")
    a("s_branch K2_xch")
    a.label("K2_odd")
    a("s_nop 1")
    for n in range(4): a(f"ds_write_b128 v5, {vr(CA+4*n,4)} offset:{n*1024}")
    a("s_waitcnt lgkmcnt(0)")
    for i in range(16): a(f"v_mov_b32 v{CA+i}, v{CA+16+i}")
    a.label("K2_xch")
    stamp(a, 5)
    a(f"""
    s_setprio 0
    s_waitcnt lgkmcnt(0)
    s_barrier
    """)
    for n in range(4): a(f"ds_read_b128 {vr(AB+4*n,4)}, v6 offset:{n*1024}")
    a(f"""
    v_bfe_u32 v10, v0, 1, 3
    v_lshlrev_b32 v10, 15, v10
    v_and_b32 v11, 1, v0
    v_lshl_add_u32 v10, v11, 14, v10
    v_lshrrev_b32 v11, 5, v0
    v_lshl_add_u32 v10, v11, 13, v10
    v_bfe_u32 v11, v0, 4, 1
    v_lshl_add_u32 v10, v11, 3, v10
    s_lshl_b32 s42, s43, 12
    s_lshl_b32 s41, s36, 4
    s_add_u32 s42, s42, s41
    s_add_u32 s42, s42, {YW}
    s_waitcnt lgkmcnt(0)
    """)
    for n in range(4):
        for i in range(4): a(f"v_add_f32 v{CA+4*n+i}, v{CA+4*n+i}, v{AB+4*n+i}")
        a(f"v_cvt_pk_bf16_f32 v{BB+2*n}, v{CA+4*n}, v{CA+4*n+1}\nv_cvt_pk_bf16_f32 v{BB+2*n+1}, v{CA+4*n+2}, v{CA+4*n+3}")
        a(f"buffer_store_dwordx2 {vr(BB+2*n,2)}, v10, s[8:11], s42 offen")
        if n < 3: a("s_add_u32 s42, s42, 0x40000")
    stamp(a, 6)
    a("s_barrier")
    stamp(a, 7); stamp_flush(a, 8)
    a("s_endpgm")
    a.label("K2_young")
    a(f"""
    s_and_b32 s35, s24, 1
    s_lshl_b32 s35, s35, 1
    s_lshl_b32 s36, s23, 2
    s_add_u32 s36, s36, s35
    s_mul_i32 s36, s36, {PSL}
    v_add_u32 v5, s36, v{L16}
    v_lshl_add_u32 v6, v0, 2, s36
    s_sub_u32 s36, s18, 4
    s_lshl_b32 s36, s36, 1
    s_add_u32 s36, s36, 16
    s_xor_b32 s37, s36, 4
    s_mul_i32 s36, s36, {PSL}
    s_mul_i32 s37, s37, {PSL}
    v_add_u32 v7, s36, v{L16}
    v_lshl_add_u32 v8, v0, 2, s36
    v_add_u32 v9, s37, v{L16}
    v_lshl_add_u32 v10, v0, 2, s37
    s_add_u32 s38, s25, s35
    s_lshl_b32 s38, s38, 15
    s_lshl_b32 s39, s21, 10
    s_add_u32 s38, s38, s39
    s_add_u32 s38, s38, {OW}
    s_add_u32 s39, s38, 0x8000
    """)
    PT = 208
    def rdp(dst, a16, a4, off):
        return [f"ds_read_b128 {vr(dst,4)}, v{a16} offset:{off}", f"ds_read_b128 {vr(dst+4,4)}, v{a16} offset:{off+1024}",
                f"ds_read_b32 v{dst+8}, v{a4} offset:{off+2048}"]
    def wrp(j):
        return [f"ds_write_b128 v7, {vr(ACC+16*j,4)} offset:{j*PSL}", f"ds_write_b128 v7, {vr(ACC+16*j+4,4)} offset:{j*PSL+1024}",
                f"ds_write_b32 v8, v{ACC+16*j+8} offset:{j*PSL+2048}"]
    PA = [PT, PT+10, PT+20, PT+30]
    PB = [KS, KS+10]
    r0 = rdp(PA[0], 5, 6, 0); r1 = rdp(PA[1], 5, 6, 8*PSL); r2 = rdp(PA[2], 5, 6, PSL); r3 = rdp(PA[3], 5, 6, 9*PSL)
    w0, w1 = wrp(0), wrp(1)
    ex = {(3, 0): [(9, "s_barrier"), (12, r0[0]), (13, r0[1]), (14, r0[2])],
          (3, 1): [(3, r1[0]), (4, r1[1]), (8, r1[2]), (9, r2[0]), (13, r2[1]), (14, r2[2])],
          (3, 2): [(2, r3[0]), (3, w0[0]), (4, r3[1]), (8, w0[1]), (9, r3[2]), (10, w0[2])],
          (3, 3): [(3, w1[0]), (4, w1[1]), (5, w1[2]), (10, ["s_waitcnt lgkmcnt(0)", "s_barrier"] + rdp(PB[0], 9, 10, 0)),
                   (12, rdp(PB[1], 9, 10, PSL))]}
    body(True, ex)
    stamp(a, 3)
    for i in range(9): a(f"v_add_f32 v{PA[0]+i}, v{PA[0]+i}, v{PA[1]+i}")
    a(f"{pv(3,3,0)}\n{pv(3,3,1)}")
    for i in range(9): a(f"v_add_f32 v{PA[2]+i}, v{PA[2]+i}, v{PA[3]+i}")
    a("s_waitcnt lgkmcnt(0)")
    for i in range(9): a(f"v_add_f32 v{PA[0]+i}, v{PA[0]+i}, v{PB[0]+i}")
    for i in range(9): a(f"v_add_f32 v{PA[2]+i}, v{PA[2]+i}, v{PB[1]+i}")
    for jj in range(2):
        for i in range(9): a(f"v_add_f32 v{ACC+32+16*jj+i}, v{ACC+32+16*jj+i}, v{PA[2*jj]+i}")
    for jj in range(2):
        o = ACC + 32 + 16*jj
        a(f"v_fma_f32 v{11+jj}, v{o}, 0, v{o+8}")
        for i in range(1, 8): a(f"v_fma_f32 v{11+jj}, v{o+i}, 0, v{11+jj}")
    a(f"""
    v_cmp_lt_f32 vcc, {f32(2.0**-60)}, v11
    s_mov_b64 s[40:41], vcc
    v_cmp_gt_f32 vcc, {f32(2.0**60)}, v11
    s_and_b64 s[40:41], s[40:41], vcc
    v_cmp_lt_f32 vcc, {f32(2.0**-60)}, v12
    s_and_b64 s[40:41], s[40:41], vcc
    v_cmp_gt_f32 vcc, {f32(2.0**60)}, v12
    s_and_b64 s[40:41], s[40:41], vcc
    s_cmp_eq_u64 s[40:41], exec
    s_cbranch_scc0 K2_slow
    """)
    a.label("K2_fin")
    a(f"v_rcp_f32 v11, v{ACC+40}\nv_rcp_f32 v12, v{ACC+56}\ns_nop 0")
    for jj in range(2):
        o = ACC + 32 + 16*jj
        for i in range(8): a(f"v_mul_f32 v{o+i}, v{o+i}, v{11+jj}")
        for i in range(4): a(f"v_cvt_pk_bf16_f32 v{PT+4*jj+i}, v{o+2*i}, v{o+2*i+1}")
        a(f"buffer_store_dwordx4 {vr(PT+4*jj,4)}, v{L16}, s[8:11], s{38+jj} offen")
    stamp(a, 4)
    if STAMP: a("s_waitcnt vmcnt(0)")
    stamp(a, 5); stamp(a, 6); stamp(a, 7); stamp_flush(a, 8)
    a("s_endpgm")
    a.label("K2_slow")
    a(f"""
    s_add_u32 s30, s26, {KW}
    s_add_u32 s31, s26, {VW}
    s_mov_b32 s34, 0
    v_mov_b32 v11, 0xff800000
    v_mov_b32 v12, 0xff800000
    """)
    a.label("K2_slow1")
    a(f"""
    s_add_u32 s42, s30, s34
    {ldk(0, "s42", 0)}
    s_waitcnt vmcnt(0)
    {M32} {vr(S,16)}, {vr(KS,4)}, {vr(Q+8,4)}, 0
    {M32} {vr(S+16,16)}, {vr(KS,4)}, {vr(Q+12,4)}, 0
    s_nop 11
    """)
    for jj in range(2):
        for i in range(8): a(f"v_max3_f32 v{11+jj}, v{S+16*jj+2*i}, v{S+16*jj+2*i+1}, v{11+jj}")
    a("""
    s_add_u32 s34, s34, 1024
    s_cmp_lt_u32 s34, 0x10000
    s_cbranch_scc1 K2_slow1
    v_mov_b32 v13, v11
    v_mov_b32 v14, v12
    s_nop 1
    v_permlane32_swap_b32 v11, v13
    v_permlane32_swap_b32 v12, v14
    v_max_f32 v11, v11, v13
    v_max_f32 v12, v12, v14
    s_mov_b32 s34, 0
    """)
    for jj in range(2):
        for i in range(16): a(f"v_sub_f32 v{S+32+16*jj+i}, 0, v{11+jj}\nv_mov_b32 v{ACC+32+16*jj+i}, 0")
    for i in range(8): a(f"v_mov_b32 v{VS+i}, 0x3f803f80")
    a.label("K2_slow2")
    a(f"s_add_u32 s42, s30, s34\ns_add_u32 s43, s31, s34\n{ldk(0, 's42', 0)}")
    for x in ldv(0, "s43", 0): a(x)
    a(f"""
    s_waitcnt vmcnt(0)
    {M32} {vr(S,16)}, {vr(KS,4)}, {vr(Q+8,4)}, {vr(S+32,16)}
    {M32} {vr(S+16,16)}, {vr(KS,4)}, {vr(Q+12,4)}, {vr(S+48,16)}
    s_nop 11
    """)
    for i in range(32): a(f"v_exp_f32 v{S+i}, v{S+i}")
    a("s_nop 1")
    for jj in range(2):
        for s in range(2):
            a(f"{SM} {vr(ACC+32+16*jj,16)}, {vr(VS+4*s,4)}, {vr(S+16*jj+8*s,8)}, v{IDX}")
    a("""
    s_add_u32 s34, s34, 1024
    s_cmp_lt_u32 s34, 0x10000
    s_cbranch_scc1 K2_slow2
    s_nop 11
    s_branch K2_fin
    """)
    a.label("K2_end")
    a("s_endpgm")
    return a, 248

K3_O, K3_XL = 65536, 131072
K3_LDS = K3_XL + 8192

def k3():
    a = Asm()
    a.label("out_kernel")
    a(f"""
    s_cmp_ge_u32 s2, 256
    s_cbranch_scc1 K3_end
    s_load_dwordx2 s[4:5], s[0:1], 0
    s_load_dwordx2 s[6:7], s[0:1], 16
    s_load_dwordx2 s[8:9], s[0:1], 80
    s_load_dwordx2 s[10:11], s[0:1], 96
    v_lshrrev_b32 v1, 6, v0
    v_and_b32 v0, 63, v0
    s_and_b32 s19, s2, 7
    v_readfirstlane_b32 s18, v1
    s_lshr_b32 s20, s2, 3
    s_lshl_b32 s21, s19, 2
    s_lshr_b32 s22, s20, 3
    s_add_u32 s21, s21, s22
    s_and_b32 s22, s20, 7
    s_lshr_b32 s23, s18, 1
    s_and_b32 s40, s18, 1
    """)
    stamp_init(a, 2, 4); stamp(a, 0)
    WV, XV, L16 = 2, 6, 8
    a(f"""
    s_lshl_b32 s41, s23, 16
    s_lshl_b32 s42, s22, 7
    s_add_u32 s41, s41, s42
    s_lshl_b32 s43, s40, 6
    s_add_u32 s41, s41, s43
    v_lshrrev_b32 v10, 2, v0
    v_lshlrev_b32 v10, 10, v10
    v_and_b32 v11, 3, v0
    v_lshl_add_u32 v10, v11, 4, v10
    v_add_u32 v{WV}, s41, v10
    v_add_u32 v{WV+1}, 15360, v{WV}
    v_add_u32 v{WV+2}, {2*15360}, v{WV}
    v_add_u32 v{WV+3}, {3*15360}, v{WV}
    v_lshlrev_b32 v{L16}, 4, v0
    s_lshl_b32 s44, s40, 13
    s_lshl_b32 s45, s23, 12
    s_add_u32 s44, s44, s45
    s_lshl_b32 s45, s23, 15
    s_lshl_b32 s46, s40, 12
    s_add_u32 s45, s45, s46
    s_lshl_b32 s47, s21, 16
    s_add_u32 s47, s47, s45
    s_add_u32 s47, s47, {OW}
    s_add_u32 s45, s45, {K3_O}
    s_lshl_b32 s48, s21, 6
    s_lshl_b32 s49, s18, 4
    s_add_u32 s49, s49, s48
    v_lshrrev_b32 v10, 3, v0
    v_add_u32 v10, s49, v10
    v_lshlrev_b32 v10, 10, v10
    v_add_u32 v10, s42, v10
    v_and_b32 v11, 7, v0
    v_lshrrev_b32 v12, 4, v0
    v_xor_b32 v11, v11, v12
    v_lshl_add_u32 v{XV}, v11, 4, v10
    v_xor_b32 v11, 4, v11
    v_lshl_add_u32 v{XV+1}, v11, 4, v10
    v_add_u32 v{XV+1}, 7168, v{XV+1}
    s_waitcnt lgkmcnt(0)
    """)
    srd(a, 24, 6, 0x80000)
    srd(a, 28, 10, WS_BYTES)
    def chunk(ch):
        a(f"s_add_u32 m0, s44, {ch*16384}\ns_mov_b32 s50, {ch*131072}")
        for q in range(4): a(f"buffer_load_dwordx4 v{WV+q}, s[24:27], s50 offen offset:{q*1024} lds")
        a(f"s_add_u32 m0, s45, {ch*8192}\ns_add_u32 s50, s47, {ch*8192}")
        for q in range(4): a(f"buffer_load_dwordx4 v{L16}, s[28:31], s50 offen offset:{q*1024} lds")
    chunk(0)
    srd(a, 32, 4, 0x200000)
    YF, G, PM, ACC, YA, XR, FR = 16, 24, 28, 36, 52, 68, 76
    a(f"""
    s_lshl_b32 s50, s18, 11
    s_add_u32 m0, s50, {K3_XL}
    v_and_b32 v10, 31, v0
    buffer_load_dwordx4 v{XV}, s[32:35], 0 offen lds
    buffer_load_dwordx4 v{XV+1}, s[32:35], 0 offen offset:1024 lds
    v_lshrrev_b32 v11, 5, v0
    v_lshlrev_b32 v12, 4, v10
    v_lshl_add_u32 v12, v11, 13, v12
    s_lshl_b32 s56, s21, 1
    s_add_u32 s56, s56, s23
    s_lshl_b32 s51, s56, 15
    s_lshl_b32 s52, s22, 10
    s_add_u32 s51, s51, s52
    s_lshl_b32 s52, s40, 9
    s_add_u32 s51, s51, s52
    s_add_u32 s51, s51, {YW}
    s_add_u32 s52, s51, 16384
    s_lshl_b32 s53, s56, 7
    s_add_u32 s53, s53, {GW}
    v_lshlrev_b32 v13, 2, v10
    buffer_load_dwordx4 {vr(YF,4)}, v12, s[28:31], s51 offen
    buffer_load_dwordx4 {vr(YF+4,4)}, v12, s[28:31], s52 offen
    buffer_load_dword v{G}, v13, s[28:31], s53 offen
    """)
    chunk(1); chunk(2); chunk(3)
    srd(a, 36, 8, 0x200000)
    WA, OA, XA, OV = 2, 3, 4, 9
    a(f"""
    v_bfe_u32 v12, v0, 2, 2
    v_lshl_add_u32 v12, v11, 2, v12
    v_lshlrev_b32 v12, 6, v12
    v_bfe_u32 v13, v0, 4, 1
    v_lshl_add_u32 v12, v13, 5, v12
    v_and_b32 v13, 3, v0
    v_lshl_add_u32 v12, v13, 3, v12
    s_lshl_b32 s54, s40, 13
    v_add_u32 v{WA}, s54, v12
    s_lshl_b32 s54, s23, 15
    s_add_u32 s54, s54, {K3_O}
    v_add_u32 v{OA}, s54, v{L16}
    v_bfe_u32 v12, v0, 1, 3
    s_lshl_b32 s54, s40, 2
    v_xor_b32 v12, s54, v12
    v_lshlrev_b32 v12, 4, v12
    v_lshl_add_u32 v12, v10, 7, v12
    v_lshl_add_u32 v12, v11, 3, v12
    s_lshl_b32 s54, s23, 12
    s_add_u32 s54, s54, {K3_XL}
    v_add_u32 v{XA}, s54, v12
    v_xor_b32 v{XA+1}, 16, v{XA}
    v_xor_b32 v{XA+2}, 32, v{XA}
    v_xor_b32 v{XA+3}, 48, v{XA}
    s_lshl_b32 s54, s56, 15
    s_add_u32 s54, s54, s42
    s_add_u32 s54, s54, s43
    v_lshlrev_b32 v12, 10, v10
    v_lshl_add_u32 v{OV}, v11, 4, v12
    v_bfe_u32 v12, v0, 2, 2
    v_and_b32 v13, 1, v0
    v_lshl_or_b32 v12, v13, 2, v12
    v_bfe_u32 v13, v0, 4, 1
    v_xor_b32 v13, v13, v11
    v_lshl_or_b32 v12, v13, 3, v12
    v_bfe_u32 v13, v0, 1, 1
    v_lshlrev_b32 v13, 4, v13
    v_mov_b32 v14, 0x3f80
    v_lshlrev_b32 v13, v13, v14
    s_mov_b32 s55, 0xffff0000
    """)
    for i in range(8):
        a(f"v_cmp_eq_u32 vcc, {i}, v12\ns_nop 1\nv_cndmask_b32 v{PM+i}, 0, v13, vcc")
    NS = 4
    def reads(h):
        f = FR + 8 * (h % NS)
        ch, hh = h >> 3, h & 7
        return [f"ds_read_b64_tr_b16 {vr(f,2)}, v{WA} offset:{ch*16384+hh*1024}",
                f"ds_read_b64_tr_b16 {vr(f+2,2)}, v{WA} offset:{ch*16384+hh*1024+512}",
                f"ds_read_b128 {vr(f+4,4)}, v{OA} offset:{h*1024}"]
    stamp(a, 1)
    a("s_waitcnt vmcnt(24)\ns_barrier")
    stamp(a, 2)
    for g in range(4): a(f"ds_read_b64 {vr(XR+2*g,2)}, v{XA+g}")
    for h in range(3):
        for r in reads(h): a(r)
    a(f"{M32} {vr(YA,16)}, {vr(YF,4)}, {vr(PM,4)}, 0")
    a(f"{M32} {vr(YA,16)}, {vr(YF+4,4)}, {vr(PM+4,4)}, {vr(YA,16)}")
    a(f"v_sub_f32 v{G+1}, 1.0, v{G}")
    fill = []
    for i in range(8):
        fill.append([f"v_lshlrev_b32 v14, 16, v{XR+i}", f"v_and_b32 v15, s55, v{XR+i}",
                     f"v_mul_f32 v14, v14, v{G+1}", f"v_mul_f32 v15, v15, v{G+1}",
                     f"v_mul_f32 v{YA+2*i}, v{YA+2*i}, v14", f"v_mul_f32 v{YA+2*i+1}, v{YA+2*i+1}, v15"])
    for h in range(32):
        nh = h + 3
        if h in (8, 16, 24): stamp(a, 2 + h // 8)
        if nh < 32 and nh % 8 == 0:
            a(f"s_waitcnt vmcnt({24-nh}) lgkmcnt(6)\ns_barrier")
        else:
            a(f"s_waitcnt lgkmcnt({min(6, 3*(31-h))})")
        f = FR + 8 * (h % NS)
        a(f"{M32} {vr(ACC,16)}, {vr(f,4)}, {vr(f+4,4)}, {'0' if h == 0 else vr(ACC,16)}")
        if nh < 32:
            for r in reads(nh): a(r)
        if 4 <= h < 12:
            for x in fill[h-4]: a(x)
    a("s_nop 11")
    for i in range(16): a(f"v_fma_f32 v{ACC+i}, v{ACC+i}, v{G}, v{YA+i}")
    for i in range(8): a(f"v_cvt_pk_bf16_f32 v{FR+i}, v{ACC+2*i}, v{ACC+2*i+1}")
    a(f"""
    v_permlane32_swap_b32 v{FR}, v{FR+2}
    v_permlane32_swap_b32 v{FR+1}, v{FR+3}
    v_permlane32_swap_b32 v{FR+4}, v{FR+6}
    v_permlane32_swap_b32 v{FR+5}, v{FR+7}
    buffer_store_dwordx4 {vr(FR,4)}, v{OV}, s[36:39], s54 offen
    buffer_store_dwordx4 {vr(FR+4,4)}, v{OV}, s[36:39], s54 offen offset:32
    """)
    stamp(a, 6)
    if STAMP: a("s_waitcnt vmcnt(0)")
    stamp(a, 7); stamp_flush(a, 8)
    a.label("K3_end")
    a("s_endpgm")
    return a, 112

def probe_kernel(kidx, nw, wave, which):
    a = Asm()
    a.label("probe_kernel")
    op = "ds_min_u32" if which == 0 else "ds_max_u32"
    a(f"""
    s_cmp_ge_u32 s2, 1
    s_cbranch_scc1 P_end
    s_load_dwordx2 s[4:5], s[0:1], 96
    s_mov_b32 s6, 0x1400000
    s_mov_b32 s7, 0x20000
    v_lshlrev_b32 v1, 11, v0
    v_mul_u32_u24 v2, {nw*256}, v0
    s_mov_b32 s8, {TW}
    s_mov_b32 s9, {TW + kidx*0x100000 + wave*256 + which*8}
    v_mov_b32 v5, 0
    v_mov_b32 v6, -1
    v_mov_b32 v7, {-1 if which == 0 else 0}
    ds_write_b64 v5, v[6:7]
    s_waitcnt lgkmcnt(0)
    s_barrier
    buffer_load_dword v3, v1, s[4:7], s8 offen offset:4
    buffer_load_dword v4, v2, s[4:7], s9 offen offset:4
    s_waitcnt vmcnt(0)
    ds_min_u32 v5, v3
    {op} v5, v4 offset:4
    s_waitcnt lgkmcnt(0)
    s_barrier
    ds_read_b64 v[6:7], v5
    s_waitcnt lgkmcnt(0)
    v_readfirstlane_b32 s10, v6
    v_readfirstlane_b32 s11, v7
    s_sub_u32 s11, s11, s10
    s_min_u32 s11, s11, 10000
    s_add_u32 s11, s11, 6000
    """)
    a.label("P_loop")
    a("""
    s_memrealtime s[12:13]
    s_waitcnt lgkmcnt(0)
    s_sub_u32 s12, s12, s10
    s_cmp_gt_u32 s12, 100000
    s_cbranch_scc1 P_end
    s_cmp_lt_u32 s12, s11
    s_cbranch_scc1 P_loop
    """)
    a.label("P_end")
    a("s_endpgm")
    return a, 16

def build():
    ref = open(f"cdna_kernels/{NAME}.s.ref").read().split("\n")
    head = [l for l in ref if l.startswith(";") and "@launch" not in l and "Override" not in l and "grid=ceil" not in l]
    ks = [("qkv_kernel", k1(), 512, K1_LDS), ("attn_kernel", k2(), 512, K2_LDS), ("out_kernel", k3(), 256, K3_LDS)]
    if PROBE:
        kidx, wave, which = map(int, PROBE.split(","))
        ks.append(("probe_kernel", probe_kernel(kidx, ks[kidx][2] // 64, wave, which), 256, 64))
    out = "\n".join(head) + "\n"
    for n, _, blk, lds in ks:
        out += f"; @launch kernel={n} grid=({1 if n == 'probe_kernel' else 256},1,1) block=({blk},1,1) lds={lds}\n"
    out += '.amdgcn_target "amdgcn-amd-amdhsa--gfx950"\n.text\n'
    bad = []
    for n, (a, nv), _, _ in ks:
        t = a.text()
        bad += check(t)
        out += f".globl {n}\n.p2align 8\n.type {n},@function\n" + t
    out += '.section .rodata,"a"\n'
    for n, (a, nv), _, _ in ks:
        out += ".p2align 6\n" + descriptor(n, nv)
    return out, bad

if __name__ == "__main__":
    out, bad = build()
    for b in bad: print("HAZARD", b)
    path = sys.argv[1] if len(sys.argv) > 1 else f"cdna_kernels/{NAME}.s"
    open(path, "w").write(out)
    print("wrote", path, len(out), "bytes;", len(bad), "hazards")
```

```python
import os, sys, struct
from asmlib import Asm, vr, sr, check

NAME = "gated_mix__mha_block__ssm_conv_h3__prompt"
QW, KW, VW, UW, OW, YW, GW = 0x000000, 0x200000, 0x400000, 0x600000, 0xA00000, 0xC00000, 0xE00000
FW = 0xE10000
QF, UF, OF, YF_ = FW, FW + 4096, FW + 8192, FW + 12288
WS_BYTES = 0xE20000
M32 = "v_mfma_f32_32x32x16_bf16"
M16 = "v_mfma_f32_16x16x32_bf16"
SM = "v_smfmac_f32_32x32x32_bf16"
LOG2E = 1.4426950408889634
STAMP = int(os.environ.get("STAMP", "0"))
PROBE = os.environ.get("PROBE")
DROP = int(os.environ.get("DROP", "0"))
DROPU = int(os.environ.get("DROPU", "-1"))
TW = 0xF00000
SPIN = 40000

SLOT = 28672
TB = 5 * SLOT
L_X = 65536
L_PRIV = 73728
USZ = 4576
PRIV = 2 * USZ
L_OLD = L_PRIV + 4 * PRIV
PSL = 2304
L_RB = L_OLD
L_XF = L_RB + 49152
LDS = L_XF + 64

def f32(x):
    return "0x%08x" % struct.unpack("<I", struct.pack("<f", x))[0]

def srd(a, d, b, nbytes):
    a(f"s_mov_b32 s{d}, s{b}\ns_mov_b32 s{d+1}, s{b+1}\ns_mov_b32 s{d+2}, {hex(nbytes)}\ns_mov_b32 s{d+3}, 0x20000")

def stamp(a, i, mode=1):
    if not STAMP or (STAMP != mode and i not in (0, 15)): return
    a(f"""
    s_memtime s[96:97]
    s_memrealtime s[98:99]
    s_waitcnt lgkmcnt(0)
    v_writelane_b32 v255, s96, {2*i}
    v_writelane_b32 v255, s98, {2*i+1}
    """)
def stamp_flush(a):
    if not STAMP: return
    a(f"""
    s_lshl_b32 s96, s2, 3
    s_add_u32 s96, s96, s30
    s_lshl_b32 s96, s96, 8
    s_add_u32 s96, s96, {TW}
    s_mov_b32 s34, 0x1400000
    v_lshlrev_b32 v254, 2, v0
    buffer_store_dword v255, v254, s[32:35], s96 offen
    """)

WS = "s[32:35]"
_uid = [0]
def poll(a, voff, soff, tmp, first_issued=False):
    _uid[0] += 1
    L = f"POLL{_uid[0]}"
    a(f"s_mov_b32 s90, {SPIN}")
    if first_issued: a(f"s_branch {L}_chk")
    a.label(L)
    a(f"buffer_load_dword v{tmp}, v{voff}, {WS}, {soff} offen sc1")
    a.label(f"{L}_chk")
    a(f"""
    s_waitcnt vmcnt(0)
    v_cmp_eq_u32 vcc, 1, v{tmp}
    s_sub_u32 s90, s90, 1
    s_cbranch_scc1 {L}_out
    s_cmp_eq_u64 vcc, exec
    s_cbranch_scc0 {L}
    """)
    a.label(f"{L}_out")

def go_check(a, g, vz):
    _uid[0] += 1
    L = f"GO{_uid[0]}"
    a(f"s_mov_b32 s90, {SPIN}")
    a.label(L)
    a(f"""
    v_and_b32 v{g}, v{g}, v{g+1}
    v_and_b32 v{g+2}, v{g+2}, v{g+3}
    v_and_b32 v{g}, v{g}, v{g+2}
    v_cmp_eq_u32 vcc, 1, v{g}
    s_sub_u32 s90, s90, 1
    s_cbranch_scc1 {L}_out
    s_cmp_eq_u64 vcc, exec
    s_cbranch_scc1 {L}_out
    buffer_load_dwordx4 {vr(g,4)}, v{vz}, s[52:55], 0 offen sc1
    s_waitcnt vmcnt(0)
    s_branch {L}
    """)
    a.label(f"{L}_out")

def set_flag(a, one, vz, soff):
    a(f"""
    s_mov_b64 exec, 1
    buffer_store_dword v{one}, v{vz}, {WS}, {soff} offen sc1
    s_mov_b64 exec, -1
    """)

def kernel():
    a = Asm()
    a.label(f"{NAME}_kernel")
    a("""
    s_cmp_ge_u32 s2, 256
    s_cbranch_scc1 K_end
    s_load_dwordx8 s[4:11], s[0:1], 0
    s_load_dwordx16 s[12:27], s[0:1], 32
    s_load_dwordx2 s[28:29], s[0:1], 96
    v_lshrrev_b32 v1, 6, v0
    v_and_b32 v0, 63, v0
    s_and_b32 s31, s2, 7
    v_readfirstlane_b32 s30, v1
    s_lshr_b32 s56, s2, 3
    s_lshr_b32 s57, s31, 1
    s_lshl_b32 s57, s57, 2
    s_lshr_b32 s59, s56, 3
    s_add_u32 s57, s57, s59
    s_and_b32 s58, s31, 1
    s_lshl_b32 s58, s58, 3
    s_and_b32 s60, s56, 7
    s_add_u32 s58, s58, s60
    s_and_b32 s61, s56, 3
    s_lshl_b32 s62, s31, 2
    s_add_u32 s61, s61, s62
    s_lshr_b32 s62, s56, 2
    """)
    if STAMP: a("v_mov_b32 v255, 0")
    stamp(a, 0)
    a("s_cmp_ge_u32 s30, 4\ns_cbranch_scc1 A_helper")

    XA, WA, ACA, FR = 2, 14, 20, 68
    GO, GX, GG, VZ, ONE = 116, 120, 128, 132, 133
    a(f"""
    v_and_b32 v17, 31, v0
    v_lshrrev_b32 v18, 5, v0
    v_bfe_u32 v19, v0, 1, 3
    v_xor_b32 v19, v19, v18
    s_lshl_b32 s63, s30, 12
    v_lshlrev_b32 v17, 7, v17
    v_lshl_add_u32 v17, v19, 4, v17
    v_add_u32 v{XA}, s63, v17
    v_mov_b32 v{VZ}, 0
    v_mov_b32 v{ONE}, 1
    """)
    for ks in range(1, 4): a(f"v_xor_b32 v{XA+ks}, {ks*32}, v{XA}")
    for st in (1, 2):
        for ks in range(4): a(f"v_add_u32 v{XA+4*st+ks}, {st*2*SLOT}, v{XA+ks}")
    a(f"""
    v_bfe_u32 v17, v0, 2, 2
    v_lshl_add_u32 v17, v18, 3, v17
    v_lshlrev_b32 v17, 6, v17
    v_bfe_u32 v19, v0, 4, 1
    v_lshl_add_u32 v17, v19, 5, v17
    v_and_b32 v19, 3, v0
    v_lshl_add_u32 v17, v19, 3, v17
    v_add_u32 v{WA}, 16384, v17
    v_add_u32 v{WA+1}, {16384+2*SLOT}, v17
    v_add_u32 v{WA+2}, {16384+4*SLOT}, v17
    v_lshlrev_b32 v134, 4, v0
    s_waitcnt lgkmcnt(0)
    """)
    srd(a, 32, 28, WS_BYTES); srd(a, 52, 26, 256); srd(a, 36, 4, 0x200000); srd(a, 40, 22, 1024)
    a(f"""
    s_cmp_lg_u32 s2, 0
    s_cbranch_scc1 A_noclear
    v_mov_b32 v20, 0
    v_mov_b32 v21, 0
    v_mov_b32 v22, 0
    v_mov_b32 v23, 0
    s_add_u32 s64, s63, {FW}
    """)
    for q in range(4): a(f"buffer_store_dwordx4 v[20:23], v134, {WS}, s64 offen offset:{q*1024} sc1")
    a.label("A_noclear")
    a(f"""
    s_lshl_b32 s64, s58, 17
    s_lshl_b32 s65, s57, 2
    s_add_u32 s65, s65, s30
    s_lshl_b32 s70, s65, 2
    s_lshl_b32 s65, s65, 10
    s_add_u32 s64, s64, s65
    s_add_u32 s65, s64, 0x10000
    s_add_u32 s66, s64, {KW}
    s_add_u32 s67, s66, 0x10000
    s_add_u32 s68, s64, {VW}
    s_mov_b32 s69, {f32(0.25*LOG2E)}
    s_lshl_b32 s71, s58, 8
    s_add_u32 s70, s70, s71
    s_add_u32 s70, s70, {QF}
    s_lshl_b32 s71, s62, 8
    s_lshl_b32 s72, s61, 3
    s_add_u32 s71, s71, s72
    s_lshl_b32 s72, s30, 1
    s_add_u32 s71, s71, s72
    s_lshl_b32 s72, s71, 10
    s_lshl_b32 s71, s71, 2
    s_add_u32 s71, s71, {GW}
    s_lshl_b32 s73, s30, 2
    s_barrier
    """)
    stamp(a, 1); stamp(a, 1, 3)
    def reads(g):
        st, ks = g >> 2, g & 3
        slot = st % 5
        bs, off = slot // 2, (slot % 2) * SLOT
        f = FR + 16 * (g % 3)
        r = [f"ds_read_b128 {vr(f,4)}, v{XA+4*bs+ks} offset:{off}"]
        for ty in range(3):
            for j in range(2):
                r.append(f"ds_read_b64_tr_b16 {vr(f+4+4*ty+2*j,2)}, v{WA+bs} offset:{off+ks*3072+ty*1024+j*256}")
        return r
    def mfmas(g):
        f = FR + 16 * (g % 3)
        c = lambda t: "0" if g == 0 else vr(ACA+16*t, 16)
        return [f"{M32} {vr(ACA,16)}, {vr(f+4,4)}, {vr(f,4)}, {c(0)}",
                f"{M32} {vr(ACA+16,16)}, {vr(f+8,4)}, {vr(f,4)}, {c(1)}",
                f"{M32} {vr(ACA+32,16)}, {vr(f,4)}, {vr(f+12,4)}, {c(2)}"]
    for r in reads(0) + reads(1): a(r)
    for g in range(32):
        if g == 16: stamp(a, 2)
        nxt = reads(g + 2) if g + 2 < 32 else []
        if g == 6:
            a(f"""
            s_cmp_lg_u32 s2, 0
            s_cbranch_scc1 A_nogo
            s_waitcnt vmcnt(0)
            s_mov_b64 exec, 1
            buffer_store_dword v{ONE}, v{VZ}, s[52:55], s73 offen sc1
            s_mov_b64 exec, -1
            """)
            a.label("A_nogo")
        if (nxt and (g + 2) % 4 == 0) or g == 31:
            a("s_waitcnt lgkmcnt(0)\ns_barrier")
            stamp(a, 1 + (g + 2) // 4, 3)
        else:
            a("s_waitcnt lgkmcnt(7)")
        m = mfmas(g)
        a(m[0])
        for r in nxt[0:2]: a(r)
        if g == 30:
            a(f"buffer_load_dwordx4 {vr(GO,4)}, v{VZ}, s[52:55], 0 offen sc1")
            a(f"buffer_load_dwordx4 {vr(GG,4)}, v134, s[40:43], 0 offen")
        a(m[1])
        for r in nxt[2:5]: a(r)
        if g == 30:
            a(f"buffer_load_dwordx4 {vr(GX,4)}, v134, s[36:39], s72 offen")
            a(f"buffer_load_dwordx4 {vr(GX+4,4)}, v134, s[36:39], s72 offen offset:1024")
        a(m[2])
        for r in nxt[5:7]: a(r)
    stamp(a, 3)
    T = FR
    a(f"""
    v_and_b32 v3, 0x33, v0
    v_bfe_u32 v4, v0, 2, 1
    v_lshl_or_b32 v3, v4, 3, v3
    v_bfe_u32 v4, v0, 3, 1
    v_lshl_or_b32 v3, v4, 2, v3
    v_lshlrev_b32 v3, 4, v3
    v_and_b32 v4, 15, v0
    v_lshlrev_b32 v4, 4, v4
    v_lshl_add_u32 v4, v18, 8, v4
    v_bfe_u32 v5, v0, 4, 1
    v_lshl_add_u32 v4, v5, 16, v4
    """)
    for t in (1, 2, 0):
        if t == 0:
            for i in range(16): a(f"v_mul_f32 v{ACA+i}, s69, v{ACA+i}")
        for i in range(8):
            a(f"v_cvt_pk_bf16_f32 v{T+8*t+i}, v{ACA+16*t+2*i}, v{ACA+16*t+2*i+1}")
        if t == 0:
            a(f"buffer_store_dwordx4 {vr(T,4)}, v134, {WS}, s64 offen sc1")
            a(f"buffer_store_dwordx4 {vr(T+4,4)}, v134, {WS}, s65 offen sc1")
        elif t == 1:
            a(f"buffer_store_dwordx4 {vr(T+8,4)}, v3, {WS}, s66 offen sc1")
            a(f"buffer_store_dwordx4 {vr(T+12,4)}, v3, {WS}, s67 offen sc1")
        else:
            a(f"buffer_store_dwordx4 {vr(T+16,4)}, v4, {WS}, s68 offen sc1")
            a(f"buffer_store_dwordx4 {vr(T+20,4)}, v4, {WS}, s68 offen offset:512 sc1")
    stamp(a, 4); stamp(a, 10, 3)
    a("s_waitcnt vmcnt(6)")
    stamp(a, 11, 3)
    go_check(a, GO, VZ)
    a("s_waitcnt vmcnt(0)")
    set_flag(a, ONE, VZ, "s70")
    stamp(a, 5); stamp(a, 12, 3)
    a("v_mov_b32 v20, 0\nv_mov_b32 v21, 0\ns_mov_b32 s74, 0xffff0000")
    for i in range(4):
        a(f"v_dot2_f32_bf16 v20, v{GX+i}, v{GG+i}, v20\nv_dot2_f32_bf16 v21, v{GX+4+i}, v{GG+i}, v21")
    a("s_nop 2")
    for d in ("row_shr:1 row_mask:0xf bank_mask:0xf bound_ctrl:0", "row_shr:2 row_mask:0xf bank_mask:0xf bound_ctrl:0",
              "row_shr:4 row_mask:0xf bank_mask:0xf bound_ctrl:0", "row_shr:8 row_mask:0xf bank_mask:0xf bound_ctrl:0",
              "row_bcast:15 row_mask:0xa bank_mask:0xf", "row_bcast:31 row_mask:0xc bank_mask:0xf"):
        a(f"v_add_f32_dpp v20, v20, v20 {d}\nv_add_f32_dpp v21, v21, v21 {d}\ns_nop 0")
    a(f"""
    v_cvt_pk_bf16_f32 v22, v20, v21
    v_lshlrev_b32 v20, 16, v22
    v_and_b32 v21, s74, v22
    v_mul_f32 v20, {f32(-LOG2E)}, v20
    v_mul_f32 v21, {f32(-LOG2E)}, v21
    v_exp_f32 v20, v20
    v_exp_f32 v21, v21
    s_nop 0
    v_add_f32 v20, 1.0, v20
    v_add_f32 v21, 1.0, v21
    v_rcp_f32 v20, v20
    v_rcp_f32 v21, v21
    s_nop 0
    v_cvt_pk_bf16_f32 v22, v20, v21
    v_lshlrev_b32 v20, 16, v22
    v_and_b32 v21, s74, v22
    s_mov_b32 exec_lo, 0
    s_mov_b32 exec_hi, 0x80000000
    buffer_store_dwordx2 v[20:21], v{VZ}, {WS}, s71 offen sc1
    s_mov_b64 exec, -1
    """)
    Q, ACC, S, KS, VS = 16, 32, 96, 160, 176
    IDX, L16, VOF, L4, WOV, XOV, Z4 = 2, 3, 4, 5, 244, 245, 248
    def att_setup():
        a(f"""
        s_and_b32 s63, s30, 1
        s_lshr_b32 s64, s30, 1
        s_lshl_b32 s65, s62, 3
        s_lshl_b32 s66, s63, 2
        s_add_u32 s65, s65, s66
        s_lshl_b32 s66, s61, 16
        s_lshl_b32 s67, s65, 10
        s_add_u32 s67, s67, s66
        s_cmp_eq_u32 s64, 2
        s_cselect_b32 s68, 2048, 0
        s_xor_b32 s69, s68, 2048
        s_add_u32 s68, s68, s67
        s_add_u32 s69, s69, s67
        s_lshl_b32 s70, s64, 14
        s_add_u32 s70, s70, s66
        s_add_u32 s71, s70, {VW}
        s_add_u32 s70, s70, {KW}
        s_mov_b32 s72, 0xffff
        s_mov_b32 s73, 0xffff
        s_lshr_b32 s74, s61, 1
        s_lshl_b32 s74, s74, 8
        s_add_u32 s74, s74, {QF}
        s_lshl_b32 s75, s31, 2
        s_lshr_b32 s76, s56, 3
        s_add_u32 s75, s75, s76
        s_and_b32 s76, s56, 7
        s_lshl_b32 s77, s63, 15
        s_lshl_b32 s78, s64, 13
        s_add_u32 s77, s77, s78
        s_lshl_b32 s78, s64, 17
        s_lshl_b32 s79, s76, 7
        s_add_u32 s78, s78, s79
        s_lshl_b32 s80, s63, 6
        s_add_u32 s78, s78, s80
        v_lshlrev_b32 v{L16}, 4, v0
        v_lshlrev_b32 v{L4}, 2, v0
        v_and_b32 v6, 15, v0
        v_lshrrev_b32 v7, 5, v0
        v_lshlrev_b32 v6, 4, v6
        v_lshl_add_u32 v{VOF}, v7, 8, v6
        v_mov_b32 v{IDX}, 0xdddd
        v_lshrrev_b32 v6, 2, v0
        v_lshlrev_b32 v6, 10, v6
        v_and_b32 v7, 3, v0
        v_lshl_add_u32 v{WOV}, v7, 4, v6
        s_lshl_b32 s80, s75, 6
        s_lshl_b32 s81, s30, 3
        s_add_u32 s80, s80, s81
        v_lshrrev_b32 v6, 3, v0
        v_add_u32 v6, s80, v6
        v_lshlrev_b32 v6, 10, v6
        v_lshrrev_b32 v7, 4, v0
        s_lshl_b32 s81, s63, 2
        v_xor_b32 v7, s81, v7
        v_and_b32 v8, 7, v0
        v_xor_b32 v7, v7, v8
        v_lshl_add_u32 v6, v7, 4, v6
        v_add_u32 v{XOV}, s79, v6
        v_and_b32 v7, 27, v0
        v_cmp_eq_u32 vcc, 16, v7
        v_mov_b32 v7, 0x3f803f80
        v_mov_b32 v{Z4}, 0
        v_cndmask_b32 v7, 0, v7, vcc
        v_mov_b32 v{Z4+1}, 0
        v_mov_b32 v{Z4+2}, 0
        v_mov_b32 v{Z4+3}, 0
        """)
        for i in range(32): a(f"v_mov_b32 v{VS+i}, v7")
        srd(a, 44, 8, 0x80000); srd(a, 36, 4, 0x200000)
    ldk = lambda st, so, off: f"buffer_load_dwordx4 {vr(KS+4*st,4)}, v{L16}, {WS}, {so} offen offset:{off} sc1"
    def ldv(st, so, off):
        return ["s_mov_b64 exec, s[72:73]",
                f"buffer_load_dwordx4 {vr(VS+8*st,4)}, v{VOF}, {WS}, {so} offen offset:{off} sc1",
                f"buffer_load_dwordx4 {vr(VS+8*st+4,4)}, v{VOF}, {WS}, {so} offen offset:{off+512} sc1",
                "s_mov_b64 exec, -1"]
    ldq = lambda j: f"buffer_load_dwordx4 {vr(Q+4*j,4)}, v{L16}, {WS}, s{68+j//2} offen offset:{(j%2)*1024} sc1"
    def att_loads():
        a(ldq(0)); a(ldk(0, "s70", 0)); a(ldq(1)); a(ldq(2)); a(ldq(3))
        for m in range(3):
            for x in ldv(m, "s71", m*1024): a(x)
            a(ldk(m+1, "s70", (m+1)*1024))
    att_setup()
    stamp(a, 13, 3)
    poll(a, L4, "s74", 6)
    stamp(a, 6); stamp(a, 14, 3)
    att_loads()
    a("s_setprio 1\ns_mov_b32 s83, 99\ns_branch B_start")

    a.label("A_helper")
    XV, WV = 2, 6
    a(f"""
    s_sub_u32 s63, s30, 4
    s_lshl_b32 s64, s57, 7
    s_lshl_b32 s65, s63, 5
    s_add_u32 s64, s64, s65
    v_lshrrev_b32 v10, 3, v0
    v_add_u32 v10, s64, v10
    v_lshlrev_b32 v10, 10, v10
    v_and_b32 v11, 7, v0
    v_lshrrev_b32 v12, 4, v0
    v_xor_b32 v13, v11, v12
    v_lshl_add_u32 v{XV}, v13, 4, v10
    v_xor_b32 v13, 4, v13
    v_lshl_add_u32 v{XV+1}, v13, 4, v10
    v_add_u32 v{XV+1}, 7168, v{XV+1}
    v_add_u32 v{XV+2}, {2*7168}, v{XV}
    v_add_u32 v{XV+3}, {2*7168}, v{XV+1}
    s_lshl_b32 s65, s63, 4
    v_lshrrev_b32 v10, 2, v0
    v_add_u32 v10, s65, v10
    v_mul_u32_u24 v10, 3072, v10
    v_and_b32 v11, 3, v0
    v_lshl_add_u32 v10, v11, 4, v10
    s_lshl_b32 s65, s58, 6
    v_add_u32 v{WV}, s65, v10
    s_lshl_b32 s66, s63, 12
    s_mul_i32 s67, s63, 3072
    s_add_u32 s67, s67, 16384
    s_lshl_b32 s68, s59, 1
    s_add_u32 s68, s68, s60
    s_waitcnt lgkmcnt(0)
    """)
    srd(a, 36, 4, 0x200000); srd(a, 40, 6, 0x180000)
    stamp(a, 1, 3)
    def dma(st):
        base = (st % 5) * SLOT
        a(f"s_add_u32 s69, s68, {st}\ns_and_b32 s69, s69, 7\ns_lshl_b32 s70, s69, 7\ns_add_u32 m0, s66, {base}\ns_mul_i32 s69, s69, 196608")
        for j in range(4): a(f"buffer_load_dwordx4 v{XV+j}, s[36:39], s70 offen offset:{j*1024} lds")
        a(f"s_add_u32 m0, s67, {base}\ns_nop 0")
        for j in range(3): a(f"buffer_load_dwordx4 v{WV}, s[40:43], s69 offen offset:{j*1024} lds")
        stamp(a, 2 + st, 3)
    dma(0); dma(1)
    srd(a, 32, 28, WS_BYTES); srd(a, 52, 26, 256); srd(a, 44, 12, 0x200000); srd(a, 48, 14, 0x200000)
    srd(a, 84, 16, 4096)
    KR, VR, SK, GOH = 16, 28, 36, 40
    a(f"""
    s_lshl_b32 s71, s31, 6
    s_lshl_b32 s72, s56, 1
    s_add_u32 s71, s71, s72
    s_lshr_b32 s72, s63, 1
    s_add_u32 s71, s71, s72
    s_lshl_b32 s72, s71, 12
    s_add_u32 s92, s18, s72
    s_addc_u32 s93, s19, 0
    s_mov_b32 s94, 4096
    s_mov_b32 s95, 0x20000
    s_lshl_b32 s72, s56, 16
    s_lshl_b32 s73, s63, 14
    s_add_u32 s72, s72, s73
    s_lshl_b32 s73, s31, 7
    s_add_u32 s72, s72, s73
    v_and_b32 v10, 31, v0
    v_lshrrev_b32 v11, 5, v0
    v_lshlrev_b32 v8, 13, v11
    v_lshl_add_u32 v8, v10, 2, v8
    v_add_u32 v8, s72, v8
    v_add_u32 v7, -3072, v8
    v_add_u32 v9, 4096, v8
    s_lshl_b32 s73, s31, 9
    v_lshl_add_u32 v12, v10, 4, s73
    v_lshlrev_b32 v13, 6, v0
    v_mov_b32 v14, 0
    v_mov_b32 v15, 1
    s_lshl_b32 s73, s63, 2
    s_add_u32 s73, s73, {L_XF}
    v_mov_b32 v44, s73
    ds_write_b32 v44, v14
    """)
    a("s_waitcnt vmcnt(7) lgkmcnt(0)\ns_barrier")
    dma(2)
    for i in range(3): a(f"buffer_load_dword v{KR+i}, v7, s[44:47], 0 offen offset:{i*1024}")
    for i in range(8): a(f"buffer_load_dword v{KR+3+i}, v{8+i//4}, s[44:47], 0 offen offset:{(i%4)*1024}")
    for i in range(8): a(f"buffer_load_dword v{VR+i}, v{8+i//4}, s[48:51], 0 offen offset:{(i%4)*1024}")
    a(f"buffer_load_dwordx4 {vr(SK,4)}, v12, s[84:87], 0 offen")
    a(f"buffer_load_dword v45, v13, s[92:95], 0 offen")
    a("s_waitcnt vmcnt(28)\ns_barrier")
    dma(3)
    a("s_waitcnt vmcnt(28)\ns_barrier")
    dma(4)
    a("s_waitcnt vmcnt(14)")
    KF, VF, SF, U, PK = 48, 70, 86, 94, 16
    a("s_mov_b32 s74, 0xffff0000")
    for i in range(11): a(f"v_lshlrev_b32 v{KF+2*i}, 16, v{KR+i}\nv_and_b32 v{KF+2*i+1}, s74, v{KR+i}")
    for i in range(8): a(f"v_lshlrev_b32 v{VF+2*i}, 16, v{VR+i}\nv_and_b32 v{VF+2*i+1}, s74, v{VR+i}")
    for ch in range(2):
        for t in range(4):
            src = SK + 2*ch + t//2
            a(f"v_lshlrev_b32 v{SF+2*t+ch}, 16, v{src}" if t % 2 == 0 else f"v_and_b32 v{SF+2*t+ch}, s74, v{src}")
    a("s_waitcnt vmcnt(7)\ns_barrier")
    dma(5)
    for i in range(8):
        u = vr(U+2*i, 2)
        a(f"v_pk_mul_f32 {u}, {vr(KF+2*i,2)}, {vr(SF+6,2)}")
        for t in (2, 1, 0): a(f"v_pk_fma_f32 {u}, {vr(KF+2*(i+3-t),2)}, {vr(SF+2*t,2)}, {u}")
        a(f"v_pk_mul_f32 {u}, {u}, {vr(VF+2*i,2)}")
    for ch in range(2):
        for i in range(4): a(f"v_cvt_pk_bf16_f32 v{PK+4*ch+i}, v{U+2*(7-2*i)+ch}, v{U+2*(6-2*i)+ch}")
    a(f"""
    s_lshl_b32 s75, s63, 1
    v_add_u32 v12, s75, v11
    v_sub_u32 v12, 7, v12
    v_and_b32 v13, 7, v10
    v_xor_b32 v12, v12, v13
    v_lshlrev_b32 v12, 4, v12
    v_lshl_add_u32 v12, v10, 8, v12
    v_add_u32 v12, {TB}, v12
    ds_write_b128 v12, {vr(PK,4)}
    ds_write_b128 v12, {vr(PK+4,4)} offset:128
    s_waitcnt vmcnt(7) lgkmcnt(0)
    s_barrier
    """)
    dma(6)
    a(f"""
    s_lshl_b32 s75, s63, 11
    s_add_u32 s75, s75, {TB}
    v_lshl_add_u32 v12, v0, 4, s75
    ds_read_b128 {vr(PK,4)}, v12
    ds_read_b128 {vr(PK+4,4)}, v12 offset:1024
    v_lshrrev_b32 v12, 3, v0
    v_lshlrev_b32 v12, 12, v12
    v_lshrrev_b32 v13, 4, v0
    v_and_b32 v46, 7, v0
    v_xor_b32 v13, v13, v46
    v_lshl_add_u32 v46, v13, 4, v12
    v_xor_b32 v13, 4, v13
    v_lshl_add_u32 v47, v13, 4, v12
    s_lshl_b32 s75, s31, 18
    s_lshl_b32 s76, s63, 16
    s_add_u32 s75, s75, s76
    s_lshl_b32 s76, s56, 7
    s_sub_u32 s75, s75, s76
    s_add_u32 s75, s75, {UW + 248*16}
    s_add_u32 s76, s75, 0x8000
    s_lshl_b32 s77, s31, 2
    s_add_u32 s77, s77, s63
    s_lshl_b32 s77, s77, 5
    s_add_u32 s77, s77, s56
    s_lshl_b32 s77, s77, 2
    s_add_u32 s77, s77, {UF}
    s_waitcnt lgkmcnt(0)
    buffer_store_dwordx4 {vr(PK,4)}, v46, {WS}, s75 offen sc1
    buffer_store_dwordx4 {vr(PK+4,4)}, v47, {WS}, s76 offen sc1
    buffer_load_dwordx4 {vr(GOH,4)}, v14, s[52:55], 0 offen sc1
    """)
    a("s_waitcnt vmcnt(10)\ns_barrier")
    dma(7)
    a("s_waitcnt vmcnt(10)\ns_barrier\ns_waitcnt vmcnt(7)")
    go_check(a, GOH, 14)
    set_flag(a, 15, 14, "s77")
    a("s_waitcnt vmcnt(1)\ns_barrier")
    stamp(a, 1)
    CA, AB, B0, B1, DF = 32, 64, 128, 208, 240
    BBUF = [B0, B1]
    a(f"""
    s_setprio 2
    s_mov_b32 s91, s71
    s_and_b32 s88, s91, -2
    s_lshl_b32 s88, s88, 1
    s_load_dword s89, s[20:21], s88
    s_mul_i32 s82, s63, {PRIV}
    s_add_u32 s82, s82, {L_PRIV}
    s_and_b32 s81, s63, 1
    s_lshl_b32 s81, s81, 8
    s_lshr_b32 s88, s91, 4
    s_lshl_b32 s88, s88, 7
    s_add_u32 s88, s88, {UF}
    v_lshlrev_b32 v1, 2, v10
    v_and_b32 v8, 15, v0
    v_lshrrev_b32 v9, 4, v0
    v_lshlrev_b32 v10, 4, v9
    v_lshl_add_u32 v11, v8, 2, v10
    s_sub_u32 s80, s81, 60
    v_add_u32 v11, s80, v11
    v_add_u32 v12, 4, v11
    v_add_u32 v13, 8, v11
    v_add_u32 v14, 12, v11
    v_add_u32 v15, 512, v11
    """)
    def lda(rr):
        b = AB + 32 * (rr % 2)
        o = []
        if rr == 0:
            for i in range(4): o.append(f"buffer_load_dword v{b+i}, v{11+i}, s[92:95], 0 offen")
        else:
            o.append(f"buffer_load_dwordx4 {vr(b,4)}, v12, s[92:95], 0 offen offset:{64*(rr-1)}")
        for aa in range(1, 8):
            o.append(f"buffer_load_dwordx4 {vr(b+4*aa,4)}, v15, s[92:95], 0 offen offset:{512*(aa-1)+64*rr}")
        return o
    ldb = lambda rr: [f"ds_read_b128 {vr(BBUF[rr%2]+4*bb,4)}, v1 offset:{64*rr+512*(7-bb)}" for bb in range(8)]
    for x in lda(0): a(x)
    a("v_add_u32 v12, 64, v11\ns_barrier")
    poll(a, 1, "s88", 6)
    stamp(a, 2)
    a(f"""
    s_lshl_b32 s88, s91, 12
    s_add_u32 s88, s88, {UW}
    v_lshlrev_b32 v6, 4, v0
    v_add_u32 v7, 2, v6
    """)
    for q in range(4): a(f"buffer_load_dwordx4 {vr(B0+4*q,4)}, v7, {WS}, s88 offen offset:{q*1024} sc1")
    for q in range(4): a(f"buffer_load_dwordx4 {vr(B0+16+4*q,4)}, v6, {WS}, s88 offen offset:{q*1024} sc1")
    for x in lda(1): a(x)
    a(f"""
    v_and_b32 v17, 31, v0
    v_min_u32 v17, 29, v17
    v_lshlrev_b32 v17, 4, v17
    v_lshrrev_b32 v18, 5, v0
    v_mul_u32_u24 v18, {USZ}, v18
    v_add3_u32 v17, v17, v18, s82
    v_add_u32 v18, s82, v6
    v_and_b32 v19, 1, v0
    v_mul_u32_u24 v19, {USZ}, v19
    v_bfe_u32 v20, v0, 1, 3
    v_lshlrev_b32 v20, 6, v20
    v_sub_u32 v19, v19, v20
    s_add_u32 s88, s82, 448
    s_add_u32 s88, s88, s81
    v_add3_u32 v1, v19, v10, s88
    v_lshl_add_u32 v19, v9, 2, v8
    v_cmp_eq_u32 vcc, 63, v0
    v_mov_b32 v21, 0xffff
    s_waitcnt lgkmcnt(0)
    v_cndmask_b32 v21, -1, v21, vcc
    s_and_b32 s88, s91, 1
    s_lshl_b32 s88, s88, 4
    s_lshr_b32 s89, s89, s88
    s_and_b32 s89, s89, 0xffff
    v_mov_b32 v20, s89
    """)
    for i in range(4):
        a(f"v_cmp_eq_u32 vcc, {15-i}, v19\nv_mov_b32 v{CA+2*i}, 0\nv_mov_b32 v{CA+2*i+1}, 0\nv_cndmask_b32 v{DF+i}, 0, v20, vcc")
    for i in range(8, 32): a(f"v_mov_b32 v{CA+i}, 0")
    a(f"""
    ds_write_b128 v17, {vr(CA,4)} offset:4096
    s_waitcnt vmcnt(12)
    v_and_b32 v{B0+15}, v{B0+15}, v21
    """)
    for q in range(4): a(f"ds_write_b128 v18, {vr(B0+4*q,4)} offset:{q*1024}")
    a("s_waitcnt vmcnt(8)")
    for q in range(4): a(f"ds_write_b128 v18, {vr(B0+16+4*q,4)} offset:{USZ+q*1024}")
    a("s_waitcnt lgkmcnt(0)")
    stamp(a, 3)
    for x in ldb(0): a(x)
    for rr in range(4):
        ab, bb_ = AB + 32 * (rr % 2), BBUF[rr % 2]
        nb = ldb(rr + 1) if rr < 3 else []
        if rr < 3:
            a(f"s_waitcnt vmcnt({8 if rr < 2 else 9}) lgkmcnt(0)")
        else:
            a("s_waitcnt lgkmcnt(0)")
            poll(a, L4, "s74", 6, first_issued=True)
            att_loads()
        if rr == 0:
            a("s_cmp_lg_u32 s81, 0\ns_cbranch_scc1 CV_nodiag")
            for b in range(8): a(f"{M16} {vr(CA+4*b,4)}, {vr(DF,4)}, {vr(bb_+4*b,4)}, {vr(CA+4*b,4)}")
            a.label("CV_nodiag")
        cnt = 0
        na = lda(rr + 2) if rr < 2 else []
        for aa in range(8):
            for b in range(8 - aa):
                a(f"{M16} {vr(CA+4*(aa+b),4)}, {vr(ab+4*aa,4)}, {vr(bb_+4*b,4)}, {vr(CA+4*(aa+b),4)}")
                cnt += 1
                if cnt % 3 == 0 and nb: a(nb.pop(0))
            if na: a(na.pop(0))
        if rr == 1:
            att_setup()
            a(f"buffer_load_dword v6, v{L4}, {WS}, s74 offen sc1")
    stamp(a, 4)
    a(f"""
    s_sub_u32 s83, s30, 4
    s_xor_b32 s84, s83, 1
    s_mul_i32 s85, s84, {PRIV}
    s_add_u32 s85, s85, {L_PRIV}
    v_add_u32 v8, s82, v{L16}
    v_add_u32 v9, s85, v{L16}
    s_lshl_b32 s83, s83, 2
    s_lshl_b32 s84, s84, 2
    s_add_u32 s83, s83, {L_XF}
    s_add_u32 s84, s84, {L_XF}
    v_mov_b32 v10, s83
    v_mov_b32 v11, s84
    v_mov_b32 v12, 1
    s_bitcmp1_b32 s30, 0
    s_cbranch_scc1 CV_odd
    """)
    for n in range(4): a(f"ds_write_b128 v8, {vr(CA+16+4*n,4)} offset:{n*1024}")
    a("s_branch CV_xch")
    a.label("CV_odd")
    for n in range(4): a(f"ds_write_b128 v8, {vr(CA+4*n,4)} offset:{n*1024}")
    a("s_waitcnt lgkmcnt(0)")
    for i in range(16): a(f"v_mov_b32 v{CA+i}, v{CA+16+i}")
    a.label("CV_xch")
    a(f"""
    s_waitcnt lgkmcnt(0)
    ds_write_b32 v10, v12
    v_bfe_u32 v13, v0, 1, 3
    v_lshlrev_b32 v13, 15, v13
    v_and_b32 v14, 1, v0
    v_lshl_add_u32 v13, v14, 14, v13
    v_lshrrev_b32 v14, 5, v0
    v_lshl_add_u32 v13, v14, 13, v13
    v_bfe_u32 v14, v0, 4, 1
    v_lshl_add_u32 v13, v14, 3, v13
    s_and_b32 s83, s30, 1
    s_lshl_b32 s84, s83, 20
    s_lshl_b32 s85, s91, 4
    s_add_u32 s84, s84, s85
    s_add_u32 s84, s84, {YW}
    s_lshl_b32 s83, s83, 11
    s_lshl_b32 s85, s91, 2
    s_add_u32 s83, s83, s85
    s_add_u32 s83, s83, {YF_}
    s_mov_b32 s90, 0x100000
    """)
    a.label("CV_wait")
    a(f"""
    ds_read_b32 v14, v11
    s_waitcnt lgkmcnt(0)
    v_cmp_eq_u32 vcc, 1, v14
    s_sub_u32 s90, s90, 1
    s_cbranch_scc1 CV_go
    s_cmp_eq_u64 vcc, exec
    s_cbranch_scc0 CV_wait
    """)
    a.label("CV_go")
    for n in range(4): a(f"ds_read_b128 {vr(AB+4*n,4)}, v9 offset:{n*1024}")
    a("s_waitcnt lgkmcnt(0)")
    for n in range(4):
        for i in range(4): a(f"v_add_f32 v{CA+4*n+i}, v{CA+4*n+i}, v{AB+4*n+i}")
        a(f"v_cvt_pk_bf16_f32 v{B1+2*n}, v{CA+4*n}, v{CA+4*n+1}\nv_cvt_pk_bf16_f32 v{B1+2*n+1}, v{CA+4*n+2}, v{CA+4*n+3}")
        a(f"buffer_store_dwordx2 {vr(B1+2*n,2)}, v13, {WS}, s84 offen sc1")
        if n < 3: a("s_add_u32 s84, s84, 0x40000")
    a("s_waitcnt vmcnt(0)")
    set_flag(a, 12, Z4, "s83")
    stamp(a, 5); stamp(a, 6)
    a(f"s_mov_b32 s83, {DROP}")

    a.label("B_start")
    for j in range(4): a(f"{M32} {vr(ACC+16*j,16)}, {vr(Z4,4)}, {vr(Z4,4)}, 0")
    a(f"{M32} {vr(S+48,16)}, {vr(Z4,4)}, {vr(Z4,4)}, 0")
    a("""
    s_add_u32 s70, s70, 4096
    s_add_u32 s71, s71, 3072
    s_mov_b32 s84, 3
    """)
    qk = lambda j, st: f"{M32} {vr(S+16*j,16)}, {vr(KS+4*st,4)}, {vr(Q+4*j,4)}, 0"
    pv = lambda j, st, s: f"{SM} {vr(ACC+16*j,16)}, {vr(VS+8*st+4*s,4)}, {vr(S+16*j+8*s,8)}, v{IDX}"
    a("s_waitcnt vmcnt(12)"); a(qk(0, 0))
    a("s_waitcnt vmcnt(11)"); a(qk(1, 0))
    a("s_waitcnt vmcnt(9)\ns_nop 9")
    stamp(a, 7)
    wodma = lambda m: [f"s_add_u32 m0, s77, {m*1024}", f"s_add_u32 s85, s78, {m*16384}",
                       f"buffer_load_dwordx4 v{WOV}, s[44:47], s85 offen lds"]
    xdma = [f"s_lshl_b32 s85, s30, 10", f"s_add_u32 m0, s85, {L_X}", "s_nop 0", f"buffer_load_dwordx4 v{XOV}, s[36:39], 0 offen lds"]
    def body(last, extras):
        for m in range(4):
            for j in range(4):
                jp, mp = (j - 1) % 4, (m if j else (m - 1) % 4)
                ins = {}
                def put(p, x): ins.setdefault(p, []).extend(x if isinstance(x, list) else [x])
                if j == 1: put(1, f"s_waitcnt vmcnt({([9,6,4,3] if last else [8,9,10,10])[m]})")
                put(1, pv(jp, mp, 0))
                put(6, pv(jp, mp, 1))
                if j == 0 and (not last or m == 0): put(8, ldv((m + 3) % 4, "s71", m*1024))
                if not (last and m == 3 and j >= 2): put(11, qk((j + 2) % 4, m if j < 2 else (m + 1) % 4))
                if j == 1 and not last: put(13, ldk(m, "s70", m*1024))
                if j == 2 and m < 2: put(8, wodma(m))
                if j == 2 and m == 2 and last: put(8, xdma)
                for p, x in extras.get((m, j), []): put(p, x)
                for e in range(16):
                    for x in ins.get(e, []): a(x)
                    a(f"v_exp_f32 v{S+16*j+e}, v{S+16*j+e}")
    a(".p2align 6")
    a.label("B_loop")
    body(False, {(3, 1): [(14, ["s_add_u32 s77, s77, 2048", "s_add_u32 s78, s78, 32768"])],
                 (3, 2): [(14, ["s_add_u32 s70, s70, 4096", "s_add_u32 s71, s71, 4096", "s_sub_u32 s84, s84, 1"])],
                 (3, 3): [(3, ["s_cmp_lg_u32 s84, s83", "s_cbranch_scc1 B_keep", "s_setprio 0", "B_keep:"]), (14, "s_cmp_lg_u32 s84, 0")]})
    a("s_cbranch_scc1 B_loop")
    stamp(a, 8)
    a("s_cmp_lt_u32 s30, 4\ns_cbranch_scc0 B_young")
    body(True, {})
    a(f"""
    s_mul_i32 s85, s30, {4*PSL}
    s_add_u32 s85, s85, {L_OLD}
    {pv(3,3,0)}
    {pv(3,3,1)}
    v_add_u32 v6, s85, v{L16}
    v_add_u32 v7, s85, v{L4}
    """)
    stamp(a, 9)
    for j in range(4):
        if j == 3: a("s_nop 1")
        a(f"""
        ds_write_b128 v6, {vr(ACC+16*j,4)} offset:{j*PSL}
        ds_write_b128 v6, {vr(ACC+16*j+4,4)} offset:{j*PSL+1024}
        ds_write_b32 v7, v{ACC+16*j+8} offset:{j*PSL+2048}
        """)
    a("s_setprio 0\ns_waitcnt vmcnt(0) lgkmcnt(0)\ns_barrier\ns_barrier")
    stamp(a, 10)
    a("s_branch C_start")
    a.label("B_young")
    a(f"""
    s_and_b32 s85, s64, 1
    s_lshl_b32 s85, s85, 1
    s_lshl_b32 s86, s63, 2
    s_add_u32 s86, s86, s85
    s_mul_i32 s86, s86, {PSL}
    s_add_u32 s86, s86, {L_OLD}
    v_add_u32 v6, s86, v{L16}
    v_add_u32 v7, s86, v{L4}
    s_sub_u32 s86, s30, 4
    s_xor_b32 s87, s86, 2
    s_mul_i32 s86, s86, {PRIV}
    s_mul_i32 s87, s87, {PRIV}
    s_add_u32 s86, s86, {L_PRIV+4096}
    s_add_u32 s87, s87, {L_PRIV+4096}
    v_add_u32 v8, s86, v{L16}
    v_add_u32 v9, s86, v{L4}
    v_add_u32 v10, s87, v{L16}
    v_add_u32 v11, s87, v{L4}
    s_add_u32 s86, s65, s85
    s_lshl_b32 s88, s86, 6
    s_lshl_b32 s86, s86, 15
    s_lshl_b32 s87, s61, 10
    s_add_u32 s86, s86, s87
    s_add_u32 s86, s86, {OW}
    s_add_u32 s87, s86, 0x8000
    s_lshl_b32 s89, s61, 2
    s_add_u32 s88, s88, s89
    s_add_u32 s88, s88, {OF}
    """)
    PT = 208
    rdp = lambda dst, a16, a4, off: [f"ds_read_b128 {vr(dst,4)}, v{a16} offset:{off}", f"ds_read_b128 {vr(dst+4,4)}, v{a16} offset:{off+1024}",
                                     f"ds_read_b32 v{dst+8}, v{a4} offset:{off+2048}"]
    wrp = lambda j: [f"ds_write_b128 v8, {vr(ACC+16*j,4)} offset:{j*PSL}", f"ds_write_b128 v8, {vr(ACC+16*j+4,4)} offset:{j*PSL+1024}",
                     f"ds_write_b32 v9, v{ACC+16*j+8} offset:{j*PSL+2048}"]
    PA = [PT, PT+10, PT+20, VS+10]
    PB = [KS, VS]
    r0 = rdp(PA[0], 6, 7, 0); r1 = rdp(PA[1], 6, 7, 8*PSL); r2 = rdp(PA[2], 6, 7, PSL); r3 = rdp(PA[3], 6, 7, 9*PSL)
    w0, w1 = wrp(0), wrp(1)
    ex = {(3, 0): [(9, ["s_barrier", "s_setprio 2"]), (12, r0[0]), (13, r0[1]), (14, r0[2])],
          (3, 1): [(3, r1[0]), (4, r1[1]), (8, r1[2]), (9, r2[0]), (13, r2[1]), (14, r2[2])],
          (3, 2): [(2, r3[0]), (3, w0[0]), (4, r3[1]), (8, w0[1]), (9, r3[2]), (10, w0[2])],
          (3, 3): [(3, w1[0]), (4, w1[1]), (5, w1[2]), (10, ["s_waitcnt vmcnt(0) lgkmcnt(0)", "s_barrier"] + rdp(PB[0], 10, 11, 0)),
                   (12, rdp(PB[1], 10, 11, PSL))]}
    if DROPU >= 0: ex.setdefault((DROPU >> 2, DROPU & 3), []).append((15, "s_setprio 0"))
    body(True, ex)
    stamp(a, 9)
    for i in range(9): a(f"v_add_f32 v{PA[0]+i}, v{PA[0]+i}, v{PA[1]+i}")
    a(f"{pv(3,3,0)}\n{pv(3,3,1)}")
    for i in range(9): a(f"v_add_f32 v{PA[2]+i}, v{PA[2]+i}, v{PA[3]+i}")
    a("s_waitcnt lgkmcnt(0)")
    for i in range(9): a(f"v_add_f32 v{PA[0]+i}, v{PA[0]+i}, v{PB[0]+i}")
    for i in range(9): a(f"v_add_f32 v{PA[2]+i}, v{PA[2]+i}, v{PB[1]+i}")
    for jj in range(2):
        for i in range(9): a(f"v_add_f32 v{ACC+32+16*jj+i}, v{ACC+32+16*jj+i}, v{PA[2*jj]+i}")
    for jj in range(2):
        o = ACC + 32 + 16*jj
        a(f"v_fma_f32 v{12+jj}, v{o}, 0, v{o+8}")
        for i in range(1, 8): a(f"v_fma_f32 v{12+jj}, v{o+i}, 0, v{12+jj}")
    a(f"""
    v_cmp_lt_f32 vcc, {f32(2.0**-60)}, v12
    s_mov_b64 s[92:93], vcc
    v_cmp_gt_f32 vcc, {f32(2.0**60)}, v12
    s_and_b64 s[92:93], s[92:93], vcc
    v_cmp_lt_f32 vcc, {f32(2.0**-60)}, v13
    s_and_b64 s[92:93], s[92:93], vcc
    v_cmp_gt_f32 vcc, {f32(2.0**60)}, v13
    s_and_b64 s[92:93], s[92:93], vcc
    s_cmp_eq_u64 s[92:93], exec
    s_cbranch_scc0 B_slow
    """)
    a.label("B_fin")
    a(f"v_rcp_f32 v12, v{ACC+40}\nv_rcp_f32 v13, v{ACC+56}\nv_mov_b32 v14, 1")
    for jj in range(2):
        o = ACC + 32 + 16*jj
        for i in range(8): a(f"v_mul_f32 v{o+i}, v{o+i}, v{12+jj}")
        for i in range(4): a(f"v_cvt_pk_bf16_f32 v{PT+4*jj+i}, v{o+2*i}, v{o+2*i+1}")
        a(f"buffer_store_dwordx4 {vr(PT+4*jj,4)}, v{L16}, {WS}, s{86+jj} offen sc1")
    a("s_waitcnt vmcnt(0)")
    set_flag(a, 14, Z4, "s88")
    stamp(a, 10)

    a.label("C_start")
    WF, OB, AC, YA, YF, PM, XR, G, RD = 16, 80, 112, 144, 160, 168, 176, 180, 184
    a(f"""
    s_lshr_b32 s77, s75, 4
    s_lshl_b32 s77, s77, 11
    s_lshl_b32 s78, s76, 8
    s_add_u32 s77, s77, s78
    s_add_u32 s77, s77, {YF_}
    buffer_load_dword v6, v{L4}, {WS}, s77 offen sc1
    s_lshr_b32 s79, s64, 1
    s_and_b32 s80, s64, 1
    s_and_b32 s81, s76, 1
    s_lshl_b32 s81, s81, 12
    v_and_b32 v12, 31, v0
    v_lshrrev_b32 v13, 5, v0
    v_bfe_u32 v7, v0, 2, 2
    v_lshl_add_u32 v7, v13, 2, v7
    v_lshlrev_b32 v7, 6, v7
    v_bfe_u32 v8, v0, 4, 1
    v_xor_b32 v8, s80, v8
    v_lshl_add_u32 v7, v8, 5, v7
    v_and_b32 v8, 3, v0
    v_lshl_add_u32 v7, v8, 3, v7
    s_lshl_b32 s82, s79, 15
    s_lshl_b32 s83, s64, 13
    s_add_u32 s82, s82, s83
    s_add_u32 s82, s82, s81
    v_add_u32 v8, s82, v7
    v_xor_b32 v9, 4096, v8
    v_xor_b32 v10, 0x8000, v8
    v_xor_b32 v11, 0x9000, v8
    """)
    for ai in range(2):
        for j in range(8):
            for jj in range(2):
                a(f"ds_read_b64_tr_b16 {vr(WF+4*(8*ai+j)+2*jj,2)}, v{8+2*ai+j//4} offset:{(j%4)*1024+jj*512}")
            if j % 4 == 3: a("s_waitcnt lgkmcnt(4)")
    a(f"""
    v_bfe_u32 v7, v0, 1, 3
    s_lshl_b32 s82, s64, 1
    v_xor_b32 v7, s82, v7
    v_lshlrev_b32 v7, 4, v7
    v_lshl_add_u32 v7, v12, 7, v7
    v_lshl_add_u32 v7, v13, 3, v7
    s_lshl_b32 s82, s63, 12
    s_add_u32 s82, s82, {L_X}
    v_add_u32 v7, s82, v7
    v_xor_b32 v8, 16, v7
    ds_read_b64 {vr(XR,2)}, v7
    ds_read_b64 {vr(XR+2,2)}, v8
    s_lshl_b32 s84, s75, 1
    s_add_u32 s84, s84, s63
    s_lshl_b32 s85, s84, 15
    s_lshl_b32 s82, s76, 10
    s_add_u32 s82, s82, s85
    s_lshl_b32 s83, s79, 9
    s_add_u32 s82, s82, s83
    s_add_u32 s82, s82, {YW}
    s_add_u32 s83, s82, 16384
    s_lshl_b32 s86, s80, 4
    v_xor_b32 v7, s86, v12
    v_lshlrev_b32 v7, 4, v7
    v_lshl_add_u32 v7, v13, 13, v7
    """)
    poll(a, L4, "s77", 6, first_issued=True)
    a(f"""
    buffer_load_dwordx4 {vr(YF,4)}, v7, {WS}, s82 offen sc1
    buffer_load_dwordx4 {vr(YF+4,4)}, v7, {WS}, s83 offen sc1
    v_bfe_u32 v8, v0, 2, 2
    v_and_b32 v9, 1, v0
    v_lshl_or_b32 v8, v9, 2, v8
    v_bfe_u32 v9, v0, 4, 1
    v_xor_b32 v9, v9, v13
    v_lshl_or_b32 v8, v9, 3, v8
    v_bfe_u32 v9, v0, 1, 1
    v_lshlrev_b32 v9, 4, v9
    v_mov_b32 v10, 0x3f80
    v_lshlrev_b32 v9, v9, v10
    v_lshlrev_b32 v14, 2, v12
    s_lshl_b32 s77, s75, 7
    s_add_u32 s77, s77, {OF}
    s_lshl_b32 s86, s64, 13
    s_add_u32 s86, s86, s85
    s_add_u32 s86, s86, {OW}
    s_add_u32 s87, s86, s81
    s_xor_b32 s81, s81, 4096
    s_add_u32 s88, s86, s81
    s_lshl_b32 s89, s84, 7
    s_add_u32 s89, s89, {GW}
    s_mov_b32 s91, 0xffff0000
    """)
    for i in range(8):
        a(f"v_cmp_eq_u32 vcc, {i}, v8\ns_nop 1\nv_cndmask_b32 v{PM+i}, 0, v9, vcc")
    a(f"""
    s_waitcnt vmcnt(0) lgkmcnt(0)
    {M32} {vr(YA,16)}, {vr(YF,4)}, {vr(PM,4)}, 0
    {M32} {vr(YA,16)}, {vr(YF+4,4)}, {vr(PM+4,4)}, {vr(YA,16)}
    """)
    srd(a, 40, 24, 0x200000)
    a(f"""
    s_lshl_b32 s82, s63, 2
    s_add_u32 s82, s82, s64
    s_mul_i32 s83, s82, 6144
    s_add_u32 s83, s83, {L_RB}
    v_add_u32 v8, s83, v{L16}
    """)
    for r in (1, 2, 3):
        a(f"s_xor_b32 s83, s82, {r}\ns_mul_i32 s83, s83, 6144\ns_add_u32 s83, s83, {L_RB+(r-1)*2048}\nv_add_u32 v{8+r}, s83, v{L16}")
    a(f"""
    s_lshl_b32 s82, s76, 7
    s_add_u32 s85, s85, s82
    s_lshl_b32 s82, s64, 5
    s_add_u32 s85, s85, s82
    v_lshlrev_b32 v7, 10, v12
    v_lshl_add_u32 v7, v13, 4, v7
    """)
    for i in range(4):
        a(f"v_lshlrev_b32 v12, 16, v{XR+i}\nv_and_b32 v13, s91, v{XR+i}\nv_mul_f32 v{YA+2*i}, v{YA+2*i}, v12\nv_mul_f32 v{YA+2*i+1}, v{YA+2*i+1}, v13")
    stamp(a, 11)
    poll(a, 14, "s77", 6)
    stamp(a, 12)
    for j in range(8): a(f"buffer_load_dwordx4 {vr(OB+4*j,4)}, v{L16}, {WS}, s{87+j//4} offen offset:{(j%4)*1024} sc1")
    a(f"buffer_load_dword v{G}, v14, {WS}, s89 offen sc1")
    for j in range(8):
        a(f"s_waitcnt vmcnt({8-j})")
        for ai in range(2):
            a(f"{M32} {vr(AC+16*ai,16)}, {vr(WF+4*(8*ai+j),4)}, {vr(OB+4*j,4)}, {'0' if j == 0 else vr(AC+16*ai,16)}")
    a(f"s_waitcnt vmcnt(0)\nv_sub_f32 v{G+1}, 1.0, v{G}")
    for i in range(8): a(f"v_mul_f32 v{YA+i}, v{YA+i}, v{G+1}")
    stamp(a, 13)
    a("s_nop 0")
    for r in (1, 2, 3):
        a(f"ds_write_b128 v{8+r}, {vr(AC+8*r,4)}\nds_write_b128 v{8+r}, {vr(AC+8*r+4,4)} offset:1024")
    a("s_waitcnt lgkmcnt(0)\ns_barrier")
    for r in range(6): a(f"ds_read_b128 {vr(RD+4*r,4)}, v8 offset:{r*1024}")
    for r in range(3):
        a(f"s_waitcnt lgkmcnt({4-2*r})")
        for i in range(8): a(f"v_add_f32 v{AC+i}, v{AC+i}, v{RD+8*r+i}")
    for i in range(8): a(f"v_fma_f32 v{AC+i}, v{AC+i}, v{G}, v{YA+i}")
    for i in range(4): a(f"v_cvt_pk_bf16_f32 v{OB+i}, v{AC+2*i}, v{AC+2*i+1}")
    a(f"""
    s_nop 0
    v_permlane32_swap_b32 v{OB}, v{OB+2}
    v_permlane32_swap_b32 v{OB+1}, v{OB+3}
    buffer_store_dwordx4 {vr(OB,4)}, v7, s[40:43], s85 offen
    """)
    stamp(a, 14)
    if STAMP: a("s_waitcnt vmcnt(0)")
    stamp(a, 15); stamp_flush(a)
    a("s_endpgm")

    a.label("B_slow")
    a(f"""
    s_add_u32 s70, s66, {KW}
    s_add_u32 s71, s66, {VW}
    s_mov_b32 s84, 0
    v_mov_b32 v12, 0xff800000
    v_mov_b32 v13, 0xff800000
    """)
    a.label("B_slow1")
    a(f"""
    s_add_u32 s85, s70, s84
    {ldk(0, "s85", 0)}
    s_waitcnt vmcnt(0)
    {M32} {vr(S,16)}, {vr(KS,4)}, {vr(Q+8,4)}, 0
    {M32} {vr(S+16,16)}, {vr(KS,4)}, {vr(Q+12,4)}, 0
    s_nop 11
    """)
    for jj in range(2):
        for i in range(8): a(f"v_max3_f32 v{12+jj}, v{S+16*jj+2*i}, v{S+16*jj+2*i+1}, v{12+jj}")
    a("""
    s_add_u32 s84, s84, 1024
    s_cmp_lt_u32 s84, 0x10000
    s_cbranch_scc1 B_slow1
    v_mov_b32 v14, v12
    v_mov_b32 v15, v13
    s_nop 1
    v_permlane32_swap_b32 v12, v14
    v_permlane32_swap_b32 v13, v15
    v_max_f32 v12, v12, v14
    v_max_f32 v13, v13, v15
    s_mov_b32 s84, 0
    """)
    for jj in range(2):
        for i in range(16): a(f"v_sub_f32 v{S+32+16*jj+i}, 0, v{12+jj}\nv_mov_b32 v{ACC+32+16*jj+i}, 0")
    for i in range(8): a(f"v_mov_b32 v{VS+i}, 0x3f803f80")
    a.label("B_slow2")
    a(f"s_add_u32 s85, s70, s84\ns_add_u32 s89, s71, s84\n{ldk(0, 's85', 0)}")
    for x in ldv(0, "s89", 0): a(x)
    a(f"""
    s_waitcnt vmcnt(0)
    {M32} {vr(S,16)}, {vr(KS,4)}, {vr(Q+8,4)}, {vr(S+32,16)}
    {M32} {vr(S+16,16)}, {vr(KS,4)}, {vr(Q+12,4)}, {vr(S+48,16)}
    s_nop 11
    """)
    for i in range(32): a(f"v_exp_f32 v{S+i}, v{S+i}")
    a("s_nop 1")
    for jj in range(2):
        for s in range(2):
            a(f"{SM} {vr(ACC+32+16*jj,16)}, {vr(VS+4*s,4)}, {vr(S+16*jj+8*s,8)}, v{IDX}")
    a("""
    s_add_u32 s84, s84, 1024
    s_cmp_lt_u32 s84, 0x10000
    s_cbranch_scc1 B_slow2
    s_nop 11
    s_branch B_fin
    """)
    a.label("K_end")
    a("s_endpgm")
    return a

def build():
    ref = open(f"cdna_kernels/{NAME}.s.ref").read().split("\n")
    head = [l for l in ref if l.startswith(";") and "@launch" not in l]
    t = kernel().text()
    bad = check(t)
    out = "\n".join(head) + f"\n; @launch grid=(256,1,1) block=(512,1,1) lds={LDS}\n"
    out += f'.amdgcn_target "amdgcn-amd-amdhsa--gfx950"\n.text\n.globl {NAME}_kernel\n.p2align 8\n.type {NAME}_kernel,@function\n' + t
    out += f""".section .rodata,"a"
.p2align 6
.amdhsa_kernel {NAME}_kernel
  .amdhsa_next_free_vgpr 256
  .amdhsa_next_free_sgpr 102
  .amdhsa_accum_offset 256
  .amdhsa_group_segment_fixed_size 0
  .amdhsa_kernarg_size 104
  .amdhsa_user_sgpr_count 2
  .amdhsa_user_sgpr_kernarg_segment_ptr 1
  .amdhsa_system_sgpr_workgroup_id_x 1
  .amdhsa_float_denorm_mode_32 3
.end_amdhsa_kernel
"""
    return out, bad

if __name__ == "__main__":
    out, bad = build()
    for b in bad: print("HAZARD", b)
    path = sys.argv[1] if len(sys.argv) > 1 else "fused.s"
    open(path, "w").write(out)
    print("wrote", path, len(out), "bytes;", len(bad), "hazards; lds", LDS)
```

```python
import sys
src, dst, wave, st, mode = sys.argv[1], sys.argv[2], int(sys.argv[3]), int(sys.argv[4]), sys.argv[5]
NAME = "gated_mix__mha_block__ssm_conv_h3__prompt"
TW = 0xF00000
s = open(src).read()
line = [l for l in s.split("\n") if l.startswith("; @launch")][0]
s = s.replace(line, line.replace("@launch ", f"@launch kernel={NAME}_kernel ") + "\n; @launch kernel=probe_kernel grid=(1,1,1) block=(256,1,1) lds=64")
op = {"min": "ds_min_u32", "max": "ds_max_u32", "avg": "ds_add_u32"}[mode]
k = f""".globl probe_kernel
.p2align 8
.type probe_kernel,@function
probe_kernel:
    s_cmp_ge_u32 s2, 1
    s_cbranch_scc1 P_end
    s_load_dwordx2 s[4:5], s[0:1], 96
    s_mov_b32 s6, 0x1400000
    s_mov_b32 s7, 0x20000
    v_lshlrev_b32 v1, 11, v0
    s_mov_b32 s8, {TW}
    s_mov_b32 s9, {TW + wave*256 + st*8}
    v_mov_b32 v5, 0
    v_mov_b32 v6, -1
    v_mov_b32 v7, {-1 if mode == 'min' else 0}
    ds_write_b64 v5, v[6:7]
    s_waitcnt lgkmcnt(0)
    s_barrier
    buffer_load_dword v3, v1, s[4:7], s8 offen offset:4
    buffer_load_dword v4, v1, s[4:7], s9 offen offset:4
    s_waitcnt vmcnt(0)
    ds_min_u32 v5, v3
    s_waitcnt lgkmcnt(0)
    s_barrier
    ds_read_b32 v6, v5
    s_waitcnt lgkmcnt(0)
    v_sub_u32 v4, v4, v6
    {op} v5, v4 offset:4
    s_waitcnt lgkmcnt(0)
    s_barrier
    ds_read_b64 v[6:7], v5
    s_waitcnt lgkmcnt(0)
    v_readfirstlane_b32 s10, v6
    v_readfirstlane_b32 s11, v7
    s_lshr_b32 s11, s11, {8 if mode == 'avg' else 0}
    s_min_u32 s11, s11, 10000
    s_add_u32 s11, s11, 6000
P_loop:
    s_memrealtime s[12:13]
    s_waitcnt lgkmcnt(0)
    s_sub_u32 s12, s12, s10
    s_cmp_gt_u32 s12, 100000
    s_cbranch_scc1 P_end
    s_cmp_lt_u32 s12, s11
    s_cbranch_scc1 P_loop
P_end:
    s_endpgm
"""
s = s.replace('.section .rodata,"a"\n', k + '.section .rodata,"a"\n')
s += """.p2align 6
.amdhsa_kernel probe_kernel
  .amdhsa_next_free_vgpr 16
  .amdhsa_next_free_sgpr 32
  .amdhsa_accum_offset 16
  .amdhsa_group_segment_fixed_size 0
  .amdhsa_kernarg_size 104
  .amdhsa_user_sgpr_count 2
  .amdhsa_user_sgpr_kernarg_segment_ptr 1
  .amdhsa_system_sgpr_workgroup_id_x 1
.end_amdhsa_kernel
"""
open(dst, "w").write(s)
```

```python
import os, sys, struct
from asmlib import Asm, vr, sr, check

NAME = "gated_mix__mha_block__ssm_conv_h3__prompt"
KW, VW, UW, YW, OW, GW = 0x200000, 0x400000, 0x600000, 0x840000, 0xA80000, 0xE00000
CST = 4352
FW = 0xE10000
FS = 256
QF, UF, YF_, OF = FW, FW + 4, FW + 8, FW + 12
WS_BYTES = 0xE60000
M32 = "v_mfma_f32_32x32x16_bf16"
M16 = "v_mfma_f32_16x16x32_bf16"
SM = "v_smfmac_f32_32x32x32_bf16"
LOG2E = 1.4426950408889634
STAMP = int(os.environ.get("STAMP", "0"))
env = lambda k, d: type(d)(os.environ.get(k, d))
HP0 = env("HP0", 1)
DROP = env("DROP", 99)
NS = env("NS", 3)
SPFQ = env("SPFQ", 1)
SPFU = env("SPFU", 1)
CDROP = env("CDROP", 1)
OUTF = env("OUTF", "")
WQ1 = env("WQ1", 4)
NOY = env("NOY", 0)
OPOLL = env("OPOLL", "all")
CDT = env("CDT", 2)
KFG = env("KFG", 20)
CVP = env("CVP", 2)
QS = env("QS", -1)
TOUCH = env("TOUCH", 0)
SPF = env("SPF", 1)
NT_U = env("NT_U", "nt")
NT_O = env("NT_O", "")
TW = 0xF00000
SPIN = 40000

SLOT = 24576
L_X = 65536
L_PRIV = 73728
USZ = 4576
PRIV = 2 * USZ
PSL = 2176
L_OLD = L_PRIV + 4 * PRIV
L_YNG = L_OLD + 16 * PSL
L_XF = L_YNG + 8 * PSL
L_WQ = L_OLD
L_QX = L_YNG
TB = L_QX + 8192
L_RB = L_OLD
LDS = L_XF + 256

def f32(x):
    return "0x%08x" % struct.unpack("<I", struct.pack("<f", x))[0]

def srd(a, d, b, nbytes):
    a(f"s_mov_b32 s{d}, s{b}\ns_mov_b32 s{d+1}, s{b+1}\ns_mov_b32 s{d+2}, {hex(nbytes)}\ns_mov_b32 s{d+3}, 0x20000")

def stamp(a, i, mode=1):
    if not STAMP or (STAMP != mode and i not in (0, 15)): return
    a(f"""
    s_memtime s[96:97]
    s_memrealtime s[98:99]
    s_waitcnt lgkmcnt(0)
    v_writelane_b32 v255, s96, {2*i}
    v_writelane_b32 v255, s98, {2*i+1}
    """)
def stamp_flush(a):
    if not STAMP: return
    a(f"""
    s_lshl_b32 s96, s2, 3
    s_add_u32 s96, s96, s30
    s_lshl_b32 s96, s96, 8
    s_add_u32 s96, s96, {TW}
    s_mov_b32 s34, 0x1400000
    v_lshlrev_b32 v254, 2, v0
    buffer_store_dword v255, v254, s[32:35], s96 offen
    """)

WS = "s[32:35]"
_uid = [0]
def poll(a, voff, soff, tmp, first_issued=False):
    _uid[0] += 1
    L = f"POLL{_uid[0]}"
    a(f"s_mov_b32 s90, {SPIN}")
    if first_issued: a(f"s_branch {L}_chk")
    a.label(L)
    a(f"buffer_load_dword v{tmp}, v{voff}, {WS}, {soff} offen sc1")
    a.label(f"{L}_chk")
    a(f"""
    s_waitcnt vmcnt(0)
    v_cmp_eq_u32 vcc, 1, v{tmp}
    s_sub_u32 s90, s90, 1
    s_cbranch_scc1 {L}_out
    s_cmp_eq_u64 vcc, exec
    s_cbranch_scc0 {L}
    """)
    a.label(f"{L}_out")

def go_check(a, g, vz):
    _uid[0] += 1
    L = f"GO{_uid[0]}"
    a(f"s_mov_b32 s90, {SPIN}")
    a.label(L)
    a(f"""
    v_and_b32 v{g}, v{g}, v{g+1}
    v_and_b32 v{g+2}, v{g+2}, v{g+3}
    v_and_b32 v{g}, v{g}, v{g+2}
    v_cmp_eq_u32 vcc, 1, v{g}
    s_sub_u32 s90, s90, 1
    s_cbranch_scc1 {L}_out
    s_cmp_eq_u64 vcc, exec
    s_cbranch_scc1 {L}_out
    buffer_load_dwordx4 {vr(g,4)}, v{vz}, s[52:55], 0 offen sc1
    s_waitcnt vmcnt(0)
    s_branch {L}
    """)
    a.label(f"{L}_out")

def lds_wait(a, vaddr, off, n, tmp):
    _uid[0] += 1
    L = f"LW{_uid[0]}"
    a("s_mov_b32 s90, 0x400000")
    a.label(L)
    if n == 1:
        a(f"ds_read_b32 v{tmp}, v{vaddr} offset:{off}\ns_waitcnt lgkmcnt(0)")
    else:
        a(f"""
        ds_read_b128 {vr(tmp,4)}, v{vaddr} offset:{off}
        s_waitcnt lgkmcnt(0)
        v_and_b32 v{tmp}, v{tmp}, v{tmp+1}
        v_and_b32 v{tmp+2}, v{tmp+2}, v{tmp+3}
        v_and_b32 v{tmp}, v{tmp}, v{tmp+2}
        """)
    a(f"""
    v_cmp_eq_u32 vcc, 1, v{tmp}
    s_sub_u32 s90, s90, 1
    s_cbranch_scc1 {L}_out
    s_cmp_eq_u64 vcc, exec
    s_cbranch_scc0 {L}
    """)
    a.label(f"{L}_out")

def shared_poll(a, leader, voff, soff, tmp, vx, word, second=None):
    _uid[0] += 1
    L = f"SP{_uid[0]}"
    a(f"s_cmp_lg_u32 s30, {leader}\ns_cbranch_scc1 {L}_f")
    if second: poll(a, second[0], second[1], tmp)
    poll(a, voff, soff, tmp)
    a(f"v_mov_b32 v{tmp}, 1\nds_write_b32 v{vx}, v{tmp} offset:{4*word}\ns_branch {L}_d")
    a.label(f"{L}_f")
    lds_wait(a, vx, 4 * word, 1, tmp)
    a.label(f"{L}_d")

def arrive(a, vx, one, vz, k, tmp):
    _uid[0] += 1
    L = f"AR{_uid[0]}"
    a(f"""
    s_mov_b64 exec, 1
    ds_add_rtn_u32 v{tmp}, v{vx}, v{one} offset:{128+4*k}
    s_waitcnt lgkmcnt(0)
    v_cmp_eq_u32 vcc, 3, v{tmp}
    s_nop 4
    s_cbranch_vccz {L}
    buffer_store_dword v{one}, v{vz}, {WS}, s62 offen offset:{4*k} sc1
    """)
    a.label(L)
    a("s_mov_b64 exec, -1")

def set_flag(a, one, vz, soff):
    a(f"""
    s_mov_b64 exec, 1
    buffer_store_dword v{one}, v{vz}, {WS}, {soff} offen sc1
    s_mov_b64 exec, -1
    """)

def kernel():
    a = Asm()
    a.label(f"{NAME}_kernel")
    a("""
    s_cmp_ge_u32 s2, 256
    s_cbranch_scc1 K_end
    s_load_dwordx8 s[4:11], s[0:1], 0
    s_load_dwordx16 s[12:27], s[0:1], 32
    s_load_dwordx2 s[28:29], s[0:1], 96
    v_lshrrev_b32 v1, 6, v0
    v_and_b32 v0, 63, v0
    s_and_b32 s31, s2, 7
    v_readfirstlane_b32 s30, v1
    s_lshr_b32 s56, s2, 3
    s_lshr_b32 s57, s31, 1
    s_lshl_b32 s57, s57, 2
    s_lshr_b32 s59, s56, 3
    s_add_u32 s57, s57, s59
    s_and_b32 s58, s31, 1
    s_lshl_b32 s58, s58, 3
    s_and_b32 s60, s56, 7
    s_add_u32 s58, s58, s60
    s_and_b32 s61, s30, 1
    s_lshl_b32 s62, s58, 1
    s_add_u32 s61, s61, s62
    s_lshl_b32 s62, s2, 8
    s_add_u32 s62, s62, FLAGBASE
    """.replace("FLAGBASE", str(FW)))
    if STAMP: a("v_mov_b32 v255, 0")
    stamp(a, 0)
    a("s_cmp_ge_u32 s30, 4\ns_cbranch_scc1 A_helper")

    Q, ACC, S, KS, VS = 16, 32, 96, 160, 176
    IDX, L16, VOF, L4, L4H, WOV, XOV, Z4, XW, KFV = 2, 3, 4, 5, 243, 244, 245, 248, 252, 241
    def att_setup():
        a(f"""
        s_and_b32 s63, s30, 1
        s_lshr_b32 s64, s30, 1
        s_lshl_b32 s65, s57, 2
        s_lshl_b32 s66, s61, 16
        s_lshl_b32 s67, s63, 12
        s_add_u32 s67, s67, {L_QX}
        s_cmp_eq_u32 s64, 0
        s_cselect_b32 s68, 2048, 0
        s_xor_b32 s69, s68, 2048
        s_add_u32 s68, s68, s67
        s_add_u32 s69, s69, s67
        s_lshl_b32 s70, s64, 14
        s_add_u32 s70, s70, s66
        s_add_u32 s71, s70, {VW}
        s_add_u32 s70, s70, {KW}
        s_mov_b32 s72, 0xffff
        s_mov_b32 s73, 0xffff
        s_lshl_b32 s74, s60, 3
        s_lshr_b32 s75, s58, 3
        s_add_u32 s74, s74, s75
        s_lshl_b32 s74, s74, 8
        s_add_u32 s74, s74, {QF}
        s_lshl_b32 s75, s31, 2
        s_lshr_b32 s76, s56, 3
        s_add_u32 s75, s75, s76
        s_and_b32 s76, s56, 7
        s_lshl_b32 s77, s63, 15
        s_lshl_b32 s78, s64, 13
        s_add_u32 s77, s77, s78
        s_lshl_b32 s78, s64, 17
        s_lshl_b32 s79, s76, 7
        s_add_u32 s78, s78, s79
        s_lshl_b32 s80, s63, 6
        s_add_u32 s78, s78, s80
        v_lshlrev_b32 v{L16}, 4, v0
        v_lshlrev_b32 v{L4}, 2, v0
        v_and_b32 v{L4H}, 0x7c, v{L4}
        v_and_b32 v6, 3, v0
        v_bfe_u32 v7, v0, 2, 2
        v_lshlrev_b32 v6, 14, v6
        v_lshl_add_u32 v{KFV}, v7, 9, v6
        v_and_b32 v6, 15, v0
        v_lshrrev_b32 v7, 5, v0
        v_lshlrev_b32 v6, 4, v6
        v_lshl_add_u32 v{VOF}, v7, 8, v6
        v_mov_b32 v{IDX}, 0xdddd
        v_lshrrev_b32 v6, 2, v0
        v_lshlrev_b32 v6, 10, v6
        v_and_b32 v7, 3, v0
        v_lshl_add_u32 v{WOV}, v7, 4, v6
        s_lshl_b32 s80, s75, 6
        s_lshl_b32 s81, s30, 3
        s_add_u32 s80, s80, s81
        v_lshrrev_b32 v6, 3, v0
        v_add_u32 v6, s80, v6
        v_lshlrev_b32 v6, 10, v6
        v_lshrrev_b32 v7, 4, v0
        s_lshl_b32 s81, s63, 2
        v_xor_b32 v7, s81, v7
        v_and_b32 v8, 7, v0
        v_xor_b32 v7, v7, v8
        v_lshl_add_u32 v6, v7, 4, v6
        v_add_u32 v{XOV}, s79, v6
        v_add_u32 v246, s68, v{L16}
        v_add_u32 v247, s69, v{L16}
        v_mov_b32 v{XW}, {L_XF}
        v_and_b32 v7, 27, v0
        v_cmp_eq_u32 vcc, 16, v7
        v_mov_b32 v7, 0x3f803f80
        v_mov_b32 v{Z4}, 0
        v_cndmask_b32 v7, 0, v7, vcc
        v_mov_b32 v{Z4+1}, 0
        v_mov_b32 v{Z4+2}, 0
        v_mov_b32 v{Z4+3}, 0
        v_mov_b32 v253, 1
        s_and_b32 s81, s30, 3
        s_lshl_b32 s81, s81, 2
        s_add_u32 s81, s81, {L_XF}
        v_mov_b32 v242, s81
        """)
        srd(a, 44, 8, 0x80000)
    ONE1, MYW = 253, 242
    def att_ones():
        for i in range(32): a(f"v_mov_b32 v{VS+i}, v7")
    ldk = lambda st, so, off: f"buffer_load_dwordx4 {vr(KS+4*st,4)}, v{L16}, {WS}, {so} offen offset:{off} sc1"
    def ldv(st, so, off):
        return ["s_mov_b64 exec, s[72:73]",
                f"buffer_load_dwordx4 {vr(VS+8*st,4)}, v{VOF}, {WS}, {so} offen offset:{off} sc1",
                f"buffer_load_dwordx4 {vr(VS+8*st+4,4)}, v{VOF}, {WS}, {so} offen offset:{off+512} sc1",
                "s_mov_b64 exec, -1"]
    def att_q():
        lds_wait(a, XW, 16, 4, Q)
        for j in range(4): a(f"ds_read_b128 {vr(Q+4*j,4)}, v{246+j//2} offset:{(j%2)*1024}")
    def att_loads():
        a(ldk(0, "s70", 0))
        for m in range(3):
            for x in ldv(m, "s71", m*1024): a(x)
            a(ldk(m+1, "s70", (m+1)*1024))

    XA, WA, ACA, XR_, FR, T = 2, 10, 20, 64, 192, 216
    GO, VZ, ONE, LN = 232, 236, 237, 238
    a(f"""
    v_and_b32 v17, 31, v0
    v_lshrrev_b32 v18, 5, v0
    v_bfe_u32 v19, v0, 1, 3
    v_xor_b32 v19, v19, v18
    s_lshl_b32 s63, s30, 12
    v_lshlrev_b32 v17, 7, v17
    v_lshl_add_u32 v17, v19, 4, v17
    v_add_u32 v{XA}, s63, v17
    v_mov_b32 v{VZ}, 0
    v_mov_b32 v{ONE}, 1
    """)
    for ks in range(1, 4): a(f"v_xor_b32 v{XA+ks}, {ks*32}, v{XA}")
    for ks in range(4): a(f"v_add_u32 v{XA+4+ks}, {2*SLOT}, v{XA+ks}")
    a(f"""
    v_bfe_u32 v17, v0, 2, 2
    v_lshl_add_u32 v17, v18, 3, v17
    v_lshlrev_b32 v17, 6, v17
    v_bfe_u32 v19, v0, 4, 1
    v_lshl_add_u32 v17, v19, 5, v17
    v_and_b32 v19, 3, v0
    v_lshl_add_u32 v17, v19, 3, v17
    v_add_u32 v{WA}, 16384, v17
    v_add_u32 v{WA+1}, {16384+2*SLOT}, v17
    v_add_u32 v{WA+2}, {L_WQ}, v17
    v_lshlrev_b32 v{LN}, 4, v0
    v_and_b32 v13, 0x33, v0
    v_bfe_u32 v14, v0, 2, 1
    v_lshl_or_b32 v13, v14, 3, v13
    v_bfe_u32 v14, v0, 3, 1
    v_lshl_or_b32 v13, v14, 2, v13
    v_lshlrev_b32 v13, 4, v13
    v_and_b32 v14, 15, v0
    v_lshlrev_b32 v14, 4, v14
    v_lshl_add_u32 v14, v18, 8, v14
    v_bfe_u32 v15, v0, 4, 1
    v_lshl_add_u32 v14, v15, 16, v14
    s_lshl_b32 s64, s30, 10
    s_add_u32 s64, s64, {L_QX}
    v_add_u32 v15, s64, v{LN}
    v_mov_b32 v20, 0
    v_mov_b32 v21, 0
    v_mov_b32 v22, 0
    v_mov_b32 v23, 0
    s_waitcnt lgkmcnt(0)
    """)
    srd(a, 32, 28, WS_BYTES); srd(a, 52, 26, 256); srd(a, 36, 4, 0x200000)
    a(f"""
    s_cmp_lg_u32 s2, 0
    s_cbranch_scc1 A_noclear
    s_lshl_b32 s64, s30, 14
    s_add_u32 s64, s64, {FW}
    v_lshlrev_b32 v24, 8, v0
    buffer_store_dwordx4 v[20:23], v24, {WS}, s64 offen sc1
    """)
    a(f"""
    s_lshl_b32 s73, s30, 2
    s_waitcnt vmcnt(0)
    s_mov_b64 exec, 1
    buffer_store_dword v{ONE}, v{VZ}, s[52:55], s73 offen sc1
    s_mov_b64 exec, -1
    """)
    a.label("A_noclear")
    if TOUCH:
        a(f"""
        s_lshl_b32 s66, s30, 13
        v_lshl_add_u32 v25, v0, 7, s66
        v_min_u32 v25, K_end-A_pc, v25
        s_getpc_b64 s[64:65]
        A_pc:
        global_load_dword v56, v25, s[64:65]
        """)
    a(f"""
    s_lshl_b32 s66, s58, 17
    s_lshl_b32 s65, s57, 2
    s_add_u32 s65, s65, s30
    s_lshl_b32 s65, s65, 10
    s_add_u32 s66, s66, s65
    s_add_u32 s68, s66, {VW}
    s_add_u32 s66, s66, {KW}
    s_add_u32 s67, s66, 0x10000
    s_mov_b32 s82, {f32(0.25*LOG2E)}
    s_barrier
    """)
    stamp(a, 1); stamp(a, 1, 3)
    def reads(g):
        st, ks = g >> 2, g & 3
        slot = st % NS
        bs, off = slot // 2, (slot % 2) * SLOT
        f = FR + 8 * (g % 3)
        r = [f"ds_read_b128 {vr(XR_+4*g,4)}, v{XA+4*bs+ks} offset:{off}"]
        for ty in range(2):
            for j in range(2):
                r.append(f"ds_read_b64_tr_b16 {vr(f+4*ty+2*j,2)}, v{WA+bs} offset:{off+ks*2048+ty*1024+j*256}")
        return r
    for r in reads(0) + reads(1): a(r)
    for g in range(32):
        nxt = reads(g + 2) if g + 2 < 32 else []
        if nxt and (g + 2) % 4 == 0:
            a("s_waitcnt lgkmcnt(0)\ns_barrier")
            stamp(a, 1 + (g + 2) // 4, 3)
        else:
            a(f"s_waitcnt lgkmcnt({5 if g < 31 else 0})")
        f, x = FR + 8 * (g % 3), XR_ + 4 * g
        a(f"{M32} {vr(ACA,16)}, {vr(f,4)}, {vr(x,4)}, {'0' if g == 0 else vr(ACA,16)}")
        for r in nxt[0:3]: a(r)
        a(f"{M32} {vr(ACA+16,16)}, {vr(x,4)}, {vr(f+4,4)}, {'0' if g == 0 else vr(ACA+16,16)}")
        for r in nxt[3:5]: a(r)
    stamp(a, 2); stamp(a, 9, 3)
    a("s_setprio 3\ns_nop 9")
    for i in range(8): a(f"v_cvt_pk_bf16_f32 v{T+i}, v{ACA+2*i}, v{ACA+2*i+1}")
    a(f"buffer_store_dwordx4 {vr(T,4)}, v13, {WS}, s66 offen sc1")
    a(f"buffer_store_dwordx4 {vr(T+4,4)}, v13, {WS}, s67 offen sc1")
    for i in range(8): a(f"v_cvt_pk_bf16_f32 v{T+8+i}, v{ACA+16+2*i}, v{ACA+16+2*i+1}")
    a(f"buffer_store_dwordx4 {vr(T+8,4)}, v14, {WS}, s68 offen sc1")
    a(f"buffer_store_dwordx4 {vr(T+12,4)}, v14, {WS}, s68 offen offset:512 sc1")
    a(f"buffer_load_dwordx4 {vr(GO,4)}, v{VZ}, s[52:55], 0 offen sc1\ns_barrier")
    stamp(a, 3); stamp(a, 10, 3)
    att_setup()
    def kvflag():
        a("s_waitcnt vmcnt(0)")
        go_check(a, GO, VZ)
        arrive(a, XW, ONE, VZ, 0, 6)
        stamp(a, 4); stamp(a, 12, 3)
    if QS < 0: kvflag()
    a("s_barrier")
    stamp(a, 11, 3)
    qrd = lambda g: [f"ds_read_b64_tr_b16 {vr(FR+4*(g%6)+2*j,2)}, v{WA+2} offset:{g*1024+j*256}" for j in range(2)]
    for g in range(5):
        for r in qrd(g): a(r)
    for g in range(32):
        if g == QS: kvflag()
        if g == KFG: a(f"buffer_load_dword v9, v{KFV}, {WS}, s74 offen sc1")
        a(f"s_waitcnt lgkmcnt({min(8, 2*(31-g))})")
        a(f"{M32} {vr(ACA,16)}, {vr(FR+4*(g%6),4)}, {vr(XR_+4*g,4)}, {'0' if g == 0 else vr(ACA,16)}")
        if g + 5 < 32:
            for r in qrd(g + 5): a(r)
    if QS == 32: kvflag()
    att_ones()
    for i in range(16): a(f"v_mul_f32 v{ACA+i}, s82, v{ACA+i}")
    for i in range(8): a(f"v_cvt_pk_bf16_f32 v{T+i}, v{ACA+2*i}, v{ACA+2*i+1}")
    a(f"""
    ds_write_b128 v15, {vr(T,4)}
    ds_write_b128 v15, {vr(T+4,4)} offset:4096
    s_waitcnt lgkmcnt(0)
    ds_write_b32 v{MYW}, v{ONE1} offset:16
    """)
    if QS > 32: kvflag()
    att_q()
    a(f"s_waitcnt lgkmcnt(0)\nds_write_b32 v{MYW}, v{ONE1} offset:80")
    stamp(a, 5); stamp(a, 13, 3)
    a(f"""
    s_waitcnt vmcnt(0)
    v_cmp_eq_u32 vcc, 1, v9
    s_nop 1
    s_cmp_eq_u64 vcc, exec
    s_cbranch_scc0 A_kvslow
    ds_write_b32 v{XW}, v{ONE1} offset:32
    s_branch A_kvok
    """)
    a.label("A_kvslow")
    shared_poll(a, 0, KFV, "s74", 6, XW, 8)
    a.label("A_kvok")
    stamp(a, 6); stamp(a, 14, 3)
    att_loads()
    a(f"s_setprio {2 if CDROP < 4 else 0}\ns_mov_b32 s83, {CDROP}\ns_mov_b32 s82, 99\ns_mov_b32 s92, s18\ns_mov_b32 s93, s19\ns_branch B_go")

    a.label("A_helper")
    XV, WV = 10, 14
    a(f"""
    s_setprio 1
    s_sub_u32 s63, s30, 4
    s_lshl_b32 s64, s57, 7
    s_lshl_b32 s65, s63, 5
    s_add_u32 s64, s64, s65
    v_lshrrev_b32 v2, 3, v0
    v_add_u32 v2, s64, v2
    v_lshlrev_b32 v2, 10, v2
    v_and_b32 v3, 7, v0
    v_lshrrev_b32 v4, 4, v0
    v_xor_b32 v5, v3, v4
    v_lshl_add_u32 v{XV}, v5, 4, v2
    v_xor_b32 v5, 4, v5
    v_lshl_add_u32 v{XV+1}, v5, 4, v2
    v_add_u32 v{XV+1}, 7168, v{XV+1}
    v_add_u32 v{XV+2}, {2*7168}, v{XV}
    v_add_u32 v{XV+3}, {2*7168}, v{XV+1}
    s_lshl_b32 s65, s63, 4
    v_lshrrev_b32 v2, 2, v0
    v_add_u32 v2, s65, v2
    v_mul_u32_u24 v2, 3072, v2
    v_and_b32 v3, 3, v0
    v_lshl_add_u32 v2, v3, 4, v2
    s_lshl_b32 s65, s58, 6
    v_add_u32 v{WV}, s65, v2
    s_lshl_b32 s84, s63, 12
    s_lshl_b32 s85, s63, 11
    s_add_u32 s85, s85, {16384-1024}
    s_lshl_b32 s86, s59, 1
    s_add_u32 s86, s86, s60
    s_waitcnt lgkmcnt(0)
    """)
    srd(a, 36, 4, 0x200000); srd(a, 40, 6, 0x180000)
    stamp(a, 1, 3)
    def dma(st):
        base = (st % NS) * SLOT
        a(f"s_add_u32 s87, s86, {st}\ns_and_b32 s87, s87, 7\ns_lshl_b32 s88, s87, 7\ns_add_u32 m0, s84, {base}\ns_mul_i32 s87, s87, 196608")
        for j in range(4): a(f"buffer_load_dwordx4 v{XV+j}, s[36:39], s88 offen offset:{j*1024} lds")
        a(f"s_add_u32 m0, s85, {base}\ns_nop 0")
        for j in (1, 2): a(f"buffer_load_dwordx4 v{WV}, s[40:43], s87 offen offset:{j*1024} lds")
        stamp(a, 2 + st, 3)
    for st in range(NS - 1): dma(st)
    srd(a, 32, 28, WS_BYTES); srd(a, 52, 26, 256)
    a(f"""
    v_mov_b32 v2, 0
    v_lshlrev_b32 v3, 2, v0
    v_add_u32 v3, {L_XF}, v3
    ds_write_b32 v3, v2
    s_lshl_b32 s92, s56, 6
    s_lshl_b32 s93, s63, 4
    s_add_u32 s92, s92, s93
    s_lshl_b32 s93, s31, 7
    s_lshl_b32 s94, s92, 10
    s_add_u32 s94, s94, s93
    s_add_u32 s94, s14, s94
    s_addc_u32 s95, s15, 0
    s_max_u32 s92, s92, 3
    s_sub_u32 s92, s92, 3
    s_lshl_b32 s92, s92, 10
    s_add_u32 s92, s92, s93
    s_add_u32 s92, s12, s92
    s_addc_u32 s93, s13, 0
    s_lshl_b32 s96, s59, 1
    s_and_b32 s97, s58, 1
    s_add_u32 s96, s96, s97
    s_lshl_b32 s96, s96, 2
    s_add_u32 s96, s96, s63
    s_mul_i32 s96, s96, 49152
    s_lshr_b32 s97, s58, 1
    s_lshl_b32 s97, s97, 7
    s_add_u32 s96, s96, s97
    s_add_u32 s82, s6, s96
    s_addc_u32 s83, s7, 0
    """)
    att_setup(); att_ones()
    pf = [f"s_load_dword s100, s[92:93], {i*1024}" for i in range(19)] + [f"s_load_dword s100, s[94:95], {i*1024}" for i in range(16)]
    pf = ([f"s_load_dword s100, s[82:83], {i*3072}" for i in range(16)] if SPFQ else []) + (pf if SPFU else [])
    for s_ in range(8):
        a(f"s_waitcnt vmcnt({6*min(NS-2, 7-s_)}){' lgkmcnt(0)' if s_ == 0 else ''}\ns_barrier")
        if s_ + NS - 1 < 8: dma(s_ + NS - 1)
        if 1 <= s_ < 7:
            for x in pf[5*(s_-1):5*s_]: a(x)
    a("s_lshr_b32 s84, s84, 2")
    for st in range(8):
        if st == WQ1: a("s_barrier")
        a(f"s_add_u32 s87, s86, {st}\ns_and_b32 s87, s87, 7\ns_add_u32 m0, s84, {L_WQ+st*4096}\ns_mul_i32 s87, s87, 196608")
        a(f"buffer_load_dwordx4 v{WV}, s[40:43], s87 offen lds")
    if WQ1 >= 8: a("s_barrier")
    for x in pf[30:]: a(x)
    stamp(a, 10, 3)
    GX, GG, GOH = 144, 152, 156
    KR, VR, SK, KF, VF, SF, U, PK = 32, 43, 52, 64, 86, 102, 110, 128
    a("s_and_b32 s84, s30, 3")
    a(f"""
    s_lshl_b32 s86, s56, 16
    s_lshl_b32 s87, s84, 14
    s_add_u32 s86, s86, s87
    s_lshl_b32 s87, s31, 7
    s_add_u32 s86, s86, s87
    v_and_b32 v6, 31, v0
    v_lshrrev_b32 v7, 5, v0
    v_lshlrev_b32 v10, 13, v7
    v_lshl_add_u32 v10, v6, 2, v10
    v_add_u32 v10, s86, v10
    v_add_u32 v9, -3072, v10
    v_add_u32 v11, 4096, v10
    s_lshl_b32 s86, s31, 9
    v_lshl_add_u32 v1, v6, 4, s86
    """)
    srd(a, 40, 12, 0x200000); srd(a, 48, 14, 0x200000)
    for i in range(3): a(f"buffer_load_dword v{KR+i}, v9, s[40:43], 0 offen offset:{i*1024} {NT_U}")
    for i in range(8): a(f"buffer_load_dword v{KR+3+i}, v{10+i//4}, s[40:43], 0 offen offset:{(i%4)*1024} {NT_U}")
    for i in range(8): a(f"buffer_load_dword v{VR+i}, v{10+i//4}, s[48:51], 0 offen offset:{(i%4)*1024} {NT_U}")
    srd(a, 40, 16, 4096); srd(a, 48, 22, 1024)
    a(f"""
    s_lshl_b32 s85, s57, 7
    s_lshl_b32 s86, s58, 3
    s_add_u32 s85, s85, s86
    s_lshl_b32 s86, s84, 1
    s_add_u32 s85, s85, s86
    s_lshl_b32 s86, s85, 10
    s_lshl_b32 s85, s85, 2
    s_add_u32 s85, s85, {GW}
    buffer_load_dwordx4 {vr(SK,4)}, v1, s[40:43], 0 offen
    buffer_load_dwordx4 {vr(GG,4)}, v{L16}, s[48:51], 0 offen
    buffer_load_dwordx4 {vr(GX,4)}, v{L16}, s[36:39], s86 offen
    buffer_load_dwordx4 {vr(GX+4,4)}, v{L16}, s[36:39], s86 offen offset:1024
    buffer_load_dwordx4 {vr(GOH,4)}, v{Z4}, s[52:55], 0 offen sc1
    s_waitcnt vmcnt(24)
    s_barrier
    s_setprio 0
    """)
    stamp(a, 1)
    a(f"""
    s_lshl_b32 s91, s31, 6
    s_lshl_b32 s86, s56, 1
    s_add_u32 s91, s91, s86
    s_lshr_b32 s86, s84, 1
    s_add_u32 s91, s91, s86
    s_lshl_b32 s86, s84, 1
    v_add_u32 v12, s86, v7
    v_sub_u32 v12, 7, v12
    v_and_b32 v13, 7, v6
    v_xor_b32 v12, v12, v13
    v_lshlrev_b32 v12, 4, v12
    v_lshl_add_u32 v12, v6, 8, v12
    v_add_u32 v12, {TB}, v12
    s_lshl_b32 s86, s84, 11
    s_add_u32 s86, s86, {TB}
    v_add_u32 v13, s86, v{L16}
    v_lshrrev_b32 v6, 3, v0
    v_mul_u32_u24 v6, {CST}, v6
    v_lshrrev_b32 v7, 4, v0
    v_and_b32 v8, 7, v0
    v_xor_b32 v7, v7, v8
    v_lshl_add_u32 v14, v7, 4, v6
    v_xor_b32 v7, 4, v7
    v_lshl_add_u32 v15, v7, 4, v6
    s_lshl_b32 s87, s31, 2
    s_add_u32 s87, s87, s84
    s_mul_i32 s87, s87, {16*CST}
    s_lshl_b32 s88, s56, 7
    s_sub_u32 s87, s87, s88
    s_add_u32 s87, s87, {UW + 248*16}
    s_add_u32 s88, s87, {8*CST}
    s_mov_b32 s86, 0xffff0000
    s_waitcnt vmcnt(4)
    """)
    stamp(a, 2); stamp(a, 11, 3)
    for i in range(11): a(f"v_lshlrev_b32 v{KF+2*i}, 16, v{KR+i}\nv_and_b32 v{KF+2*i+1}, s86, v{KR+i}")
    for i in range(8): a(f"v_lshlrev_b32 v{VF+2*i}, 16, v{VR+i}\nv_and_b32 v{VF+2*i+1}, s86, v{VR+i}")
    for ch in range(2):
        for t in range(4):
            src = SK + 2*ch + t//2
            a(f"v_lshlrev_b32 v{SF+2*t+ch}, 16, v{src}" if t % 2 == 0 else f"v_and_b32 v{SF+2*t+ch}, s86, v{src}")
    for i in range(8):
        u = vr(U+2*i, 2)
        a(f"v_pk_mul_f32 {u}, {vr(KF+2*i,2)}, {vr(SF+6,2)}")
        for t in (2, 1, 0): a(f"v_pk_fma_f32 {u}, {vr(KF+2*(i+3-t),2)}, {vr(SF+2*t,2)}, {u}")
        a(f"v_pk_mul_f32 {u}, {u}, {vr(VF+2*i,2)}")
    for ch in range(2):
        for i in range(4): a(f"v_cvt_pk_bf16_f32 v{PK+4*ch+i}, v{U+2*(7-2*i)+ch}, v{U+2*(6-2*i)+ch}")
    a(f"""
    ds_write_b128 v12, {vr(PK,4)}
    ds_write_b128 v12, {vr(PK+4,4)} offset:128
    v_mov_b32 v48, 0
    v_mov_b32 v49, 0
    s_waitcnt vmcnt(0) lgkmcnt(0)
    ds_write_b32 v{MYW}, v{ONE1} offset:48
    """)
    for i in range(4):
        a(f"v_dot2_f32_bf16 v48, v{GX+i}, v{GG+i}, v48\nv_dot2_f32_bf16 v49, v{GX+4+i}, v{GG+i}, v49")
    a("s_nop 2")
    for d in ("row_shr:1 row_mask:0xf bank_mask:0xf bound_ctrl:0", "row_shr:2 row_mask:0xf bank_mask:0xf bound_ctrl:0",
              "row_shr:4 row_mask:0xf bank_mask:0xf bound_ctrl:0", "row_shr:8 row_mask:0xf bank_mask:0xf bound_ctrl:0",
              "row_bcast:15 row_mask:0xa bank_mask:0xf", "row_bcast:31 row_mask:0xc bank_mask:0xf"):
        a(f"v_add_f32_dpp v48, v48, v48 {d}\nv_add_f32_dpp v49, v49, v49 {d}\ns_nop 0")
    a(f"""
    v_cvt_pk_bf16_f32 v50, v48, v49
    v_lshlrev_b32 v48, 16, v50
    v_and_b32 v49, s86, v50
    v_mul_f32 v48, {f32(-LOG2E)}, v48
    v_mul_f32 v49, {f32(-LOG2E)}, v49
    v_exp_f32 v48, v48
    v_exp_f32 v49, v49
    s_nop 0
    v_add_f32 v48, 1.0, v48
    v_add_f32 v49, 1.0, v49
    v_rcp_f32 v48, v48
    v_rcp_f32 v49, v49
    s_nop 0
    v_cvt_pk_bf16_f32 v50, v48, v49
    v_lshlrev_b32 v216, 16, v50
    v_and_b32 v217, s86, v50
    """)
    go_check(a, GOH, Z4)
    lds_wait(a, XW, 48, 4, 56)
    a(f"""
    ds_read_b128 v[208:211], v13
    ds_read_b128 v[212:215], v13 offset:1024
    s_lshl_b32 s86, s91, 12
    s_lshl_b32 s83, s63, 11
    s_add_u32 s86, s86, s83
    s_add_u32 s92, s18, s86
    s_addc_u32 s93, s19, 0
    s_mov_b32 s83, {DROP}
    s_mov_b32 s82, 2
    """)
    stamp(a, 3); stamp(a, 12, 3)
    att_q()
    lds_wait(a, XW, 80, 4, 56)
    lds_wait(a, XW, 32, 1, 6)
    stamp(a, 4); stamp(a, 13, 3)
    att_loads()
    a(f"""
    buffer_store_dwordx4 v[208:211], v14, {WS}, s87 offen sc1
    buffer_store_dwordx4 v[212:215], v15, {WS}, s88 offen sc1
    s_mov_b32 exec_lo, 0
    s_mov_b32 exec_hi, 0x80000000
    buffer_store_dwordx2 v[216:217], v{Z4}, {WS}, s85 offen sc1
    s_mov_b64 exec, -1
    s_setprio {HP0}
    """)
    stamp(a, 5); stamp(a, 6)
    for i in range(12): a(f"s_load_dword s100, s[92:93], {i*128}")

    a.label("B_go")
    for j in range(4): a(f"{M32} {vr(ACC+16*j,16)}, {vr(Z4,4)}, {vr(Z4,4)}, 0")
    a(f"{M32} {vr(S+48,16)}, {vr(Z4,4)}, {vr(Z4,4)}, 0")
    a("s_add_u32 s70, s70, 4096\ns_add_u32 s71, s71, 3072\ns_mov_b32 s84, 3")
    qk = lambda j, st: f"{M32} {vr(S+16*j,16)}, {vr(KS+4*st,4)}, {vr(Q+4*j,4)}, 0"
    pv = lambda j, st, s: f"{SM} {vr(ACC+16*j,16)}, {vr(VS+8*st+4*s,4)}, {vr(S+16*j+8*s,8)}, v{IDX}"
    a("s_waitcnt vmcnt(9)"); a(qk(0, 0)); a(qk(1, 0))
    a("s_nop 10")
    stamp(a, 7)
    wodma = lambda m: [f"s_add_u32 m0, s77, {m*1024}", f"s_add_u32 s85, s78, {m*16384}",
                       f"buffer_load_dwordx4 v{WOV}, s[44:47], s85 offen {NT_O} lds"]
    xdma = [f"s_lshl_b32 s85, s30, 10", f"s_add_u32 m0, s85, {L_X}", "s_nop 0", f"buffer_load_dwordx4 v{XOV}, s[36:39], 0 offen lds"]
    def body(last, extras, waits):
        for m in range(4):
            for j in range(4):
                jp, mp = (j - 1) % 4, (m if j else (m - 1) % 4)
                ins = {}
                def put(p, x): ins.setdefault(p, []).extend(x if isinstance(x, list) else [x])
                if j == 1 and waits[m] is not None: put(1, f"s_waitcnt vmcnt({waits[m]})")
                put(1, pv(jp, mp, 0))
                put(6, pv(jp, mp, 1))
                if j == 0 and (not last or m == 0): put(8, ldv((m + 3) % 4, "s71", m*1024))
                if not (last and m == 3 and j >= 2): put(11, qk((j + 2) % 4, m if j < 2 else (m + 1) % 4))
                if j == 1 and not last: put(13, ldk(m, "s70", m*1024))
                if j == 2 and m < 2 and not last: put(8, wodma(m))
                if j == 2 and m == 2 and not last:
                    put(8, ["s_cmp_eq_u32 s84, 1", "s_cbranch_scc1 B_x"] + wodma(2) + ["s_branch B_xd", "B_x:"] + xdma + ["B_xd:"])
                for p, x in extras.get((m, j), []): put(p, x)
                for e in range(16):
                    for x in ins.get(e, []):
                        if callable(x): x()
                        else: a(x)
                    a(f"v_exp_f32 v{S+16*j+e}, v{S+16*j+e}")
    a(".p2align 6")
    a.label("B_loop")
    body(False, {(3, 1): [(14, ["s_add_u32 s77, s77, 3072", "s_add_u32 s78, s78, 49152"])],
                 (3, 2): [(14, ["s_add_u32 s70, s70, 4096", "s_add_u32 s71, s71, 4096", "s_sub_u32 s84, s84, 1"])],
                 (CDT, 0): [(3, ["s_cmp_lg_u32 s84, s83", "s_cbranch_scc1 B_keep", "s_setprio 0", "B_keep:"])],
                 (3, 3): [(8, ["s_cmp_lg_u32 s84, s82", "s_cbranch_scc1 B_nouf", lambda: arrive(a, XW, ONE1, Z4, 1, 6)]
                              + [f"s_load_dword s100, s[92:93], {i*128}" for i in range(12, 16)] + ["B_nouf:"]),
                          (14, "s_cmp_lg_u32 s84, 0")]}, [8, 9, 10, 11])
    a("s_cbranch_scc1 B_loop")
    stamp(a, 8)
    a("s_cmp_lt_u32 s30, 4\ns_cbranch_scc1 B_final")

    WF, OB, AC, YA, YF, PM, XR, G, RD = 16, 80, 112, 144, 176, 192, 200, 208, 212
    CA, DF = 32, 192
    ABUF, BBUF = [96, 160], [128, 64]
    a(f"""
    s_and_b32 s84, s30, 3
    s_mul_i32 s85, s84, {4*PSL}
    s_add_u32 s85, s85, {L_OLD}
    v_add_u32 v6, s85, v{L16}
    v_add_u32 v7, s85, v{L4H}
    s_lshl_b32 s88, s31, 8
    s_add_u32 s88, s88, {UF}
    v_lshlrev_b32 v210, 9, v{L4H}
    s_lshr_b32 s86, s31, 1
    s_lshl_b32 s86, s86, 1
    s_and_b32 s87, s75, 1
    s_add_u32 s86, s86, s87
    s_lshr_b32 s87, s75, 1
    s_and_b32 s87, s87, 3
    s_lshl_b32 s87, s87, 6
    s_add_u32 s86, s86, s87
    s_lshl_b32 s86, s86, 8
    s_add_u32 s86, s86, {UF}
    v_and_b32 v211, 7, v0
    v_lshlrev_b32 v211, 11, v211
    s_and_b32 s80, s91, -2
    s_lshl_b32 s80, s80, 1
    s_load_dword s89, s[20:21], s80
    s_mul_i32 s82, s84, {PRIV}
    s_add_u32 s82, s82, {L_PRIV}
    s_lshl_b32 s81, s91, 12
    s_add_u32 s92, s18, s81
    s_addc_u32 s93, s19, 0
    s_mov_b32 s94, 4096
    s_mov_b32 s95, 0x20000
    s_lshl_b32 s81, s63, 8
    s_mul_i32 s83, s91, {CST}
    s_add_u32 s83, s83, {UW}
    s_lshl_b32 s87, s75, 1
    s_add_u32 s87, s87, s63
    s_lshl_b32 s87, s87, 7
    s_add_u32 s87, s87, {GW}
    """)
    def lda(rr):
        b = ABUF[rr % 2]
        o = []
        if rr == 0:
            for i in range(4): o.append(f"buffer_load_dword v{b+i}, v{11+i}, s[92:95], 0 offen")
        else:
            o.append(f"buffer_load_dwordx4 {vr(b,4)}, v216, s[92:95], 0 offen offset:{64*(rr-1)}")
        for aa in range(1, 8):
            o.append(f"buffer_load_dwordx4 {vr(b+4*aa,4)}, v15, s[92:95], 0 offen offset:{512*(aa-1)+64*rr}")
        return o
    ldb = lambda rr: [f"ds_read_b128 {vr(BBUF[rr%2]+4*bb,4)}, v1 offset:{64*rr+512*(7-bb)}" for bb in range(8)]
    def ucheck():
        a(f"""
        v_and_b32 v212, v212, v213
        v_cmp_eq_u32 vcc, 1, v212
        ds_write_b32 v{MYW}, v{ONE1} offset:160
        s_nop 0
        s_cmp_eq_u64 vcc, exec
        s_cbranch_scc1 H_uok
        """)
        poll(a, 210, "s88", 212); poll(a, 211, "s86", 212)
        a.label("H_uok")
    udma = lambda rho, q: [f"s_add_u32 m0, s82, {rho*USZ}", "s_nop 0",
                           f"buffer_load_dwordx4 v{L16 if rho else 214}, {WS}, s83 offen offset:{q*1024} sc1 lds",
                           f"buffer_load_dwordx4 v{L16 if rho else 214}, {WS}, s83 offen offset:{q*1024+1024} sc1 lds"]
    setup1 = f"""
    v_and_b32 v8, 15, v0
    v_lshrrev_b32 v9, 4, v0
    v_lshlrev_b32 v10, 4, v9
    v_lshl_add_u32 v11, v8, 2, v10
    s_sub_u32 s80, s81, 60
    v_add_u32 v11, s80, v11
    v_add_u32 v12, 4, v11
    v_add_u32 v13, 8, v11
    v_add_u32 v14, 12, v11
    v_add_u32 v15, 512, v11
    v_add_u32 v216, 64, v11
    v_add_u32 v214, 2, v{L16}
    """
    setup2 = f"""
    v_and_b32 v217, 31, v0
    v_min_u32 v217, 29, v217
    v_lshlrev_b32 v217, 4, v217
    v_lshrrev_b32 v218, 5, v0
    v_mul_u32_u24 v218, {USZ}, v218
    v_add3_u32 v217, v217, v218, s82
    v_add_u32 v218, s82, v{L16}
    ds_write_b128 v217, {vr(Z4,4)} offset:4096
    v_and_b32 v219, 1, v0
    v_mul_u32_u24 v219, {USZ}, v219
    v_bfe_u32 v220, v0, 1, 3
    v_lshlrev_b32 v220, 6, v220
    v_sub_u32 v219, v219, v220
    s_add_u32 s80, s82, 448
    s_add_u32 s80, s80, s81
    v_add3_u32 v1, v219, v10, s80
    v_lshl_add_u32 v219, v9, 2, v8
    v_mov_b32 v215, s82
    s_waitcnt lgkmcnt(0)
    s_and_b32 s80, s91, 1
    s_lshl_b32 s80, s80, 4
    s_lshr_b32 s89, s89, s80
    s_and_b32 s89, s89, 0xffff
    v_mov_b32 v220, s89
    """
    diag = [f"v_cmp_eq_u32 vcc, {15-i}, v219\ns_nop 1\nv_cndmask_b32 v{DF+i}, 0, v220, vcc" for i in range(4)]
    wrh = lambda j: [f"ds_write_b128 v6, {vr(ACC+16*j,4)} offset:{j*PSL}", f"ds_write_b128 v6, {vr(ACC+16*j+4,4)} offset:{j*PSL+1024}",
                     f"ds_write_b32 v7, v{ACC+16*j+8} offset:{j*PSL+2048}"]
    A0, A1 = lda(0), lda(1)
    exh = {(0, 1): [(4, setup1)],
           (0, 2): [(4, f"buffer_load_dword v212, v210, {WS}, s88 offen sc1"), (8, f"buffer_load_dword v213, v211, {WS}, s86 offen sc1")],
           (0, 3): [(4, setup2)],
           (1, 1): [(3, ucheck), (8, udma(1, 0)), (13, udma(1, 2))],
           (1, 2): [(4, udma(0, 0)), (13, udma(0, 2))],
           (1, 3): [(4, f"buffer_load_dword v{G}, v{L4H}, {WS}, s87 offen sc1")],
           (3, 1): [(8, diag)] + [(9 + i, A1[i]) for i in range(4)],
           (3, 2): [(3 + i, wrh(0)[i]) for i in range(3)] + [(8 + i, A1[4 + i]) for i in range(4)],
           (3, 3): [(0, A0[0:4])] + [(3 + i, wrh(1)[i]) for i in range(3)] + [(7 + i, A0[4 + i]) for i in range(7)]}
    body(True, exh, [10, 0, None, None])
    a(f"""
    s_waitcnt vmcnt(19)
    ds_write_b16 v215, v{Z4} offset:4094
    {pv(3,3,0)}
    {pv(3,3,1)}
    s_setprio {CVP}
    """)
    stamp(a, 9)
    for x in ldb(0) + wrh(2): a(x)
    a("s_nop 0")
    for x in wrh(3): a(x)
    a(f"s_waitcnt lgkmcnt(0)\nds_write_b32 v{MYW}, v{ONE1} offset:64")
    stamp(a, 10)
    for rr in range(4):
        ab, bb_ = ABUF[rr % 2], BBUF[rr % 2]
        nb = ldb(rr + 1) if rr < 3 else []
        mm = lambda aa, b, c=None: f"{M16} {vr(CA+4*(aa+b),4)}, {vr(ab+4*aa,4)}, {vr(bb_+4*b,4)}, {c or vr(CA+4*(aa+b),4)}"
        a(f"s_waitcnt vmcnt({[0, 8, 8, 0][rr]}){' lgkmcnt(0)' if rr else ''}")
        if rr == 0:
            a("s_cmp_lg_u32 s81, 0\ns_cbranch_scc1 CV_nodiag")
            for b in range(8): a(f"{M16} {vr(CA+4*b,4)}, {vr(DF,4)}, {vr(bb_+4*b,4)}, 0")
            for b in range(8): a(mm(0, b))
            a("s_branch CV_row1")
            a.label("CV_nodiag")
            for b in range(8): a(mm(0, b, "0"))
            a.label("CV_row1")
        cnt = 0
        na = lda(rr + 2) if rr < 2 else []
        for aa in range(8):
            for b in range(8 - aa):
                if rr == 0 and aa == 0: continue
                a(mm(aa, b))
                cnt += 1
                if cnt % 3 == 0 and nb: a(nb.pop(0))
            if na: a(na.pop(0))
    AB, B0 = 96, 128
    stamp(a, 11)
    a(f"""
    s_xor_b32 s85, s84, 1
    s_lshl_b32 s83, s85, 2
    s_mul_i32 s85, s85, {PRIV}
    s_add_u32 s85, s85, {L_PRIV}
    v_add_u32 v9, s85, v{L16}
    s_add_u32 s83, s83, {L_XF}
    v_mov_b32 v11, s83
    s_cmp_lg_u32 s63, 0
    s_cbranch_scc1 CV_odd
    """)
    for n in range(4): a(f"ds_write_b128 v218, {vr(CA+16+4*n,4)} offset:{n*1024}")
    a("s_branch CV_xch")
    a.label("CV_odd")
    for n in range(4): a(f"ds_write_b128 v218, {vr(CA+4*n,4)} offset:{n*1024}")
    a("s_waitcnt lgkmcnt(0)")
    for i in range(16): a(f"v_mov_b32 v{CA+i}, v{CA+16+i}")
    a.label("CV_xch")
    a(f"""
    s_waitcnt lgkmcnt(0)
    ds_write_b32 v{MYW}, v{ONE1}
    v_and_b32 v13, 15, v0
    v_lshlrev_b32 v13, 4, v13
    v_lshrrev_b32 v14, 5, v0
    v_lshl_add_u32 v13, v14, 8, v13
    v_bfe_u32 v14, v0, 4, 1
    v_lshl_add_u32 v13, v14, 9, v13
    s_lshl_b32 s84, s63, 11
    s_mul_i32 s85, s91, {CST}
    s_add_u32 s84, s84, s85
    s_add_u32 s84, s84, {YW}
    """)
    lds_wait(a, 11, 0, 1, 14)
    for n in range(4): a(f"ds_read_b128 {vr(AB+4*n,4)}, v9 offset:{n*1024}")
    a("s_waitcnt lgkmcnt(0)")
    for n in range(4):
        for i in range(4): a(f"v_add_f32 v{CA+4*n+i}, v{CA+4*n+i}, v{AB+4*n+i}")
        a(f"v_cvt_pk_bf16_f32 v{B0+2*n}, v{CA+4*n}, v{CA+4*n+1}\nv_cvt_pk_bf16_f32 v{B0+2*n+1}, v{CA+4*n+2}, v{CA+4*n+3}")
    a("s_nop 0")
    for p in range(2):
        a(f"v_permlane16_swap_b32 v{B0+4*p}, v{B0+4*p+2}\nv_permlane16_swap_b32 v{B0+4*p+1}, v{B0+4*p+3}")
        a(f"buffer_store_dwordx4 {vr(B0+4*p,4)}, v13, {WS}, s84 offen offset:{1024*p} sc1")
    a("s_setprio 0")
    def c_setup():
        a(f"""
        s_lshr_b32 s79, s64, 1
        s_and_b32 s80, s64, 1
        s_and_b32 s81, s76, 1
        s_lshl_b32 s81, s81, 12
        v_and_b32 v12, 31, v0
        v_lshrrev_b32 v13, 5, v0
        v_bfe_u32 v7, v0, 2, 2
        v_lshl_add_u32 v7, v13, 2, v7
        v_lshlrev_b32 v7, 6, v7
        v_bfe_u32 v8, v0, 4, 1
        v_xor_b32 v8, s80, v8
        v_lshl_add_u32 v7, v8, 5, v7
        v_and_b32 v8, 3, v0
        v_lshl_add_u32 v7, v8, 3, v7
        s_lshl_b32 s82, s79, 15
        s_lshl_b32 s70, s64, 13
        s_add_u32 s82, s82, s70
        s_add_u32 s82, s82, s81
        v_add_u32 v8, s82, v7
        v_xor_b32 v9, 4096, v8
        v_xor_b32 v10, 0x8000, v8
        v_xor_b32 v11, 0x9000, v8
        s_lshl_b32 s84, s75, 1
        s_add_u32 s84, s84, s63
        s_lshl_b32 s85, s84, 15
        """)
    def c_wo():
        for ai in range(2):
            for j in range(8):
                for jj in range(2):
                    a(f"ds_read_b64_tr_b16 {vr(WF+4*(8*ai+j)+2*jj,2)}, v{8+2*ai+j//4} offset:{(j%4)*1024+jj*512}")
                if j % 4 == 3: a("s_waitcnt lgkmcnt(4)")
    def c_addr():
        a(f"""
        s_lshr_b32 s77, s75, 1
        s_and_b32 s78, s77, 3
        s_lshl_b32 s78, s78, 6
        s_lshr_b32 s77, s77, 2
        s_lshl_b32 s77, s77, 1
        s_add_u32 s77, s77, s78
        s_lshl_b32 s77, s77, 8
        s_add_u32 s77, s77, {OF}
        v_and_b32 v14, 7, v0
        v_bfe_u32 v6, v0, 3, 1
        v_lshlrev_b32 v14, 11, v14
        v_lshl_add_u32 v14, v6, 8, v14
        s_lshl_b32 s78, s64, 13
        s_add_u32 s78, s78, s85
        s_add_u32 s78, s78, {OW}
        s_add_u32 s94, s78, s81
        s_xor_b32 s81, s81, 4096
        s_add_u32 s95, s78, s81
        s_lshl_b32 s82, s63, 2
        s_add_u32 s82, s82, s64
        s_mul_i32 s83, s82, 6144
        s_add_u32 s83, s83, {L_RB}
        v_add_u32 v8, s83, v{L16}
        """)
        for r in (1, 2, 3):
            a(f"s_xor_b32 s83, s82, {r}\ns_mul_i32 s83, s83, 6144\ns_add_u32 s83, s83, {L_RB+(r-1)*2048}\nv_add_u32 v{8+r}, s83, v{L16}")
        a(f"""
        s_and_b32 s82, s30, 3
        s_mul_i32 s82, s82, {PRIV}
        s_add_u32 s82, s82, {L_PRIV+4096}
        v_add_u32 v15, s82, v{L16}
        v_add_u32 v1, s82, v{L4H}
        s_lshl_b32 s82, s76, 7
        s_add_u32 s85, s85, s82
        s_lshl_b32 s82, s64, 5
        s_add_u32 s85, s85, s82
        v_lshlrev_b32 v7, 10, v12
        v_lshl_add_u32 v7, v13, 4, v7
        """)
        srd(a, 40, 24, 0x200000)
    c_setup()
    a(f"""
    s_lshl_b32 s77, s76, 8
    s_add_u32 s77, s77, {YF_}
    s_mov_b32 s87, s77
    s_mul_i32 s82, s76, {64*CST}
    s_lshr_b32 s70, s84, 3
    s_lshl_b32 s70, s70, 9
    s_add_u32 s82, s82, s70
    s_and_b32 s70, s84, 7
    s_lshl_b32 s70, s70, 5
    s_add_u32 s82, s82, s70
    s_add_u32 s88, s82, {YW}
    s_add_u32 s89, s88, {32*CST}
    s_lshl_b32 s86, s80, 4
    v_xor_b32 v7, s86, v12
    v_mul_u32_u24 v7, {CST}, v7
    v_lshl_add_u32 v238, v13, 8, v7
    v_bfe_u32 v14, v0, 2, 2
    v_and_b32 v15, 1, v0
    v_lshl_or_b32 v14, v15, 2, v14
    v_bfe_u32 v15, v0, 4, 1
    v_xor_b32 v15, v15, v13
    v_lshl_or_b32 v14, v15, 3, v14
    v_bfe_u32 v15, v0, 1, 1
    v_lshlrev_b32 v15, 4, v15
    v_mov_b32 v6, 0x3f80
    v_lshlrev_b32 v15, v15, v6
    s_mov_b32 s91, 0xffff0000
    """)
    for i in range(8):
        a(f"v_cmp_eq_u32 vcc, {i}, v14\ns_nop 1\nv_cndmask_b32 v{PM+i}, 0, v15, vcc")
    a(f"""
    v_bfe_u32 v7, v0, 1, 3
    s_lshl_b32 s82, s64, 1
    v_xor_b32 v7, s82, v7
    v_lshlrev_b32 v7, 4, v7
    v_lshl_add_u32 v7, v12, 7, v7
    v_lshl_add_u32 v7, v13, 3, v7
    s_lshl_b32 s82, s63, 12
    s_add_u32 s82, s82, {L_X}
    v_add_u32 v7, s82, v7
    v_xor_b32 v6, 16, v7
    v_xor_b32 v14, 64, v7
    v_xor_b32 v15, 80, v7
    s_waitcnt vmcnt(0)
    """)
    arrive(a, XW, ONE1, Z4, 2, 16)
    stamp(a, 12)
    lds_wait(a, XW, 160, 4, 16)
    lds_wait(a, XW, 176, 4, 16)
    a(f"""
    ds_read_b64 {vr(XR,2)}, v7
    ds_read_b64 {vr(XR+2,2)}, v6
    ds_read_b64 {vr(XR+4,2)}, v14
    ds_read_b64 {vr(XR+6,2)}, v15
    """)
    c_wo()
    c_addr()
    a(f"v_sub_f32 v{G+1}, 1.0, v{G}\nds_write_b32 v1, v{G} offset:2048")
    for i in range(8):
        a(f"v_lshlrev_b32 v{RD+2*i}, 16, v{XR+i}\nv_and_b32 v{RD+2*i+1}, s91, v{XR+i}")
    for i in range(16): a(f"v_mul_f32 v{RD+i}, v{RD+i}, v{G+1}")
    shared_poll(a, 4, 210, "s87", 6, XW, 10)
    a("s_mov_b64 exec, s[72:73]")
    for b in (1, 0):
        for sg in range(2): a(f"buffer_load_dwordx4 {vr(YF+8*b+4*sg,4)}, v238, {WS}, {'s88' if b else 's89'} offen offset:{16*sg} sc1")
    a("s_mov_b64 exec, -1\ns_setprio 3")
    lds_wait(a, XW, 44, 1, 6)
    stamp(a, 13)
    oload = [f"buffer_load_dwordx4 {vr(OB+4*j,4)}, v{L16}, {WS}, s{94+j//4} offen offset:{(j%4)*1024} sc1" for j in range(8)]
    for x in oload: a(x)
    for b in (1, 0):
        a(f"s_waitcnt vmcnt({8+2*b})")
        a(f"{M32} {vr(YA+16*b,16)}, {vr(YF+8*b,4)}, {vr(PM,4)}, 0")
        a(f"{M32} {vr(YA+16*b,16)}, {vr(YF+8*b+4,4)}, {vr(PM+4,4)}, {vr(YA+16*b,16)}")
    a("s_nop 9")
    for i in range(8): a(f"v_mul_f32 v{YA+16+i}, v{YA+16+i}, v{RD+8+i}")
    a(f"ds_write_b128 v15, {vr(YA+16,4)}\nds_write_b128 v15, {vr(YA+20,4)} offset:1024")
    for i in range(8): a(f"v_mul_f32 v{YA+i}, v{YA+i}, v{RD+i}")
    a("s_branch C_mm")

    a.label("B_final")
    a(f"""
    s_lshl_b32 s85, s64, 1
    s_lshl_b32 s86, s63, 2
    s_add_u32 s86, s86, s85
    s_mul_i32 s86, s86, {PSL}
    s_add_u32 s86, s86, {L_OLD}
    v_add_u32 v6, s86, v{L16}
    v_add_u32 v7, s86, v{L4H}
    s_xor_b32 s87, s30, 2
    s_mul_i32 s86, s30, {2*PSL}
    s_mul_i32 s87, s87, {2*PSL}
    s_add_u32 s86, s86, {L_YNG}
    s_add_u32 s87, s87, {L_YNG}
    v_add_u32 v8, s86, v{L16}
    v_add_u32 v9, s86, v{L4H}
    v_add_u32 v10, s87, v{L16}
    v_add_u32 v11, s87, v{L4H}
    s_add_u32 s86, s65, s85
    s_lshl_b32 s86, s86, 15
    s_lshl_b32 s87, s61, 10
    s_add_u32 s86, s86, s87
    s_add_u32 s86, s86, {OW}
    s_add_u32 s87, s86, 0x8000
    """)
    PT = 208
    rdp = lambda dst, a16, a4, off: [f"ds_read_b128 {vr(dst,4)}, v{a16} offset:{off}", f"ds_read_b128 {vr(dst+4,4)}, v{a16} offset:{off+1024}",
                                     f"ds_read_b32 v{dst+8}, v{a4} offset:{off+2048}"]
    wrp = lambda j: [f"ds_write_b128 v8, {vr(ACC+16*j,4)} offset:{j*PSL}", f"ds_write_b128 v8, {vr(ACC+16*j+4,4)} offset:{j*PSL+1024}",
                     f"ds_write_b32 v9, v{ACC+16*j+8} offset:{j*PSL+2048}"]
    PA = [PT, PT+10, PT+20, VS+10]
    PB = [KS, VS]
    r0 = rdp(PA[0], 6, 7, 0); r1 = rdp(PA[1], 6, 7, 8*PSL); r2 = rdp(PA[2], 6, 7, PSL); r3 = rdp(PA[3], 6, 7, 9*PSL)
    w0, w1 = wrp(0), wrp(1)
    ex = {(1, 1): [(3, f"ds_write_b32 v{MYW}, v{ONE1} offset:176")],
          (3, 0): [(9, ["s_setprio 3", lambda: lds_wait(a, XW, 64, 4, 12)]), (12, r0[0]), (13, r0[1]), (14, r0[2])],
          (3, 1): [(3, r1[0]), (4, r1[1]), (8, r1[2]), (9, r2[0]), (13, r2[1]), (14, r2[2])],
          (3, 2): [(2, r3[0]), (3, w0[0]), (4, r3[1]), (8, w0[1]), (9, r3[2]), (10, w0[2])],
          (3, 3): [(3, w1[0]), (4, w1[1]), (5, w1[2]), (9, ["s_waitcnt lgkmcnt(0)", f"ds_write_b32 v{MYW}, v{ONE1} offset:144"]),
                   (12, [lambda: lds_wait(a, XW, 144, 4, 12)] + rdp(PB[0], 10, 11, 0)), (13, rdp(PB[1], 10, 11, PSL))]}
    body(True, ex, [10, 5, 2, 0])
    stamp(a, 9)
    for i in range(9): a(f"v_add_f32 v{PA[0]+i}, v{PA[0]+i}, v{PA[1]+i}")
    a(f"{pv(3,3,0)}\n{pv(3,3,1)}")
    for i in range(9): a(f"v_add_f32 v{PA[2]+i}, v{PA[2]+i}, v{PA[3]+i}")
    a("s_waitcnt lgkmcnt(0)")
    for i in range(9): a(f"v_add_f32 v{PA[0]+i}, v{PA[0]+i}, v{PB[0]+i}")
    for i in range(9): a(f"v_add_f32 v{PA[2]+i}, v{PA[2]+i}, v{PB[1]+i}")
    for jj in range(2):
        for i in range(9): a(f"v_add_f32 v{ACC+32+16*jj+i}, v{ACC+32+16*jj+i}, v{PA[2*jj]+i}")
    for jj in range(2):
        o = ACC + 32 + 16*jj
        a(f"v_fma_f32 v{12+jj}, v{o}, 0, v{o+8}")
        for i in range(1, 8): a(f"v_fma_f32 v{12+jj}, v{o+i}, 0, v{12+jj}")
    a(f"""
    v_cmp_lt_f32 vcc, {f32(2.0**-60)}, v12
    s_mov_b64 s[92:93], vcc
    v_cmp_gt_f32 vcc, {f32(2.0**60)}, v12
    s_and_b64 s[92:93], s[92:93], vcc
    v_cmp_lt_f32 vcc, {f32(2.0**-60)}, v13
    s_and_b64 s[92:93], s[92:93], vcc
    v_cmp_gt_f32 vcc, {f32(2.0**60)}, v13
    s_and_b64 s[92:93], s[92:93], vcc
    s_cmp_eq_u64 s[92:93], exec
    s_cbranch_scc0 B_slow
    """)
    a.label("B_fin")
    a(f"v_rcp_f32 v12, v{ACC+40}\nv_rcp_f32 v13, v{ACC+56}\ns_nop 0")
    for jj in range(2):
        o = ACC + 32 + 16*jj
        for i in range(8): a(f"v_mul_f32 v{o+i}, v{o+i}, v{12+jj}")
        for i in range(4): a(f"v_cvt_pk_bf16_f32 v{PT+4*jj+i}, v{o+2*i}, v{o+2*i+1}")
        a(f"buffer_store_dwordx4 {vr(PT+4*jj,4)}, v{L16}, {WS}, s{86+jj} offen sc1")
    a(f"ds_write_b32 v{MYW}, v{ONE1} offset:96")
    stamp(a, 10)
    c_setup()
    lds_wait(a, XW, 160, 4, 16)
    lds_wait(a, XW, 176, 4, 16)
    c_wo()
    c_addr()
    a("s_waitcnt vmcnt(0)")
    arrive(a, XW, ONE1, Z4, 3, 6)
    stamp(a, 11)

    shared_poll(a, 0, 14, "s77", 6, XW, 11)
    stamp(a, 13)
    for x in oload: a(x)
    a.label("C_mm")
    lds_wait(a, XW, 96, 4, RD)
    for j in range(8):
        a(f"s_waitcnt vmcnt({7-j})")
        for ai in range(2):
            a(f"{M32} {vr(AC+16*ai,16)}, {vr(WF+4*(8*ai+j),4)}, {vr(OB+4*j,4)}, {'0' if j == 0 else vr(AC+16*ai,16)}")
    stamp(a, 14)
    a("s_nop 10")
    for r in (1, 2, 3):
        a(f"ds_write_b128 v{8+r}, {vr(AC+8*r,4)}\nds_write_b128 v{8+r}, {vr(AC+8*r+4,4)} offset:1024")
    a(f"s_cmp_lt_u32 s30, 4\ns_waitcnt lgkmcnt(0)\ns_barrier\ns_cbranch_scc0 C_havexy")
    a(f"ds_read_b128 {vr(YA,4)}, v15\nds_read_b128 {vr(YA+4,4)}, v15 offset:1024\nds_read_b32 v{G}, v1 offset:2048")
    a.label("C_havexy")
    for r in range(6): a(f"ds_read_b128 {vr(RD+4*r,4)}, v8 offset:{r*1024}")
    for r in range(3):
        a(f"s_waitcnt lgkmcnt({4-2*r})")
        for i in range(8): a(f"v_add_f32 v{AC+i}, v{AC+i}, v{RD+8*r+i}")
    for i in range(8): a(f"v_fma_f32 v{AC+i}, v{AC+i}, v{G}, v{YA+i}")
    for i in range(4): a(f"v_cvt_pk_bf16_f32 v{OB+i}, v{AC+2*i}, v{AC+2*i+1}")
    a(f"""
    s_nop 0
    v_permlane32_swap_b32 v{OB}, v{OB+2}
    v_permlane32_swap_b32 v{OB+1}, v{OB+3}
    buffer_store_dwordx4 {vr(OB,4)}, v7, s[40:43], s85 offen {OUTF}
    """)
    if STAMP: a("s_waitcnt vmcnt(0)")
    stamp(a, 15); stamp_flush(a)
    a("s_endpgm")

    a.label("B_slow")
    a(f"""
    s_add_u32 s70, s66, {KW}
    s_add_u32 s71, s66, {VW}
    s_mov_b32 s84, 0
    v_mov_b32 v12, 0xff800000
    v_mov_b32 v13, 0xff800000
    """)
    a.label("B_slow1")
    a(f"""
    s_add_u32 s85, s70, s84
    {ldk(0, "s85", 0)}
    s_waitcnt vmcnt(0)
    {M32} {vr(S,16)}, {vr(KS,4)}, {vr(Q+8,4)}, 0
    {M32} {vr(S+16,16)}, {vr(KS,4)}, {vr(Q+12,4)}, 0
    s_nop 11
    """)
    for jj in range(2):
        for i in range(8): a(f"v_max3_f32 v{12+jj}, v{S+16*jj+2*i}, v{S+16*jj+2*i+1}, v{12+jj}")
    a("""
    s_add_u32 s84, s84, 1024
    s_cmp_lt_u32 s84, 0x10000
    s_cbranch_scc1 B_slow1
    v_mov_b32 v14, v12
    v_mov_b32 v15, v13
    s_nop 1
    v_permlane32_swap_b32 v12, v14
    v_permlane32_swap_b32 v13, v15
    v_max_f32 v12, v12, v14
    v_max_f32 v13, v13, v15
    s_mov_b32 s84, 0
    """)
    for jj in range(2):
        for i in range(16): a(f"v_sub_f32 v{S+32+16*jj+i}, 0, v{12+jj}\nv_mov_b32 v{ACC+32+16*jj+i}, 0")
    for i in range(8): a(f"v_mov_b32 v{VS+i}, 0x3f803f80")
    a.label("B_slow2")
    a(f"s_add_u32 s85, s70, s84\ns_add_u32 s89, s71, s84\n{ldk(0, 's85', 0)}")
    for x in ldv(0, "s89", 0): a(x)
    a(f"""
    s_waitcnt vmcnt(0)
    {M32} {vr(S,16)}, {vr(KS,4)}, {vr(Q+8,4)}, {vr(S+32,16)}
    {M32} {vr(S+16,16)}, {vr(KS,4)}, {vr(Q+12,4)}, {vr(S+48,16)}
    s_nop 11
    """)
    for i in range(32): a(f"v_exp_f32 v{S+i}, v{S+i}")
    a("s_nop 1")
    for jj in range(2):
        for s in range(2):
            a(f"{SM} {vr(ACC+32+16*jj,16)}, {vr(VS+4*s,4)}, {vr(S+16*jj+8*s,8)}, v{IDX}")
    a("""
    s_add_u32 s84, s84, 1024
    s_cmp_lt_u32 s84, 0x10000
    s_cbranch_scc1 B_slow2
    s_nop 11
    s_branch B_fin
    """)
    a.label("K_end")
    a("s_endpgm")
    return a

def build():
    ref = open(f"cdna_kernels/{NAME}.s.ref").read().split("\n")
    head = [l for l in ref if l.startswith(";") and "@launch" not in l]
    t = kernel().text()
    bad = check(t)
    out = "\n".join(head) + f"\n; @launch grid=(256,1,1) block=(512,1,1) lds={LDS}\n"
    out += f'.amdgcn_target "amdgcn-amd-amdhsa--gfx950"\n.text\n.globl {NAME}_kernel\n.p2align 8\n.type {NAME}_kernel,@function\n' + t
    out += f""".section .rodata,"a"
.p2align 6
.amdhsa_kernel {NAME}_kernel
  .amdhsa_next_free_vgpr 256
  .amdhsa_next_free_sgpr 102
  .amdhsa_accum_offset 256
  .amdhsa_group_segment_fixed_size 0
  .amdhsa_kernarg_size 104
  .amdhsa_user_sgpr_count 2
  .amdhsa_user_sgpr_kernarg_segment_ptr 1
  .amdhsa_system_sgpr_workgroup_id_x 1
  .amdhsa_float_denorm_mode_32 3
.end_amdhsa_kernel
"""
    return out, bad

if __name__ == "__main__":
    out, bad = build()
    for b in bad: print("HAZARD", b)
    path = sys.argv[1] if len(sys.argv) > 1 else "fused.s"
    open(path, "w").write(out)
    print("wrote", path, len(out), "bytes;", len(bad), "hazards; lds", LDS)
```

```python
import os, sys, struct
from asmlib import Asm, vr, sr, check

NAME = "gated_mix__mha_block__ssm_conv_h3__prompt"
KW, VW, UW, YW, OW, GW = 0x200000, 0x400000, 0x600000, 0x840000, 0xA80000, 0xE00000
CST = 4352
FW = 0xE10000
FS = 256
QF, UF, CF = FW, FW + 4, FW + 8
WS_BYTES = 0xE60000
M32 = "v_mfma_f32_32x32x16_bf16"
M16 = "v_mfma_f32_16x16x32_bf16"
SM = "v_smfmac_f32_32x32x32_bf16"
LOG2E = 1.4426950408889634
STAMP = int(os.environ.get("STAMP", "0"))
env = lambda k, d: type(d)(os.environ.get(k, d))
NS = env("NS", 3)
WQ1 = env("WQ1", 4)
KFG = env("KFG", 14)
CDROP, CDT = env("CDROP", 1), env("CDT", 1)
CVP = env("CVP", 2)
OLATE = env("OLATE", 1)
YLATE = env("YLATE", 1)
TOUCH = env("TOUCH", 1)
TW = 0xF00000
SPIN = 40000

SLOT = 24576
L_X = 65536
L_PRIV = 73728
USZ = 4576
PRIV = 2 * USZ
PSL = 2176
L_OLD = L_PRIV + 4 * PRIV
L_YNG = L_OLD + 16 * PSL
L_XF = L_YNG + 8 * PSL
L_WQ = L_OLD
L_QX = L_YNG
TB = L_QX + 8192
L_RB = L_OLD
LDS = L_XF + 256
W_XCH, W_QW, W_KV, W_TB, W_PO, W_QR, W_PR, W_CNT, W_PY, W_LH, W_LC, W_YS = 0, 16, 32, 48, 64, 80, 96, 128, 144, 160, 176, 192

def f32(x):
    return "0x%08x" % struct.unpack("<I", struct.pack("<f", x))[0]

def srd(a, d, b, nbytes):
    a(f"s_mov_b32 s{d}, s{b}\ns_mov_b32 s{d+1}, s{b+1}\ns_mov_b32 s{d+2}, {hex(nbytes)}\ns_mov_b32 s{d+3}, 0x20000")

def stamp(a, i, mode=1):
    if not STAMP or (STAMP != mode and i not in (0, 15)): return
    a(f"""
    s_memtime s[96:97]
    s_memrealtime s[98:99]
    s_waitcnt lgkmcnt(0)
    v_writelane_b32 v255, s96, {2*i}
    v_writelane_b32 v255, s98, {2*i+1}
    """)
def stamp_flush(a):
    if not STAMP: return
    a(f"""
    s_lshl_b32 s96, s2, 3
    s_add_u32 s96, s96, s30
    s_lshl_b32 s96, s96, 8
    s_add_u32 s96, s96, {TW}
    s_mov_b32 s34, 0x1400000
    v_lshlrev_b32 v6, 2, v0
    buffer_store_dword v255, v6, s[32:35], s96 offen
    """)

WS = "s[32:35]"
IDX, L16, VOF, L4H = 2, 3, 4, 5
KF2, VZ, WOA, RBA, XYA, XGA, OUTV = 222, 223, 232, 233, 237, 238, 239
CFV, KFV, MYW, XW4, WOV, XOV, QA, Z4, XW, ONE, XW8 = 240, 241, 242, 243, 244, 245, 246, 248, 252, 253, 254
_uid = [0]
def uid(p):
    _uid[0] += 1
    return f"{p}{_uid[0]}"

def poll(a, voff, soff, tmp, srd_=WS):
    L = uid("POLL")
    a(f"s_mov_b32 s90, {SPIN}")
    a.label(L)
    a(f"""
    buffer_load_dword v{tmp}, v{voff}, {srd_}, {soff} offen sc1
    s_waitcnt vmcnt(0)
    v_cmp_eq_u32 vcc, 1, v{tmp}
    s_sub_u32 s90, s90, 1
    s_cbranch_scc1 {L}_out
    s_cmp_eq_u64 vcc, exec
    s_cbranch_scc0 {L}
    """)
    a.label(f"{L}_out")

def all_set(a, late, val, voff, soff, srd_=WS):
    L = uid("AS")
    a(f"v_cmp_eq_u32 vcc, 1, v{val}\ns_nop 0\ns_cmp_eq_u64 vcc, exec\ns_cbranch_scc0 {L}")
    a.label(f"{L}_ok")
    late.label(L)
    poll(late, voff, soff, val, srd_)
    late(f"s_branch {L}_ok")

def lds_wait(a, vaddr, off, tmp):
    L = uid("LW")
    a("s_mov_b32 s90, 0x400000")
    a.label(L)
    a(f"""
    ds_read_b32 v{tmp}, v{vaddr} offset:{off}
    s_waitcnt lgkmcnt(0)
    v_cmp_eq_u32 vcc, 1, v{tmp}
    s_sub_u32 s90, s90, 1
    s_cbranch_scc1 {L}_out
    s_cmp_eq_u64 vcc, exec
    s_cbranch_scc0 {L}
    """)
    a.label(f"{L}_out")

mark = lambda off: f"ds_write_b32 v{MYW}, v{ONE} offset:{off}"

def arrive(a, k, tmp, n=4):
    L = uid("AR")
    a(f"""
    s_mov_b64 exec, 1
    ds_add_rtn_u32 v{tmp}, v{XW}, v{ONE} offset:{W_CNT+4*k}
    s_waitcnt lgkmcnt(0)
    v_cmp_eq_u32 vcc, {n-1}, v{tmp}
    s_nop 4
    s_cbranch_vccz {L}
    buffer_store_dword v{ONE}, v{VZ}, {WS}, s62 offen offset:{4*k} sc1
    """)
    a.label(L)
    a("s_mov_b64 exec, -1")

def fresh(a, late, regs, reload, tmp, keep=0):
    L = uid("FR")
    chk = [f"v_max3_u32 v{tmp}, v{regs[0]}, v{regs[1]}, v{regs[2]}"]
    r = list(regs[3:])
    while len(r) >= 2: chk.append(f"v_max3_u32 v{tmp}, v{r.pop(0)}, v{r.pop(0)}, v{tmp}")
    if r: chk.append(f"v_max_u32 v{tmp}, v{r[0]}, v{tmp}")
    chk += [f"v_cmp_eq_u32 vcc, -1, v{tmp}", "s_nop 0", "s_cmp_eq_u64 vcc, 0"]
    a("\n".join(chk)); a(f"s_cbranch_scc0 {L}")
    a.label(f"{L}_ok")
    late.label(L)
    late(f"s_mov_b32 s90, {SPIN}")
    late.label(f"{L}_l")
    if STAMP: late("s_add_u32 s21, s21, 1")
    late("\n".join(reload) + f"\ns_waitcnt vmcnt({keep})\n" + "\n".join(chk))
    late(f"s_cbranch_scc1 {L}_ok\ns_sub_u32 s90, s90, 1\ns_cbranch_scc0 {L}_l\ns_branch {L}_ok")

def lines(t):
    return [l.strip() for l in t.strip().split("\n") if l.strip()]

def kernel():
    a = Asm(); late = Asm()
    a.label(f"{NAME}_kernel")
    a(f"""
    s_cmp_ge_u32 s2, 256
    s_cbranch_scc1 K_end
    s_load_dwordx8 s[4:11], s[0:1], 0
    s_load_dwordx16 s[12:27], s[0:1], 32
    s_load_dwordx2 s[28:29], s[0:1], 96
    v_lshrrev_b32 v1, 6, v0
    v_and_b32 v0, 63, v0
    s_and_b32 s31, s2, 7
    v_readfirstlane_b32 s30, v1
    s_lshr_b32 s56, s2, 3
    s_lshr_b32 s57, s31, 1
    s_lshl_b32 s57, s57, 2
    s_lshr_b32 s59, s56, 3
    s_add_u32 s57, s57, s59
    s_and_b32 s58, s31, 1
    s_lshl_b32 s58, s58, 3
    s_and_b32 s60, s56, 7
    s_add_u32 s58, s58, s60
    """)
    if STAMP: a("v_mov_b32 v255, 0")
    stamp(a, 0)
    a("s_cmp_ge_u32 s30, 4\ns_cbranch_scc1 A_helper")

    Q, ACC, S, KS, VS = 16, 32, 96, 160, 176
    WF, OB, AC, YA, YF, XR, RD, PK4, XG = 16, 80, 112, 144, 176, 192, 80, 104, 112
    G = 208
    def common_setup(t0, t1, t2):
        a(f"""
        s_and_b32 s63, s30, 1
        s_lshr_b32 s64, s30, 1
        s_lshl_b32 s61, s58, 1
        s_add_u32 s61, s61, s63
        s_lshl_b32 s62, s2, 8
        s_add_u32 s62, s62, {FW}
        s_lshl_b32 s66, s61, 16
        s_lshl_b32 s67, s63, 12
        s_add_u32 s67, s67, {L_QX}
        s_cmp_eq_u32 s64, 0
        s_cselect_b32 s68, 2048, 0
        s_xor_b32 s69, s68, 2048
        s_add_u32 s68, s68, s67
        s_add_u32 s69, s69, s67
        v_lshlrev_b32 v{L16}, 4, v0
        v_add_u32 v{QA}, s68, v{L16}
        v_add_u32 v{QA+1}, s69, v{L16}
        s_lshl_b32 s70, s64, 14
        s_add_u32 s70, s70, s66
        s_add_u32 s71, s70, {VW}
        s_add_u32 s70, s70, {KW}
        s_mov_b32 s72, 0xffff
        s_mov_b32 s73, 0xffff
        s_lshl_b32 s74, s60, 3
        s_lshr_b32 s75, s58, 3
        s_add_u32 s74, s74, s75
        s_lshl_b32 s75, s64, 1
        s_add_u32 s74, s74, s75
        s_lshl_b32 s74, s74, 8
        s_add_u32 s74, s74, {QF}
        s_lshl_b32 s75, s31, 2
        s_add_u32 s75, s75, s59
        s_mov_b32 s76, s60
        s_lshl_b32 s77, s63, 15
        s_lshl_b32 s78, s64, 13
        s_add_u32 s77, s77, s78
        s_lshl_b32 s78, s64, 17
        s_lshl_b32 s85, s76, 7
        s_add_u32 s78, s78, s85
        s_lshl_b32 s79, s63, 6
        s_add_u32 s78, s78, s79
        s_lshl_b32 s79, s30, 10
        s_add_u32 s79, s79, {L_X}
        v_and_b32 v{t0}, 31, v0
        v_lshlrev_b32 v{L4H}, 2, v{t0}
        v_lshrrev_b32 v{t1}, 5, v0
        v_lshlrev_b32 v{OUTV}, 10, v{t0}
        v_lshl_add_u32 v{OUTV}, v{t1}, 4, v{OUTV}
        v_and_b32 v{t0}, 15, v0
        v_lshlrev_b32 v{t0}, 4, v{t0}
        v_lshl_add_u32 v{VOF}, v{t1}, 8, v{t0}
        v_mov_b32 v{IDX}, 0xdddd
        v_and_b32 v{t0}, 3, v0
        v_lshlrev_b32 v{XW4}, 2, v{t0}
        v_add_u32 v{XW4}, {L_XF}, v{XW4}
        v_bfe_u32 v{t2}, v0, 2, 2
        v_lshlrev_b32 v{KFV}, 14, v{t0}
        v_and_b32 v{KF2}, 0x4000, v{KFV}
        v_lshl_add_u32 v{t2}, v{t1}, 2, v{t2}
        v_lshlrev_b32 v{t2}, 6, v{t2}
        v_lshl_add_u32 v{t2}, v{t0}, 3, v{t2}
        s_and_b32 s80, s64, 1
        v_bfe_u32 v{WOA}, v0, 4, 1
        v_xor_b32 v{WOA}, s80, v{WOA}
        v_lshl_add_u32 v{t2}, v{WOA}, 5, v{t2}
        s_lshr_b32 s80, s64, 1
        s_lshl_b32 s80, s80, 15
        s_lshl_b32 s81, s64, 13
        s_add_u32 s80, s80, s81
        s_and_b32 s82, s76, 1
        s_lshl_b32 s82, s82, 12
        s_add_u32 s80, s80, s82
        v_add_u32 v{WOA}, s80, v{t2}
        v_lshrrev_b32 v{t2}, 2, v0
        v_lshlrev_b32 v{t2}, 10, v{t2}
        v_lshl_add_u32 v{WOV}, v{t0}, 4, v{t2}
        s_lshl_b32 s83, s75, 1
        s_add_u32 s83, s83, s63
        s_lshl_b32 s83, s83, 15
        s_add_u32 s81, s81, s83
        s_add_u32 s81, s81, {OW}
        s_add_u32 s67, s81, s82
        s_xor_b32 s82, s82, 4096
        s_add_u32 s68, s81, s82
        s_add_u32 s69, s83, s85
        s_lshl_b32 s80, s64, 5
        s_add_u32 s69, s69, s80
        s_lshl_b32 s80, s75, 6
        s_lshl_b32 s81, s30, 3
        s_add_u32 s80, s80, s81
        v_lshrrev_b32 v{t2}, 3, v0
        v_add_u32 v{t2}, s80, v{t2}
        v_lshlrev_b32 v{t2}, 10, v{t2}
        v_lshrrev_b32 v{t1}, 4, v0
        s_lshl_b32 s81, s63, 2
        v_xor_b32 v{t1}, s81, v{t1}
        v_and_b32 v{t0}, 7, v0
        v_xor_b32 v{t1}, v{t1}, v{t0}
        v_lshl_add_u32 v{t2}, v{t1}, 4, v{t2}
        v_add_u32 v{XOV}, s85, v{t2}
        v_lshlrev_b32 v{XW8}, 2, v{t0}
        v_add_u32 v{XW8}, {L_XF}, v{XW8}
        v_bfe_u32 v{t1}, v0, 3, 1
        v_lshlrev_b32 v{t0}, 11, v{t0}
        v_lshl_add_u32 v{CFV}, v{t1}, 8, v{t0}
        s_lshr_b32 s80, s75, 1
        s_and_b32 s84, s80, 3
        s_lshl_b32 s84, s84, 6
        s_lshr_b32 s80, s80, 2
        s_lshl_b32 s80, s80, 1
        s_add_u32 s80, s80, s84
        s_lshl_b32 s80, s80, 8
        s_add_u32 s101, s80, {CF}
        s_add_u32 s81, s81, s64
        """)
        for r in range(4):
            a(f"s_xor_b32 s80, s81, {r}\ns_mul_i32 s80, s80, 6144\ns_add_u32 s80, s80, {L_RB+max(r-1,0)*2048}\nv_add_u32 v{RBA+r}, s80, v{L16}")
        a(f"""
        s_and_b32 s84, s30, 3
        s_mul_i32 s65, s84, {PRIV}
        s_add_u32 s65, s65, {L_PRIV}
        s_add_u32 s80, s65, 4096
        v_add_u32 v{XYA}, s80, v{L16}
        v_add_u32 v{XGA}, s80, v{L4H}
        s_lshl_b32 s80, s84, 2
        s_add_u32 s80, s80, {L_XF}
        v_mov_b32 v{MYW}, s80
        v_mov_b32 v{XW}, {L_XF}
        v_mov_b32 v{ONE}, 1
        v_mov_b32 v{VZ}, 0
        """)
        for i in range(4): a(f"v_mov_b32 v{Z4+i}, 0")
        srd(a, 44, 8, 0x80000)
    ones = lambda t: lines(f"v_and_b32 v{t}, 27, v0\nv_cmp_eq_u32 vcc, 16, v{t}\nv_mov_b32 v{t}, 0x3f803f80\ns_nop 0\nv_cndmask_b32 v{t}, 0, v{t}, vcc")
    ldk = lambda st, so, off: f"buffer_load_dwordx4 {vr(KS+4*st,4)}, v{L16}, {WS}, {so} offen offset:{off} sc1"
    def ldv(st, so, off):
        return ["s_mov_b64 exec, s[72:73]",
                f"buffer_load_dwordx4 {vr(VS+8*st,4)}, v{VOF}, {WS}, {so} offen offset:{off} sc1",
                f"buffer_load_dwordx4 {vr(VS+8*st+4,4)}, v{VOF}, {WS}, {so} offen offset:{off+512} sc1",
                "s_mov_b64 exec, -1"]
    def att_q():
        lds_wait(a, XW4, W_QW, Q)
        for j in range(4): a(f"ds_read_b128 {vr(Q+4*j,4)}, v{QA+j//2} offset:{(j%2)*1024}")
    def att_loads():
        a(ldk(0, "s70", 0))
        for m in range(3):
            for x in ldv(m, "s71", m*1024): a(x)
            a(ldk(m+1, "s70", (m+1)*1024))
    def c_wo():
        a(f"v_xor_b32 v6, 4096, v{WOA}\nv_xor_b32 v7, 0x8000, v{WOA}\nv_xor_b32 v8, 0x9000, v{WOA}")
        for ai in range(2):
            for j in range(8):
                for jj in range(2):
                    a(f"ds_read_b64_tr_b16 {vr(WF+4*(8*ai+j)+2*jj,2)}, v{[WOA,6,7,8][2*ai+j//4]} offset:{(j%4)*1024+jj*512}")
                if j % 4 == 3 and 8*ai+j < 15: a("s_waitcnt lgkmcnt(4)")
    oload = [f"buffer_load_dwordx4 {vr(OB+4*j,4)}, v{L16}, {WS}, s{67+j//4} offen offset:{(j%4)*1024} sc1" for j in range(8)]

    XA, WA, AK, AV, AQ, XF, FR, FQ, GO = 6, [14, 15, 1], 20, 36, 48, 64, 192, [208, 212, 216, 28, 32], 19
    a("s_waitcnt lgkmcnt(0)")
    srd(a, 32, 28, WS_BYTES); srd(a, 52, 26, 256); srd(a, 36, 4, 0x200000); srd(a, 40, 24, 0x200000)
    common_setup(20, 21, 22)
    a(f"""
    s_cmp_lg_u32 s2, 0
    s_cbranch_scc1 A_noclear
    s_lshl_b32 s80, s30, 14
    s_add_u32 s80, s80, {FW}
    v_lshlrev_b32 v24, 8, v0
    buffer_store_dwordx4 {vr(Z4,4)}, v24, {WS}, s80 offen sc1
    s_lshl_b32 s80, s30, 2
    s_waitcnt vmcnt(0)
    s_mov_b64 exec, 1
    buffer_store_dword v{ONE}, v{VZ}, s[52:55], s80 offen sc1
    s_mov_b64 exec, -1
    """)
    a.label("A_noclear")
    if TOUCH:
        a(f"""
        s_lshl_b32 s80, s30, 13
        v_lshl_add_u32 v25, v0, 7, s80
        v_min_u32 v25, K_end-A_pc, v25
        s_getpc_b64 s[80:81]
        A_pc:
        global_load_dword v221, v25, s[80:81]
        """)
    a(f"""
    v_and_b32 v20, 31, v0
    v_lshrrev_b32 v21, 5, v0
    v_bfe_u32 v22, v0, 1, 3
    v_xor_b32 v22, v22, v21
    s_lshl_b32 s80, s30, 12
    v_lshlrev_b32 v20, 7, v20
    v_lshl_add_u32 v20, v22, 4, v20
    v_add_u32 v{XA}, s80, v20
    """)
    for ks in range(1, 4): a(f"v_xor_b32 v{XA+ks}, {ks*32}, v{XA}")
    for ks in range(4): a(f"v_add_u32 v{XA+4+ks}, {2*SLOT}, v{XA+ks}")
    a(f"""
    v_bfe_u32 v20, v0, 2, 2
    v_lshl_add_u32 v20, v21, 3, v20
    v_lshlrev_b32 v20, 6, v20
    v_bfe_u32 v22, v0, 4, 1
    v_lshl_add_u32 v20, v22, 5, v20
    v_and_b32 v23, 3, v0
    v_lshl_add_u32 v20, v23, 3, v20
    v_add_u32 v{WA[0]}, 16384, v20
    v_add_u32 v{WA[1]}, {16384+2*SLOT}, v20
    v_add_u32 v{WA[2]}, {L_WQ}, v20
    v_lshlrev_b32 v228, 2, v23
    v_and_b32 v16, 0x33, v0
    v_bfe_u32 v17, v0, 2, 1
    v_lshl_or_b32 v16, v17, 3, v16
    v_bfe_u32 v17, v0, 3, 1
    v_lshl_or_b32 v16, v17, 2, v16
    v_lshlrev_b32 v16, 4, v16
    v_lshl_add_u32 v17, v22, 16, v{VOF}
    s_lshl_b32 s80, s30, 10
    s_add_u32 s80, s80, {L_QX}
    v_add_u32 v18, s80, v{L16}
    s_lshl_b32 s10, s58, 17
    s_lshl_b32 s80, s57, 2
    s_add_u32 s81, s80, s30
    s_lshl_b32 s81, s81, 10
    s_add_u32 s10, s10, s81
    s_add_u32 s12, s10, {VW}
    s_add_u32 s10, s10, {KW}
    s_add_u32 s11, s10, 0x10000
    s_mov_b32 s13, {f32(0.25*LOG2E)}
    s_lshl_b32 s81, s64, 1
    s_add_u32 s80, s80, s81
    s_lshl_b32 s80, s80, 15
    s_lshl_b32 s82, s61, 10
    s_add_u32 s80, s80, s82
    s_add_u32 s86, s80, {OW}
    s_add_u32 s87, s86, 0x8000
    s_mov_b32 s88, s86
    s_mov_b32 s89, 0x8000
    s_lshl_b32 s82, s63, 2
    s_add_u32 s82, s82, s81
    s_mul_i32 s14, s82, {PSL}
    s_add_u32 s14, s14, {L_OLD}
    s_xor_b32 s16, s30, 2
    s_mul_i32 s15, s30, {2*PSL}
    s_mul_i32 s16, s16, {2*PSL}
    s_add_u32 s15, s15, {L_YNG}
    s_add_u32 s16, s16, {L_YNG}
    s_mov_b32 s83, {CDROP}
    s_mov_b32 s82, 99
    s_mov_b32 s92, s18
    s_mov_b32 s93, s19
    """)
    for x in ones(229): a(x)
    a("s_barrier")
    stamp(a, 1); stamp(a, 1, 3)
    def reads(g):
        st, ks = g >> 2, g & 3
        slot = st % NS
        bs, off = slot // 2, (slot % 2) * SLOT
        f = FR + 8 * (g % 3)
        r = [f"ds_read_b128 {vr(XF+4*g,4)}, v{XA+4*bs+ks} offset:{off}"]
        for ty in range(2):
            for j in range(2):
                r.append(f"ds_read_b64_tr_b16 {vr(f+4*ty+2*j,2)}, v{WA[bs]} offset:{off+ks*2048+ty*1024+j*256}")
        return r
    for r in reads(0) + reads(1): a(r)
    for g in range(32):
        nxt = reads(g + 2) if g + 2 < 32 else []
        if nxt and (g + 2) % 4 == 0:
            a("s_waitcnt lgkmcnt(0)\ns_barrier")
            stamp(a, 1 + (g + 2) // 4, 3)
        else:
            a(f"s_waitcnt lgkmcnt({5 if g < 31 else 0})")
        f, x = FR + 8 * (g % 3), XF + 4 * g
        a(f"{M32} {vr(AK,16)}, {vr(f,4)}, {vr(x,4)}, {'0' if g == 0 else vr(AK,16)}")
        for r in nxt[0:3]: a(r)
        a(f"{M32} {vr(AV,16)}, {vr(x,4)}, {vr(f+4,4)}, {'0' if g == 0 else vr(AV,16)}")
        for r in nxt[3:5]: a(r)
    stamp(a, 2); stamp(a, 9, 3)
    a("s_setprio 3\ns_nop 9")
    for i in range(8): a(f"v_cvt_pk_bf16_f32 v{AK+i}, v{AK+2*i}, v{AK+2*i+1}")
    a(f"buffer_store_dwordx4 {vr(AK,4)}, v16, {WS}, s10 offen sc1")
    a(f"buffer_store_dwordx4 {vr(AK+4,4)}, v16, {WS}, s11 offen sc1")
    for i in range(8): a(f"v_cvt_pk_bf16_f32 v{AV+i}, v{AV+2*i}, v{AV+2*i+1}")
    a(f"buffer_store_dwordx4 {vr(AV,4)}, v17, {WS}, s12 offen sc1")
    a(f"buffer_store_dwordx4 {vr(AV+4,4)}, v17, {WS}, s12 offen offset:512 sc1")
    a(f"buffer_load_dword v{GO}, v228, s[52:55], 0 offen sc1\ns_barrier")
    stamp(a, 3); stamp(a, 10, 3)
    a(f"""
    v_add_u32 v6, s14, v{L16}
    v_add_u32 v7, s14, v{L4H}
    v_add_u32 v8, s15, v{L16}
    v_add_u32 v9, s15, v{L4H}
    v_add_u32 v10, s16, v{L16}
    v_add_u32 v11, s16, v{L4H}
    """)
    for i in range(16, 32): a(f"v_mov_b32 v{VS+i}, v229")
    a("s_waitcnt vmcnt(0)")
    all_set(a, late, GO, 228, "0", "s[52:55]")
    arrive(a, 0, 12)
    stamp(a, 4); stamp(a, 12, 3)
    a("s_barrier")
    stamp(a, 11, 3)
    order = [28, 29, 30, 31] + list(range(28))
    qrd = lambda n: [f"ds_read_b64_tr_b16 {vr(FQ[n%5]+2*j,2)}, v{WA[2]} offset:{order[n]*1024+j*256}" for j in range(2)]
    for n in range(4):
        for r in qrd(n): a(r)
    for n in range(32):
        if n == KFG: a(f"buffer_load_dword v12, v{KF2}, {WS}, s74 offen sc1")
        a(f"s_waitcnt lgkmcnt({min(6, 2*(31-n))})")
        a(f"{M32} {vr(AQ,16)}, {vr(FQ[n%5],4)}, {vr(XF+4*order[n],4)}, {'0' if n == 0 else vr(AQ,16)}")
        if n + 4 < 32:
            for r in qrd(n + 4): a(r)
        if 4 <= n < 20: a(f"v_mov_b32 v{VS+n-4}, v229")
    a("s_nop 11")
    for i in range(16): a(f"v_mul_f32 v{AQ+i}, s13, v{AQ+i}")
    for i in range(8): a(f"v_cvt_pk_bf16_f32 v{AQ+i}, v{AQ+2*i}, v{AQ+2*i+1}")
    a(f"""
    ds_write_b128 v18, {vr(AQ,4)}
    ds_write_b128 v18, {vr(AQ+4,4)} offset:4096
    s_waitcnt lgkmcnt(0)
    {mark(W_QW)}
    s_waitcnt vmcnt(0)
    """)
    all_set(a, late, 12, KF2, "s74")
    stamp(a, 5); stamp(a, 13, 3)
    att_loads()
    att_q()
    a(f"s_waitcnt lgkmcnt(0)\n{mark(W_QR)}\ns_setprio 2")
    stamp(a, 6); stamp(a, 14, 3)
    a("s_branch B_go")

    a.label("A_helper")
    XV, WV = 16, 20
    a(f"""
    s_setprio 1
    s_sub_u32 s84, s30, 4
    s_lshl_b32 s80, s57, 7
    s_lshl_b32 s81, s84, 5
    s_add_u32 s80, s80, s81
    v_lshrrev_b32 v6, 3, v0
    v_add_u32 v6, s80, v6
    v_lshlrev_b32 v6, 10, v6
    v_and_b32 v7, 7, v0
    v_lshrrev_b32 v8, 4, v0
    v_xor_b32 v9, v7, v8
    v_lshl_add_u32 v{XV}, v9, 4, v6
    v_xor_b32 v9, 4, v9
    v_lshl_add_u32 v{XV+1}, v9, 4, v6
    v_add_u32 v{XV+1}, 7168, v{XV+1}
    v_add_u32 v{XV+2}, {2*7168}, v{XV}
    v_add_u32 v{XV+3}, {2*7168}, v{XV+1}
    s_lshl_b32 s81, s84, 4
    v_lshrrev_b32 v6, 2, v0
    v_add_u32 v6, s81, v6
    v_mul_u32_u24 v6, 3072, v6
    v_and_b32 v7, 3, v0
    v_lshl_add_u32 v6, v7, 4, v6
    s_lshl_b32 s81, s58, 6
    v_add_u32 v{WV}, s81, v6
    s_lshl_b32 s92, s84, 12
    s_lshl_b32 s93, s84, 11
    s_add_u32 s93, s93, {16384-1024}
    s_lshl_b32 s94, s59, 1
    s_add_u32 s94, s94, s60
    s_waitcnt lgkmcnt(0)
    """)
    srd(a, 36, 4, 0x200000); srd(a, 40, 6, 0x180000)
    stamp(a, 1, 3)
    def dma(st):
        base = (st % NS) * SLOT
        a(f"s_add_u32 s95, s94, {st}\ns_and_b32 s95, s95, 7\ns_lshl_b32 s100, s95, 7\ns_add_u32 m0, s92, {base}\ns_mul_i32 s95, s95, 196608")
        for j in range(4): a(f"buffer_load_dwordx4 v{XV+j}, s[36:39], s100 offen offset:{j*1024} lds")
        a(f"s_add_u32 m0, s93, {base}\ns_nop 0")
        for j in (1, 2): a(f"buffer_load_dwordx4 v{WV}, s[40:43], s95 offen offset:{j*1024} lds")
        stamp(a, 2 + st, 3)
    for st in range(NS - 1): dma(st)
    srd(a, 32, 28, WS_BYTES); srd(a, 52, 26, 256)
    common_setup(6, 7, 8)
    BA, PW16, PW4, A0, A64, A512, U2, PV16, PT16, PTW, YST = 1, 6, 7, 8, 9, 10, 11, 12, 13, 14, 15
    UFV, GFV, P0, P1, YLD, YSW, YSR, XAD, DF, PM = 210, 211, 212, 213, 214, 215, 216, 217, 218, 224
    UK, TBW, TBR, US, SKV, GOV = 21, 24, 25, 26, 28, 29
    a(f"""
    v_lshlrev_b32 v32, 2, v0
    v_add_u32 v32, {L_XF}, v32
    ds_write_b32 v32, v{VZ}
    s_lshl_b32 s91, s31, 6
    s_lshl_b32 s80, s56, 1
    s_add_u32 s91, s91, s80
    s_lshr_b32 s80, s84, 1
    s_add_u32 s91, s91, s80
    s_and_b32 s80, s91, -2
    s_lshl_b32 s80, s80, 1
    s_load_dword s89, s[20:21], s80
    v_and_b32 v32, 31, v0
    v_lshrrev_b32 v33, 5, v0
    v_and_b32 v34, 15, v0
    v_lshrrev_b32 v35, 4, v0
    v_and_b32 v36, 7, v0
    v_lshrrev_b32 v37, 3, v0
    v_min_u32 v38, 29, v32
    v_lshlrev_b32 v38, 4, v38
    v_mul_u32_u24 v39, {USZ}, v33
    v_add3_u32 v38, v38, v39, s65
    ds_write_b128 v38, {vr(Z4,4)} offset:4096
    s_mul_i32 s80, s84, {4*PSL}
    s_add_u32 s80, s80, {L_OLD}
    v_add_u32 v{PW16}, s80, v{L16}
    v_add_u32 v{PW4}, s80, v{L4H}
    s_lshl_b32 s81, s63, 8
    v_lshlrev_b32 v38, 4, v35
    v_lshl_add_u32 v{A0}, v34, 2, v38
    s_sub_u32 s80, s81, 60
    v_add_u32 v{A0}, s80, v{A0}
    v_add_u32 v{A64}, 64, v{A0}
    v_add_u32 v{A512}, 512, v{A0}
    v_add_u32 v{U2}, 2, v{L16}
    v_add_u32 v{PV16}, s65, v{L16}
    s_xor_b32 s80, s84, 1
    s_lshl_b32 s82, s80, 2
    s_add_u32 s82, s82, {L_XF}
    v_mov_b32 v{PTW}, s82
    s_mul_i32 s80, s80, {PRIV}
    s_add_u32 s80, s80, {L_PRIV}
    v_add_u32 v{PT16}, s80, v{L16}
    v_and_b32 v39, 1, v0
    v_mul_u32_u24 v39, {USZ}, v39
    v_bfe_u32 v40, v0, 1, 3
    v_lshlrev_b32 v41, 6, v40
    v_sub_u32 v39, v39, v41
    s_add_u32 s80, s65, 448
    s_add_u32 s80, s80, s81
    v_add3_u32 v{BA}, v39, v38, s80
    v_and_b32 v38, 3, v0
    v_lshlrev_b32 v{GOV}, 2, v38
    v_lshlrev_b32 v38, 4, v38
    v_bfe_u32 v39, v0, 2, 2
    v_lshl_add_u32 v38, v39, 7, v38
    v_lshl_add_u32 v38, v33, 6, v38
    v_bfe_u32 v41, v0, 4, 1
    v_lshl_add_u32 v{YST}, v41, 9, v38
    v_lshlrev_b32 v{UFV}, 9, v{L4H}
    v_lshlrev_b32 v{GFV}, 11, v36
    v_mul_u32_u24 v38, {CST}, v37
    v_lshl_add_u32 v{YLD}, v36, 4, v38
    v_xor_b32 v42, v36, v35
    v_lshl_add_u32 v{US}, v42, 4, v38
    v_xor_b32 v42, 4, v42
    v_lshl_add_u32 v{US+1}, v42, 4, v38
    v_xor_b32 v38, v36, v37
    v_lshlrev_b32 v38, 4, v38
    v_lshl_add_u32 v38, v37, 7, v38
    s_add_u32 s80, s65, 6400
    v_add_u32 v{YSW}, s80, v38
    s_lshl_b32 s80, s63, 1
    v_lshl_add_u32 v38, v33, 2, s80
    v_xor_b32 v38, v38, v36
    v_lshlrev_b32 v38, 4, v38
    v_lshl_add_u32 v38, v34, 7, v38
    s_and_b32 s80, s64, 1
    s_mul_i32 s80, s80, {PRIV}
    s_add_u32 s80, s80, {L_PRIV+6400}
    v_add_u32 v{YSR}, s80, v38
    s_lshl_b32 s80, s64, 1
    v_xor_b32 v38, s80, v40
    v_lshlrev_b32 v38, 4, v38
    v_lshl_add_u32 v38, v32, 7, v38
    v_lshl_add_u32 v38, v33, 3, v38
    s_lshl_b32 s80, s63, 12
    s_add_u32 s80, s80, {L_X}
    v_add_u32 v{XAD}, s80, v38
    v_and_b32 v38, 1, v0
    v_lshl_or_b32 v39, v38, 2, v39
    v_xor_b32 v41, v41, v33
    v_lshl_or_b32 v39, v41, 3, v39
    v_bfe_u32 v38, v0, 1, 1
    v_lshlrev_b32 v38, 4, v38
    v_mov_b32 v41, 0x3f80
    v_lshlrev_b32 v38, v38, v41
    """)
    for i in range(8): a(f"v_cmp_eq_u32 vcc, {i}, v39\ns_nop 1\nv_cndmask_b32 v{PM+i}, 0, v38, vcc")
    a(f"""
    s_lshl_b32 s80, s56, 16
    s_lshl_b32 s82, s84, 14
    s_add_u32 s80, s80, s82
    s_lshl_b32 s82, s31, 7
    s_add_u32 s80, s80, s82
    v_lshlrev_b32 v38, 13, v33
    v_lshl_add_u32 v38, v32, 2, v38
    v_add_u32 v{UK+1}, s80, v38
    v_add_u32 v{UK}, -3072, v{UK+1}
    v_add_u32 v{UK+2}, 4096, v{UK+1}
    s_lshl_b32 s80, s31, 9
    v_lshl_add_u32 v{SKV}, v32, 4, s80
    s_lshl_b32 s80, s84, 1
    v_add_u32 v38, s80, v33
    v_sub_u32 v38, 7, v38
    v_xor_b32 v38, v38, v36
    v_lshlrev_b32 v38, 4, v38
    v_lshl_add_u32 v38, v32, 8, v38
    v_add_u32 v{TBW}, {TB}, v38
    s_lshl_b32 s80, s84, 11
    s_add_u32 s80, s80, {TB}
    v_add_u32 v{TBR}, s80, v{L16}
    s_lshl_b32 s10, s31, 2
    s_add_u32 s10, s10, s84
    s_mul_i32 s10, s10, {16*CST}
    s_lshl_b32 s80, s56, 7
    s_sub_u32 s10, s10, s80
    s_add_u32 s10, s10, {UW + 248*16}
    s_add_u32 s11, s10, {8*CST}
    s_lshl_b32 s87, s31, 8
    s_add_u32 s87, s87, {UF}
    s_lshr_b32 s86, s31, 1
    s_lshl_b32 s86, s86, 1
    s_and_b32 s80, s75, 1
    s_add_u32 s86, s86, s80
    s_lshr_b32 s80, s75, 1
    s_and_b32 s80, s80, 3
    s_lshl_b32 s80, s80, 6
    s_add_u32 s86, s86, s80
    s_lshl_b32 s86, s86, 8
    s_add_u32 s86, s86, {UF}
    v_lshl_add_u32 v39, v35, 2, v34
    s_waitcnt lgkmcnt(0)
    s_and_b32 s80, s91, 1
    s_lshl_b32 s80, s80, 4
    s_lshr_b32 s89, s89, s80
    s_and_b32 s89, s89, 0xffff
    v_mov_b32 v38, s89
    """)
    for i in range(4): a(f"v_cmp_eq_u32 vcc, {15-i}, v39\ns_nop 1\nv_cndmask_b32 v{DF+i}, 0, v38, vcc")
    for x in ones(38): a(x)
    for i in range(32): a(f"v_mov_b32 v{VS+i}, v38")
    for s_ in range(8):
        a(f"s_waitcnt vmcnt({6*min(NS-2, 7-s_)})\ns_barrier")
        if s_ + NS - 1 < 8: dma(s_ + NS - 1)
    a("s_lshr_b32 s92, s92, 2")
    for st in range(8):
        if st == WQ1: a("s_barrier")
        a(f"s_add_u32 s95, s94, {st}\ns_and_b32 s95, s95, 7\ns_add_u32 m0, s92, {L_WQ+st*4096}\ns_mul_i32 s95, s95, 196608")
        a(f"buffer_load_dwordx4 v{WV}, s[40:43], s95 offen lds")
    if WQ1 >= 8: a("s_barrier")
    stamp(a, 10, 3)
    KR, VR, SK, GOH, KF, VF, SF, U, UP, GX, GG = 32, 43, 52, 56, 64, 86, 102, 110, 128, 144, 152
    srd(a, 40, 12, 0x200000); srd(a, 48, 14, 0x200000)
    for i in range(3): a(f"buffer_load_dword v{KR+i}, v{UK}, s[40:43], 0 offen offset:{i*1024} nt")
    for i in range(8): a(f"buffer_load_dword v{KR+3+i}, v{UK+1+i//4}, s[40:43], 0 offen offset:{(i%4)*1024} nt")
    for i in range(8): a(f"buffer_load_dword v{VR+i}, v{UK+1+i//4}, s[48:51], 0 offen offset:{(i%4)*1024} nt")
    srd(a, 40, 16, 4096); srd(a, 48, 22, 1024)
    a(f"""
    s_lshl_b32 s12, s57, 7
    s_lshl_b32 s80, s58, 3
    s_add_u32 s12, s12, s80
    s_lshl_b32 s80, s84, 1
    s_add_u32 s12, s12, s80
    s_lshl_b32 s80, s12, 10
    s_lshl_b32 s12, s12, 2
    s_add_u32 s12, s12, {GW}
    buffer_load_dwordx4 {vr(SK,4)}, v{SKV}, s[40:43], 0 offen
    buffer_load_dwordx4 {vr(GG,4)}, v{L16}, s[48:51], 0 offen
    buffer_load_dwordx4 {vr(GX,4)}, v{L16}, s[36:39], s80 offen
    buffer_load_dwordx4 {vr(GX+4,4)}, v{L16}, s[36:39], s80 offen offset:1024
    buffer_load_dword v{GOH}, v{GOV}, s[52:55], 0 offen sc1
    s_waitcnt vmcnt(24)
    s_barrier
    s_setprio 0
    """)
    stamp(a, 1); stamp(a, 11, 3)
    srd(a, 40, 24, 0x200000)
    a(f"""
    s_mul_i32 s13, s91, {CST}
    s_lshl_b32 s80, s63, 11
    s_add_u32 s7, s13, s80
    s_add_u32 s7, s7, {YW}
    s_add_u32 s13, s13, {UW}
    s_mov_b32 s88, s7
    s_mov_b32 s89, 1024
    s_lshl_b32 s14, s75, 1
    s_add_u32 s14, s14, s63
    s_lshl_b32 s14, s14, 7
    s_add_u32 s14, s14, {GW}
    s_lshl_b32 s15, s76, 2
    s_add_u32 s15, s15, s84
    s_mul_i32 s15, s15, {16*CST}
    s_lshl_b32 s82, s75, 7
    s_add_u32 s15, s15, s82
    s_add_u32 s15, s15, {YW}
    s_add_u32 s16, s15, {8*CST}
    s_lshl_b32 s17, s76, 8
    s_add_u32 s17, s17, {CF}
    s_lshl_b32 s82, s91, 12
    s_add_u32 s82, s82, s80
    s_add_u32 s92, s18, s82
    s_addc_u32 s93, s19, 0
    s_mov_b32 s83, 99
    s_mov_b32 s82, 2
    s_mov_b32 s6, 0xffff0000
    s_waitcnt vmcnt(4)
    """)
    stamp(a, 2)
    a(f"buffer_load_dword v57, v{KF2}, {WS}, s74 offen sc1")
    for i in range(11): a(f"v_lshlrev_b32 v{KF+2*i}, 16, v{KR+i}\nv_and_b32 v{KF+2*i+1}, s6, v{KR+i}")
    for i in range(8): a(f"v_lshlrev_b32 v{VF+2*i}, 16, v{VR+i}\nv_and_b32 v{VF+2*i+1}, s6, v{VR+i}")
    for ch in range(2):
        for t in range(4):
            src = SK + 2*ch + t//2
            a(f"v_lshlrev_b32 v{SF+2*t+ch}, 16, v{src}" if t % 2 == 0 else f"v_and_b32 v{SF+2*t+ch}, s6, v{src}")
    for i in range(8):
        u = vr(U+2*i, 2)
        a(f"v_pk_mul_f32 {u}, {vr(KF+2*i,2)}, {vr(SF+6,2)}")
        for t in (2, 1, 0): a(f"v_pk_fma_f32 {u}, {vr(KF+2*(i+3-t),2)}, {vr(SF+2*t,2)}, {u}")
        a(f"v_pk_mul_f32 {u}, {u}, {vr(VF+2*i,2)}")
    for ch in range(2):
        for i in range(4): a(f"v_cvt_pk_bf16_f32 v{KR+4*ch+i}, v{U+2*(7-2*i)+ch}, v{U+2*(6-2*i)+ch}")
    a(f"""
    ds_write_b128 v{TBW}, {vr(KR,4)}
    ds_write_b128 v{TBW}, {vr(KR+4,4)} offset:128
    v_mov_b32 v48, 0
    v_mov_b32 v49, 0
    s_waitcnt vmcnt(0) lgkmcnt(0)
    {mark(W_TB)}
    """)
    all_set(a, late, 57, KF2, "s74")
    att_loads()
    for i in range(4):
        a(f"v_dot2_f32_bf16 v48, v{GX+i}, v{GG+i}, v48\nv_dot2_f32_bf16 v49, v{GX+4+i}, v{GG+i}, v49")
    a("s_nop 2")
    for d in ("row_shr:1 row_mask:0xf bank_mask:0xf bound_ctrl:0", "row_shr:2 row_mask:0xf bank_mask:0xf bound_ctrl:0",
              "row_shr:4 row_mask:0xf bank_mask:0xf bound_ctrl:0", "row_shr:8 row_mask:0xf bank_mask:0xf bound_ctrl:0",
              "row_bcast:15 row_mask:0xa bank_mask:0xf", "row_bcast:31 row_mask:0xc bank_mask:0xf"):
        a(f"v_add_f32_dpp v48, v48, v48 {d}\nv_add_f32_dpp v49, v49, v49 {d}\ns_nop 0")
    a(f"""
    v_cvt_pk_bf16_f32 v50, v48, v49
    v_lshlrev_b32 v48, 16, v50
    v_and_b32 v49, s6, v50
    v_mul_f32 v48, {f32(-LOG2E)}, v48
    v_mul_f32 v49, {f32(-LOG2E)}, v49
    v_exp_f32 v48, v48
    v_exp_f32 v49, v49
    s_nop 0
    v_add_f32 v48, 1.0, v48
    v_add_f32 v49, 1.0, v49
    v_rcp_f32 v48, v48
    v_rcp_f32 v49, v49
    s_nop 0
    v_cvt_pk_bf16_f32 v50, v48, v49
    v_lshlrev_b32 v{UP+8}, 16, v50
    v_and_b32 v{UP+9}, s6, v50
    v_mov_b32 v{UP+10}, v{US}
    v_mov_b32 v{UP+11}, v{US+1}
    """)
    all_set(a, late, GOH, GOV, "0", "s[52:55]")
    lds_wait(a, XW4, W_TB, 56)
    a(f"ds_read_b128 {vr(UP,4)}, v{TBR}\nds_read_b128 {vr(UP+4,4)}, v{TBR} offset:1024")
    stamp(a, 3); stamp(a, 12, 3)
    a("s_waitcnt lgkmcnt(0)")
    a(f"""
    buffer_store_dwordx4 {vr(UP,4)}, v{UP+10}, {WS}, s10 offen sc1
    buffer_store_dwordx4 {vr(UP+4,4)}, v{UP+11}, {WS}, s11 offen sc1
    s_mov_b32 exec_lo, 0
    s_mov_b32 exec_hi, 0x80000000
    buffer_store_dwordx2 {vr(UP+8,2)}, v{VZ}, {WS}, s12 offen sc1
    s_mov_b64 exec, -1
    """)
    stamp(a, 4); stamp(a, 13, 3)
    att_q()
    lds_wait(a, XW4, W_QR, 56)
    a("s_setprio 1")
    stamp(a, 5); stamp(a, 6)
    for i in range(12): a(f"s_load_dword s100, s[92:93], {i*128}")

    a.label("B_go")
    for j in range(4): a(f"{M32} {vr(ACC+16*j,16)}, {vr(Z4,4)}, {vr(Z4,4)}, 0")
    a(f"{M32} {vr(S+48,16)}, {vr(Z4,4)}, {vr(Z4,4)}, 0")
    a("s_add_u32 s70, s70, 4096\ns_add_u32 s71, s71, 3072\ns_mov_b32 s84, 3")
    qk = lambda j, st: f"{M32} {vr(S+16*j,16)}, {vr(KS+4*st,4)}, {vr(Q+4*j,4)}, 0"
    pv = lambda j, st, s: f"{SM} {vr(ACC+16*j,16)}, {vr(VS+8*st+4*s,4)}, {vr(S+16*j+8*s,8)}, v{IDX}"
    a("s_waitcnt vmcnt(9)"); a(qk(0, 0)); a(qk(1, 0))
    for i in range(4): a(f"v_mov_b32 v{Z4+i}, -1")
    a("s_nop 6")
    if STAMP: a("s_mov_b32 s21, 0")
    stamp(a, 7)
    wodma = lambda m: [f"s_add_u32 m0, s77, {m*1024}", f"s_add_u32 s85, s78, {m*16384}", f"buffer_load_dwordx4 v{WOV}, s[44:47], s85 offen lds"]
    xdma = ["s_mov_b32 m0, s79", "s_nop 0", f"buffer_load_dwordx4 v{XOV}, s[36:39], 0 offen lds"]
    def body(last, extras, waits):
        for m in range(4):
            for j in range(4):
                jp, mp = (j - 1) % 4, (m if j else (m - 1) % 4)
                ins = {}
                def put(p, x): ins.setdefault(p, []).extend(x if isinstance(x, list) else [x])
                if j == 1 and waits[m] is not None: put(1, f"s_waitcnt vmcnt({waits[m]})")
                put(1, pv(jp, mp, 0))
                put(6, pv(jp, mp, 1))
                if j == 0 and (not last or m == 0): put(8, ldv((m + 3) % 4, "s71", m*1024))
                if not (last and m == 3 and j >= 2): put(11, qk((j + 2) % 4, m if j < 2 else (m + 1) % 4))
                if j == 1 and not last: put(13, ldk(m, "s70", m*1024))
                if j == 2 and not last:
                    if m < 2: put(8, wodma(m))
                    if m == 2: put(8, ["s_cmp_eq_u32 s84, 1", "s_cbranch_scc1 B_x"] + wodma(2) + ["s_branch B_xd", "B_x:"] + xdma + ["B_xd:"])
                    if m == 3: put(8, [f"buffer_store_dwordx4 {vr(Z4,4)}, v{L16}, {WS}, s88 offen sc1", "s_add_u32 s88, s88, s89", "s_mov_b32 s89, 0"])
                if not last and m == 1 and j == 3: put(4, f"buffer_load_dword v{QA+1}, v{KFV}, {WS}, s74 offen sc1")
                if not last and m == 3 and j == 3: put(3, ["s_waitcnt vmcnt(8)", lambda: all_set(a, late, QA + 1, KFV, "s74")])
                if last and m == 0 and j == 0: put(3, lambda: arrive(a, 2, QA, 8))
                for p, x in extras.get((m, j), []): put(p, x)
                for e in range(16):
                    for x in ins.get(e, []):
                        if callable(x): x()
                        else: a(x)
                    a(f"v_exp_f32 v{S+16*j+e}, v{S+16*j+e}")
    a(".p2align 6")
    a.label("B_loop")
    body(False, {(3, 1): [(14, ["s_add_u32 s77, s77, 3072", "s_add_u32 s78, s78, 49152"])],
                 (3, 2): [(14, ["s_add_u32 s70, s70, 4096", "s_add_u32 s71, s71, 4096", "s_sub_u32 s84, s84, 1"])],
                 (CDT, 0): [(3, ["s_cmp_lg_u32 s84, s83", "s_cbranch_scc1 B_keep", "s_setprio 0", "B_keep:"])],
                 (3, 3): [(8, ["s_cmp_lg_u32 s84, s82", "s_cbranch_scc1 B_nouf", lambda: arrive(a, 1, QA)]
                              + [f"s_load_dword s100, s[92:93], {i*128}" for i in range(12, 16)] + ["B_nouf:"]),
                          (14, "s_cmp_lg_u32 s84, 0")]}, [8, 9, 11, 12])
    a("s_cbranch_scc1 B_loop")
    stamp(a, 8)
    a("s_cmp_lt_u32 s30, 4\ns_cbranch_scc1 B_final")

    CA = 32
    ABUF, BBUF = [96, 160], [128, 64]
    a(f"""
    s_lshl_b32 s80, s91, 12
    s_add_u32 s92, s18, s80
    s_addc_u32 s93, s19, 0
    s_mov_b32 s94, 4096
    s_mov_b32 s95, 0x20000
    buffer_load_dword v{P0}, v{UFV}, {WS}, s87 offen sc1
    buffer_load_dword v{P1}, v{GFV}, {WS}, s86 offen sc1
    """)
    def lda(rr):
        b = ABUF[rr % 2]
        o = []
        if rr == 0:
            o.append(f"buffer_load_dword v{b}, v{A0}, s[92:95], 0 offen")
            for i in range(1, 4): o.append(f"v_add_u32 v{A0}, 4, v{A0}\nbuffer_load_dword v{b+i}, v{A0}, s[92:95], 0 offen")
        else:
            o.append(f"buffer_load_dwordx4 {vr(b,4)}, v{A64}, s[92:95], 0 offen offset:{64*(rr-1)}")
        for aa in range(1, 8):
            o.append(f"buffer_load_dwordx4 {vr(b+4*aa,4)}, v{A512}, s[92:95], 0 offen offset:{512*(aa-1)+64*rr}")
        return o
    ldb = lambda rr: [f"ds_read_b128 {vr(BBUF[rr%2]+4*bb,4)}, v{BA} offset:{64*rr+512*(7-bb)}" for bb in range(8)]
    udma = lambda rho, q: [f"s_add_u32 m0, s65, {rho*USZ}", "s_nop 0",
                           f"buffer_load_dwordx4 v{L16 if rho else U2}, {WS}, s13 offen offset:{q*1024} sc1 lds",
                           f"buffer_load_dwordx4 v{L16 if rho else U2}, {WS}, s13 offen offset:{q*1024+1024} sc1 lds"]
    wrh = lambda j: [f"ds_write_b128 v{PW16}, {vr(ACC+16*j,4)} offset:{j*PSL}", f"ds_write_b128 v{PW16}, {vr(ACC+16*j+4,4)} offset:{j*PSL+1024}",
                     f"ds_write_b32 v{PW4}, v{ACC+16*j+8} offset:{j*PSL+2048}"]
    LA0, LA1 = lda(0), lda(1)
    exh = {(1, 1): [(3, [mark(W_LH), lambda: all_set(a, late, P0, UFV, "s87"), lambda: all_set(a, late, P1, GFV, "s86")]),
                    (8, udma(1, 0)), (13, udma(1, 2))],
           (1, 2): [(4, udma(0, 0)), (13, udma(0, 2))],
           (1, 3): [(4, f"buffer_load_dword v{G}, v{L4H}, {WS}, s14 offen sc1")],
           (3, 1): [(9 + i, LA1[i]) for i in range(4)],
           (3, 2): [(3 + i, wrh(0)[i]) for i in range(3)] + [(8 + i, LA1[4 + i]) for i in range(4)],
           (3, 3): [(0, LA0[0:4])] + [(3 + i, wrh(1)[i]) for i in range(3)] + [(7 + i, LA0[4 + i]) for i in range(7)]}
    body(True, exh, [14, 2, None, 9])
    a(f"""
    s_waitcnt vmcnt(19)
    s_mov_b64 exec, 1
    ds_write_b16 v{PV16}, v{VZ} offset:4094
    s_mov_b64 exec, -1
    {pv(3,3,0)}
    {pv(3,3,1)}
    s_setprio {CVP}
    """)
    stamp(a, 9)
    for x in ldb(0) + wrh(2): a(x)
    a("s_nop 0")
    for x in wrh(3): a(x)
    a(f"s_waitcnt lgkmcnt(0)\n{mark(W_PO)}")
    for rr in range(4):
        ab, bb_ = ABUF[rr % 2], BBUF[rr % 2]
        nb = ldb(rr + 1) if rr < 3 else []
        mm = lambda aa, b, c=None: f"{M16} {vr(CA+4*(aa+b),4)}, {vr(ab+4*aa,4)}, {vr(bb_+4*b,4)}, {c or vr(CA+4*(aa+b),4)}"
        a(f"s_waitcnt vmcnt({[0, 8, 8, 0][rr]}){' lgkmcnt(0)' if rr else ''}")
        if rr == 3:
            a(f"buffer_load_dword v{P0}, v{UFV}, {WS}, s17 offen sc1\nbuffer_load_dword v{P1}, v{CFV}, {WS}, s101 offen sc1")
        if rr == 0:
            a("s_cmp_lg_u32 s63, 0\ns_cbranch_scc1 CV_nodiag")
            for b in range(8): a(f"{M16} {vr(CA+4*b,4)}, {vr(DF,4)}, {vr(bb_+4*b,4)}, 0")
            for b in range(8): a(mm(0, b))
            a("s_branch CV_row1")
            a.label("CV_nodiag")
            for b in range(8): a(mm(0, b, "0"))
            a.label("CV_row1")
        cnt = 0
        na = lda(rr + 2) if rr < 2 else []
        for aa in range(8):
            for b in range(8 - aa):
                if rr == 0 and aa == 0: continue
                a(mm(aa, b))
                cnt += 1
                if cnt % 3 == 0 and nb: a(nb.pop(0))
            if na: a(na.pop(0))
    stamp(a, 11)
    XI, YP = 96, 128
    a("s_cmp_lg_u32 s63, 0\ns_cbranch_scc1 CV_odd")
    for odd in range(2):
        if odd: a.label("CV_odd")
        a("s_nop 5" if not odd else "s_nop 0")
        for n in range(4): a(f"ds_write_b128 v{PV16}, {vr(CA+16*(1-odd)+4*n,4)} offset:{n*1024}")
        a(f"s_waitcnt lgkmcnt(0)\n{mark(W_XCH)}")
        lds_wait(a, PTW, W_XCH, XI)
        for n in range(4): a(f"ds_read_b128 {vr(XI+4*n,4)}, v{PT16} offset:{n*1024}")
        for n in range(4):
            c = CA + 16*odd + 4*n
            a(f"s_waitcnt lgkmcnt({3-n})")
            a(f"v_pk_add_f32 {vr(c,2)}, {vr(c,2)}, {vr(XI+4*n,2)}\nv_pk_add_f32 {vr(c+2,2)}, {vr(c+2,2)}, {vr(XI+4*n+2,2)}")
            a(f"v_cvt_pk_bf16_f32 v{YP+2*n}, v{c}, v{c+1}\nv_cvt_pk_bf16_f32 v{YP+2*n+1}, v{c+2}, v{c+3}")
        if not odd: a("s_branch CV_st")
    a.label("CV_st")
    a("s_nop 0")
    for p in range(2):
        a(f"v_permlane16_swap_b32 v{YP+4*p}, v{YP+4*p+2}\nv_permlane16_swap_b32 v{YP+4*p+1}, v{YP+4*p+3}")
        a(f"buffer_store_dwordx4 {vr(YP+4*p,4)}, v{YST}, {WS}, s7 offen offset:{1024*p} sc1")
    a("s_waitcnt vmcnt(2)")
    all_set(a, late, P0, UFV, "s17"); all_set(a, late, P1, CFV, "s101")
    yload = [f"buffer_load_dwordx4 {vr(YA+4*q,4)}, v{YLD}, {WS}, s{15+q} offen sc1" for q in range(2)]
    if not YLATE:
        for x in yload: a(x)
    a("s_setprio 0")
    stamp(a, 12)
    lds_wait(a, XW8, W_LH, 9)
    a(f"""
    v_xor_b32 v9, 16, v{XAD}
    v_xor_b32 v10, 64, v{XAD}
    v_xor_b32 v11, 80, v{XAD}
    ds_read_b64 {vr(XR,2)}, v{XAD}
    ds_read_b64 {vr(XR+2,2)}, v9
    ds_read_b64 {vr(XR+4,2)}, v10
    ds_read_b64 {vr(XR+6,2)}, v11
    v_sub_f32 v{G+1}, 1.0, v{G}
    ds_write_b32 v{XGA}, v{G} offset:2048
    """)
    c_wo()
    a(f"v_xor_b32 v9, 16, v{YSR}\nv_mov_b32 v{G+2}, v{G+1}\nv_mov_b32 v{G+3}, v{G+1}")
    for i in range(8):
        a(f"v_lshlrev_b32 v{XG+2*i}, 16, v{XR+i}\nv_and_b32 v{XG+2*i+1}, s6, v{XR+i}")
        a(f"v_pk_mul_f32 {vr(XG+2*i,2)}, {vr(XG+2*i,2)}, {vr(G+2,2)}")
    if YLATE:
        for x in yload: a(x)
    a("s_waitcnt vmcnt(0)")
    fresh(a, late, list(range(YA, YA+8)), yload, 10)
    a(f"""
    ds_write_b128 v{YSW}, {vr(YA,4)}
    ds_write_b128 v{YSW}, {vr(YA+4,4)} offset:1024
    s_waitcnt lgkmcnt(0)
    {mark(W_YS)}
    """)
    stamp(a, 10)
    if STAMP: a("v_writelane_b32 v255, s21, 41")
    lds_wait(a, XW4, W_YS, 10)
    for b in (1, 0):
        for sg in range(2): a(f"ds_read_b128 {vr(YF+8*b+4*sg,4)}, v{[YSR, 9][sg]} offset:{(1-b)*2*PRIV}")
    for b in (1, 0):
        a(f"s_waitcnt lgkmcnt({2*b})")
        a(f"{M32} {vr(YA+16*b,16)}, {vr(YF+8*b,4)}, {vr(PM,4)}, 0")
        a(f"{M32} {vr(YA+16*b,16)}, {vr(YF+8*b+4,4)}, {vr(PM+4,4)}, {vr(YA+16*b,16)}")
    lds_wait(a, XW4, W_PR, 10)
    a("s_setprio 3")
    stamp(a, 13)
    for x in oload: a(x)
    for i in range(4): a(f"v_pk_mul_f32 {vr(YA+16+2*i,2)}, {vr(YA+16+2*i,2)}, {vr(XG+8+2*i,2)}")
    a(f"ds_write_b128 v{XYA}, {vr(YA+16,4)}\nds_write_b128 v{XYA}, {vr(YA+20,4)} offset:1024")
    for i in range(4): a(f"v_pk_mul_f32 {vr(YA+2*i,2)}, {vr(YA+2*i,2)}, {vr(XG+2*i,2)}")
    a("s_branch C_mm")

    a.label("B_final")
    rdp = lambda dst, a16, off: [f"ds_read_b128 {vr(dst,4)}, v{a16} offset:{off}", f"ds_read_b128 {vr(dst+4,4)}, v{a16} offset:{off+1024}",
                                 f"ds_read_b32 v{dst+8}, v{a16+1} offset:{off+2048}"]
    wrp = lambda j: [f"ds_write_b128 v8, {vr(ACC+16*j,4)} offset:{j*PSL}", f"ds_write_b128 v8, {vr(ACC+16*j+4,4)} offset:{j*PSL+1024}",
                     f"ds_write_b32 v9, v{ACC+16*j+8} offset:{j*PSL+2048}"]
    PA, PB = [208, 176, 160, 186], [96, 112]
    r0 = rdp(PA[0], 6, 0); r1 = rdp(PA[1], 6, 8*PSL); r2 = rdp(PA[2], 6, PSL); r3 = rdp(PA[3], 6, 9*PSL)
    w0, w1 = wrp(0), wrp(1)
    def add9(d, s_):
        return [f"v_pk_add_f32 {vr(d+2*i,2)}, {vr(d+2*i,2)}, {vr(s_+2*i,2)}" for i in range(4)] + [f"v_add_f32 v{d+8}, v{d+8}, v{s_+8}"]
    ex = {(1, 1): [(3, mark(W_LC))],
          (2, 2): [(8, f"buffer_load_dword v13, v{CFV}, {WS}, s101 offen sc1")],
          (3, 0): [(9, [lambda: lds_wait(a, XW4, W_PO, 12), "s_setprio 3"]), (12, r0[0]), (13, r0[1]), (14, r0[2])],
          (3, 1): [(3, r1[0]), (4, r1[1]), (8, r1[2]), (9, r2[0]), (13, r2[1]), (14, r2[2])],
          (3, 2): [(2, r3[0]), (3, w0[0]), (4, r3[1]), (8, w0[1]), (9, r3[2]), (10, w0[2])],
          (3, 3): [(3, w1[0]), (4, w1[1]), (5, w1[2]), (9, ["s_waitcnt lgkmcnt(0)", mark(W_PY)]),
                   (12, [lambda: lds_wait(a, XW4, W_PY, 12)] + rdp(PB[0], 10, 0)), (13, rdp(PB[1], 10, PSL))]}
    body(True, ex, [12, 6, 3, 0])
    stamp(a, 9)
    O2, O3 = ACC + 32, ACC + 48
    for x in add9(PA[0], PA[1])[:2]: a(x)
    a(f"{pv(3,3,0)}\n{pv(3,3,1)}")
    for x in add9(PA[0], PA[1])[2:] + add9(O2, PA[0]) + add9(PA[2], PA[3]): a(x)
    a("s_waitcnt lgkmcnt(0)")
    a(mark(W_PR))
    for x in add9(O2, PB[0]) + add9(PA[2], PB[1]) + add9(O3, PA[2]): a(x)
    a(f"v_mov_b32 v14, 0\nv_mov_b32 v15, 0")
    for o in (O2, O3):
        for i in range(4): a(f"v_pk_fma_f32 v[14:15], {vr(o+2*i,2)}, 0, v[14:15] op_sel_hi:[1,0,1]")
    a(f"""
    v_add_f32 v14, v14, v15
    v_min_f32 v15, v{O2+8}, v{O3+8}
    v_add_f32 v14, v14, v{O2+8}
    v_add_f32 v14, v14, v{O3+8}
    v_cmp_lt_f32 vcc, {f32(2.0**-60)}, v15
    s_mov_b64 s[92:93], vcc
    v_cmp_gt_f32 vcc, {f32(2.0**60)}, v14
    s_and_b64 s[92:93], s[92:93], vcc
    s_cmp_eq_u64 s[92:93], exec
    s_cbranch_scc0 B_slow
    """)
    a.label("B_fin")
    a(f"v_rcp_f32 v14, v{O2+8}\nv_rcp_f32 v12, v{O3+8}\ns_nop 0")
    for jj, (o, r) in enumerate(((O2, 14), (O3, 12))):
        for i in range(4): a(f"v_pk_mul_f32 {vr(o+2*i,2)}, {vr(o+2*i,2)}, {vr(r,2)} op_sel_hi:[1,0]")
        for i in range(4): a(f"v_cvt_pk_bf16_f32 v{208+4*jj+i}, v{o+2*i}, v{o+2*i+1}")
        a(f"buffer_store_dwordx4 {vr(208+4*jj,4)}, v{L16}, {WS}, s{86+jj} offen sc1")
    stamp(a, 10)
    all_set(a, late, 13, CFV, "s101")
    if not OLATE:
        for x in oload: a(x)
    stamp(a, 11)
    lds_wait(a, XW8, W_LH, 12)
    c_wo()
    lds_wait(a, XW4, W_PR, 12)
    if OLATE:
        for x in oload: a(x)
    stamp(a, 13)

    a.label("C_mm")
    for j in range(8):
        a(f"s_waitcnt vmcnt({7-j})")
        fresh(a, late, list(range(OB+4*j, OB+4*j+4)), oload[j:], 6, 7 - j)
        for ai in (1, 0):
            a(f"{M32} {vr(AC+16*ai,16)}, {vr(WF+4*(8*ai+j),4)}, {vr(OB+4*j,4)}, {'0' if j == 0 else vr(AC+16*ai,16)}")
    stamp(a, 14)
    a("s_nop 10")
    for r in (2, 3, 1):
        a(f"ds_write_b128 v{RBA+r}, {vr(AC+8*r,4)}\nds_write_b128 v{RBA+r}, {vr(AC+8*r+4,4)} offset:1024")
    a(f"s_cmp_lt_u32 s30, 4\ns_waitcnt lgkmcnt(0)\ns_barrier\ns_cbranch_scc0 C_havexy")
    a(f"ds_read_b128 {vr(YA,4)}, v{XYA}\nds_read_b128 {vr(YA+4,4)}, v{XYA} offset:1024\nds_read_b32 v{G}, v{XGA} offset:2048")
    a.label("C_havexy")
    for r in range(6): a(f"ds_read_b128 {vr(RD+4*r,4)}, v{RBA} offset:{r*1024}")
    for r in range(3):
        a(f"s_waitcnt lgkmcnt({4-2*r})")
        for i in range(4): a(f"v_pk_add_f32 {vr(AC+2*i,2)}, {vr(AC+2*i,2)}, {vr(RD+8*r+2*i,2)}")
    for i in range(4): a(f"v_pk_fma_f32 {vr(AC+2*i,2)}, {vr(AC+2*i,2)}, {vr(G,2)}, {vr(YA+2*i,2)} op_sel_hi:[1,0,1]")
    for i in range(4): a(f"v_cvt_pk_bf16_f32 v{PK4+i}, v{AC+2*i}, v{AC+2*i+1}")
    a(f"""
    s_nop 0
    v_permlane32_swap_b32 v{PK4}, v{PK4+2}
    v_permlane32_swap_b32 v{PK4+1}, v{PK4+3}
    buffer_store_dwordx4 {vr(PK4,4)}, v{OUTV}, s[40:43], s69 offen
    """)
    if STAMP: a("s_waitcnt vmcnt(0)")
    stamp(a, 15)
    if STAMP: a("v_writelane_b32 v255, s21, 40")
    stamp_flush(a)
    a("s_endpgm")

    a.label("B_slow")
    a(f"""
    s_add_u32 s70, s66, {KW}
    s_add_u32 s71, s66, {VW}
    s_mov_b32 s84, 0
    v_mov_b32 v208, 0xff800000
    v_mov_b32 v209, 0xff800000
    """)
    a.label("B_slow1")
    a(f"""
    s_add_u32 s85, s70, s84
    {ldk(0, "s85", 0)}
    s_waitcnt vmcnt(0)
    {M32} {vr(S,16)}, {vr(KS,4)}, {vr(Q+8,4)}, 0
    {M32} {vr(S+16,16)}, {vr(KS,4)}, {vr(Q+12,4)}, 0
    s_nop 11
    """)
    for jj in range(2):
        for i in range(8): a(f"v_max3_f32 v{208+jj}, v{S+16*jj+2*i}, v{S+16*jj+2*i+1}, v{208+jj}")
    a("""
    s_add_u32 s84, s84, 1024
    s_cmp_lt_u32 s84, 0x10000
    s_cbranch_scc1 B_slow1
    v_mov_b32 v210, v208
    v_mov_b32 v211, v209
    s_nop 1
    v_permlane32_swap_b32 v208, v210
    v_permlane32_swap_b32 v209, v211
    v_max_f32 v208, v208, v210
    v_max_f32 v209, v209, v211
    s_mov_b32 s84, 0
    """)
    for jj in range(2):
        for i in range(16): a(f"v_sub_f32 v{S+32+16*jj+i}, 0, v{208+jj}\nv_mov_b32 v{ACC+32+16*jj+i}, 0")
    for i in range(8): a(f"v_mov_b32 v{VS+i}, 0x3f803f80")
    a.label("B_slow2")
    a(f"s_add_u32 s85, s70, s84\ns_add_u32 s89, s71, s84\n{ldk(0, 's85', 0)}")
    for x in ldv(0, "s89", 0): a(x)
    a(f"""
    s_waitcnt vmcnt(0)
    {M32} {vr(S,16)}, {vr(KS,4)}, {vr(Q+8,4)}, {vr(S+32,16)}
    {M32} {vr(S+16,16)}, {vr(KS,4)}, {vr(Q+12,4)}, {vr(S+48,16)}
    s_nop 11
    """)
    for i in range(32): a(f"v_exp_f32 v{S+i}, v{S+i}")
    a("s_nop 1")
    for jj in range(2):
        for s in range(2):
            a(f"{SM} {vr(ACC+32+16*jj,16)}, {vr(VS+4*s,4)}, {vr(S+16*jj+8*s,8)}, v{IDX}")
    a("""
    s_add_u32 s84, s84, 1024
    s_cmp_lt_u32 s84, 0x10000
    s_cbranch_scc1 B_slow2
    s_nop 11
    s_branch B_fin
    """)
    a.lines += late.lines
    a.label("K_end")
    a("s_endpgm")
    return a

def build():
    ref = open(f"cdna_kernels/{NAME}.s.ref").read().split("\n")
    head = [l for l in ref if l.startswith(";") and "@launch" not in l]
    t = kernel().text()
    bad = check(t)
    out = "\n".join(head) + f"\n; @launch grid=(256,1,1) block=(512,1,1) lds={LDS}\n"
    out += f'.amdgcn_target "amdgcn-amd-amdhsa--gfx950"\n.text\n.globl {NAME}_kernel\n.p2align 8\n.type {NAME}_kernel,@function\n' + t
    out += f""".section .rodata,"a"
.p2align 6
.amdhsa_kernel {NAME}_kernel
  .amdhsa_next_free_vgpr 256
  .amdhsa_next_free_sgpr 102
  .amdhsa_accum_offset 256
  .amdhsa_group_segment_fixed_size 0
  .amdhsa_kernarg_size 104
  .amdhsa_user_sgpr_count 2
  .amdhsa_user_sgpr_kernarg_segment_ptr 1
  .amdhsa_system_sgpr_workgroup_id_x 1
  .amdhsa_float_denorm_mode_32 3
.end_amdhsa_kernel
"""
    return out, bad

if __name__ == "__main__":
    out, bad = build()
    for b in bad: print("HAZARD", b)
    path = sys.argv[1] if len(sys.argv) > 1 else "fused.s"
    open(path, "w").write(out)
    print("wrote", path, len(out), "bytes;", len(bad), "hazards; lds", LDS)
```

```python
import os, sys, struct
from asmlib import Asm, vr, sr, check

NAME = "gated_mix__mha_block__ssm_conv_h3__prompt"
KW, VW, UW, YW, OW, GW = 0x200000, 0x400000, 0x600000, 0x840000, 0xA80000, 0xE00000
CST = 4352
FW = 0xE10000
FS = 256
QF, UF, CF = FW, FW + 4, FW + 8
WS_BYTES = 0xE60000
M32 = "v_mfma_f32_32x32x16_bf16"
M16 = "v_mfma_f32_16x16x32_bf16"
SM = "v_smfmac_f32_32x32x32_bf16"
LOG2E = 1.4426950408889634
STAMP = int(os.environ.get("STAMP", "0"))
env = lambda k, d: type(d)(os.environ.get(k, d))
NS = env("NS", 3)
WQ1 = env("WQ1", 4)
KFG = env("KFG", 14)
CDROP, CDT = env("CDROP", 2), env("CDT", 0)
XP, XP2 = env("XP", 3), env("XP2", 3)
OFIRST = env("OFIRST", 0)
HOL = env("HOL", 1)
CVP = env("CVP", 0)
HS0 = env("HS0", 150)
CS0 = env("CS0", 150)
OLATE = env("OLATE", 1)
YLATE = env("YLATE", 1)
TOUCH = env("TOUCH", 2)
TW = 0xF00000
SPIN = 40000

SLOT = 24576
L_X = 65536
L_PRIV = 73728
USZ = 4576
PRIV = 2 * USZ
PSL = 2176
L_OLD = L_PRIV + 4 * PRIV
L_YNG = L_OLD + 16 * PSL
L_XF = L_YNG + 8 * PSL
L_WQ = L_OLD
L_QX = L_YNG
TB = L_QX + 8192
L_RB = L_OLD
LDS = L_XF + 256
W_XCH, W_QW, W_KV, W_TB, W_PO, W_QR, W_PR, W_CNT, W_PY, W_LH, W_LC, W_YS, W_OL = 0, 16, 32, 48, 64, 80, 96, 128, 144, 160, 176, 192, 208

def f32(x):
    return "0x%08x" % struct.unpack("<I", struct.pack("<f", x))[0]

def srd(a, d, b, nbytes):
    a(f"s_mov_b32 s{d}, s{b}\ns_mov_b32 s{d+1}, s{b+1}\ns_mov_b32 s{d+2}, {hex(nbytes)}\ns_mov_b32 s{d+3}, 0x20000")

def stamp(a, i, mode=1):
    if not STAMP or (STAMP != mode and i not in (0, 15)): return
    a(f"""
    s_memtime s[96:97]
    s_memrealtime s[98:99]
    s_waitcnt lgkmcnt(0)
    v_writelane_b32 v255, s96, {2*i}
    v_writelane_b32 v255, s98, {2*i+1}
    """)
def stamp_flush(a):
    if not STAMP: return
    a(f"""
    s_lshl_b32 s96, s2, 3
    s_add_u32 s96, s96, s30
    s_lshl_b32 s96, s96, 8
    s_add_u32 s96, s96, {TW}
    s_mov_b32 s34, 0x1400000
    v_lshlrev_b32 v6, 2, v0
    buffer_store_dword v255, v6, s[32:35], s96 offen
    """)

WS = "s[32:35]"
IDX, L16, VOF, L4H = 2, 3, 4, 5
KF2, VZ, WOA, RBA, XYA, XGA, OUTV = 222, 223, 232, 233, 237, 238, 239
CFV, KFV, MYW, XW4, WOV, XOV, QA, Z4, XW, ONE, XW8 = 240, 241, 242, 243, 244, 245, 246, 248, 252, 253, 254
_uid = [0]
def uid(p):
    _uid[0] += 1
    return f"{p}{_uid[0]}"

def poll(a, voff, soff, tmp, srd_=WS):
    L = uid("POLL")
    a(f"s_mov_b32 s90, {SPIN}")
    a.label(L)
    a(f"""
    buffer_load_dword v{tmp}, v{voff}, {srd_}, {soff} offen sc1
    s_waitcnt vmcnt(0)
    v_cmp_eq_u32 vcc, 1, v{tmp}
    s_sub_u32 s90, s90, 1
    s_cbranch_scc1 {L}_out
    s_cmp_eq_u64 vcc, exec
    s_cbranch_scc0 {L}
    """)
    a.label(f"{L}_out")

def all_set(a, late, val, voff, soff, srd_=WS):
    L = uid("AS")
    a(f"v_cmp_eq_u32 vcc, 1, v{val}\ns_nop 0\ns_cmp_eq_u64 vcc, exec\ns_cbranch_scc0 {L}")
    a.label(f"{L}_ok")
    late.label(L)
    poll(late, voff, soff, val, srd_)
    late(f"s_branch {L}_ok")

def lds_wait(a, vaddr, off, tmp):
    L = uid("LW")
    a("s_mov_b32 s90, 0x400000")
    a.label(L)
    a(f"""
    ds_read_b32 v{tmp}, v{vaddr} offset:{off}
    s_waitcnt lgkmcnt(0)
    v_cmp_eq_u32 vcc, 1, v{tmp}
    s_sub_u32 s90, s90, 1
    s_cbranch_scc1 {L}_out
    s_cmp_eq_u64 vcc, exec
    s_cbranch_scc0 {L}
    """)
    a.label(f"{L}_out")

mark = lambda off: f"ds_write_b32 v{MYW}, v{ONE} offset:{off}"

def arrive(a, k, tmp, n=4):
    L = uid("AR")
    a(f"""
    s_mov_b64 exec, 1
    ds_add_rtn_u32 v{tmp}, v{XW}, v{ONE} offset:{W_CNT+4*k}
    s_waitcnt lgkmcnt(0)
    v_cmp_eq_u32 vcc, {n-1}, v{tmp}
    s_nop 4
    s_cbranch_vccz {L}
    buffer_store_dword v{ONE}, v{VZ}, {WS}, s62 offen offset:{4*k} sc1
    """)
    a.label(L)
    a("s_mov_b64 exec, -1")

def fresh(a, late, regs, reload, tmp, keep=0):
    L = uid("FR")
    chk = [f"v_max3_u32 v{tmp}, v{regs[0]}, v{regs[1]}, v{regs[2]}"]
    r = list(regs[3:])
    while len(r) >= 2: chk.append(f"v_max3_u32 v{tmp}, v{r.pop(0)}, v{r.pop(0)}, v{tmp}")
    if r: chk.append(f"v_max_u32 v{tmp}, v{r[0]}, v{tmp}")
    chk += [f"v_cmp_eq_u32 vcc, -1, v{tmp}", "s_nop 0", "s_cmp_eq_u64 vcc, 0"]
    a("\n".join(chk)); a(f"s_cbranch_scc0 {L}")
    a.label(f"{L}_ok")
    late.label(L)
    late(f"s_mov_b32 s90, {SPIN}")
    late.label(f"{L}_l")
    if STAMP: late("s_add_u32 s21, s21, 1")
    late("\n".join(reload) + f"\ns_waitcnt vmcnt({keep})\n" + "\n".join(chk))
    late(f"s_cbranch_scc1 {L}_ok\ns_sub_u32 s90, s90, 1\ns_cbranch_scc0 {L}_l\ns_branch {L}_ok")

def lines(t):
    return [l.strip() for l in t.strip().split("\n") if l.strip()]

def kernel():
    a = Asm(); late = Asm()
    a.label(f"{NAME}_kernel")
    a(f"""
    s_cmp_ge_u32 s2, 256
    s_cbranch_scc1 K_end
    """)
    if STAMP == 4: a("v_mov_b32 v255, 0"); stamp(a, 0)
    if TOUCH == 2:
        a("""
        v_lshlrev_b32 v221, 7, v0
        v_min_u32 v221, K_end-A_pc, v221
        s_getpc_b64 s[80:81]
        A_pc:
        global_load_dword v221, v221, s[80:81]
        """)
    a(f"""
    s_load_dwordx8 s[4:11], s[0:1], 0
    s_load_dwordx16 s[12:27], s[0:1], 32
    s_load_dwordx2 s[28:29], s[0:1], 96
    v_lshrrev_b32 v1, 6, v0
    v_and_b32 v0, 63, v0
    s_and_b32 s31, s2, 7
    v_readfirstlane_b32 s30, v1
    s_lshr_b32 s56, s2, 3
    s_lshr_b32 s57, s31, 1
    s_lshl_b32 s57, s57, 2
    s_lshr_b32 s59, s56, 3
    s_add_u32 s57, s57, s59
    s_and_b32 s58, s31, 1
    s_lshl_b32 s58, s58, 3
    s_and_b32 s60, s56, 7
    s_add_u32 s58, s58, s60
    """)
    if STAMP == 4: stamp(a, 1, 4)
    elif STAMP: a("v_mov_b32 v255, 0"); stamp(a, 0)
    a("s_cmp_lt_u32 s30, 4\ns_cbranch_scc1 A_compute")

    Q, ACC, S, KS, VS = 16, 32, 96, 160, 176
    WF, OB, AC, YA, YF, XR, RD, PK4, XG = 16, 80, 112, 144, 176, 192, 80, 104, 112
    G = 208
    def common_setup(a, t0, t1, t2):
        a(f"""
        s_and_b32 s63, s30, 1
        s_lshr_b32 s64, s30, 1
        s_lshl_b32 s61, s58, 1
        s_add_u32 s61, s61, s63
        s_lshl_b32 s62, s2, 8
        s_add_u32 s62, s62, {FW}
        s_lshl_b32 s66, s61, 16
        s_lshl_b32 s67, s63, 12
        s_add_u32 s67, s67, {L_QX}
        s_cmp_eq_u32 s64, 0
        s_cselect_b32 s68, 2048, 0
        s_xor_b32 s69, s68, 2048
        s_add_u32 s68, s68, s67
        s_add_u32 s69, s69, s67
        v_lshlrev_b32 v{L16}, 4, v0
        v_add_u32 v{QA}, s68, v{L16}
        v_add_u32 v{QA+1}, s69, v{L16}
        s_lshl_b32 s70, s64, 14
        s_add_u32 s70, s70, s66
        s_add_u32 s71, s70, {VW}
        s_add_u32 s70, s70, {KW}
        s_mov_b32 s72, 0xffff
        s_mov_b32 s73, 0xffff
        s_lshl_b32 s74, s60, 3
        s_lshr_b32 s75, s58, 3
        s_add_u32 s74, s74, s75
        s_lshl_b32 s75, s64, 1
        s_add_u32 s74, s74, s75
        s_lshl_b32 s74, s74, 8
        s_add_u32 s74, s74, {QF}
        s_lshl_b32 s75, s31, 2
        s_add_u32 s75, s75, s59
        s_mov_b32 s76, s60
        s_lshl_b32 s77, s63, 15
        s_lshl_b32 s78, s64, 13
        s_add_u32 s77, s77, s78
        s_lshl_b32 s78, s64, 17
        s_lshl_b32 s85, s76, 7
        s_add_u32 s78, s78, s85
        s_lshl_b32 s79, s63, 6
        s_add_u32 s78, s78, s79
        s_lshl_b32 s79, s30, 10
        s_add_u32 s79, s79, {L_X}
        v_and_b32 v{t0}, 31, v0
        v_lshlrev_b32 v{L4H}, 2, v{t0}
        v_lshrrev_b32 v{t1}, 5, v0
        v_lshlrev_b32 v{OUTV}, 10, v{t0}
        v_lshl_add_u32 v{OUTV}, v{t1}, 4, v{OUTV}
        v_and_b32 v{t0}, 15, v0
        v_lshlrev_b32 v{t0}, 4, v{t0}
        v_lshl_add_u32 v{VOF}, v{t1}, 8, v{t0}
        v_mov_b32 v{IDX}, 0xdddd
        v_and_b32 v{t0}, 3, v0
        v_lshlrev_b32 v{XW4}, 2, v{t0}
        v_add_u32 v{XW4}, {L_XF}, v{XW4}
        v_bfe_u32 v{t2}, v0, 2, 2
        v_lshlrev_b32 v{KFV}, 14, v{t0}
        v_and_b32 v{KF2}, 0x4000, v{KFV}
        v_lshl_add_u32 v{t2}, v{t1}, 2, v{t2}
        v_lshlrev_b32 v{t2}, 6, v{t2}
        v_lshl_add_u32 v{t2}, v{t0}, 3, v{t2}
        s_and_b32 s80, s64, 1
        v_bfe_u32 v{WOA}, v0, 4, 1
        v_xor_b32 v{WOA}, s80, v{WOA}
        v_lshl_add_u32 v{t2}, v{WOA}, 5, v{t2}
        s_lshr_b32 s80, s64, 1
        s_lshl_b32 s80, s80, 15
        s_lshl_b32 s81, s64, 13
        s_add_u32 s80, s80, s81
        s_and_b32 s82, s76, 1
        s_lshl_b32 s82, s82, 12
        s_add_u32 s80, s80, s82
        v_add_u32 v{WOA}, s80, v{t2}
        v_lshrrev_b32 v{t2}, 2, v0
        v_lshlrev_b32 v{t2}, 10, v{t2}
        v_lshl_add_u32 v{WOV}, v{t0}, 4, v{t2}
        s_lshl_b32 s83, s75, 1
        s_add_u32 s83, s83, s63
        s_lshl_b32 s83, s83, 15
        s_add_u32 s81, s81, s83
        s_add_u32 s81, s81, {OW}
        s_add_u32 s67, s81, s82
        s_xor_b32 s82, s82, 4096
        s_add_u32 s68, s81, s82
        s_add_u32 s69, s83, s85
        s_lshl_b32 s80, s64, 5
        s_add_u32 s69, s69, s80
        s_lshl_b32 s80, s75, 6
        s_lshl_b32 s81, s30, 3
        s_add_u32 s80, s80, s81
        v_lshrrev_b32 v{t2}, 3, v0
        v_add_u32 v{t2}, s80, v{t2}
        v_lshlrev_b32 v{t2}, 10, v{t2}
        v_lshrrev_b32 v{t1}, 4, v0
        s_lshl_b32 s81, s63, 2
        v_xor_b32 v{t1}, s81, v{t1}
        v_and_b32 v{t0}, 7, v0
        v_xor_b32 v{t1}, v{t1}, v{t0}
        v_lshl_add_u32 v{t2}, v{t1}, 4, v{t2}
        v_add_u32 v{XOV}, s85, v{t2}
        v_lshlrev_b32 v{XW8}, 2, v{t0}
        v_add_u32 v{XW8}, {L_XF}, v{XW8}
        v_bfe_u32 v{t1}, v0, 3, 1
        v_lshlrev_b32 v{t0}, 11, v{t0}
        v_lshl_add_u32 v{CFV}, v{t1}, 8, v{t0}
        s_lshr_b32 s80, s75, 1
        s_and_b32 s84, s80, 3
        s_lshl_b32 s84, s84, 6
        s_lshr_b32 s80, s80, 2
        s_lshl_b32 s80, s80, 1
        s_add_u32 s80, s80, s84
        s_lshl_b32 s80, s80, 8
        s_add_u32 s101, s80, {CF}
        s_add_u32 s81, s81, s64
        """)
        for r in range(4):
            a(f"s_xor_b32 s80, s81, {r}\ns_mul_i32 s80, s80, 6144\ns_add_u32 s80, s80, {L_RB+max(r-1,0)*2048}\nv_add_u32 v{RBA+r}, s80, v{L16}")
        a(f"""
        s_and_b32 s84, s30, 3
        s_mul_i32 s65, s84, {PRIV}
        s_add_u32 s65, s65, {L_PRIV}
        s_add_u32 s80, s65, 4096
        v_add_u32 v{XYA}, s80, v{L16}
        v_add_u32 v{XGA}, s80, v{L4H}
        s_lshl_b32 s80, s84, 2
        s_add_u32 s80, s80, {L_XF}
        v_mov_b32 v{MYW}, s80
        v_mov_b32 v{XW}, {L_XF}
        v_mov_b32 v{ONE}, 1
        v_mov_b32 v{VZ}, 0
        """)
        for i in range(4): a(f"v_mov_b32 v{Z4+i}, 0")
        srd(a, 44, 8, 0x80000)
    ones = lambda t: lines(f"v_and_b32 v{t}, 27, v0\nv_cmp_eq_u32 vcc, 16, v{t}\nv_mov_b32 v{t}, 0x3f803f80\ns_nop 0\nv_cndmask_b32 v{t}, 0, v{t}, vcc")
    ldk = lambda st, so, off: f"buffer_load_dwordx4 {vr(KS+4*st,4)}, v{L16}, {WS}, {so} offen offset:{off} sc1"
    def ldv(st, so, off):
        return ["s_mov_b64 exec, s[72:73]",
                f"buffer_load_dwordx4 {vr(VS+8*st,4)}, v{VOF}, {WS}, {so} offen offset:{off} sc1",
                f"buffer_load_dwordx4 {vr(VS+8*st+4,4)}, v{VOF}, {WS}, {so} offen offset:{off+512} sc1",
                "s_mov_b64 exec, -1"]
    def att_q():
        lds_wait(a, XW4, W_QW, Q)
        for j in range(4): a(f"ds_read_b128 {vr(Q+4*j,4)}, v{QA+j//2} offset:{(j%2)*1024}")
    def att_loads():
        a(ldk(0, "s70", 0))
        for m in range(3):
            for x in ldv(m, "s71", m*1024): a(x)
            a(ldk(m+1, "s70", (m+1)*1024))
    def c_wo():
        a(f"v_xor_b32 v6, 4096, v{WOA}\nv_xor_b32 v7, 0x8000, v{WOA}\nv_xor_b32 v8, 0x9000, v{WOA}")
        for ai in range(2):
            for j in range(8):
                for jj in range(2):
                    a(f"ds_read_b64_tr_b16 {vr(WF+4*(8*ai+j)+2*jj,2)}, v{[WOA,6,7,8][2*ai+j//4]} offset:{(j%4)*1024+jj*512}")
                if j % 4 == 3 and 8*ai+j < 15: a("s_waitcnt lgkmcnt(4)")
    oload = [f"buffer_load_dwordx4 {vr(OB+4*j,4)}, v{L16}, {WS}, s{67+j//4} offen offset:{(j%4)*1024} sc1" for j in range(8)]

    XV, WV = 16, 20
    a(f"""
    s_setprio 1
    s_sub_u32 s84, s30, 4
    s_lshl_b32 s80, s57, 7
    s_lshl_b32 s81, s84, 5
    s_add_u32 s80, s80, s81
    v_lshrrev_b32 v6, 3, v0
    v_add_u32 v6, s80, v6
    v_lshlrev_b32 v6, 10, v6
    v_and_b32 v7, 7, v0
    v_lshrrev_b32 v8, 4, v0
    v_xor_b32 v9, v7, v8
    v_lshl_add_u32 v{XV}, v9, 4, v6
    v_xor_b32 v9, 4, v9
    v_lshl_add_u32 v{XV+1}, v9, 4, v6
    v_add_u32 v{XV+1}, 7168, v{XV+1}
    v_add_u32 v{XV+2}, {2*7168}, v{XV}
    v_add_u32 v{XV+3}, {2*7168}, v{XV+1}
    s_lshl_b32 s81, s84, 4
    v_lshrrev_b32 v6, 2, v0
    v_add_u32 v6, s81, v6
    v_mul_u32_u24 v6, 3072, v6
    v_and_b32 v7, 3, v0
    v_lshl_add_u32 v6, v7, 4, v6
    s_lshl_b32 s81, s58, 6
    v_add_u32 v{WV}, s81, v6
    s_lshl_b32 s92, s84, 12
    s_lshl_b32 s93, s84, 11
    s_add_u32 s93, s93, {16384-1024}
    s_lshl_b32 s94, s59, 1
    s_add_u32 s94, s94, s60
    s_waitcnt lgkmcnt(0)
    """)
    srd(a, 36, 4, 0x200000); srd(a, 40, 6, 0x180000)
    stamp(a, 1, 3)
    def dma(st):
        base = (st % NS) * SLOT
        a(f"s_add_u32 s95, s94, {st}\ns_and_b32 s95, s95, 7\ns_lshl_b32 s100, s95, 7\ns_add_u32 m0, s92, {base}\ns_mul_i32 s95, s95, 196608")
        for j in range(4): a(f"buffer_load_dwordx4 v{XV+j}, s[36:39], s100 offen offset:{j*1024} lds")
        a(f"s_add_u32 m0, s93, {base}\ns_nop 0")
        for j in (1, 2): a(f"buffer_load_dwordx4 v{WV}, s[40:43], s95 offen offset:{j*1024} lds")
        stamp(a, 2 + st, 3)
    for st in range(NS - 1): dma(st)
    a(f"v_lshlrev_b32 v32, 2, v0\nv_add_u32 v32, {L_XF}, v32\nv_mov_b32 v33, 0\nds_write_b32 v32, v33")
    main = a; a = Asm()
    srd(a, 32, 28, WS_BYTES); srd(a, 52, 26, 256)
    common_setup(a, 6, 7, 8)
    BA, PW16, PW4, A0, A64, A512, U2, PV16, PT16, PTW, YST = 1, 6, 7, 8, 9, 10, 11, 12, 13, 14, 15
    UFV, GFV, P0, P1, YLD, YSW, YSR, XAD, DF, PM = 210, 211, 212, 213, 214, 215, 216, 217, 218, 224
    UK, TBW, TBR, US, SKV, GOV = 21, 24, 25, 26, 28, 29
    a(f"""
    s_lshl_b32 s91, s31, 6
    s_lshl_b32 s80, s56, 1
    s_add_u32 s91, s91, s80
    s_lshr_b32 s80, s84, 1
    s_add_u32 s91, s91, s80
    s_and_b32 s80, s91, -2
    s_lshl_b32 s80, s80, 1
    s_load_dword s89, s[20:21], s80
    v_and_b32 v32, 31, v0
    v_lshrrev_b32 v33, 5, v0
    v_and_b32 v34, 15, v0
    v_lshrrev_b32 v35, 4, v0
    v_and_b32 v36, 7, v0
    v_lshrrev_b32 v37, 3, v0
    v_min_u32 v38, 29, v32
    v_lshlrev_b32 v38, 4, v38
    v_mul_u32_u24 v39, {USZ}, v33
    v_add3_u32 v38, v38, v39, s65
    ds_write_b128 v38, {vr(Z4,4)} offset:4096
    s_mul_i32 s80, s84, {4*PSL}
    s_add_u32 s80, s80, {L_OLD}
    v_add_u32 v{PW16}, s80, v{L16}
    v_add_u32 v{PW4}, s80, v{L4H}
    s_lshl_b32 s81, s63, 8
    v_lshlrev_b32 v38, 4, v35
    v_lshl_add_u32 v{A0}, v34, 2, v38
    s_sub_u32 s80, s81, 60
    v_add_u32 v{A0}, s80, v{A0}
    v_add_u32 v{A64}, 64, v{A0}
    v_add_u32 v{A512}, 512, v{A0}
    v_add_u32 v{U2}, 2, v{L16}
    v_add_u32 v{PV16}, s65, v{L16}
    s_xor_b32 s80, s84, 1
    s_lshl_b32 s82, s80, 2
    s_add_u32 s82, s82, {L_XF}
    v_mov_b32 v{PTW}, s82
    s_mul_i32 s80, s80, {PRIV}
    s_add_u32 s80, s80, {L_PRIV}
    v_add_u32 v{PT16}, s80, v{L16}
    v_and_b32 v39, 1, v0
    v_mul_u32_u24 v39, {USZ}, v39
    v_bfe_u32 v40, v0, 1, 3
    v_lshlrev_b32 v41, 6, v40
    v_sub_u32 v39, v39, v41
    s_add_u32 s80, s65, 448
    s_add_u32 s80, s80, s81
    v_add3_u32 v{BA}, v39, v38, s80
    v_and_b32 v38, 3, v0
    v_lshlrev_b32 v{GOV}, 2, v38
    v_lshlrev_b32 v38, 4, v38
    v_bfe_u32 v39, v0, 2, 2
    v_lshl_add_u32 v38, v39, 7, v38
    v_lshl_add_u32 v38, v33, 6, v38
    v_bfe_u32 v41, v0, 4, 1
    v_lshl_add_u32 v{YST}, v41, 9, v38
    v_lshlrev_b32 v{UFV}, 9, v{L4H}
    v_lshlrev_b32 v{GFV}, 11, v36
    v_mul_u32_u24 v38, {CST}, v37
    v_lshl_add_u32 v{YLD}, v36, 4, v38
    v_xor_b32 v42, v36, v35
    v_lshl_add_u32 v{US}, v42, 4, v38
    v_xor_b32 v42, 4, v42
    v_lshl_add_u32 v{US+1}, v42, 4, v38
    v_xor_b32 v38, v36, v37
    v_lshlrev_b32 v38, 4, v38
    v_lshl_add_u32 v38, v37, 7, v38
    s_add_u32 s80, s65, 6400
    v_add_u32 v{YSW}, s80, v38
    s_lshl_b32 s80, s63, 1
    v_lshl_add_u32 v38, v33, 2, s80
    v_xor_b32 v38, v38, v36
    v_lshlrev_b32 v38, 4, v38
    v_lshl_add_u32 v38, v34, 7, v38
    s_and_b32 s80, s64, 1
    s_mul_i32 s80, s80, {PRIV}
    s_add_u32 s80, s80, {L_PRIV+6400}
    v_add_u32 v{YSR}, s80, v38
    s_lshl_b32 s80, s64, 1
    v_xor_b32 v38, s80, v40
    v_lshlrev_b32 v38, 4, v38
    v_lshl_add_u32 v38, v32, 7, v38
    v_lshl_add_u32 v38, v33, 3, v38
    s_lshl_b32 s80, s63, 12
    s_add_u32 s80, s80, {L_X}
    v_add_u32 v{XAD}, s80, v38
    v_and_b32 v38, 1, v0
    v_lshl_or_b32 v39, v38, 2, v39
    v_xor_b32 v41, v41, v33
    v_lshl_or_b32 v39, v41, 3, v39
    v_bfe_u32 v38, v0, 1, 1
    v_lshlrev_b32 v38, 4, v38
    v_mov_b32 v41, 0x3f80
    v_lshlrev_b32 v38, v38, v41
    """)
    for i in range(8): a(f"v_cmp_eq_u32 vcc, {i}, v39\ns_nop 1\nv_cndmask_b32 v{PM+i}, 0, v38, vcc")
    a(f"""
    s_lshl_b32 s80, s56, 16
    s_lshl_b32 s82, s84, 14
    s_add_u32 s80, s80, s82
    s_lshl_b32 s82, s31, 7
    s_add_u32 s80, s80, s82
    v_lshlrev_b32 v38, 13, v33
    v_lshl_add_u32 v38, v32, 2, v38
    v_add_u32 v{UK+1}, s80, v38
    v_add_u32 v{UK}, -3072, v{UK+1}
    v_add_u32 v{UK+2}, 4096, v{UK+1}
    s_lshl_b32 s80, s31, 9
    v_lshl_add_u32 v{SKV}, v32, 4, s80
    s_lshl_b32 s80, s84, 1
    v_add_u32 v38, s80, v33
    v_sub_u32 v38, 7, v38
    v_xor_b32 v38, v38, v36
    v_lshlrev_b32 v38, 4, v38
    v_lshl_add_u32 v38, v32, 8, v38
    v_add_u32 v{TBW}, {TB}, v38
    s_lshl_b32 s80, s84, 11
    s_add_u32 s80, s80, {TB}
    v_add_u32 v{TBR}, s80, v{L16}
    s_lshl_b32 s10, s31, 2
    s_add_u32 s10, s10, s84
    s_mul_i32 s10, s10, {16*CST}
    s_lshl_b32 s80, s56, 7
    s_sub_u32 s10, s10, s80
    s_add_u32 s10, s10, {UW + 248*16}
    s_add_u32 s11, s10, {8*CST}
    s_lshl_b32 s87, s31, 8
    s_add_u32 s87, s87, {UF}
    s_lshr_b32 s86, s31, 1
    s_lshl_b32 s86, s86, 1
    s_and_b32 s80, s75, 1
    s_add_u32 s86, s86, s80
    s_lshr_b32 s80, s75, 1
    s_and_b32 s80, s80, 3
    s_lshl_b32 s80, s80, 6
    s_add_u32 s86, s86, s80
    s_lshl_b32 s86, s86, 8
    s_add_u32 s86, s86, {UF}
    v_lshl_add_u32 v39, v35, 2, v34
    s_waitcnt lgkmcnt(0)
    s_and_b32 s80, s91, 1
    s_lshl_b32 s80, s80, 4
    s_lshr_b32 s89, s89, s80
    s_and_b32 s89, s89, 0xffff
    v_mov_b32 v38, s89
    """)
    for i in range(4): a(f"v_cmp_eq_u32 vcc, {15-i}, v39\ns_nop 1\nv_cndmask_b32 v{DF+i}, 0, v38, vcc")
    for x in ones(38): a(x)
    for i in range(32): a(f"v_mov_b32 v{VS+i}, v38")
    defer = a.lines; a = main
    cuts = [0, HS0] + [HS0 + (len(defer) - HS0) * (n + 1) // 7 for n in range(7)]
    for n in range(1, len(cuts) - 1):
        while cuts[n] < len(defer) and ("vcc" in defer[cuts[n]] or defer[cuts[n]].startswith(("s_nop", "s_cselect", "s_addc"))): cuts[n] += 1
    a.lines += defer[:cuts[1]]
    for s_ in range(8):
        a(f"s_waitcnt vmcnt({6*min(NS-2, 7-s_)}){' lgkmcnt(0)' if s_ == 0 else ''}\ns_barrier")
        if s_ + NS - 1 < 8: dma(s_ + NS - 1)
        if s_ < 7: a.lines += defer[cuts[s_+1]:cuts[s_+2]]
    a("s_lshr_b32 s92, s92, 2")
    for st in range(8):
        if st == WQ1: a("s_barrier")
        a(f"s_add_u32 s95, s94, {st}\ns_and_b32 s95, s95, 7\ns_add_u32 m0, s92, {L_WQ+st*4096}\ns_mul_i32 s95, s95, 196608")
        a(f"buffer_load_dwordx4 v{WV}, s[40:43], s95 offen lds")
    if WQ1 >= 8: a("s_barrier")
    stamp(a, 10, 3)
    KR, VR, SK, GOH, KF, VF, SF, U, UP, GX, GG = 32, 43, 52, 56, 64, 86, 102, 110, 128, 144, 152
    srd(a, 40, 12, 0x200000); srd(a, 48, 14, 0x200000)
    for i in range(3): a(f"buffer_load_dword v{KR+i}, v{UK}, s[40:43], 0 offen offset:{i*1024} nt")
    for i in range(8): a(f"buffer_load_dword v{KR+3+i}, v{UK+1+i//4}, s[40:43], 0 offen offset:{(i%4)*1024} nt")
    for i in range(8): a(f"buffer_load_dword v{VR+i}, v{UK+1+i//4}, s[48:51], 0 offen offset:{(i%4)*1024} nt")
    srd(a, 40, 16, 4096); srd(a, 48, 22, 1024)
    a(f"""
    s_lshl_b32 s12, s57, 7
    s_lshl_b32 s80, s58, 3
    s_add_u32 s12, s12, s80
    s_lshl_b32 s80, s84, 1
    s_add_u32 s12, s12, s80
    s_lshl_b32 s80, s12, 10
    s_lshl_b32 s12, s12, 2
    s_add_u32 s12, s12, {GW}
    buffer_load_dwordx4 {vr(SK,4)}, v{SKV}, s[40:43], 0 offen
    buffer_load_dwordx4 {vr(GG,4)}, v{L16}, s[48:51], 0 offen
    buffer_load_dwordx4 {vr(GX,4)}, v{L16}, s[36:39], s80 offen
    buffer_load_dwordx4 {vr(GX+4,4)}, v{L16}, s[36:39], s80 offen offset:1024
    buffer_load_dword v{GOH}, v{GOV}, s[52:55], 0 offen sc1
    s_waitcnt vmcnt(24)
    s_barrier
    s_setprio 0
    """)
    stamp(a, 1); stamp(a, 11, 3)
    srd(a, 40, 24, 0x200000)
    a(f"""
    s_mul_i32 s13, s91, {CST}
    s_lshl_b32 s80, s63, 11
    s_add_u32 s7, s13, s80
    s_add_u32 s7, s7, {YW}
    s_add_u32 s13, s13, {UW}
    s_mov_b32 s88, s7
    s_add_u32 s89, s7, 1024
    s_and_b32 s4, s64, 1
    s_lshl_b32 s4, s4, 1
    s_lshl_b32 s5, s57, 2
    s_add_u32 s4, s4, s5
    s_lshl_b32 s4, s4, 15
    s_lshl_b32 s5, s61, 10
    s_add_u32 s4, s4, s5
    s_add_u32 s4, s4, {OW}
    s_add_u32 s5, s4, 0x8000
    s_mov_b32 s8, 1
    s_lshl_b32 s14, s75, 1
    s_add_u32 s14, s14, s63
    s_lshl_b32 s14, s14, 7
    s_add_u32 s14, s14, {GW}
    s_lshl_b32 s15, s76, 2
    s_add_u32 s15, s15, s84
    s_mul_i32 s15, s15, {16*CST}
    s_lshl_b32 s82, s75, 7
    s_add_u32 s15, s15, s82
    s_add_u32 s15, s15, {YW}
    s_add_u32 s16, s15, {8*CST}
    s_lshl_b32 s17, s76, 8
    s_add_u32 s17, s17, {CF}
    s_lshl_b32 s82, s91, 12
    s_add_u32 s82, s82, s80
    s_add_u32 s92, s18, s82
    s_addc_u32 s93, s19, 0
    s_mov_b32 s83, 99
    s_mov_b32 s82, 2
    s_mov_b32 s6, 0xffff0000
    s_waitcnt vmcnt(4)
    """)
    stamp(a, 2)
    a(f"buffer_load_dword v57, v{KF2}, {WS}, s74 offen sc1")
    for i in range(11): a(f"v_lshlrev_b32 v{KF+2*i}, 16, v{KR+i}\nv_and_b32 v{KF+2*i+1}, s6, v{KR+i}")
    for i in range(8): a(f"v_lshlrev_b32 v{VF+2*i}, 16, v{VR+i}\nv_and_b32 v{VF+2*i+1}, s6, v{VR+i}")
    for ch in range(2):
        for t in range(4):
            src = SK + 2*ch + t//2
            a(f"v_lshlrev_b32 v{SF+2*t+ch}, 16, v{src}" if t % 2 == 0 else f"v_and_b32 v{SF+2*t+ch}, s6, v{src}")
    for i in range(8):
        u = vr(U+2*i, 2)
        a(f"v_pk_mul_f32 {u}, {vr(KF+2*i,2)}, {vr(SF+6,2)}")
        for t in (2, 1, 0): a(f"v_pk_fma_f32 {u}, {vr(KF+2*(i+3-t),2)}, {vr(SF+2*t,2)}, {u}")
        a(f"v_pk_mul_f32 {u}, {u}, {vr(VF+2*i,2)}")
    for ch in range(2):
        for i in range(4): a(f"v_cvt_pk_bf16_f32 v{KR+4*ch+i}, v{U+2*(7-2*i)+ch}, v{U+2*(6-2*i)+ch}")
    a(f"""
    ds_write_b128 v{TBW}, {vr(KR,4)}
    ds_write_b128 v{TBW}, {vr(KR+4,4)} offset:128
    v_mov_b32 v48, 0
    v_mov_b32 v49, 0
    s_waitcnt vmcnt(0) lgkmcnt(0)
    {mark(W_TB)}
    """)

    for i in range(4):
        a(f"v_dot2_f32_bf16 v48, v{GX+i}, v{GG+i}, v48\nv_dot2_f32_bf16 v49, v{GX+4+i}, v{GG+i}, v49")
    a("s_nop 2")
    for d in ("row_shr:1 row_mask:0xf bank_mask:0xf bound_ctrl:0", "row_shr:2 row_mask:0xf bank_mask:0xf bound_ctrl:0",
              "row_shr:4 row_mask:0xf bank_mask:0xf bound_ctrl:0", "row_shr:8 row_mask:0xf bank_mask:0xf bound_ctrl:0",
              "row_bcast:15 row_mask:0xa bank_mask:0xf", "row_bcast:31 row_mask:0xc bank_mask:0xf"):
        a(f"v_add_f32_dpp v48, v48, v48 {d}\nv_add_f32_dpp v49, v49, v49 {d}\ns_nop 0")
    a(f"""
    v_cvt_pk_bf16_f32 v50, v48, v49
    v_lshlrev_b32 v48, 16, v50
    v_and_b32 v49, s6, v50
    v_mul_f32 v48, {f32(-LOG2E)}, v48
    v_mul_f32 v49, {f32(-LOG2E)}, v49
    v_exp_f32 v48, v48
    v_exp_f32 v49, v49
    s_nop 0
    v_add_f32 v48, 1.0, v48
    v_add_f32 v49, 1.0, v49
    v_rcp_f32 v48, v48
    v_rcp_f32 v49, v49
    s_nop 0
    v_cvt_pk_bf16_f32 v50, v48, v49
    v_lshlrev_b32 v{UP+8}, 16, v50
    v_and_b32 v{UP+9}, s6, v50
    v_mov_b32 v{UP+10}, v{US}
    v_mov_b32 v{UP+11}, v{US+1}
    """)
    all_set(a, late, GOH, GOV, "0", "s[52:55]")
    lds_wait(a, XW4, W_TB, 56)
    a(f"ds_read_b128 {vr(UP,4)}, v{TBR}\nds_read_b128 {vr(UP+4,4)}, v{TBR} offset:1024")
    stamp(a, 3); stamp(a, 12, 3)
    all_set(a, late, 57, KF2, "s74")
    att_loads()
    a("s_waitcnt lgkmcnt(0)")
    a(f"""
    buffer_store_dwordx4 {vr(UP,4)}, v{UP+10}, {WS}, s10 offen sc1
    buffer_store_dwordx4 {vr(UP+4,4)}, v{UP+11}, {WS}, s11 offen sc1
    s_mov_b32 exec_lo, 0
    s_mov_b32 exec_hi, 0x80000000
    buffer_store_dwordx2 {vr(UP+8,2)}, v{VZ}, {WS}, s12 offen sc1
    s_mov_b64 exec, -1
    """)
    stamp(a, 4); stamp(a, 13, 3)
    att_q()
    lds_wait(a, XW4, W_QR, 56)
    a("s_setprio 1")
    stamp(a, 5); stamp(a, 6)
    for i in range(12): a(f"s_load_dword s100, s[92:93], {i*128}")

    a("s_branch B_go")

    a.label("A_compute")
    XA, WA, AK, AV, AQ, XF, FR, FQ, GO = 6, [14, 15, 1], 20, 36, 48, 64, 192, [208, 212, 216, 28, 32], 19
    a(f"""
    v_and_b32 v20, 31, v0
    v_lshrrev_b32 v21, 5, v0
    v_bfe_u32 v22, v0, 1, 3
    v_xor_b32 v22, v22, v21
    s_lshl_b32 s80, s30, 12
    v_lshlrev_b32 v20, 7, v20
    v_lshl_add_u32 v20, v22, 4, v20
    v_add_u32 v{XA}, s80, v20
    """)
    for ks in range(1, 4): a(f"v_xor_b32 v{XA+ks}, {ks*32}, v{XA}")
    for ks in range(4): a(f"v_add_u32 v{XA+4+ks}, {2*SLOT}, v{XA+ks}")
    a(f"""
    v_bfe_u32 v20, v0, 2, 2
    v_lshl_add_u32 v20, v21, 3, v20
    v_lshlrev_b32 v20, 6, v20
    v_bfe_u32 v22, v0, 4, 1
    v_lshl_add_u32 v20, v22, 5, v20
    v_and_b32 v23, 3, v0
    v_lshl_add_u32 v20, v23, 3, v20
    v_add_u32 v{WA[0]}, 16384, v20
    v_add_u32 v{WA[1]}, {16384+2*SLOT}, v20
    v_add_u32 v{WA[2]}, {L_WQ}, v20
    v_lshlrev_b32 v228, 2, v23
    v_mov_b32 v55, v22
    s_waitcnt lgkmcnt(0)
    """)
    srd(a, 32, 28, WS_BYTES); srd(a, 52, 26, 256)
    a(f"""
    s_cmp_lg_u32 s2, 0
    s_cbranch_scc1 A_noclear
    s_lshl_b32 s80, s30, 14
    s_add_u32 s80, s80, {FW}
    v_lshlrev_b32 v24, 8, v0
    v_mov_b32 v28, 0
    v_mov_b32 v29, 0
    v_mov_b32 v30, 0
    v_mov_b32 v31, 0
    v_mov_b32 v25, 1
    buffer_store_dwordx4 v[28:31], v24, {WS}, s80 offen sc1
    s_lshl_b32 s80, s30, 2
    s_waitcnt vmcnt(0)
    s_mov_b64 exec, 1
    buffer_store_dword v25, v28, s[52:55], s80 offen sc1
    s_mov_b64 exec, -1
    """)
    a.label("A_noclear")
    main = a; a = Asm()
    srd(a, 36, 4, 0x200000); srd(a, 40, 24, 0x200000)
    common_setup(a, 52, 53, 54)
    a(f"""
    v_and_b32 v16, 0x33, v0
    v_bfe_u32 v17, v0, 2, 1
    v_lshl_or_b32 v16, v17, 3, v16
    v_bfe_u32 v17, v0, 3, 1
    v_lshl_or_b32 v16, v17, 2, v16
    v_lshlrev_b32 v16, 4, v16
    v_lshl_add_u32 v17, v55, 16, v{VOF}
    s_lshl_b32 s80, s30, 10
    s_add_u32 s80, s80, {L_QX}
    v_add_u32 v18, s80, v{L16}
    s_lshl_b32 s10, s58, 17
    s_lshl_b32 s80, s57, 2
    s_add_u32 s81, s80, s30
    s_lshl_b32 s81, s81, 10
    s_add_u32 s10, s10, s81
    s_add_u32 s12, s10, {VW}
    s_add_u32 s10, s10, {KW}
    s_add_u32 s11, s10, 0x10000
    s_mov_b32 s13, {f32(0.25*LOG2E)}
    s_lshl_b32 s81, s64, 1
    s_add_u32 s80, s80, s81
    s_lshl_b32 s80, s80, 15
    s_lshl_b32 s82, s61, 10
    s_add_u32 s80, s80, s82
    s_add_u32 s86, s80, {OW}
    s_add_u32 s87, s86, 0x8000
    s_mov_b32 s8, 99
    s_lshl_b32 s82, s63, 2
    s_add_u32 s82, s82, s81
    s_mul_i32 s14, s82, {PSL}
    s_add_u32 s14, s14, {L_OLD}
    s_xor_b32 s16, s30, 2
    s_mul_i32 s15, s30, {2*PSL}
    s_mul_i32 s16, s16, {2*PSL}
    s_add_u32 s15, s15, {L_YNG}
    s_add_u32 s16, s16, {L_YNG}
    s_mov_b32 s83, {CDROP}
    s_mov_b32 s82, 99
    s_mov_b32 s92, s18
    s_mov_b32 s93, s19
    """)
    for x in ones(229): a(x)
    defer = a.lines; a = main
    cuts = [CS0 + (len(defer) - CS0) * n // 28 for n in range(29)]
    for n in range(28):
        while cuts[n] < len(defer) and ("vcc" in defer[cuts[n]] or defer[cuts[n]].startswith(("s_nop", "s_cselect", "s_addc"))): cuts[n] += 1
    a.lines += defer[:cuts[0]]
    a("s_barrier")
    stamp(a, 1); stamp(a, 1, 3); stamp(a, 2, 4)
    def reads(g):
        st, ks = g >> 2, g & 3
        slot = st % NS
        bs, off = slot // 2, (slot % 2) * SLOT
        f = FR + 8 * (g % 3)
        r = [f"ds_read_b128 {vr(XF+4*g,4)}, v{XA+4*bs+ks} offset:{off}"]
        for ty in range(2):
            for j in range(2):
                r.append(f"ds_read_b64_tr_b16 {vr(f+4*ty+2*j,2)}, v{WA[bs]} offset:{off+ks*2048+ty*1024+j*256}")
        return r
    for r in reads(0) + reads(1): a(r)
    for g in range(32):
        nxt = reads(g + 2) if g + 2 < 32 else []
        if nxt and (g + 2) % 4 == 0:
            a("s_waitcnt lgkmcnt(0)\ns_barrier")
            stamp(a, 1 + (g + 2) // 4, 3)
        else:
            a(f"s_waitcnt lgkmcnt({5 if g < 31 else 0})")
        f, x = FR + 8 * (g % 3), XF + 4 * g
        a(f"{M32} {vr(AK,16)}, {vr(f,4)}, {vr(x,4)}, {'0' if g == 0 else vr(AK,16)}")
        for r in nxt[0:3]: a(r)
        a(f"{M32} {vr(AV,16)}, {vr(x,4)}, {vr(f+4,4)}, {'0' if g == 0 else vr(AV,16)}")
        for r in nxt[3:5]: a(r)
        if g < 28: a.lines += defer[cuts[g]:cuts[g+1]]
    stamp(a, 2); stamp(a, 9, 3); stamp(a, 3, 4)
    a("s_setprio 3\ns_nop 9")
    for i in range(8): a(f"v_cvt_pk_bf16_f32 v{AK+i}, v{AK+2*i}, v{AK+2*i+1}")
    a(f"buffer_store_dwordx4 {vr(AK,4)}, v16, {WS}, s10 offen sc1")
    a(f"buffer_store_dwordx4 {vr(AK+4,4)}, v16, {WS}, s11 offen sc1")
    for i in range(8): a(f"v_cvt_pk_bf16_f32 v{AV+i}, v{AV+2*i}, v{AV+2*i+1}")
    a(f"buffer_store_dwordx4 {vr(AV,4)}, v17, {WS}, s12 offen sc1")
    a(f"buffer_store_dwordx4 {vr(AV+4,4)}, v17, {WS}, s12 offen offset:512 sc1")
    a(f"buffer_load_dword v{GO}, v228, s[52:55], 0 offen sc1\ns_barrier")
    stamp(a, 3); stamp(a, 10, 3)
    a(f"""
    v_add_u32 v6, s14, v{L16}
    v_add_u32 v7, s14, v{L4H}
    v_add_u32 v8, s15, v{L16}
    v_add_u32 v9, s15, v{L4H}
    v_add_u32 v10, s16, v{L16}
    v_add_u32 v11, s16, v{L4H}
    """)
    for i in range(16, 32): a(f"v_mov_b32 v{VS+i}, v229")
    a("s_waitcnt vmcnt(0)")
    all_set(a, late, GO, 228, "0", "s[52:55]")
    arrive(a, 0, 12)
    stamp(a, 4); stamp(a, 12, 3)
    a("s_barrier")
    stamp(a, 11, 3)
    order = [28, 29, 30, 31] + list(range(28))
    qrd = lambda n: [f"ds_read_b64_tr_b16 {vr(FQ[n%5]+2*j,2)}, v{WA[2]} offset:{order[n]*1024+j*256}" for j in range(2)]
    for n in range(4):
        for r in qrd(n): a(r)
    for n in range(32):
        if n == KFG: a(f"buffer_load_dword v12, v{KF2}, {WS}, s74 offen sc1")
        a(f"s_waitcnt lgkmcnt({min(6, 2*(31-n))})")
        a(f"{M32} {vr(AQ,16)}, {vr(FQ[n%5],4)}, {vr(XF+4*order[n],4)}, {'0' if n == 0 else vr(AQ,16)}")
        if n + 4 < 32:
            for r in qrd(n + 4): a(r)
        if 4 <= n < 20: a(f"v_mov_b32 v{VS+n-4}, v229")
    a("s_nop 11")
    for i in range(16): a(f"v_mul_f32 v{AQ+i}, s13, v{AQ+i}")
    for i in range(8): a(f"v_cvt_pk_bf16_f32 v{AQ+i}, v{AQ+2*i}, v{AQ+2*i+1}")
    a(f"""
    ds_write_b128 v18, {vr(AQ,4)}
    ds_write_b128 v18, {vr(AQ+4,4)} offset:4096
    s_waitcnt lgkmcnt(0)
    {mark(W_QW)}
    s_waitcnt vmcnt(0)
    """)
    all_set(a, late, 12, KF2, "s74")
    stamp(a, 5); stamp(a, 13, 3)
    att_loads()
    att_q()
    a(f"s_waitcnt lgkmcnt(0)\n{mark(W_QR)}\ns_setprio 2")
    stamp(a, 6); stamp(a, 14, 3)

    a.label("B_go")
    for j in range(4): a(f"{M32} {vr(ACC+16*j,16)}, {vr(Z4,4)}, {vr(Z4,4)}, 0")
    a(f"{M32} {vr(S+48,16)}, {vr(Z4,4)}, {vr(Z4,4)}, 0")
    a("s_add_u32 s70, s70, 4096\ns_add_u32 s71, s71, 3072\ns_mov_b32 s84, 3")
    qk = lambda j, st: f"{M32} {vr(S+16*j,16)}, {vr(KS+4*st,4)}, {vr(Q+4*j,4)}, 0"
    pv = lambda j, st, s: f"{SM} {vr(ACC+16*j,16)}, {vr(VS+8*st+4*s,4)}, {vr(S+16*j+8*s,8)}, v{IDX}"
    a("s_waitcnt vmcnt(9)"); a(qk(0, 0)); a(qk(1, 0))
    for i in range(4): a(f"v_mov_b32 v{Z4+i}, -1")
    a("s_nop 6")
    if STAMP: a("s_mov_b32 s21, 0")
    stamp(a, 7)
    wodma = lambda m: [f"s_add_u32 m0, s77, {m*1024}", f"s_add_u32 s85, s78, {m*16384}", f"buffer_load_dwordx4 v{WOV}, s[44:47], s85 offen lds"]
    xdma = ["s_mov_b32 m0, s79", "s_nop 0", f"buffer_load_dwordx4 v{XOV}, s[36:39], 0 offen lds"]
    def body(last, extras, waits):
        for m in range(4):
            for j in range(4):
                jp, mp = (j - 1) % 4, (m if j else (m - 1) % 4)
                ins = {}
                def put(p, x): ins.setdefault(p, []).extend(x if isinstance(x, list) else [x])
                if j == 1 and waits[m] is not None: put(1, f"s_waitcnt vmcnt({waits[m]})")
                put(1, pv(jp, mp, 0))
                put(6, pv(jp, mp, 1))
                if j == 0 and (not last or m == 0): put(8, ldv((m + 3) % 4, "s71", m*1024))
                if not (last and m == 3 and j >= 2): put(11, qk((j + 2) % 4, m if j < 2 else (m + 1) % 4))
                if j == 1 and not last: put(13, ldk(m, "s70", m*1024))
                if j == 2 and not last:
                    if m < 2: put(8, wodma(m))
                    if m == 2: put(8, ["s_cmp_eq_u32 s84, 1", "s_cbranch_scc1 B_x"] + wodma(2) + ["s_branch B_xd", "B_x:"] + xdma + ["B_xd:"])
                    if m == 3: put(8, ["s_cmp_le_u32 s84, s8", "s_cbranch_scc1 B_nocl"] + [f"buffer_store_dwordx4 {vr(Z4,4)}, v{L16}, {WS}, s{r} offen sc1" for r in (88, 89)]
                                   + ["s_mov_b32 s88, s4", "s_mov_b32 s89, s5", "B_nocl:"])
                if not last and m == 1 and j == 3: put(4, f"buffer_load_dword v{QA+1}, v{KFV}, {WS}, s74 offen sc1")
                if not last and m == 3 and j == 3: put(3, ["s_waitcnt vmcnt(7)", lambda: all_set(a, late, QA + 1, KFV, "s74")])
                for p, x in extras.get((m, j), []): put(p, x)
                for e in range(16):
                    for x in ins.get(e, []):
                        if callable(x): x()
                        else: a(x)
                    a(f"v_exp_f32 v{S+16*j+e}, v{S+16*j+e}")
    a(".p2align 6")
    a.label("B_loop")
    body(False, {(3, 1): [(14, ["s_add_u32 s77, s77, 3072", "s_add_u32 s78, s78, 49152"])],
                 (3, 2): [(14, ["s_add_u32 s70, s70, 4096", "s_add_u32 s71, s71, 4096", "s_sub_u32 s84, s84, 1"])],
                 (CDT, 0): [(3, ["s_cmp_lg_u32 s84, s83", "s_cbranch_scc1 B_keep", "s_setprio 0", "B_keep:"])],
                 (3, 3): [(8, ["s_cmp_lg_u32 s84, s82", "s_cbranch_scc1 B_nouf", lambda: arrive(a, 1, QA)]
                              + [f"s_load_dword s100, s[92:93], {i*128}" for i in range(12, 16)] + ["B_nouf:"]),
                          (14, "s_cmp_lg_u32 s84, 0")]}, [8, 9, 11, 12])
    a("s_cbranch_scc1 B_loop")
    stamp(a, 8)
    a("s_cmp_lt_u32 s30, 4\ns_cbranch_scc1 B_final")

    CA = 32
    ABUF, BBUF = [96, 160], [128, 64]
    a(f"""
    s_lshl_b32 s80, s91, 12
    s_add_u32 s92, s18, s80
    s_addc_u32 s93, s19, 0
    s_mov_b32 s94, 4096
    s_mov_b32 s95, 0x20000
    buffer_load_dword v{P0}, v{UFV}, {WS}, s87 offen sc1
    buffer_load_dword v{P1}, v{GFV}, {WS}, s86 offen sc1
    """)
    def lda(rr):
        b = ABUF[rr % 2]
        o = []
        if rr == 0:
            o.append(f"buffer_load_dword v{b}, v{A0}, s[92:95], 0 offen")
            for i in range(1, 4): o.append(f"v_add_u32 v{A0}, 4, v{A0}\nbuffer_load_dword v{b+i}, v{A0}, s[92:95], 0 offen")
        else:
            o.append(f"buffer_load_dwordx4 {vr(b,4)}, v{A64}, s[92:95], 0 offen offset:{64*(rr-1)}")
        for aa in range(1, 8):
            o.append(f"buffer_load_dwordx4 {vr(b+4*aa,4)}, v{A512}, s[92:95], 0 offen offset:{512*(aa-1)+64*rr}")
        return o
    ldb = lambda rr: [f"ds_read_b128 {vr(BBUF[rr%2]+4*bb,4)}, v{BA} offset:{64*rr+512*(7-bb)}" for bb in range(8)]
    udma = lambda rho, q: [f"s_add_u32 m0, s65, {rho*USZ}", "s_nop 0",
                           f"buffer_load_dwordx4 v{L16 if rho else U2}, {WS}, s13 offen offset:{q*1024} sc1 lds",
                           f"buffer_load_dwordx4 v{L16 if rho else U2}, {WS}, s13 offen offset:{q*1024+1024} sc1 lds"]
    wrh = lambda j: [f"ds_write_b128 v{PW16}, {vr(ACC+16*j,4)} offset:{j*PSL}", f"ds_write_b128 v{PW16}, {vr(ACC+16*j+4,4)} offset:{j*PSL+1024}",
                     f"ds_write_b32 v{PW4}, v{ACC+16*j+8} offset:{j*PSL+2048}"]
    LA0, LA1 = lda(0), lda(1)
    exh = {(0, 0): [(3, lambda: arrive(a, 2, QA))],
           (1, 1): [(3, [mark(W_LH), lambda: all_set(a, late, P0, UFV, "s87"), lambda: all_set(a, late, P1, GFV, "s86")]),
                    (8, udma(1, 0)), (13, udma(1, 2))],
           (1, 2): [(4, udma(0, 0)), (13, udma(0, 2))],
           (1, 3): [(4, f"buffer_load_dword v{G}, v{L4H}, {WS}, s14 offen sc1")],
           (3, 1): [(9 + i, LA1[i]) for i in range(4)],
           (3, 2): [(3 + i, wrh(0)[i]) for i in range(3)] + [(8 + i, LA1[4 + i]) for i in range(4)],
           (3, 3): [(0, LA0[0:4])] + [(3 + i, wrh(1)[i]) for i in range(3)] + [(7 + i, LA0[4 + i]) for i in range(7)]}
    body(True, exh, [13, 2, None, 9])
    a(f"""
    s_waitcnt vmcnt(19)
    s_mov_b64 exec, 1
    ds_write_b16 v{PV16}, v{VZ} offset:4094
    s_mov_b64 exec, -1
    {pv(3,3,0)}
    {pv(3,3,1)}
    s_setprio {CVP}
    """)
    stamp(a, 9)
    for x in ldb(0) + wrh(2): a(x)
    a("s_nop 0")
    for x in wrh(3): a(x)
    a(f"s_waitcnt lgkmcnt(0)\n{mark(W_PO)}")
    for rr in range(4):
        ab, bb_ = ABUF[rr % 2], BBUF[rr % 2]
        nb = ldb(rr + 1) if rr < 3 else []
        mm = lambda aa, b, c=None: f"{M16} {vr(CA+4*(aa+b),4)}, {vr(ab+4*aa,4)}, {vr(bb_+4*b,4)}, {c or vr(CA+4*(aa+b),4)}"
        a(f"s_waitcnt vmcnt({[0, 8, 8, 0][rr]}){' lgkmcnt(0)' if rr else ''}")
        if rr == 3:
            a(f"buffer_load_dword v{P0}, v{UFV}, {WS}, s17 offen sc1\nbuffer_load_dword v{P1}, v{CFV}, {WS}, s101 offen sc1")
        if rr == 0:
            a("s_cmp_lg_u32 s63, 0\ns_cbranch_scc1 CV_nodiag")
            for b in range(8): a(f"{M16} {vr(CA+4*b,4)}, {vr(DF,4)}, {vr(bb_+4*b,4)}, 0")
            for b in range(8): a(mm(0, b))
            a("s_branch CV_row1")
            a.label("CV_nodiag")
            for b in range(8): a(mm(0, b, "0"))
            a.label("CV_row1")
        cnt = 0
        na = lda(rr + 2) if rr < 2 else []
        for aa in range(8):
            for b in range(8 - aa):
                if rr == 0 and aa == 0: continue
                a(mm(aa, b))
                cnt += 1
                if cnt % 3 == 0 and nb: a(nb.pop(0))
            if na: a(na.pop(0))
    stamp(a, 11)
    XI, YP = 96, 128
    a(f"s_setprio {XP}")
    a("s_cmp_lg_u32 s63, 0\ns_cbranch_scc1 CV_odd")
    for odd in range(2):
        if odd: a.label("CV_odd")
        a("s_nop 4" if not odd else "s_nop 0")
        for n in range(4): a(f"ds_write_b128 v{PV16}, {vr(CA+16*(1-odd)+4*n,4)} offset:{n*1024}")
        a(f"s_waitcnt lgkmcnt(0)\n{mark(W_XCH)}")
        lds_wait(a, PTW, W_XCH, XI)
        for n in range(4): a(f"ds_read_b128 {vr(XI+4*n,4)}, v{PT16} offset:{n*1024}")
        for n in range(4):
            c = CA + 16*odd + 4*n
            a(f"s_waitcnt lgkmcnt({3-n})")
            a(f"v_pk_add_f32 {vr(c,2)}, {vr(c,2)}, {vr(XI+4*n,2)}\nv_pk_add_f32 {vr(c+2,2)}, {vr(c+2,2)}, {vr(XI+4*n+2,2)}")
            a(f"v_cvt_pk_bf16_f32 v{YP+2*n}, v{c}, v{c+1}\nv_cvt_pk_bf16_f32 v{YP+2*n+1}, v{c+2}, v{c+3}")
        if not odd: a("s_branch CV_st")
    a.label("CV_st")
    a("s_nop 0")
    for p in range(2):
        a(f"v_permlane16_swap_b32 v{YP+4*p}, v{YP+4*p+2}\nv_permlane16_swap_b32 v{YP+4*p+1}, v{YP+4*p+3}")
        a(f"buffer_store_dwordx4 {vr(YP+4*p,4)}, v{YST}, {WS}, s7 offen offset:{1024*p} sc1")
    a("s_waitcnt vmcnt(2)")
    all_set(a, late, P0, UFV, "s17"); all_set(a, late, P1, CFV, "s101")
    yload = [f"buffer_load_dwordx4 {vr(YA+4*q,4)}, v{YLD}, {WS}, s{15+q} offen sc1" for q in range(2)]
    if not YLATE:
        for x in yload: a(x)
    a(f"s_setprio {XP2}")
    stamp(a, 12)
    lds_wait(a, XW8, W_LH, 9)
    a(f"""
    v_xor_b32 v9, 16, v{XAD}
    v_xor_b32 v10, 64, v{XAD}
    v_xor_b32 v11, 80, v{XAD}
    ds_read_b64 {vr(XR,2)}, v{XAD}
    ds_read_b64 {vr(XR+2,2)}, v9
    ds_read_b64 {vr(XR+4,2)}, v10
    ds_read_b64 {vr(XR+6,2)}, v11
    v_sub_f32 v{G+1}, 1.0, v{G}
    ds_write_b32 v{XGA}, v{G} offset:2048
    """)
    c_wo()
    a(f"v_xor_b32 v9, 16, v{YSR}\nv_mov_b32 v{G+2}, v{G+1}\nv_mov_b32 v{G+3}, v{G+1}")
    for i in range(8):
        a(f"v_lshlrev_b32 v{XG+2*i}, 16, v{XR+i}\nv_and_b32 v{XG+2*i+1}, s6, v{XR+i}")
        a(f"v_pk_mul_f32 {vr(XG+2*i,2)}, {vr(XG+2*i,2)}, {vr(G+2,2)}")
    if YLATE:
        for x in yload: a(x)
    if OFIRST:
        a("s_setprio 0")
        lds_wait(a, XW4, W_OL, 10)
        a("s_setprio 3")
        stamp(a, 13)
        for x in oload: a(x)
    a(f"s_waitcnt vmcnt({8 if OFIRST else 0})")
    fresh(a, late, list(range(YA, YA+8)), yload, 10)
    a(f"""
    ds_write_b128 v{YSW}, {vr(YA,4)}
    ds_write_b128 v{YSW}, {vr(YA+4,4)} offset:1024
    s_waitcnt lgkmcnt(0)
    {mark(W_YS)}
    """)
    stamp(a, 10)
    if STAMP: a("v_writelane_b32 v255, s21, 41")
    lds_wait(a, XW4, W_YS, 10)
    for b in (1, 0):
        for sg in range(2): a(f"ds_read_b128 {vr(YF+8*b+4*sg,4)}, v{[YSR, 9][sg]} offset:{(1-b)*2*PRIV}")
    for b in (1, 0):
        a(f"s_waitcnt lgkmcnt({2*b})")
        a(f"{M32} {vr(YA+16*b,16)}, {vr(YF+8*b,4)}, {vr(PM,4)}, 0")
        a(f"{M32} {vr(YA+16*b,16)}, {vr(YF+8*b+4,4)}, {vr(PM+4,4)}, {vr(YA+16*b,16)}")
    if OFIRST: a("s_nop 9")
    else:
        a("s_setprio 0")
        lds_wait(a, XW4, W_OL if HOL else W_PR, 10)
        a("s_setprio 3")
        stamp(a, 13)
        for x in oload: a(x)
    for i in range(4): a(f"v_pk_mul_f32 {vr(YA+16+2*i,2)}, {vr(YA+16+2*i,2)}, {vr(XG+8+2*i,2)}")
    a(f"ds_write_b128 v{XYA}, {vr(YA+16,4)}\nds_write_b128 v{XYA}, {vr(YA+20,4)} offset:1024")
    if OFIRST: a("s_nop 0")
    for i in range(4): a(f"v_pk_mul_f32 {vr(YA+2*i,2)}, {vr(YA+2*i,2)}, {vr(XG+2*i,2)}")
    a("s_branch C_mm")

    a.label("B_final")
    rdp = lambda dst, a16, off: [f"ds_read_b128 {vr(dst,4)}, v{a16} offset:{off}", f"ds_read_b128 {vr(dst+4,4)}, v{a16} offset:{off+1024}",
                                 f"ds_read_b32 v{dst+8}, v{a16+1} offset:{off+2048}"]
    wrp = lambda j: [f"ds_write_b128 v8, {vr(ACC+16*j,4)} offset:{j*PSL}", f"ds_write_b128 v8, {vr(ACC+16*j+4,4)} offset:{j*PSL+1024}",
                     f"ds_write_b32 v9, v{ACC+16*j+8} offset:{j*PSL+2048}"]
    PA, PB = [208, 176, 160, 186], [96, 112]
    r0 = rdp(PA[0], 6, 0); r1 = rdp(PA[1], 6, 8*PSL); r2 = rdp(PA[2], 6, PSL); r3 = rdp(PA[3], 6, 9*PSL)
    w0, w1 = wrp(0), wrp(1)
    def add9(d, s_):
        return [f"v_pk_add_f32 {vr(d+2*i,2)}, {vr(d+2*i,2)}, {vr(s_+2*i,2)}" for i in range(4)] + [f"v_add_f32 v{d+8}, v{d+8}, v{s_+8}"]
    ex = {(1, 1): [(3, mark(W_LC))],
          (2, 2): [(8, f"buffer_load_dword v13, v{CFV}, {WS}, s101 offen sc1")],
          (3, 0): [(9, [lambda: lds_wait(a, XW4, W_PO, 12), "s_setprio 3"]), (12, r0[0]), (13, r0[1]), (14, r0[2])],
          (3, 1): [(3, r1[0]), (4, r1[1]), (8, r1[2]), (9, r2[0]), (13, r2[1]), (14, r2[2])],
          (3, 2): [(2, r3[0]), (3, w0[0]), (4, r3[1]), (8, w0[1]), (9, r3[2]), (10, w0[2])],
          (3, 3): [(3, w1[0]), (4, w1[1]), (5, w1[2]), (9, ["s_waitcnt lgkmcnt(0)", mark(W_PY)]),
                   (12, [lambda: lds_wait(a, XW4, W_PY, 12)] + rdp(PB[0], 10, 0)), (13, rdp(PB[1], 10, PSL))]}
    body(True, ex, [11, 5, 2, 0])
    stamp(a, 9)
    O2, O3 = ACC + 32, ACC + 48
    for x in add9(PA[0], PA[1])[:2]: a(x)
    a(f"{pv(3,3,0)}\n{pv(3,3,1)}")
    for x in add9(PA[0], PA[1])[2:] + add9(O2, PA[0]) + add9(PA[2], PA[3]): a(x)
    a("s_waitcnt lgkmcnt(0)")
    a(mark(W_PR))
    for x in add9(O2, PB[0]) + add9(PA[2], PB[1]) + add9(O3, PA[2]): a(x)
    a(f"v_mov_b32 v14, 0\nv_mov_b32 v15, 0")
    for o in (O2, O3):
        for i in range(4): a(f"v_pk_fma_f32 v[14:15], {vr(o+2*i,2)}, 0, v[14:15] op_sel_hi:[1,0,1]")
    a(f"""
    v_add_f32 v14, v14, v15
    v_min_f32 v15, v{O2+8}, v{O3+8}
    v_add_f32 v14, v14, v{O2+8}
    v_add_f32 v14, v14, v{O3+8}
    v_cmp_lt_f32 vcc, {f32(2.0**-60)}, v15
    s_mov_b64 s[92:93], vcc
    v_cmp_gt_f32 vcc, {f32(2.0**60)}, v14
    s_and_b64 s[92:93], s[92:93], vcc
    s_cmp_eq_u64 s[92:93], exec
    s_cbranch_scc0 B_slow
    """)
    a.label("B_fin")
    a(f"v_rcp_f32 v14, v{O2+8}\nv_rcp_f32 v12, v{O3+8}\ns_nop 0")
    for jj, (o, r) in enumerate(((O2, 14), (O3, 12))):
        for i in range(4): a(f"v_pk_mul_f32 {vr(o+2*i,2)}, {vr(o+2*i,2)}, {vr(r,2)} op_sel_hi:[1,0]")
        for i in range(4): a(f"v_cvt_pk_bf16_f32 v{208+4*jj+i}, v{o+2*i}, v{o+2*i+1}")
        a(f"buffer_store_dwordx4 {vr(208+4*jj,4)}, v{L16}, {WS}, s{86+jj} offen sc1")
    stamp(a, 10)
    all_set(a, late, 13, CFV, "s101")
    if not OLATE:
        for x in oload: a(x)
    stamp(a, 11)
    lds_wait(a, XW8, W_LH, 12)
    c_wo()
    lds_wait(a, XW4, W_PR, 12)
    if HOL: a(mark(W_OL))
    if OLATE:
        for x in oload: a(x)
    stamp(a, 13)

    a.label("C_mm")
    for j in range(8):
        a(f"s_waitcnt vmcnt({7-j})")
        fresh(a, late, list(range(OB+4*j, OB+4*j+4)), oload[j:], 6, 7 - j)
        for ai in (1, 0):
            a(f"{M32} {vr(AC+16*ai,16)}, {vr(WF+4*(8*ai+j),4)}, {vr(OB+4*j,4)}, {'0' if j == 0 else vr(AC+16*ai,16)}")
    stamp(a, 14)
    a("s_nop 10")
    for r in (2, 3, 1):
        a(f"ds_write_b128 v{RBA+r}, {vr(AC+8*r,4)}\nds_write_b128 v{RBA+r}, {vr(AC+8*r+4,4)} offset:1024")
    a(f"s_cmp_lt_u32 s30, 4\ns_waitcnt lgkmcnt(0)\ns_barrier\ns_cbranch_scc0 C_havexy")
    a(f"ds_read_b128 {vr(YA,4)}, v{XYA}\nds_read_b128 {vr(YA+4,4)}, v{XYA} offset:1024\nds_read_b32 v{G}, v{XGA} offset:2048")
    a.label("C_havexy")
    for r in range(6): a(f"ds_read_b128 {vr(RD+4*r,4)}, v{RBA} offset:{r*1024}")
    for r in range(3):
        a(f"s_waitcnt lgkmcnt({4-2*r})")
        for i in range(4): a(f"v_pk_add_f32 {vr(AC+2*i,2)}, {vr(AC+2*i,2)}, {vr(RD+8*r+2*i,2)}")
    for i in range(4): a(f"v_pk_fma_f32 {vr(AC+2*i,2)}, {vr(AC+2*i,2)}, {vr(G,2)}, {vr(YA+2*i,2)} op_sel_hi:[1,0,1]")
    for i in range(4): a(f"v_cvt_pk_bf16_f32 v{PK4+i}, v{AC+2*i}, v{AC+2*i+1}")
    a(f"""
    s_nop 0
    v_permlane32_swap_b32 v{PK4}, v{PK4+2}
    v_permlane32_swap_b32 v{PK4+1}, v{PK4+3}
    buffer_store_dwordx4 {vr(PK4,4)}, v{OUTV}, s[40:43], s69 offen
    """)
    if STAMP: a("s_waitcnt vmcnt(0)")
    stamp(a, 15)
    if STAMP: a("v_writelane_b32 v255, s21, 40")
    stamp_flush(a)
    a("s_endpgm")

    a.label("B_slow")
    a(f"""
    s_add_u32 s70, s66, {KW}
    s_add_u32 s71, s66, {VW}
    s_mov_b32 s84, 0
    v_mov_b32 v208, 0xff800000
    v_mov_b32 v209, 0xff800000
    """)
    a.label("B_slow1")
    a(f"""
    s_add_u32 s85, s70, s84
    {ldk(0, "s85", 0)}
    s_waitcnt vmcnt(0)
    {M32} {vr(S,16)}, {vr(KS,4)}, {vr(Q+8,4)}, 0
    {M32} {vr(S+16,16)}, {vr(KS,4)}, {vr(Q+12,4)}, 0
    s_nop 11
    """)
    for jj in range(2):
        for i in range(8): a(f"v_max3_f32 v{208+jj}, v{S+16*jj+2*i}, v{S+16*jj+2*i+1}, v{208+jj}")
    a("""
    s_add_u32 s84, s84, 1024
    s_cmp_lt_u32 s84, 0x10000
    s_cbranch_scc1 B_slow1
    v_mov_b32 v210, v208
    v_mov_b32 v211, v209
    s_nop 1
    v_permlane32_swap_b32 v208, v210
    v_permlane32_swap_b32 v209, v211
    v_max_f32 v208, v208, v210
    v_max_f32 v209, v209, v211
    s_mov_b32 s84, 0
    """)
    for jj in range(2):
        for i in range(16): a(f"v_sub_f32 v{S+32+16*jj+i}, 0, v{208+jj}\nv_mov_b32 v{ACC+32+16*jj+i}, 0")
    for i in range(8): a(f"v_mov_b32 v{VS+i}, 0x3f803f80")
    a.label("B_slow2")
    a(f"s_add_u32 s85, s70, s84\ns_add_u32 s89, s71, s84\n{ldk(0, 's85', 0)}")
    for x in ldv(0, "s89", 0): a(x)
    a(f"""
    s_waitcnt vmcnt(0)
    {M32} {vr(S,16)}, {vr(KS,4)}, {vr(Q+8,4)}, {vr(S+32,16)}
    {M32} {vr(S+16,16)}, {vr(KS,4)}, {vr(Q+12,4)}, {vr(S+48,16)}
    s_nop 11
    """)
    for i in range(32): a(f"v_exp_f32 v{S+i}, v{S+i}")
    a("s_nop 1")
    for jj in range(2):
        for s in range(2):
            a(f"{SM} {vr(ACC+32+16*jj,16)}, {vr(VS+4*s,4)}, {vr(S+16*jj+8*s,8)}, v{IDX}")
    a("""
    s_add_u32 s84, s84, 1024
    s_cmp_lt_u32 s84, 0x10000
    s_cbranch_scc1 B_slow2
    s_nop 11
    s_branch B_fin
    """)
    a.lines += late.lines
    a.label("K_end")
    a("s_endpgm")
    return a

def build():
    ref = open(f"cdna_kernels/{NAME}.s.ref").read().split("\n")
    head = [l for l in ref if l.startswith(";") and "@launch" not in l]
    t = kernel().text()
    bad = check(t)
    out = "\n".join(head) + f"\n; @launch grid=(256,1,1) block=(512,1,1) lds={LDS}\n"
    out += f'.amdgcn_target "amdgcn-amd-amdhsa--gfx950"\n.text\n.globl {NAME}_kernel\n.p2align 8\n.type {NAME}_kernel,@function\n' + t
    out += f""".section .rodata,"a"
.p2align 6
.amdhsa_kernel {NAME}_kernel
  .amdhsa_next_free_vgpr 256
  .amdhsa_next_free_sgpr 102
  .amdhsa_accum_offset 256
  .amdhsa_group_segment_fixed_size 0
  .amdhsa_kernarg_size 104
  .amdhsa_user_sgpr_count 2
  .amdhsa_user_sgpr_kernarg_segment_ptr 1
  .amdhsa_system_sgpr_workgroup_id_x 1
  .amdhsa_float_denorm_mode_32 3
.end_amdhsa_kernel
"""
    return out, bad

if __name__ == "__main__":
    out, bad = build()
    for b in bad: print("HAZARD", b)
    path = sys.argv[1] if len(sys.argv) > 1 else "fused.s"
    open(path, "w").write(out)
    print("wrote", path, len(out), "bytes;", len(bad), "hazards; lds", LDS)
```

```python
import os, sys, struct
from asmlib import Asm, vr, sr, check

NAME = "gated_mix__mha_block__ssm_conv_h3__prompt"
KW, VW, UW, YW, OW, GW = 0x200000, 0x400000, 0x600000, 0x840000, 0xA80000, 0xE00000
CST = 4352
FW = 0xE10000
FS = 256
QF, UF, CF = FW, FW + 4, FW + 8
WS_BYTES = 0xE60000
M32 = "v_mfma_f32_32x32x16_bf16"
M16 = "v_mfma_f32_16x16x32_bf16"
SM = "v_smfmac_f32_32x32x32_bf16"
LOG2E = 1.4426950408889634
STAMP = int(os.environ.get("STAMP", "0"))
env = lambda k, d: type(d)(os.environ.get(k, d))
NS = env("NS", 3)
EXP = env("EXP", "")
STG = env("STG", 8)
STM = env("STM", 8 // STG)
WQ1 = env("WQ1", 4)
KFG = env("KFG", 14)
CDROP, CDT = env("CDROP", 2), env("CDT", 0)
XP, XP2 = env("XP", 3), env("XP2", 3)
OFIRST = env("OFIRST", 0)
HOL = env("HOL", 1)
CVP = env("CVP", 0)
HS0 = env("HS0", 150)
CS0 = env("CS0", 150)
OLATE = env("OLATE", 1)
YLATE = env("YLATE", 1)
TOUCH = env("TOUCH", 2)
TW = 0xF00000
SPIN = 40000

SLOT = 24576
L_X = 65536
L_PRIV = 73728
USZ = 4576
PRIV = 2 * USZ
PSL = 2176
L_OLD = L_PRIV + 4 * PRIV
L_YNG = L_OLD + 16 * PSL
L_XF = L_YNG + 8 * PSL
L_WQ = L_OLD
L_QX = L_YNG
TB = L_QX + 8192
L_RB = L_OLD
LDS = L_XF + 256
W_XCH, W_QW, W_KV, W_TB, W_PO, W_QR, W_PR, W_CNT, W_PY, W_LH, W_LC, W_YS, W_OL = 0, 16, 32, 48, 64, 80, 96, 128, 144, 160, 176, 192, 208

def f32(x):
    return "0x%08x" % struct.unpack("<I", struct.pack("<f", x))[0]

def srd(a, d, b, nbytes):
    a(f"s_mov_b32 s{d}, s{b}\ns_mov_b32 s{d+1}, s{b+1}\ns_mov_b32 s{d+2}, {hex(nbytes)}\ns_mov_b32 s{d+3}, 0x20000")

def stamp(a, i, mode=1):
    if not STAMP or (STAMP != mode and i not in (0, 15)): return
    a(f"""
    s_memtime s[96:97]
    s_memrealtime s[98:99]
    s_waitcnt lgkmcnt(0)
    v_writelane_b32 v255, s96, {2*i}
    v_writelane_b32 v255, s98, {2*i+1}
    """)
def stamp_flush(a):
    if not STAMP: return
    a(f"""
    s_lshl_b32 s96, s2, 3
    s_add_u32 s96, s96, s30
    s_lshl_b32 s96, s96, 8
    s_add_u32 s96, s96, {TW}
    s_mov_b32 s34, 0x1400000
    v_lshlrev_b32 v6, 2, v0
    buffer_store_dword v255, v6, s[32:35], s96 offen
    """)

WS = "s[32:35]"
IDX, L16, VOF, L4H = 2, 3, 4, 5
KF2, VZ, WOA, RBA, XYA, XGA, OUTV = 222, 223, 232, 233, 237, 238, 239
CFV, KFV, MYW, XW4, WOV, XOV, QA, Z4, XW, ONE, XW8 = 240, 241, 242, 243, 244, 245, 246, 248, 252, 253, 254
_uid = [0]
def uid(p):
    _uid[0] += 1
    return f"{p}{_uid[0]}"

def poll(a, voff, soff, tmp, srd_=WS):
    L = uid("POLL")
    a(f"s_mov_b32 s90, {SPIN}")
    a.label(L)
    a(f"""
    buffer_load_dword v{tmp}, v{voff}, {srd_}, {soff} offen sc1
    s_waitcnt vmcnt(0)
    v_cmp_eq_u32 vcc, 1, v{tmp}
    s_sub_u32 s90, s90, 1
    s_cbranch_scc1 {L}_out
    s_cmp_eq_u64 vcc, exec
    s_cbranch_scc0 {L}
    """)
    a.label(f"{L}_out")

def all_set(a, late, val, voff, soff, srd_=WS):
    L = uid("AS")
    a(f"v_cmp_eq_u32 vcc, 1, v{val}\ns_nop 0\ns_cmp_eq_u64 vcc, exec\ns_cbranch_scc0 {L}")
    a.label(f"{L}_ok")
    late.label(L)
    poll(late, voff, soff, val, srd_)
    late(f"s_branch {L}_ok")

def lds_wait(a, vaddr, off, tmp):
    L = uid("LW")
    a("s_mov_b32 s90, 0x400000")
    a.label(L)
    a(f"""
    ds_read_b32 v{tmp}, v{vaddr} offset:{off}
    s_waitcnt lgkmcnt(0)
    v_cmp_eq_u32 vcc, 1, v{tmp}
    s_sub_u32 s90, s90, 1
    s_cbranch_scc1 {L}_out
    s_cmp_eq_u64 vcc, exec
    s_cbranch_scc0 {L}
    """)
    a.label(f"{L}_out")

mark = lambda off: f"ds_write_b32 v{MYW}, v{ONE} offset:{off}"

def arrive(a, k, tmp, n=4):
    L = uid("AR")
    a(f"""
    s_mov_b64 exec, 1
    ds_add_rtn_u32 v{tmp}, v{XW}, v{ONE} offset:{W_CNT+4*k}
    s_waitcnt lgkmcnt(0)
    v_cmp_eq_u32 vcc, {n-1}, v{tmp}
    s_nop 4
    s_cbranch_vccz {L}
    buffer_store_dword v{ONE}, v{VZ}, {WS}, s62 offen offset:{4*k} sc1
    """)
    a.label(L)
    a("s_mov_b64 exec, -1")

def fresh(a, late, regs, reload, tmp, keep=0):
    L = uid("FR")
    chk = [f"v_max3_u32 v{tmp}, v{regs[0]}, v{regs[1]}, v{regs[2]}"]
    r = list(regs[3:])
    while len(r) >= 2: chk.append(f"v_max3_u32 v{tmp}, v{r.pop(0)}, v{r.pop(0)}, v{tmp}")
    if r: chk.append(f"v_max_u32 v{tmp}, v{r[0]}, v{tmp}")
    chk += [f"v_cmp_eq_u32 vcc, -1, v{tmp}", "s_nop 0", "s_cmp_eq_u64 vcc, 0"]
    a("\n".join(chk)); a(f"s_cbranch_scc0 {L}")
    a.label(f"{L}_ok")
    late.label(L)
    late(f"s_mov_b32 s90, {SPIN}")
    late.label(f"{L}_l")
    if STAMP: late("s_add_u32 s21, s21, 1")
    late("\n".join(reload) + f"\ns_waitcnt vmcnt({keep})\n" + "\n".join(chk))
    late(f"s_cbranch_scc1 {L}_ok\ns_sub_u32 s90, s90, 1\ns_cbranch_scc0 {L}_l\ns_branch {L}_ok")

def lines(t):
    return [l.strip() for l in t.strip().split("\n") if l.strip()]

def kernel():
    a = Asm(); late = Asm()
    a.label(f"{NAME}_kernel")
    a(f"""
    s_cmp_ge_u32 s2, 256
    s_cbranch_scc1 K_end
    """)
    if STAMP == 4: a("v_mov_b32 v255, 0"); stamp(a, 0)
    if TOUCH == 2:
        a("""
        v_lshlrev_b32 v221, 7, v0
        v_min_u32 v221, K_end-A_pc, v221
        s_getpc_b64 s[80:81]
        A_pc:
        global_load_dword v221, v221, s[80:81]
        """)
    a(f"""
    s_load_dwordx8 s[4:11], s[0:1], 0
    s_load_dwordx16 s[12:27], s[0:1], 32
    s_load_dwordx2 s[28:29], s[0:1], 96
    v_lshrrev_b32 v1, 6, v0
    v_and_b32 v0, 63, v0
    s_and_b32 s31, s2, 7
    v_readfirstlane_b32 s30, v1
    s_lshr_b32 s56, s2, 3
    s_lshr_b32 s57, s31, 1
    s_lshl_b32 s57, s57, 2
    s_lshr_b32 s59, s56, 3
    s_add_u32 s57, s57, s59
    s_and_b32 s58, s31, 1
    s_lshl_b32 s58, s58, 3
    s_and_b32 s60, s56, 7
    s_add_u32 s58, s58, s60
    """)
    if STAMP == 4: stamp(a, 1, 4)
    elif STAMP: a("v_mov_b32 v255, 0"); stamp(a, 0)
    a("s_cmp_lt_u32 s30, 4\ns_cbranch_scc1 A_compute")

    Q, ACC, S, KS, VS = 16, 32, 96, 160, 176
    WF, OB, AC, YA, YF, XR, RD, PK4, XG = 16, 80, 112, 144, 176, 192, 80, 104, 112
    G = 208
    def common_setup(a, t0, t1, t2):
        a(f"""
        s_and_b32 s63, s30, 1
        s_lshr_b32 s64, s30, 1
        s_lshl_b32 s61, s58, 1
        s_add_u32 s61, s61, s63
        s_lshl_b32 s62, s2, 8
        s_add_u32 s62, s62, {FW}
        s_lshl_b32 s66, s61, 16
        s_lshl_b32 s67, s63, 12
        s_add_u32 s67, s67, {L_QX}
        s_cmp_eq_u32 s64, 0
        s_cselect_b32 s68, 2048, 0
        s_xor_b32 s69, s68, 2048
        s_add_u32 s68, s68, s67
        s_add_u32 s69, s69, s67
        v_lshlrev_b32 v{L16}, 4, v0
        v_add_u32 v{QA}, s68, v{L16}
        v_add_u32 v{QA+1}, s69, v{L16}
        s_lshl_b32 s70, s64, 14
        s_add_u32 s70, s70, s66
        s_add_u32 s71, s70, {VW}
        s_add_u32 s70, s70, {KW}
        s_mov_b32 s72, 0xffff
        s_mov_b32 s73, 0xffff
        s_lshl_b32 s74, s60, 3
        s_lshr_b32 s75, s58, 3
        s_add_u32 s74, s74, s75
        s_lshl_b32 s75, s64, 1
        s_add_u32 s74, s74, s75
        s_lshl_b32 s74, s74, 8
        s_add_u32 s74, s74, {QF}
        s_lshl_b32 s75, s31, 2
        s_add_u32 s75, s75, s59
        s_mov_b32 s76, s60
        s_lshl_b32 s77, s63, 15
        s_lshl_b32 s78, s64, 13
        s_add_u32 s77, s77, s78
        s_lshl_b32 s78, s64, 17
        s_lshl_b32 s85, s76, 7
        s_add_u32 s78, s78, s85
        s_lshl_b32 s79, s63, 6
        s_add_u32 s78, s78, s79
        s_lshl_b32 s79, s30, 10
        s_add_u32 s79, s79, {L_X}
        v_and_b32 v{t0}, 31, v0
        v_lshlrev_b32 v{L4H}, 2, v{t0}
        v_lshrrev_b32 v{t1}, 5, v0
        v_lshlrev_b32 v{OUTV}, 10, v{t0}
        v_lshl_add_u32 v{OUTV}, v{t1}, 4, v{OUTV}
        v_and_b32 v{t0}, 15, v0
        v_lshlrev_b32 v{t0}, 4, v{t0}
        v_lshl_add_u32 v{VOF}, v{t1}, 8, v{t0}
        v_mov_b32 v{IDX}, 0xdddd
        v_and_b32 v{t0}, 3, v0
        v_lshlrev_b32 v{XW4}, 2, v{t0}
        v_add_u32 v{XW4}, {L_XF}, v{XW4}
        v_bfe_u32 v{t2}, v0, 2, 2
        v_lshlrev_b32 v{KFV}, 14, v{t0}
        v_and_b32 v{KF2}, 0x4000, v{KFV}
        v_lshl_add_u32 v{t2}, v{t1}, 2, v{t2}
        v_lshlrev_b32 v{t2}, 6, v{t2}
        v_lshl_add_u32 v{t2}, v{t0}, 3, v{t2}
        s_and_b32 s80, s64, 1
        v_bfe_u32 v{WOA}, v0, 4, 1
        v_xor_b32 v{WOA}, s80, v{WOA}
        v_lshl_add_u32 v{t2}, v{WOA}, 5, v{t2}
        s_lshr_b32 s80, s64, 1
        s_lshl_b32 s80, s80, 15
        s_lshl_b32 s81, s64, 13
        s_add_u32 s80, s80, s81
        s_and_b32 s82, s76, 1
        s_lshl_b32 s82, s82, 12
        s_add_u32 s80, s80, s82
        v_add_u32 v{WOA}, s80, v{t2}
        v_lshrrev_b32 v{t2}, 2, v0
        v_lshlrev_b32 v{t2}, 10, v{t2}
        v_lshl_add_u32 v{WOV}, v{t0}, 4, v{t2}
        s_lshl_b32 s83, s75, 1
        s_add_u32 s83, s83, s63
        s_lshl_b32 s83, s83, 15
        s_add_u32 s81, s81, s83
        s_add_u32 s81, s81, {OW}
        s_add_u32 s67, s81, s82
        s_xor_b32 s82, s82, 4096
        s_add_u32 s68, s81, s82
        s_add_u32 s69, s83, s85
        s_lshl_b32 s80, s64, 5
        s_add_u32 s69, s69, s80
        s_lshl_b32 s80, s75, 6
        s_lshl_b32 s81, s30, 3
        s_add_u32 s80, s80, s81
        v_lshrrev_b32 v{t2}, 3, v0
        v_add_u32 v{t2}, s80, v{t2}
        v_lshlrev_b32 v{t2}, 10, v{t2}
        v_lshrrev_b32 v{t1}, 4, v0
        s_lshl_b32 s81, s63, 2
        v_xor_b32 v{t1}, s81, v{t1}
        v_and_b32 v{t0}, 7, v0
        v_xor_b32 v{t1}, v{t1}, v{t0}
        v_lshl_add_u32 v{t2}, v{t1}, 4, v{t2}
        v_add_u32 v{XOV}, s85, v{t2}
        v_lshlrev_b32 v{XW8}, 2, v{t0}
        v_add_u32 v{XW8}, {L_XF}, v{XW8}
        v_bfe_u32 v{t1}, v0, 3, 1
        v_lshlrev_b32 v{t0}, 11, v{t0}
        v_lshl_add_u32 v{CFV}, v{t1}, 8, v{t0}
        s_lshr_b32 s80, s75, 1
        s_and_b32 s84, s80, 3
        s_lshl_b32 s84, s84, 6
        s_lshr_b32 s80, s80, 2
        s_lshl_b32 s80, s80, 1
        s_add_u32 s80, s80, s84
        s_lshl_b32 s80, s80, 8
        s_add_u32 s101, s80, {CF}
        s_add_u32 s81, s81, s64
        """)
        for r in range(4):
            a(f"s_xor_b32 s80, s81, {r}\ns_mul_i32 s80, s80, 6144\ns_add_u32 s80, s80, {L_RB+max(r-1,0)*2048}\nv_add_u32 v{RBA+r}, s80, v{L16}")
        a(f"""
        s_and_b32 s84, s30, 3
        s_mul_i32 s65, s84, {PRIV}
        s_add_u32 s65, s65, {L_PRIV}
        s_add_u32 s80, s65, 4096
        v_add_u32 v{XYA}, s80, v{L16}
        v_add_u32 v{XGA}, s80, v{L4H}
        s_lshl_b32 s80, s84, 2
        s_add_u32 s80, s80, {L_XF}
        v_mov_b32 v{MYW}, s80
        v_mov_b32 v{XW}, {L_XF}
        v_mov_b32 v{ONE}, 1
        v_mov_b32 v{VZ}, 0
        """)
        for i in range(4): a(f"v_mov_b32 v{Z4+i}, 0")
        srd(a, 44, 8, 0x80000)
    ones = lambda t: lines(f"v_and_b32 v{t}, 27, v0\nv_cmp_eq_u32 vcc, 16, v{t}\nv_mov_b32 v{t}, 0x3f803f80\ns_nop 0\nv_cndmask_b32 v{t}, 0, v{t}, vcc")
    ldk = lambda st, so, off: f"buffer_load_dwordx4 {vr(KS+4*st,4)}, v{L16}, {WS}, {so} offen offset:{off} sc1"
    def ldv(st, so, off):
        return ["s_mov_b64 exec, s[72:73]",
                f"buffer_load_dwordx4 {vr(VS+8*st,4)}, v{VOF}, {WS}, {so} offen offset:{off} sc1",
                f"buffer_load_dwordx4 {vr(VS+8*st+4,4)}, v{VOF}, {WS}, {so} offen offset:{off+512} sc1",
                "s_mov_b64 exec, -1"]
    def att_q():
        lds_wait(a, XW4, W_QW, Q)
        for j in range(4): a(f"ds_read_b128 {vr(Q+4*j,4)}, v{QA+j//2} offset:{(j%2)*1024}")
    def att_loads():
        a(ldk(0, "s70", 0))
        for m in range(3):
            for x in ldv(m, "s71", m*1024): a(x)
            a(ldk(m+1, "s70", (m+1)*1024))
    def c_wo():
        a(f"v_xor_b32 v6, 4096, v{WOA}\nv_xor_b32 v7, 0x8000, v{WOA}\nv_xor_b32 v8, 0x9000, v{WOA}")
        for ai in range(2):
            for j in range(8):
                for jj in range(2):
                    a(f"ds_read_b64_tr_b16 {vr(WF+4*(8*ai+j)+2*jj,2)}, v{[WOA,6,7,8][2*ai+j//4]} offset:{(j%4)*1024+jj*512}")
                if j % 4 == 3 and 8*ai+j < 15: a("s_waitcnt lgkmcnt(4)")
    oload = [f"buffer_load_dwordx4 {vr(OB+4*j,4)}, v{L16}, {WS}, s{67+j//4} offen offset:{(j%4)*1024} sc1" for j in range(8)]

    XV, WV = 16, 20
    a(f"""
    s_setprio 1
    s_sub_u32 s84, s30, 4
    s_lshl_b32 s80, s57, 7
    s_lshl_b32 s81, s84, 5
    s_add_u32 s80, s80, s81
    v_lshrrev_b32 v6, 3, v0
    v_add_u32 v6, s80, v6
    v_lshlrev_b32 v6, 10, v6
    v_and_b32 v7, 7, v0
    v_lshrrev_b32 v8, 4, v0
    v_xor_b32 v9, v7, v8
    v_lshl_add_u32 v{XV}, v9, 4, v6
    v_xor_b32 v9, 4, v9
    v_lshl_add_u32 v{XV+1}, v9, 4, v6
    v_add_u32 v{XV+1}, 7168, v{XV+1}
    v_add_u32 v{XV+2}, {2*7168}, v{XV}
    v_add_u32 v{XV+3}, {2*7168}, v{XV+1}
    s_lshl_b32 s81, s84, 4
    v_lshrrev_b32 v6, 2, v0
    v_add_u32 v6, s81, v6
    v_mul_u32_u24 v6, 3072, v6
    v_and_b32 v7, 3, v0
    v_lshl_add_u32 v6, v7, 4, v6
    s_lshl_b32 s81, s58, 6
    v_add_u32 v{WV}, s81, v6
    s_lshl_b32 s92, s84, 12
    s_lshl_b32 s93, s84, 11
    s_add_u32 s93, s93, {16384-1024}
    s_lshl_b32 s94, s59, 1
    s_add_u32 s94, s94, s60
    {"s_mov_b32 s94, 0" if "nostag" in EXP else ""}
    {"s_add_u32 s94, s59, s60" if STG < 8 else ""}
    {f"s_and_b32 s94, s94, {STG-1}" if STG < 8 else ""}
    {f"s_mul_i32 s94, s94, {STM}" if STG < 8 else ""}
    {"v_and_b32 v20, 0xfff0, v16" if "wl2" in EXP else ""}
    {"v_and_b32 v16, 0xfff0, v16" if "xl2" in EXP else ""}
    {"v_and_b32 v17, 0xfff0, v17" if "xl2" in EXP else ""}
    {"v_and_b32 v18, 0xfff0, v18" if "xl2" in EXP else ""}
    {"v_and_b32 v19, 0xfff0, v19" if "xl2" in EXP else ""}
    s_waitcnt lgkmcnt(0)
    """)
    srd(a, 36, 4, 0x200000); srd(a, 40, 6, 0x180000)
    stamp(a, 1, 3)
    def dma(st):
        base = (st % NS) * SLOT
        a(f"s_add_u32 s95, s94, {st}\ns_and_b32 s95, s95, 7\ns_lshl_b32 s100, s95, 7\ns_add_u32 m0, s92, {base}\ns_mul_i32 s95, s95, 196608")
        for j in range(4): a(f"buffer_load_dwordx4 v{XV+j}, s[36:39], s100 offen offset:{j*1024} lds")
        a(f"s_add_u32 m0, s93, {base}\ns_nop 0")
        for j in (1, 2): a(f"buffer_load_dwordx4 v{WV}, s[40:43], s95 offen offset:{j*1024} lds")
        stamp(a, 2 + st, 3)
    dma(0); dma(1)
    issued = 2
    a(f"v_lshlrev_b32 v32, 2, v0\nv_add_u32 v32, {L_XF}, v32\nv_mov_b32 v33, 0\nds_write_b32 v32, v33")
    main = a; a = Asm()
    srd(a, 32, 28, WS_BYTES); srd(a, 52, 26, 256)
    common_setup(a, 6, 7, 8)
    BA, PW16, PW4, A0, A64, A512, U2, PV16, PT16, PTW, YST = 1, 6, 7, 8, 9, 10, 11, 12, 13, 14, 15
    UFV, GFV, P0, P1, YLD, YSW, YSR, XAD, DF, PM = 210, 211, 212, 213, 214, 215, 216, 217, 218, 224
    UK, TBW, TBR, US, SKV, GOV = 21, 24, 25, 26, 28, 29
    a(f"""
    s_lshl_b32 s91, s31, 6
    s_lshl_b32 s80, s56, 1
    s_add_u32 s91, s91, s80
    s_lshr_b32 s80, s84, 1
    s_add_u32 s91, s91, s80
    s_and_b32 s80, s91, -2
    s_lshl_b32 s80, s80, 1
    s_load_dword s89, s[20:21], s80
    v_and_b32 v32, 31, v0
    v_lshrrev_b32 v33, 5, v0
    v_and_b32 v34, 15, v0
    v_lshrrev_b32 v35, 4, v0
    v_and_b32 v36, 7, v0
    v_lshrrev_b32 v37, 3, v0
    v_min_u32 v38, 29, v32
    v_lshlrev_b32 v38, 4, v38
    v_mul_u32_u24 v39, {USZ}, v33
    v_add3_u32 v30, v38, v39, s65
    s_mul_i32 s80, s84, {4*PSL}
    s_add_u32 s80, s80, {L_OLD}
    v_add_u32 v{PW16}, s80, v{L16}
    v_add_u32 v{PW4}, s80, v{L4H}
    s_lshl_b32 s81, s63, 8
    v_lshlrev_b32 v38, 4, v35
    v_lshl_add_u32 v{A0}, v34, 2, v38
    s_sub_u32 s80, s81, 60
    v_add_u32 v{A0}, s80, v{A0}
    v_add_u32 v{A64}, 64, v{A0}
    v_add_u32 v{A512}, 512, v{A0}
    v_add_u32 v{U2}, 2, v{L16}
    v_add_u32 v{PV16}, s65, v{L16}
    s_xor_b32 s80, s84, 1
    s_lshl_b32 s82, s80, 2
    s_add_u32 s82, s82, {L_XF}
    v_mov_b32 v{PTW}, s82
    s_mul_i32 s80, s80, {PRIV}
    s_add_u32 s80, s80, {L_PRIV}
    v_add_u32 v{PT16}, s80, v{L16}
    v_and_b32 v39, 1, v0
    v_mul_u32_u24 v39, {USZ}, v39
    v_bfe_u32 v40, v0, 1, 3
    v_lshlrev_b32 v41, 6, v40
    v_sub_u32 v39, v39, v41
    s_add_u32 s80, s65, 448
    s_add_u32 s80, s80, s81
    v_add3_u32 v{BA}, v39, v38, s80
    v_and_b32 v38, 3, v0
    v_lshlrev_b32 v{GOV}, 2, v38
    v_lshlrev_b32 v38, 4, v38
    v_bfe_u32 v39, v0, 2, 2
    v_lshl_add_u32 v38, v39, 7, v38
    v_lshl_add_u32 v38, v33, 6, v38
    v_bfe_u32 v41, v0, 4, 1
    v_lshl_add_u32 v{YST}, v41, 9, v38
    v_lshlrev_b32 v{UFV}, 9, v{L4H}
    v_lshlrev_b32 v{GFV}, 11, v36
    v_mul_u32_u24 v38, {CST}, v37
    v_lshl_add_u32 v{YLD}, v36, 4, v38
    v_xor_b32 v42, v36, v35
    v_lshl_add_u32 v{US}, v42, 4, v38
    v_xor_b32 v42, 4, v42
    v_lshl_add_u32 v{US+1}, v42, 4, v38
    v_xor_b32 v38, v36, v37
    v_lshlrev_b32 v38, 4, v38
    v_lshl_add_u32 v38, v37, 7, v38
    s_add_u32 s80, s65, 6400
    v_add_u32 v{YSW}, s80, v38
    s_lshl_b32 s80, s63, 1
    v_lshl_add_u32 v38, v33, 2, s80
    v_xor_b32 v38, v38, v36
    v_lshlrev_b32 v38, 4, v38
    v_lshl_add_u32 v38, v34, 7, v38
    s_and_b32 s80, s64, 1
    s_mul_i32 s80, s80, {PRIV}
    s_add_u32 s80, s80, {L_PRIV+6400}
    v_add_u32 v{YSR}, s80, v38
    s_lshl_b32 s80, s64, 1
    v_xor_b32 v38, s80, v40
    v_lshlrev_b32 v38, 4, v38
    v_lshl_add_u32 v38, v32, 7, v38
    v_lshl_add_u32 v38, v33, 3, v38
    s_lshl_b32 s80, s63, 12
    s_add_u32 s80, s80, {L_X}
    v_add_u32 v{XAD}, s80, v38
    v_and_b32 v38, 1, v0
    v_lshl_or_b32 v39, v38, 2, v39
    v_xor_b32 v41, v41, v33
    v_lshl_or_b32 v39, v41, 3, v39
    v_bfe_u32 v38, v0, 1, 1
    v_lshlrev_b32 v38, 4, v38
    v_mov_b32 v41, 0x3f80
    v_lshlrev_b32 v38, v38, v41
    """)
    for i in range(8): a(f"v_cmp_eq_u32 vcc, {i}, v39\ns_nop 1\nv_cndmask_b32 v{PM+i}, 0, v38, vcc")
    a(f"""
    s_lshl_b32 s80, s56, 16
    s_lshl_b32 s82, s84, 14
    s_add_u32 s80, s80, s82
    s_lshl_b32 s82, s31, 7
    s_add_u32 s80, s80, s82
    v_lshlrev_b32 v38, 13, v33
    v_lshl_add_u32 v38, v32, 2, v38
    v_add_u32 v{UK+1}, s80, v38
    v_add_u32 v{UK}, -3072, v{UK+1}
    v_add_u32 v{UK+2}, 4096, v{UK+1}
    s_lshl_b32 s80, s31, 9
    v_lshl_add_u32 v{SKV}, v32, 4, s80
    s_lshl_b32 s80, s84, 1
    v_add_u32 v38, s80, v33
    v_sub_u32 v38, 7, v38
    v_xor_b32 v38, v38, v36
    v_lshlrev_b32 v38, 4, v38
    v_lshl_add_u32 v38, v32, 8, v38
    v_add_u32 v{TBW}, {TB}, v38
    s_lshl_b32 s80, s84, 11
    s_add_u32 s80, s80, {TB}
    v_add_u32 v{TBR}, s80, v{L16}
    s_lshl_b32 s10, s31, 2
    s_add_u32 s10, s10, s84
    s_mul_i32 s10, s10, {16*CST}
    s_lshl_b32 s80, s56, 7
    s_sub_u32 s10, s10, s80
    s_add_u32 s10, s10, {UW + 248*16}
    s_add_u32 s11, s10, {8*CST}
    s_lshl_b32 s87, s31, 8
    s_add_u32 s87, s87, {UF}
    s_lshr_b32 s86, s31, 1
    s_lshl_b32 s86, s86, 1
    s_and_b32 s80, s75, 1
    s_add_u32 s86, s86, s80
    s_lshr_b32 s80, s75, 1
    s_and_b32 s80, s80, 3
    s_lshl_b32 s80, s80, 6
    s_add_u32 s86, s86, s80
    s_lshl_b32 s86, s86, 8
    s_add_u32 s86, s86, {UF}
    v_lshl_add_u32 v39, v35, 2, v34
    s_waitcnt lgkmcnt(0)
    s_and_b32 s80, s91, 1
    s_lshl_b32 s80, s80, 4
    s_lshr_b32 s89, s89, s80
    s_and_b32 s89, s89, 0xffff
    v_mov_b32 v38, s89
    """)
    for i in range(4): a(f"v_cmp_eq_u32 vcc, {15-i}, v39\ns_nop 1\nv_cndmask_b32 v{DF+i}, 0, v38, vcc")
    for x in ones(38): a(x)
    for i in range(32): a(f"v_mov_b32 v{VS+i}, v38")
    defer = a.lines; a = main
    cuts = [0, HS0] + [HS0 + (len(defer) - HS0) * (n + 1) // 7 for n in range(7)]
    for n in range(1, len(cuts) - 1):
        while cuts[n] < len(defer) and ("vcc" in defer[cuts[n]] or defer[cuts[n]].startswith(("s_nop", "s_cselect", "s_addc"))): cuts[n] += 1
    a.lines += defer[:cuts[1]]
    for s_ in range(8):
        a(f"s_waitcnt vmcnt({6*(issued-1-s_)}){' lgkmcnt(0)' if s_ == 0 else ''}\ns_barrier")
        while issued < min(8, s_ + NS): dma(issued); issued += 1
        if s_ < 7: a.lines += defer[cuts[s_+1]:cuts[s_+2]]
    a("s_lshr_b32 s92, s92, 2")
    for st in range(8):
        if st == WQ1: a("s_barrier")
        a(f"s_add_u32 s95, s94, {st}\ns_and_b32 s95, s95, 7\ns_add_u32 m0, s92, {L_WQ+st*4096}\ns_mul_i32 s95, s95, 196608")
        a(f"buffer_load_dwordx4 v{WV}, s[40:43], s95 offen lds")
    if WQ1 >= 8: a("s_barrier")
    stamp(a, 10, 3)
    KR, VR, SK, GOH, KF, VF, SF, U, UP, GX, GG = 32, 43, 52, 56, 64, 86, 102, 110, 128, 144, 152
    srd(a, 40, 12, 0x200000); srd(a, 48, 14, 0x200000)
    for i in range(3): a(f"buffer_load_dword v{KR+i}, v{UK}, s[40:43], 0 offen offset:{i*1024} nt")
    for i in range(8): a(f"buffer_load_dword v{KR+3+i}, v{UK+1+i//4}, s[40:43], 0 offen offset:{(i%4)*1024} nt")
    for i in range(8): a(f"buffer_load_dword v{VR+i}, v{UK+1+i//4}, s[48:51], 0 offen offset:{(i%4)*1024} nt")
    srd(a, 40, 16, 4096); srd(a, 48, 22, 1024)
    a(f"""
    s_lshl_b32 s12, s57, 7
    s_lshl_b32 s80, s58, 3
    s_add_u32 s12, s12, s80
    s_lshl_b32 s80, s84, 1
    s_add_u32 s12, s12, s80
    s_lshl_b32 s80, s12, 10
    s_lshl_b32 s12, s12, 2
    s_add_u32 s12, s12, {GW}
    buffer_load_dwordx4 {vr(SK,4)}, v{SKV}, s[40:43], 0 offen
    buffer_load_dwordx4 {vr(GG,4)}, v{L16}, s[48:51], 0 offen
    buffer_load_dwordx4 {vr(GX,4)}, v{L16}, s[36:39], s80 offen
    buffer_load_dwordx4 {vr(GX+4,4)}, v{L16}, s[36:39], s80 offen offset:1024
    buffer_load_dword v{GOH}, v{GOV}, s[52:55], 0 offen sc1
    s_waitcnt vmcnt(24)
    s_barrier
    s_setprio 0
    """)
    stamp(a, 1); stamp(a, 11, 3)
    a(f"ds_write_b128 v30, {vr(Z4,4)} offset:4096")
    srd(a, 40, 24, 0x200000)
    a(f"""
    s_mul_i32 s13, s91, {CST}
    s_lshl_b32 s80, s63, 11
    s_add_u32 s7, s13, s80
    s_add_u32 s7, s7, {YW}
    s_add_u32 s13, s13, {UW}
    s_mov_b32 s88, s7
    s_add_u32 s89, s7, 1024
    s_and_b32 s4, s64, 1
    s_lshl_b32 s4, s4, 1
    s_lshl_b32 s5, s57, 2
    s_add_u32 s4, s4, s5
    s_lshl_b32 s4, s4, 15
    s_lshl_b32 s5, s61, 10
    s_add_u32 s4, s4, s5
    s_add_u32 s4, s4, {OW}
    s_add_u32 s5, s4, 0x8000
    s_mov_b32 s8, 1
    s_lshl_b32 s14, s75, 1
    s_add_u32 s14, s14, s63
    s_lshl_b32 s14, s14, 7
    s_add_u32 s14, s14, {GW}
    s_lshl_b32 s15, s76, 2
    s_add_u32 s15, s15, s84
    s_mul_i32 s15, s15, {16*CST}
    s_lshl_b32 s82, s75, 7
    s_add_u32 s15, s15, s82
    s_add_u32 s15, s15, {YW}
    s_add_u32 s16, s15, {8*CST}
    s_lshl_b32 s17, s76, 8
    s_add_u32 s17, s17, {CF}
    s_lshl_b32 s82, s91, 12
    s_add_u32 s82, s82, s80
    s_add_u32 s92, s18, s82
    s_addc_u32 s93, s19, 0
    s_mov_b32 s83, 99
    s_mov_b32 s82, 2
    s_mov_b32 s6, 0xffff0000
    s_waitcnt vmcnt(4)
    """)
    stamp(a, 2)
    a(f"buffer_load_dword v57, v{KF2}, {WS}, s74 offen sc1")
    for i in range(11): a(f"v_lshlrev_b32 v{KF+2*i}, 16, v{KR+i}\nv_and_b32 v{KF+2*i+1}, s6, v{KR+i}")
    for i in range(8): a(f"v_lshlrev_b32 v{VF+2*i}, 16, v{VR+i}\nv_and_b32 v{VF+2*i+1}, s6, v{VR+i}")
    for ch in range(2):
        for t in range(4):
            src = SK + 2*ch + t//2
            a(f"v_lshlrev_b32 v{SF+2*t+ch}, 16, v{src}" if t % 2 == 0 else f"v_and_b32 v{SF+2*t+ch}, s6, v{src}")
    for i in range(8):
        u = vr(U+2*i, 2)
        a(f"v_pk_mul_f32 {u}, {vr(KF+2*i,2)}, {vr(SF+6,2)}")
        for t in (2, 1, 0): a(f"v_pk_fma_f32 {u}, {vr(KF+2*(i+3-t),2)}, {vr(SF+2*t,2)}, {u}")
        a(f"v_pk_mul_f32 {u}, {u}, {vr(VF+2*i,2)}")
    for ch in range(2):
        for i in range(4): a(f"v_cvt_pk_bf16_f32 v{KR+4*ch+i}, v{U+2*(7-2*i)+ch}, v{U+2*(6-2*i)+ch}")
    a(f"""
    ds_write_b128 v{TBW}, {vr(KR,4)}
    ds_write_b128 v{TBW}, {vr(KR+4,4)} offset:128
    v_mov_b32 v48, 0
    v_mov_b32 v49, 0
    s_waitcnt vmcnt(0) lgkmcnt(0)
    {mark(W_TB)}
    """)

    for i in range(4):
        a(f"v_dot2_f32_bf16 v48, v{GX+i}, v{GG+i}, v48\nv_dot2_f32_bf16 v49, v{GX+4+i}, v{GG+i}, v49")
    a("s_nop 2")
    for d in ("row_shr:1 row_mask:0xf bank_mask:0xf bound_ctrl:0", "row_shr:2 row_mask:0xf bank_mask:0xf bound_ctrl:0",
              "row_shr:4 row_mask:0xf bank_mask:0xf bound_ctrl:0", "row_shr:8 row_mask:0xf bank_mask:0xf bound_ctrl:0",
              "row_bcast:15 row_mask:0xa bank_mask:0xf", "row_bcast:31 row_mask:0xc bank_mask:0xf"):
        a(f"v_add_f32_dpp v48, v48, v48 {d}\nv_add_f32_dpp v49, v49, v49 {d}\ns_nop 0")
    a(f"""
    v_cvt_pk_bf16_f32 v50, v48, v49
    v_lshlrev_b32 v48, 16, v50
    v_and_b32 v49, s6, v50
    v_mul_f32 v48, {f32(-LOG2E)}, v48
    v_mul_f32 v49, {f32(-LOG2E)}, v49
    v_exp_f32 v48, v48
    v_exp_f32 v49, v49
    s_nop 0
    v_add_f32 v48, 1.0, v48
    v_add_f32 v49, 1.0, v49
    v_rcp_f32 v48, v48
    v_rcp_f32 v49, v49
    s_nop 0
    v_cvt_pk_bf16_f32 v50, v48, v49
    v_lshlrev_b32 v{UP+8}, 16, v50
    v_and_b32 v{UP+9}, s6, v50
    v_mov_b32 v{UP+10}, v{US}
    v_mov_b32 v{UP+11}, v{US+1}
    """)
    all_set(a, late, GOH, GOV, "0", "s[52:55]")
    lds_wait(a, XW4, W_TB, 56)
    a(f"ds_read_b128 {vr(UP,4)}, v{TBR}\nds_read_b128 {vr(UP+4,4)}, v{TBR} offset:1024")
    stamp(a, 3); stamp(a, 12, 3)
    all_set(a, late, 57, KF2, "s74")
    att_loads()
    a("s_waitcnt lgkmcnt(0)")
    a(f"""
    buffer_store_dwordx4 {vr(UP,4)}, v{UP+10}, {WS}, s10 offen sc1
    buffer_store_dwordx4 {vr(UP+4,4)}, v{UP+11}, {WS}, s11 offen sc1
    s_mov_b32 exec_lo, 0
    s_mov_b32 exec_hi, 0x80000000
    buffer_store_dwordx2 {vr(UP+8,2)}, v{VZ}, {WS}, s12 offen sc1
    s_mov_b64 exec, -1
    """)
    stamp(a, 4); stamp(a, 13, 3)
    att_q()
    lds_wait(a, XW4, W_QR, 56)
    a("s_setprio 1")
    stamp(a, 5); stamp(a, 6)
    for i in range(12): a(f"s_load_dword s100, s[92:93], {i*128}")

    a("s_branch B_go")

    a.label("A_compute")
    XA, WA, AK, AV, AQ, XF, FR, FQ, GO = 6, [14, 15, 1], 20, 36, 48, 64, 192, [208, 212, 216, 28, 32], 19
    a(f"""
    v_and_b32 v20, 31, v0
    v_lshrrev_b32 v21, 5, v0
    v_bfe_u32 v22, v0, 1, 3
    v_xor_b32 v22, v22, v21
    s_lshl_b32 s80, s30, 12
    v_lshlrev_b32 v20, 7, v20
    v_lshl_add_u32 v20, v22, 4, v20
    v_add_u32 v{XA}, s80, v20
    """)
    for ks in range(1, 4): a(f"v_xor_b32 v{XA+ks}, {ks*32}, v{XA}")
    for ks in range(4): a(f"v_add_u32 v{XA+4+ks}, {2*SLOT}, v{XA+ks}")
    a(f"""
    v_bfe_u32 v20, v0, 2, 2
    v_lshl_add_u32 v20, v21, 3, v20
    v_lshlrev_b32 v20, 6, v20
    v_bfe_u32 v22, v0, 4, 1
    v_lshl_add_u32 v20, v22, 5, v20
    v_and_b32 v23, 3, v0
    v_lshl_add_u32 v20, v23, 3, v20
    v_add_u32 v{WA[0]}, 16384, v20
    v_add_u32 v{WA[1]}, {16384+2*SLOT}, v20
    v_add_u32 v{WA[2]}, {L_WQ}, v20
    v_lshlrev_b32 v228, 2, v23
    v_mov_b32 v55, v22
    s_waitcnt lgkmcnt(0)
    """)
    srd(a, 32, 28, WS_BYTES); srd(a, 52, 26, 256)
    a(f"""
    s_cmp_lg_u32 s2, 0
    s_cbranch_scc1 A_noclear
    s_lshl_b32 s80, s30, 14
    s_add_u32 s80, s80, {FW}
    v_lshlrev_b32 v24, 8, v0
    v_mov_b32 v28, 0
    v_mov_b32 v29, 0
    v_mov_b32 v30, 0
    v_mov_b32 v31, 0
    v_mov_b32 v25, 1
    buffer_store_dwordx4 v[28:31], v24, {WS}, s80 offen sc1
    s_lshl_b32 s80, s30, 2
    s_waitcnt vmcnt(0)
    s_mov_b64 exec, 1
    buffer_store_dword v25, v28, s[52:55], s80 offen sc1
    s_mov_b64 exec, -1
    """)
    a.label("A_noclear")
    main = a; a = Asm()
    srd(a, 36, 4, 0x200000); srd(a, 40, 24, 0x200000)
    common_setup(a, 52, 53, 54)
    a(f"""
    v_and_b32 v16, 0x33, v0
    v_bfe_u32 v17, v0, 2, 1
    v_lshl_or_b32 v16, v17, 3, v16
    v_bfe_u32 v17, v0, 3, 1
    v_lshl_or_b32 v16, v17, 2, v16
    v_lshlrev_b32 v16, 4, v16
    v_lshl_add_u32 v17, v55, 16, v{VOF}
    s_lshl_b32 s80, s30, 10
    s_add_u32 s80, s80, {L_QX}
    v_add_u32 v18, s80, v{L16}
    s_lshl_b32 s10, s58, 17
    s_lshl_b32 s80, s57, 2
    s_add_u32 s81, s80, s30
    s_lshl_b32 s81, s81, 10
    s_add_u32 s10, s10, s81
    s_add_u32 s12, s10, {VW}
    s_add_u32 s10, s10, {KW}
    s_add_u32 s11, s10, 0x10000
    s_mov_b32 s13, {f32(0.25*LOG2E)}
    s_lshl_b32 s81, s64, 1
    s_add_u32 s80, s80, s81
    s_lshl_b32 s80, s80, 15
    s_lshl_b32 s82, s61, 10
    s_add_u32 s80, s80, s82
    s_add_u32 s86, s80, {OW}
    s_add_u32 s87, s86, 0x8000
    s_mov_b32 s8, 99
    s_lshl_b32 s82, s63, 2
    s_add_u32 s82, s82, s81
    s_mul_i32 s14, s82, {PSL}
    s_add_u32 s14, s14, {L_OLD}
    s_xor_b32 s16, s30, 2
    s_mul_i32 s15, s30, {2*PSL}
    s_mul_i32 s16, s16, {2*PSL}
    s_add_u32 s15, s15, {L_YNG}
    s_add_u32 s16, s16, {L_YNG}
    s_mov_b32 s83, {CDROP}
    s_mov_b32 s82, 99
    s_mov_b32 s92, s18
    s_mov_b32 s93, s19
    """)
    for x in ones(229): a(x)
    defer = a.lines; a = main
    cuts = [CS0 + (len(defer) - CS0) * n // 28 for n in range(29)]
    for n in range(28):
        while cuts[n] < len(defer) and ("vcc" in defer[cuts[n]] or defer[cuts[n]].startswith(("s_nop", "s_cselect", "s_addc"))): cuts[n] += 1
    a.lines += defer[:cuts[0]]
    a("s_barrier")
    stamp(a, 1); stamp(a, 1, 3); stamp(a, 2, 4)
    def reads(g):
        st, ks = g >> 2, g & 3
        slot = st % NS
        bs, off = slot // 2, (slot % 2) * SLOT
        f = FR + 8 * (g % 3)
        r = [f"ds_read_b128 {vr(XF+4*g,4)}, v{XA+4*bs+ks} offset:{off}"]
        for ty in range(2):
            for j in range(2):
                r.append(f"ds_read_b64_tr_b16 {vr(f+4*ty+2*j,2)}, v{WA[bs]} offset:{off+ks*2048+ty*1024+j*256}")
        return r
    for r in reads(0) + reads(1): a(r)
    for g in range(32):
        nxt = reads(g + 2) if g + 2 < 32 else []
        if nxt and (g + 2) % 4 == 0:
            a("s_waitcnt lgkmcnt(0)\ns_barrier")
            stamp(a, 1 + (g + 2) // 4, 3)
        else:
            a(f"s_waitcnt lgkmcnt({5 if g < 31 else 0})")
        f, x = FR + 8 * (g % 3), XF + 4 * g
        if "nord" in EXP: nxt = []
        if "nomm" not in EXP: a(f"{M32} {vr(AK,16)}, {vr(f,4)}, {vr(x,4)}, {'0' if g == 0 else vr(AK,16)}")
        for r in nxt[0:3]: a(r)
        if "nomm" not in EXP: a(f"{M32} {vr(AV,16)}, {vr(x,4)}, {vr(f+4,4)}, {'0' if g == 0 else vr(AV,16)}")
        for r in nxt[3:5]: a(r)
        if g < 28: a.lines += defer[cuts[g]:cuts[g+1]]
    stamp(a, 2); stamp(a, 9, 3); stamp(a, 3, 4)
    a("s_setprio 3\ns_nop 9")
    for i in range(8): a(f"v_cvt_pk_bf16_f32 v{AK+i}, v{AK+2*i}, v{AK+2*i+1}")
    a(f"buffer_store_dwordx4 {vr(AK,4)}, v16, {WS}, s10 offen sc1")
    a(f"buffer_store_dwordx4 {vr(AK+4,4)}, v16, {WS}, s11 offen sc1")
    for i in range(8): a(f"v_cvt_pk_bf16_f32 v{AV+i}, v{AV+2*i}, v{AV+2*i+1}")
    a(f"buffer_store_dwordx4 {vr(AV,4)}, v17, {WS}, s12 offen sc1")
    a(f"buffer_store_dwordx4 {vr(AV+4,4)}, v17, {WS}, s12 offen offset:512 sc1")
    a(f"buffer_load_dword v{GO}, v228, s[52:55], 0 offen sc1\ns_barrier")
    stamp(a, 3); stamp(a, 10, 3)
    a(f"""
    v_add_u32 v6, s14, v{L16}
    v_add_u32 v7, s14, v{L4H}
    v_add_u32 v8, s15, v{L16}
    v_add_u32 v9, s15, v{L4H}
    v_add_u32 v10, s16, v{L16}
    v_add_u32 v11, s16, v{L4H}
    """)
    for i in range(16, 32): a(f"v_mov_b32 v{VS+i}, v229")
    a("s_waitcnt vmcnt(0)")
    all_set(a, late, GO, 228, "0", "s[52:55]")
    arrive(a, 0, 12)
    stamp(a, 4); stamp(a, 12, 3)
    a("s_barrier")
    stamp(a, 11, 3)
    order = [28, 29, 30, 31] + list(range(28))
    qrd = lambda n: [f"ds_read_b64_tr_b16 {vr(FQ[n%5]+2*j,2)}, v{WA[2]} offset:{order[n]*1024+j*256}" for j in range(2)]
    for n in range(4):
        for r in qrd(n): a(r)
    for n in range(32):
        if n == KFG: a(f"buffer_load_dword v12, v{KF2}, {WS}, s74 offen sc1")
        a(f"s_waitcnt lgkmcnt({min(6, 2*(31-n))})")
        a(f"{M32} {vr(AQ,16)}, {vr(FQ[n%5],4)}, {vr(XF+4*order[n],4)}, {'0' if n == 0 else vr(AQ,16)}")
        if n + 4 < 32:
            for r in qrd(n + 4): a(r)
        if 4 <= n < 20: a(f"v_mov_b32 v{VS+n-4}, v229")
    a("s_nop 11")
    for i in range(16): a(f"v_mul_f32 v{AQ+i}, s13, v{AQ+i}")
    for i in range(8): a(f"v_cvt_pk_bf16_f32 v{AQ+i}, v{AQ+2*i}, v{AQ+2*i+1}")
    a(f"""
    ds_write_b128 v18, {vr(AQ,4)}
    ds_write_b128 v18, {vr(AQ+4,4)} offset:4096
    s_waitcnt lgkmcnt(0)
    {mark(W_QW)}
    s_waitcnt vmcnt(0)
    """)
    all_set(a, late, 12, KF2, "s74")
    stamp(a, 5); stamp(a, 13, 3)
    att_loads()
    att_q()
    a(f"s_waitcnt lgkmcnt(0)\n{mark(W_QR)}\ns_setprio 2")
    stamp(a, 6); stamp(a, 14, 3)

    a.label("B_go")
    for j in range(4): a(f"{M32} {vr(ACC+16*j,16)}, {vr(Z4,4)}, {vr(Z4,4)}, 0")
    a(f"{M32} {vr(S+48,16)}, {vr(Z4,4)}, {vr(Z4,4)}, 0")
    a("s_add_u32 s70, s70, 4096\ns_add_u32 s71, s71, 3072\ns_mov_b32 s84, 3")
    qk = lambda j, st: f"{M32} {vr(S+16*j,16)}, {vr(KS+4*st,4)}, {vr(Q+4*j,4)}, 0"
    pv = lambda j, st, s: f"{SM} {vr(ACC+16*j,16)}, {vr(VS+8*st+4*s,4)}, {vr(S+16*j+8*s,8)}, v{IDX}"
    a("s_waitcnt vmcnt(9)"); a(qk(0, 0)); a(qk(1, 0))
    for i in range(4): a(f"v_mov_b32 v{Z4+i}, -1")
    a("s_nop 6")
    if STAMP: a("s_mov_b32 s21, 0")
    stamp(a, 7)
    wodma = lambda m: [f"s_add_u32 m0, s77, {m*1024}", f"s_add_u32 s85, s78, {m*16384}", f"buffer_load_dwordx4 v{WOV}, s[44:47], s85 offen lds"]
    xdma = ["s_mov_b32 m0, s79", "s_nop 0", f"buffer_load_dwordx4 v{XOV}, s[36:39], 0 offen lds"]
    def body(last, extras, waits):
        for m in range(4):
            for j in range(4):
                jp, mp = (j - 1) % 4, (m if j else (m - 1) % 4)
                ins = {}
                def put(p, x): ins.setdefault(p, []).extend(x if isinstance(x, list) else [x])
                if j == 1 and waits[m] is not None: put(1, f"s_waitcnt vmcnt({waits[m]})")
                put(1, pv(jp, mp, 0))
                put(6, pv(jp, mp, 1))
                if j == 0 and (not last or m == 0): put(8, ldv((m + 3) % 4, "s71", m*1024))
                if not (last and m == 3 and j >= 2): put(11, qk((j + 2) % 4, m if j < 2 else (m + 1) % 4))
                if j == 1 and not last: put(13, ldk(m, "s70", m*1024))
                if j == 2 and not last:
                    if m < 2: put(8, wodma(m))
                    if m == 2: put(8, ["s_cmp_eq_u32 s84, 1", "s_cbranch_scc1 B_x"] + wodma(2) + ["s_branch B_xd", "B_x:"] + xdma + ["B_xd:"])
                    if m == 3: put(8, ["s_cmp_le_u32 s84, s8", "s_cbranch_scc1 B_nocl"] + [f"buffer_store_dwordx4 {vr(Z4,4)}, v{L16}, {WS}, s{r} offen sc1" for r in (88, 89)]
                                   + ["s_mov_b32 s88, s4", "s_mov_b32 s89, s5", "B_nocl:"])
                if not last and m == 1 and j == 3: put(4, f"buffer_load_dword v{QA+1}, v{KFV}, {WS}, s74 offen sc1")
                if not last and m == 3 and j == 3: put(3, ["s_waitcnt vmcnt(7)", lambda: all_set(a, late, QA + 1, KFV, "s74")])
                for p, x in extras.get((m, j), []): put(p, x)
                for e in range(16):
                    for x in ins.get(e, []):
                        if callable(x): x()
                        else: a(x)
                    a(f"v_exp_f32 v{S+16*j+e}, v{S+16*j+e}")
    a(".p2align 6")
    a.label("B_loop")
    body(False, {(3, 1): [(14, ["s_add_u32 s77, s77, 3072", "s_add_u32 s78, s78, 49152"])],
                 (3, 2): [(14, ["s_add_u32 s70, s70, 4096", "s_add_u32 s71, s71, 4096", "s_sub_u32 s84, s84, 1"])],
                 (CDT, 0): [(3, ["s_cmp_lg_u32 s84, s83", "s_cbranch_scc1 B_keep", "s_setprio 0", "B_keep:"])],
                 (3, 3): [(8, ["s_cmp_lg_u32 s84, s82", "s_cbranch_scc1 B_nouf", lambda: arrive(a, 1, QA)]
                              + [f"s_load_dword s100, s[92:93], {i*128}" for i in range(12, 16)] + ["B_nouf:"]),
                          (14, "s_cmp_lg_u32 s84, 0")]}, [8, 9, 11, 12])
    a("s_cbranch_scc1 B_loop")
    stamp(a, 8)
    a("s_cmp_lt_u32 s30, 4\ns_cbranch_scc1 B_final")

    CA = 32
    ABUF, BBUF = [96, 160], [128, 64]
    a(f"""
    s_lshl_b32 s80, s91, 12
    s_add_u32 s92, s18, s80
    s_addc_u32 s93, s19, 0
    s_mov_b32 s94, 4096
    s_mov_b32 s95, 0x20000
    buffer_load_dword v{P0}, v{UFV}, {WS}, s87 offen sc1
    buffer_load_dword v{P1}, v{GFV}, {WS}, s86 offen sc1
    """)
    def lda(rr):
        b = ABUF[rr % 2]
        o = []
        if rr == 0:
            o.append(f"buffer_load_dword v{b}, v{A0}, s[92:95], 0 offen")
            for i in range(1, 4): o.append(f"v_add_u32 v{A0}, 4, v{A0}\nbuffer_load_dword v{b+i}, v{A0}, s[92:95], 0 offen")
        else:
            o.append(f"buffer_load_dwordx4 {vr(b,4)}, v{A64}, s[92:95], 0 offen offset:{64*(rr-1)}")
        for aa in range(1, 8):
            o.append(f"buffer_load_dwordx4 {vr(b+4*aa,4)}, v{A512}, s[92:95], 0 offen offset:{512*(aa-1)+64*rr}")
        return o
    ldb = lambda rr: [f"ds_read_b128 {vr(BBUF[rr%2]+4*bb,4)}, v{BA} offset:{64*rr+512*(7-bb)}" for bb in range(8)]
    udma = lambda rho, q: [f"s_add_u32 m0, s65, {rho*USZ}", "s_nop 0",
                           f"buffer_load_dwordx4 v{L16 if rho else U2}, {WS}, s13 offen offset:{q*1024} sc1 lds",
                           f"buffer_load_dwordx4 v{L16 if rho else U2}, {WS}, s13 offen offset:{q*1024+1024} sc1 lds"]
    wrh = lambda j: [f"ds_write_b128 v{PW16}, {vr(ACC+16*j,4)} offset:{j*PSL}", f"ds_write_b128 v{PW16}, {vr(ACC+16*j+4,4)} offset:{j*PSL+1024}",
                     f"ds_write_b32 v{PW4}, v{ACC+16*j+8} offset:{j*PSL+2048}"]
    LA0, LA1 = lda(0), lda(1)
    exh = {(0, 0): [(3, lambda: arrive(a, 2, QA))],
           (1, 1): [(3, [mark(W_LH), lambda: all_set(a, late, P0, UFV, "s87"), lambda: all_set(a, late, P1, GFV, "s86")]),
                    (8, udma(1, 0)), (13, udma(1, 2))],
           (1, 2): [(4, udma(0, 0)), (13, udma(0, 2))],
           (1, 3): [(4, f"buffer_load_dword v{G}, v{L4H}, {WS}, s14 offen sc1")],
           (3, 1): [(9 + i, LA1[i]) for i in range(4)],
           (3, 2): [(3 + i, wrh(0)[i]) for i in range(3)] + [(8 + i, LA1[4 + i]) for i in range(4)],
           (3, 3): [(0, LA0[0:4])] + [(3 + i, wrh(1)[i]) for i in range(3)] + [(7 + i, LA0[4 + i]) for i in range(7)]}
    body(True, exh, [13, 2, None, 9])
    a(f"""
    s_waitcnt vmcnt(19)
    s_mov_b64 exec, 1
    ds_write_b16 v{PV16}, v{VZ} offset:4094
    s_mov_b64 exec, -1
    {pv(3,3,0)}
    {pv(3,3,1)}
    s_setprio {CVP}
    """)
    stamp(a, 9)
    for x in ldb(0) + wrh(2): a(x)
    a("s_nop 0")
    for x in wrh(3): a(x)
    a(f"s_waitcnt lgkmcnt(0)\n{mark(W_PO)}")
    for rr in range(4):
        ab, bb_ = ABUF[rr % 2], BBUF[rr % 2]
        nb = ldb(rr + 1) if rr < 3 else []
        mm = lambda aa, b, c=None: f"{M16} {vr(CA+4*(aa+b),4)}, {vr(ab+4*aa,4)}, {vr(bb_+4*b,4)}, {c or vr(CA+4*(aa+b),4)}"
        a(f"s_waitcnt vmcnt({[0, 8, 8, 0][rr]}){' lgkmcnt(0)' if rr else ''}")
        if rr == 3:
            a(f"buffer_load_dword v{P0}, v{UFV}, {WS}, s17 offen sc1\nbuffer_load_dword v{P1}, v{CFV}, {WS}, s101 offen sc1")
        if rr == 0:
            a("s_cmp_lg_u32 s63, 0\ns_cbranch_scc1 CV_nodiag")
            for b in range(8): a(f"{M16} {vr(CA+4*b,4)}, {vr(DF,4)}, {vr(bb_+4*b,4)}, 0")
            for b in range(8): a(mm(0, b))
            a("s_branch CV_row1")
            a.label("CV_nodiag")
            for b in range(8): a(mm(0, b, "0"))
            a.label("CV_row1")
        cnt = 0
        na = lda(rr + 2) if rr < 2 else []
        for aa in range(8):
            for b in range(8 - aa):
                if rr == 0 and aa == 0: continue
                a(mm(aa, b))
                cnt += 1
                if cnt % 3 == 0 and nb: a(nb.pop(0))
            if na: a(na.pop(0))
    stamp(a, 11)
    XI, YP = 96, 128
    a(f"s_setprio {XP}")
    a("s_cmp_lg_u32 s63, 0\ns_cbranch_scc1 CV_odd")
    for odd in range(2):
        if odd: a.label("CV_odd")
        a("s_nop 4" if not odd else "s_nop 0")
        for n in range(4): a(f"ds_write_b128 v{PV16}, {vr(CA+16*(1-odd)+4*n,4)} offset:{n*1024}")
        a(f"s_waitcnt lgkmcnt(0)\n{mark(W_XCH)}")
        lds_wait(a, PTW, W_XCH, XI)
        for n in range(4): a(f"ds_read_b128 {vr(XI+4*n,4)}, v{PT16} offset:{n*1024}")
        for n in range(4):
            c = CA + 16*odd + 4*n
            a(f"s_waitcnt lgkmcnt({3-n})")
            a(f"v_pk_add_f32 {vr(c,2)}, {vr(c,2)}, {vr(XI+4*n,2)}\nv_pk_add_f32 {vr(c+2,2)}, {vr(c+2,2)}, {vr(XI+4*n+2,2)}")
            a(f"v_cvt_pk_bf16_f32 v{YP+2*n}, v{c}, v{c+1}\nv_cvt_pk_bf16_f32 v{YP+2*n+1}, v{c+2}, v{c+3}")
        if not odd: a("s_branch CV_st")
    a.label("CV_st")
    a("s_nop 0")
    for p in range(2):
        a(f"v_permlane16_swap_b32 v{YP+4*p}, v{YP+4*p+2}\nv_permlane16_swap_b32 v{YP+4*p+1}, v{YP+4*p+3}")
        a(f"buffer_store_dwordx4 {vr(YP+4*p,4)}, v{YST}, {WS}, s7 offen offset:{1024*p} sc1")
    a("s_waitcnt vmcnt(2)")
    all_set(a, late, P0, UFV, "s17"); all_set(a, late, P1, CFV, "s101")
    yload = [f"buffer_load_dwordx4 {vr(YA+4*q,4)}, v{YLD}, {WS}, s{15+q} offen sc1" for q in range(2)]
    if not YLATE:
        for x in yload: a(x)
    a(f"s_setprio {XP2}")
    stamp(a, 12)
    lds_wait(a, XW8, W_LH, 9)
    a(f"""
    v_xor_b32 v9, 16, v{XAD}
    v_xor_b32 v10, 64, v{XAD}
    v_xor_b32 v11, 80, v{XAD}
    ds_read_b64 {vr(XR,2)}, v{XAD}
    ds_read_b64 {vr(XR+2,2)}, v9
    ds_read_b64 {vr(XR+4,2)}, v10
    ds_read_b64 {vr(XR+6,2)}, v11
    v_sub_f32 v{G+1}, 1.0, v{G}
    ds_write_b32 v{XGA}, v{G} offset:2048
    """)
    c_wo()
    a(f"v_xor_b32 v9, 16, v{YSR}\nv_mov_b32 v{G+2}, v{G+1}\nv_mov_b32 v{G+3}, v{G+1}")
    for i in range(8):
        a(f"v_lshlrev_b32 v{XG+2*i}, 16, v{XR+i}\nv_and_b32 v{XG+2*i+1}, s6, v{XR+i}")
        a(f"v_pk_mul_f32 {vr(XG+2*i,2)}, {vr(XG+2*i,2)}, {vr(G+2,2)}")
    if YLATE:
        for x in yload: a(x)
    if OFIRST:
        a("s_setprio 0")
        lds_wait(a, XW4, W_OL, 10)
        a("s_setprio 3")
        stamp(a, 13)
        for x in oload: a(x)
    a(f"s_waitcnt vmcnt({8 if OFIRST else 0})")
    fresh(a, late, list(range(YA, YA+8)), yload, 10)
    a(f"""
    ds_write_b128 v{YSW}, {vr(YA,4)}
    ds_write_b128 v{YSW}, {vr(YA+4,4)} offset:1024
    s_waitcnt lgkmcnt(0)
    {mark(W_YS)}
    """)
    stamp(a, 10)
    if STAMP: a("v_writelane_b32 v255, s21, 41")
    lds_wait(a, XW4, W_YS, 10)
    for b in (1, 0):
        for sg in range(2): a(f"ds_read_b128 {vr(YF+8*b+4*sg,4)}, v{[YSR, 9][sg]} offset:{(1-b)*2*PRIV}")
    for b in (1, 0):
        a(f"s_waitcnt lgkmcnt({2*b})")
        a(f"{M32} {vr(YA+16*b,16)}, {vr(YF+8*b,4)}, {vr(PM,4)}, 0")
        a(f"{M32} {vr(YA+16*b,16)}, {vr(YF+8*b+4,4)}, {vr(PM+4,4)}, {vr(YA+16*b,16)}")
    if OFIRST: a("s_nop 9")
    else:
        a("s_setprio 0")
        lds_wait(a, XW4, W_OL if HOL else W_PR, 10)
        a("s_setprio 3")
        stamp(a, 13)
        for x in oload: a(x)
    for i in range(4): a(f"v_pk_mul_f32 {vr(YA+16+2*i,2)}, {vr(YA+16+2*i,2)}, {vr(XG+8+2*i,2)}")
    a(f"ds_write_b128 v{XYA}, {vr(YA+16,4)}\nds_write_b128 v{XYA}, {vr(YA+20,4)} offset:1024")
    if OFIRST: a("s_nop 0")
    for i in range(4): a(f"v_pk_mul_f32 {vr(YA+2*i,2)}, {vr(YA+2*i,2)}, {vr(XG+2*i,2)}")
    a("s_branch C_mm")

    a.label("B_final")
    rdp = lambda dst, a16, off: [f"ds_read_b128 {vr(dst,4)}, v{a16} offset:{off}", f"ds_read_b128 {vr(dst+4,4)}, v{a16} offset:{off+1024}",
                                 f"ds_read_b32 v{dst+8}, v{a16+1} offset:{off+2048}"]
    wrp = lambda j: [f"ds_write_b128 v8, {vr(ACC+16*j,4)} offset:{j*PSL}", f"ds_write_b128 v8, {vr(ACC+16*j+4,4)} offset:{j*PSL+1024}",
                     f"ds_write_b32 v9, v{ACC+16*j+8} offset:{j*PSL+2048}"]
    PA, PB = [208, 176, 160, 186], [96, 112]
    r0 = rdp(PA[0], 6, 0); r1 = rdp(PA[1], 6, 8*PSL); r2 = rdp(PA[2], 6, PSL); r3 = rdp(PA[3], 6, 9*PSL)
    w0, w1 = wrp(0), wrp(1)
    def add9(d, s_):
        return [f"v_pk_add_f32 {vr(d+2*i,2)}, {vr(d+2*i,2)}, {vr(s_+2*i,2)}" for i in range(4)] + [f"v_add_f32 v{d+8}, v{d+8}, v{s_+8}"]
    ex = {(1, 1): [(3, mark(W_LC))],
          (2, 2): [(8, f"buffer_load_dword v13, v{CFV}, {WS}, s101 offen sc1")],
          (3, 0): [(9, [lambda: lds_wait(a, XW4, W_PO, 12), "s_setprio 3"]), (12, r0[0]), (13, r0[1]), (14, r0[2])],
          (3, 1): [(3, r1[0]), (4, r1[1]), (8, r1[2]), (9, r2[0]), (13, r2[1]), (14, r2[2])],
          (3, 2): [(2, r3[0]), (3, w0[0]), (4, r3[1]), (8, w0[1]), (9, r3[2]), (10, w0[2])],
          (3, 3): [(3, w1[0]), (4, w1[1]), (5, w1[2]), (9, ["s_waitcnt lgkmcnt(0)", mark(W_PY)]),
                   (12, [lambda: lds_wait(a, XW4, W_PY, 12)] + rdp(PB[0], 10, 0)), (13, rdp(PB[1], 10, PSL))]}
    body(True, ex, [11, 5, 2, 0])
    stamp(a, 9)
    O2, O3 = ACC + 32, ACC + 48
    for x in add9(PA[0], PA[1])[:2]: a(x)
    a(f"{pv(3,3,0)}\n{pv(3,3,1)}")
    for x in add9(PA[0], PA[1])[2:] + add9(O2, PA[0]) + add9(PA[2], PA[3]): a(x)
    a("s_waitcnt lgkmcnt(0)")
    a(mark(W_PR))
    for x in add9(O2, PB[0]) + add9(PA[2], PB[1]) + add9(O3, PA[2]): a(x)
    a(f"v_mov_b32 v14, 0\nv_mov_b32 v15, 0")
    for o in (O2, O3):
        for i in range(4): a(f"v_pk_fma_f32 v[14:15], {vr(o+2*i,2)}, 0, v[14:15] op_sel_hi:[1,0,1]")
    a(f"""
    v_add_f32 v14, v14, v15
    v_min_f32 v15, v{O2+8}, v{O3+8}
    v_add_f32 v14, v14, v{O2+8}
    v_add_f32 v14, v14, v{O3+8}
    v_cmp_lt_f32 vcc, {f32(2.0**-60)}, v15
    s_mov_b64 s[92:93], vcc
    v_cmp_gt_f32 vcc, {f32(2.0**60)}, v14
    s_and_b64 s[92:93], s[92:93], vcc
    s_cmp_eq_u64 s[92:93], exec
    s_cbranch_scc0 B_slow
    """)
    a.label("B_fin")
    a(f"v_rcp_f32 v14, v{O2+8}\nv_rcp_f32 v12, v{O3+8}\ns_nop 0")
    for jj, (o, r) in enumerate(((O2, 14), (O3, 12))):
        for i in range(4): a(f"v_pk_mul_f32 {vr(o+2*i,2)}, {vr(o+2*i,2)}, {vr(r,2)} op_sel_hi:[1,0]")
        for i in range(4): a(f"v_cvt_pk_bf16_f32 v{208+4*jj+i}, v{o+2*i}, v{o+2*i+1}")
        a(f"buffer_store_dwordx4 {vr(208+4*jj,4)}, v{L16}, {WS}, s{86+jj} offen sc1")
    stamp(a, 10)
    all_set(a, late, 13, CFV, "s101")
    if not OLATE:
        for x in oload: a(x)
    stamp(a, 11)
    lds_wait(a, XW8, W_LH, 12)
    c_wo()
    lds_wait(a, XW4, W_PR, 12)
    if HOL: a(mark(W_OL))
    if OLATE:
        for x in oload: a(x)
    stamp(a, 13)

    a.label("C_mm")
    for j in range(8):
        a(f"s_waitcnt vmcnt({7-j})")
        fresh(a, late, list(range(OB+4*j, OB+4*j+4)), oload[j:], 6, 7 - j)
        for ai in (1, 0):
            a(f"{M32} {vr(AC+16*ai,16)}, {vr(WF+4*(8*ai+j),4)}, {vr(OB+4*j,4)}, {'0' if j == 0 else vr(AC+16*ai,16)}")
    stamp(a, 14)
    a("s_nop 10")
    for r in (2, 3, 1):
        a(f"ds_write_b128 v{RBA+r}, {vr(AC+8*r,4)}\nds_write_b128 v{RBA+r}, {vr(AC+8*r+4,4)} offset:1024")
    a(f"s_cmp_lt_u32 s30, 4\ns_waitcnt lgkmcnt(0)\ns_barrier\ns_cbranch_scc0 C_havexy")
    a(f"ds_read_b128 {vr(YA,4)}, v{XYA}\nds_read_b128 {vr(YA+4,4)}, v{XYA} offset:1024\nds_read_b32 v{G}, v{XGA} offset:2048")
    a.label("C_havexy")
    for r in range(6): a(f"ds_read_b128 {vr(RD+4*r,4)}, v{RBA} offset:{r*1024}")
    for r in range(3):
        a(f"s_waitcnt lgkmcnt({4-2*r})")
        for i in range(4): a(f"v_pk_add_f32 {vr(AC+2*i,2)}, {vr(AC+2*i,2)}, {vr(RD+8*r+2*i,2)}")
    for i in range(4): a(f"v_pk_fma_f32 {vr(AC+2*i,2)}, {vr(AC+2*i,2)}, {vr(G,2)}, {vr(YA+2*i,2)} op_sel_hi:[1,0,1]")
    for i in range(4): a(f"v_cvt_pk_bf16_f32 v{PK4+i}, v{AC+2*i}, v{AC+2*i+1}")
    a(f"""
    s_nop 0
    v_permlane32_swap_b32 v{PK4}, v{PK4+2}
    v_permlane32_swap_b32 v{PK4+1}, v{PK4+3}
    buffer_store_dwordx4 {vr(PK4,4)}, v{OUTV}, s[40:43], s69 offen
    """)
    if STAMP: a("s_waitcnt vmcnt(0)")
    stamp(a, 15)
    if STAMP: a("v_writelane_b32 v255, s21, 40")
    stamp_flush(a)
    a("s_endpgm")

    a.label("B_slow")
    a(f"""
    s_add_u32 s70, s66, {KW}
    s_add_u32 s71, s66, {VW}
    s_mov_b32 s84, 0
    v_mov_b32 v208, 0xff800000
    v_mov_b32 v209, 0xff800000
    """)
    a.label("B_slow1")
    a(f"""
    s_add_u32 s85, s70, s84
    {ldk(0, "s85", 0)}
    s_waitcnt vmcnt(0)
    {M32} {vr(S,16)}, {vr(KS,4)}, {vr(Q+8,4)}, 0
    {M32} {vr(S+16,16)}, {vr(KS,4)}, {vr(Q+12,4)}, 0
    s_nop 11
    """)
    for jj in range(2):
        for i in range(8): a(f"v_max3_f32 v{208+jj}, v{S+16*jj+2*i}, v{S+16*jj+2*i+1}, v{208+jj}")
    a("""
    s_add_u32 s84, s84, 1024
    s_cmp_lt_u32 s84, 0x10000
    s_cbranch_scc1 B_slow1
    v_mov_b32 v210, v208
    v_mov_b32 v211, v209
    s_nop 1
    v_permlane32_swap_b32 v208, v210
    v_permlane32_swap_b32 v209, v211
    v_max_f32 v208, v208, v210
    v_max_f32 v209, v209, v211
    s_mov_b32 s84, 0
    """)
    for jj in range(2):
        for i in range(16): a(f"v_sub_f32 v{S+32+16*jj+i}, 0, v{208+jj}\nv_mov_b32 v{ACC+32+16*jj+i}, 0")
    for i in range(8): a(f"v_mov_b32 v{VS+i}, 0x3f803f80")
    a.label("B_slow2")
    a(f"s_add_u32 s85, s70, s84\ns_add_u32 s89, s71, s84\n{ldk(0, 's85', 0)}")
    for x in ldv(0, "s89", 0): a(x)
    a(f"""
    s_waitcnt vmcnt(0)
    {M32} {vr(S,16)}, {vr(KS,4)}, {vr(Q+8,4)}, {vr(S+32,16)}
    {M32} {vr(S+16,16)}, {vr(KS,4)}, {vr(Q+12,4)}, {vr(S+48,16)}
    s_nop 11
    """)
    for i in range(32): a(f"v_exp_f32 v{S+i}, v{S+i}")
    a("s_nop 1")
    for jj in range(2):
        for s in range(2):
            a(f"{SM} {vr(ACC+32+16*jj,16)}, {vr(VS+4*s,4)}, {vr(S+16*jj+8*s,8)}, v{IDX}")
    a("""
    s_add_u32 s84, s84, 1024
    s_cmp_lt_u32 s84, 0x10000
    s_cbranch_scc1 B_slow2
    s_nop 11
    s_branch B_fin
    """)
    a.lines += late.lines
    a.label("K_end")
    a("s_endpgm")
    return a

def build():
    ref = open(f"cdna_kernels/{NAME}.s.ref").read().split("\n")
    head = [l for l in ref if l.startswith(";") and "@launch" not in l]
    t = kernel().text()
    bad = check(t)
    out = "\n".join(head) + f"\n; @launch grid=(256,1,1) block=(512,1,1) lds={LDS}\n"
    out += f'.amdgcn_target "amdgcn-amd-amdhsa--gfx950"\n.text\n.globl {NAME}_kernel\n.p2align 8\n.type {NAME}_kernel,@function\n' + t
    out += f""".section .rodata,"a"
.p2align 6
.amdhsa_kernel {NAME}_kernel
  .amdhsa_next_free_vgpr 256
  .amdhsa_next_free_sgpr 102
  .amdhsa_accum_offset 256
  .amdhsa_group_segment_fixed_size 0
  .amdhsa_kernarg_size 104
  .amdhsa_user_sgpr_count 2
  .amdhsa_user_sgpr_kernarg_segment_ptr 1
  .amdhsa_system_sgpr_workgroup_id_x 1
  .amdhsa_float_denorm_mode_32 3
.end_amdhsa_kernel
"""
    return out, bad

if __name__ == "__main__":
    out, bad = build()
    for b in bad: print("HAZARD", b)
    path = sys.argv[1] if len(sys.argv) > 1 else "fused.s"
    open(path, "w").write(out)
    print("wrote", path, len(out), "bytes;", len(bad), "hazards; lds", LDS)
```

```python
import os, sys, struct
from asmlib import Asm, vr, sr, check

NAME = "gated_mix__mha_block__ssm_conv_h3__prompt"
KW, VW, UW, YW, OW, GW = 0x200000, 0x400000, 0x600000, 0x840000, 0xA80000, 0xE00000
CST = 4352
FW = 0xE10000
FS = 256
QF, UF, CF = FW, FW + 4, FW + 8
WS_BYTES = 0xE60000
M32 = "v_mfma_f32_32x32x16_bf16"
M16 = "v_mfma_f32_16x16x32_bf16"
SM = "v_smfmac_f32_32x32x32_bf16"
LOG2E = 1.4426950408889634
STAMP = int(os.environ.get("STAMP", "0"))
env = lambda k, d: type(d)(os.environ.get(k, d))
NS = env("NS", 3)
EXP = env("EXP", "")
STG = env("STG", 4)
STM = env("STM", 8 // STG)
WQ1 = env("WQ1", 4)
KFG = env("KFG", 14)
CDROP, CDT = env("CDROP", 2), env("CDT", 0)
XP, XP2 = env("XP", 3), env("XP2", 3)
OFIRST = env("OFIRST", 0)
YSM = env("YSM", 1)
CVR = env("CVR", 3)
F1 = env("F1", 1)
HOL = env("HOL", 1)
CVP = env("CVP", 0)
HS0 = env("HS0", 150)
CS0 = env("CS0", 150)
OLATE = env("OLATE", 1)
YLATE = env("YLATE", 1)
TOUCH = env("TOUCH", 2)
TW = 0xF00000
SPIN = 40000

SLOT = 24576
L_X = 65536
L_PRIV = 73728
USZ = 4576
PRIV = 2 * USZ
PSL = 2176
L_OLD = L_PRIV + 4 * PRIV
L_YNG = L_OLD + 16 * PSL
L_XF = L_YNG + 8 * PSL
L_WQ = L_OLD
L_QX = L_YNG
TB = L_QX + 8192
L_RB = L_OLD
LDS = L_XF + 256
W_XCH, W_QW, W_KV, W_TB, W_PO, W_QR, W_PR, W_CNT, W_PY, W_LH, W_LC, W_YS, W_OL = 0, 16, 32, 48, 64, 80, 96, 128, 144, 160, 176, 192, 208

def f32(x):
    return "0x%08x" % struct.unpack("<I", struct.pack("<f", x))[0]

def srd(a, d, b, nbytes):
    a(f"s_mov_b32 s{d}, s{b}\ns_mov_b32 s{d+1}, s{b+1}\ns_mov_b32 s{d+2}, {hex(nbytes)}\ns_mov_b32 s{d+3}, 0x20000")

def stamp(a, i, mode=1):
    if not STAMP or (STAMP != mode and i not in (0, 15)): return
    a(f"""
    s_memtime s[96:97]
    s_memrealtime s[98:99]
    s_waitcnt lgkmcnt(0)
    v_writelane_b32 v255, s96, {2*i}
    v_writelane_b32 v255, s98, {2*i+1}
    """)
def stamp_flush(a):
    if not STAMP: return
    a(f"""
    s_lshl_b32 s96, s2, 3
    s_add_u32 s96, s96, s30
    s_lshl_b32 s96, s96, 8
    s_add_u32 s96, s96, {TW}
    s_mov_b32 s34, 0x1400000
    v_lshlrev_b32 v6, 2, v0
    buffer_store_dword v255, v6, s[32:35], s96 offen
    """)

WS = "s[32:35]"
IDX, L16, VOF, L4H = 2, 3, 4, 5
KF2, VZ, WOA, RBA, XYA, XGA, OUTV = 222, 223, 232, 233, 237, 238, 239
CFV, KFV, MYW, XW4, WOV, XOV, QA, Z4, XW, ONE, XW8 = 240, 241, 242, 243, 244, 245, 246, 248, 252, 253, 254
_uid = [0]
def uid(p):
    _uid[0] += 1
    return f"{p}{_uid[0]}"

def poll(a, voff, soff, tmp, srd_=WS):
    L = uid("POLL")
    a(f"s_mov_b32 s90, {SPIN}")
    a.label(L)
    a(f"""
    buffer_load_dword v{tmp}, v{voff}, {srd_}, {soff} offen sc1
    s_waitcnt vmcnt(0)
    v_cmp_eq_u32 vcc, 1, v{tmp}
    s_sub_u32 s90, s90, 1
    s_cbranch_scc1 {L}_out
    s_cmp_eq_u64 vcc, exec
    s_cbranch_scc0 {L}
    """)
    a.label(f"{L}_out")

def all_set(a, late, val, voff, soff, srd_=WS):
    L = uid("AS")
    a(f"v_cmp_eq_u32 vcc, 1, v{val}\ns_nop 0\ns_cmp_eq_u64 vcc, exec\ns_cbranch_scc0 {L}")
    a.label(f"{L}_ok")
    late.label(L)
    poll(late, voff, soff, val, srd_)
    late(f"s_branch {L}_ok")

def lds_wait(a, vaddr, off, tmp):
    L = uid("LW")
    a("s_mov_b32 s90, 0x400000")
    a.label(L)
    a(f"""
    ds_read_b32 v{tmp}, v{vaddr} offset:{off}
    s_waitcnt lgkmcnt(0)
    v_cmp_eq_u32 vcc, 1, v{tmp}
    s_sub_u32 s90, s90, 1
    s_cbranch_scc1 {L}_out
    s_cmp_eq_u64 vcc, exec
    s_cbranch_scc0 {L}
    """)
    a.label(f"{L}_out")

mark = lambda off: f"ds_write_b32 v{MYW}, v{ONE} offset:{off}"

def arrive(a, k, tmp, n=4):
    L = uid("AR")
    a(f"""
    s_mov_b64 exec, 1
    ds_add_rtn_u32 v{tmp}, v{XW}, v{ONE} offset:{W_CNT+4*k}
    s_waitcnt lgkmcnt(0)
    v_cmp_eq_u32 vcc, {n-1}, v{tmp}
    s_nop 4
    s_cbranch_vccz {L}
    buffer_store_dword v{ONE}, v{VZ}, {WS}, s62 offen offset:{4*k} sc1
    """)
    a.label(L)
    a("s_mov_b64 exec, -1")

def fresh(a, late, regs, reload, tmp, keep=0):
    L = uid("FR")
    chk = [f"v_max3_u32 v{tmp}, v{regs[0]}, v{regs[1]}, v{regs[2]}"]
    r = list(regs[3:])
    while len(r) >= 2: chk.append(f"v_max3_u32 v{tmp}, v{r.pop(0)}, v{r.pop(0)}, v{tmp}")
    if r: chk.append(f"v_max_u32 v{tmp}, v{r[0]}, v{tmp}")
    chk += [f"v_cmp_eq_u32 vcc, -1, v{tmp}", "s_nop 0", "s_cmp_eq_u64 vcc, 0"]
    a("\n".join(chk)); a(f"s_cbranch_scc0 {L}")
    a.label(f"{L}_ok")
    late.label(L)
    late(f"s_mov_b32 s90, {SPIN}")
    late.label(f"{L}_l")
    if STAMP: late("s_add_u32 s21, s21, 1")
    late("\n".join(reload) + f"\ns_waitcnt vmcnt({keep})\n" + "\n".join(chk))
    late(f"s_cbranch_scc1 {L}_ok\ns_sub_u32 s90, s90, 1\ns_cbranch_scc0 {L}_l\ns_branch {L}_ok")

def lines(t):
    return [l.strip() for l in t.strip().split("\n") if l.strip()]

def kernel():
    a = Asm(); late = Asm()
    a.label(f"{NAME}_kernel")
    a(f"""
    s_cmp_ge_u32 s2, 256
    s_cbranch_scc1 K_end
    """)
    if STAMP == 4: a("v_mov_b32 v255, 0"); stamp(a, 0)
    if TOUCH == 2:
        a("""
        v_lshlrev_b32 v221, 7, v0
        v_min_u32 v221, K_end-A_pc, v221
        s_getpc_b64 s[80:81]
        A_pc:
        global_load_dword v221, v221, s[80:81]
        """)
    a(f"""
    s_load_dwordx8 s[4:11], s[0:1], 0
    s_load_dwordx16 s[12:27], s[0:1], 32
    s_load_dwordx2 s[28:29], s[0:1], 96
    v_lshrrev_b32 v1, 6, v0
    v_and_b32 v0, 63, v0
    s_and_b32 s31, s2, 7
    v_readfirstlane_b32 s30, v1
    s_lshr_b32 s56, s2, 3
    s_lshr_b32 s57, s31, 1
    s_lshl_b32 s57, s57, 2
    s_lshr_b32 s59, s56, 3
    s_add_u32 s57, s57, s59
    s_and_b32 s58, s31, 1
    s_lshl_b32 s58, s58, 3
    s_and_b32 s60, s56, 7
    s_add_u32 s58, s58, s60
    """)
    if STAMP == 4: stamp(a, 1, 4)
    elif STAMP: a("v_mov_b32 v255, 0"); stamp(a, 0)
    a("s_cmp_lt_u32 s30, 4\ns_cbranch_scc1 A_compute")

    Q, ACC, S, KS, VS = 16, 32, 96, 160, 176
    WF, OB, AC, YA, YF, XR, RD, PK4, XG = 16, 80, 112, 144, 176, 192, 80, 104, 112
    G = 208
    def common_setup(a, t0, t1, t2):
        a(f"""
        s_and_b32 s63, s30, 1
        s_lshr_b32 s64, s30, 1
        s_lshl_b32 s61, s58, 1
        s_add_u32 s61, s61, s63
        s_lshl_b32 s62, s2, 8
        s_add_u32 s62, s62, {FW}
        s_lshl_b32 s66, s61, 16
        s_lshl_b32 s67, s63, 12
        s_add_u32 s67, s67, {L_QX}
        s_cmp_eq_u32 s64, 0
        s_cselect_b32 s68, 2048, 0
        s_xor_b32 s69, s68, 2048
        s_add_u32 s68, s68, s67
        s_add_u32 s69, s69, s67
        v_lshlrev_b32 v{L16}, 4, v0
        v_add_u32 v{QA}, s68, v{L16}
        v_add_u32 v{QA+1}, s69, v{L16}
        s_lshl_b32 s70, s64, 14
        s_add_u32 s70, s70, s66
        s_add_u32 s71, s70, {VW}
        s_add_u32 s70, s70, {KW}
        s_mov_b32 s72, 0xffff
        s_mov_b32 s73, 0xffff
        s_lshl_b32 s74, s60, 3
        s_lshr_b32 s75, s58, 3
        s_add_u32 s74, s74, s75
        s_lshl_b32 s75, s64, 1
        s_add_u32 s74, s74, s75
        s_lshl_b32 s74, s74, 8
        s_add_u32 s74, s74, {QF}
        s_lshl_b32 s75, s31, 2
        s_add_u32 s75, s75, s59
        s_mov_b32 s76, s60
        s_lshl_b32 s77, s63, 15
        s_lshl_b32 s78, s64, 13
        s_add_u32 s77, s77, s78
        s_lshl_b32 s78, s64, 17
        s_lshl_b32 s85, s76, 7
        s_add_u32 s78, s78, s85
        s_lshl_b32 s79, s63, 6
        s_add_u32 s78, s78, s79
        s_lshl_b32 s79, s30, 10
        s_add_u32 s79, s79, {L_X}
        v_and_b32 v{t0}, 31, v0
        v_lshlrev_b32 v{L4H}, 2, v{t0}
        v_lshrrev_b32 v{t1}, 5, v0
        v_lshlrev_b32 v{OUTV}, 10, v{t0}
        v_lshl_add_u32 v{OUTV}, v{t1}, 4, v{OUTV}
        v_and_b32 v{t0}, 15, v0
        v_lshlrev_b32 v{t0}, 4, v{t0}
        v_lshl_add_u32 v{VOF}, v{t1}, 8, v{t0}
        v_mov_b32 v{IDX}, 0xdddd
        v_and_b32 v{t0}, 3, v0
        v_lshlrev_b32 v{XW4}, 2, v{t0}
        v_add_u32 v{XW4}, {L_XF}, v{XW4}
        v_bfe_u32 v{t2}, v0, 2, 2
        v_lshlrev_b32 v{KFV}, 14, v{t0}
        v_and_b32 v{KF2}, 0x4000, v{KFV}
        v_lshl_add_u32 v{t2}, v{t1}, 2, v{t2}
        v_lshlrev_b32 v{t2}, 6, v{t2}
        v_lshl_add_u32 v{t2}, v{t0}, 3, v{t2}
        s_and_b32 s80, s64, 1
        v_bfe_u32 v{WOA}, v0, 4, 1
        v_xor_b32 v{WOA}, s80, v{WOA}
        v_lshl_add_u32 v{t2}, v{WOA}, 5, v{t2}
        s_lshr_b32 s80, s64, 1
        s_lshl_b32 s80, s80, 15
        s_lshl_b32 s81, s64, 13
        s_add_u32 s80, s80, s81
        s_and_b32 s82, s76, 1
        s_lshl_b32 s82, s82, 12
        s_add_u32 s80, s80, s82
        v_add_u32 v{WOA}, s80, v{t2}
        v_lshrrev_b32 v{t2}, 2, v0
        v_lshlrev_b32 v{t2}, 10, v{t2}
        v_lshl_add_u32 v{WOV}, v{t0}, 4, v{t2}
        s_lshl_b32 s83, s75, 1
        s_add_u32 s83, s83, s63
        s_lshl_b32 s83, s83, 15
        s_add_u32 s81, s81, s83
        s_add_u32 s81, s81, {OW}
        s_add_u32 s67, s81, s82
        s_xor_b32 s82, s82, 4096
        s_add_u32 s68, s81, s82
        s_add_u32 s69, s83, s85
        s_lshl_b32 s80, s64, 5
        s_add_u32 s69, s69, s80
        s_lshl_b32 s80, s75, 6
        s_lshl_b32 s81, s30, 3
        s_add_u32 s80, s80, s81
        v_lshrrev_b32 v{t2}, 3, v0
        v_add_u32 v{t2}, s80, v{t2}
        v_lshlrev_b32 v{t2}, 10, v{t2}
        v_lshrrev_b32 v{t1}, 4, v0
        s_lshl_b32 s81, s63, 2
        v_xor_b32 v{t1}, s81, v{t1}
        v_and_b32 v{t0}, 7, v0
        v_xor_b32 v{t1}, v{t1}, v{t0}
        v_lshl_add_u32 v{t2}, v{t1}, 4, v{t2}
        v_add_u32 v{XOV}, s85, v{t2}
        v_lshlrev_b32 v{XW8}, 2, v{t0}
        v_add_u32 v{XW8}, {L_XF}, v{XW8}
        v_bfe_u32 v{t1}, v0, 3, 1
        v_lshlrev_b32 v{t0}, 11, v{t0}
        v_lshl_add_u32 v{CFV}, v{t1}, 8, v{t0}
        s_lshr_b32 s80, s75, 1
        s_and_b32 s84, s80, 3
        s_lshl_b32 s84, s84, 6
        s_lshr_b32 s80, s80, 2
        s_lshl_b32 s80, s80, 1
        s_add_u32 s80, s80, s84
        s_lshl_b32 s80, s80, 8
        s_add_u32 s101, s80, {CF}
        s_add_u32 s81, s81, s64
        """)
        for r in range(4):
            a(f"s_xor_b32 s80, s81, {r}\ns_mul_i32 s80, s80, 6144\ns_add_u32 s80, s80, {L_RB+max(r-1,0)*2048}\nv_add_u32 v{RBA+r}, s80, v{L16}")
        a(f"""
        s_and_b32 s84, s30, 3
        s_mul_i32 s65, s84, {PRIV}
        s_add_u32 s65, s65, {L_PRIV}
        s_add_u32 s80, s65, 4096
        v_add_u32 v{XYA}, s80, v{L16}
        v_add_u32 v{XGA}, s80, v{L4H}
        s_lshl_b32 s80, s84, 2
        s_add_u32 s80, s80, {L_XF}
        v_mov_b32 v{MYW}, s80
        v_mov_b32 v{XW}, {L_XF}
        v_mov_b32 v{ONE}, 1
        v_mov_b32 v{VZ}, 0
        """)
        for i in range(4): a(f"v_mov_b32 v{Z4+i}, 0")
        srd(a, 44, 8, 0x80000)
    ones = lambda t: lines(f"v_and_b32 v{t}, 27, v0\nv_cmp_eq_u32 vcc, 16, v{t}\nv_mov_b32 v{t}, 0x3f803f80\ns_nop 0\nv_cndmask_b32 v{t}, 0, v{t}, vcc")
    ldk = lambda st, so, off: f"buffer_load_dwordx4 {vr(KS+4*st,4)}, v{L16}, {WS}, {so} offen offset:{off} sc1"
    def ldv(st, so, off):
        return ["s_mov_b64 exec, s[72:73]",
                f"buffer_load_dwordx4 {vr(VS+8*st,4)}, v{VOF}, {WS}, {so} offen offset:{off} sc1",
                f"buffer_load_dwordx4 {vr(VS+8*st+4,4)}, v{VOF}, {WS}, {so} offen offset:{off+512} sc1",
                "s_mov_b64 exec, -1"]
    def att_q():
        lds_wait(a, XW4, W_QW, Q)
        for j in range(4): a(f"ds_read_b128 {vr(Q+4*j,4)}, v{QA+j//2} offset:{(j%2)*1024}")
    def att_loads():
        a(ldk(0, "s70", 0))
        for m in range(3):
            for x in ldv(m, "s71", m*1024): a(x)
            a(ldk(m+1, "s70", (m+1)*1024))
    def c_wo():
        a(f"v_xor_b32 v6, 4096, v{WOA}\nv_xor_b32 v7, 0x8000, v{WOA}\nv_xor_b32 v8, 0x9000, v{WOA}")
        for ai in range(2):
            for j in range(8):
                for jj in range(2):
                    a(f"ds_read_b64_tr_b16 {vr(WF+4*(8*ai+j)+2*jj,2)}, v{[WOA,6,7,8][2*ai+j//4]} offset:{(j%4)*1024+jj*512}")
                if j % 4 == 3 and 8*ai+j < 15: a("s_waitcnt lgkmcnt(4)")
    oload = [f"buffer_load_dwordx4 {vr(OB+4*j,4)}, v{L16}, {WS}, s{67+j//4} offen offset:{(j%4)*1024} sc1" for j in range(8)]

    XV, WV = 16, 20
    a(f"""
    s_setprio 1
    s_sub_u32 s84, s30, 4
    s_lshl_b32 s80, s57, 7
    s_lshl_b32 s81, s84, 5
    s_add_u32 s80, s80, s81
    v_lshrrev_b32 v6, 3, v0
    v_add_u32 v6, s80, v6
    v_lshlrev_b32 v6, 10, v6
    v_and_b32 v7, 7, v0
    v_lshrrev_b32 v8, 4, v0
    v_xor_b32 v9, v7, v8
    v_lshl_add_u32 v{XV}, v9, 4, v6
    v_xor_b32 v9, 4, v9
    v_lshl_add_u32 v{XV+1}, v9, 4, v6
    v_add_u32 v{XV+1}, 7168, v{XV+1}
    v_add_u32 v{XV+2}, {2*7168}, v{XV}
    v_add_u32 v{XV+3}, {2*7168}, v{XV+1}
    s_lshl_b32 s81, s84, 4
    v_lshrrev_b32 v6, 2, v0
    v_add_u32 v6, s81, v6
    v_mul_u32_u24 v6, 3072, v6
    v_and_b32 v7, 3, v0
    v_lshl_add_u32 v6, v7, 4, v6
    s_lshl_b32 s81, s58, 6
    v_add_u32 v{WV}, s81, v6
    s_lshl_b32 s92, s84, 12
    s_lshl_b32 s93, s84, 11
    s_add_u32 s93, s93, {16384-1024}
    s_lshl_b32 s94, s59, 1
    s_add_u32 s94, s94, s60
    {"s_mov_b32 s94, 0" if "nostag" in EXP else ""}
    {"s_add_u32 s94, s59, s60" if STG < 8 else ""}
    {f"s_and_b32 s94, s94, {STG-1}" if STG < 8 else ""}
    {f"s_mul_i32 s94, s94, {STM}" if STG < 8 else ""}
    {"v_and_b32 v20, 0xfff0, v16" if "wl2" in EXP else ""}
    {"v_and_b32 v16, 0xfff0, v16" if "xl2" in EXP else ""}
    {"v_and_b32 v17, 0xfff0, v17" if "xl2" in EXP else ""}
    {"v_and_b32 v18, 0xfff0, v18" if "xl2" in EXP else ""}
    {"v_and_b32 v19, 0xfff0, v19" if "xl2" in EXP else ""}
    s_waitcnt lgkmcnt(0)
    """)
    srd(a, 36, 4, 0x200000); srd(a, 40, 6, 0x180000)
    stamp(a, 1, 3)
    def dma(st):
        base = (st % NS) * SLOT
        a(f"s_add_u32 s95, s94, {st}\ns_and_b32 s95, s95, 7\ns_lshl_b32 s100, s95, 7\ns_add_u32 m0, s92, {base}\ns_mul_i32 s95, s95, 196608")
        for j in range(4): a(f"buffer_load_dwordx4 v{XV+j}, s[36:39], s100 offen offset:{j*1024} lds")
        a(f"s_add_u32 m0, s93, {base}\ns_nop 0")
        for j in (1, 2): a(f"buffer_load_dwordx4 v{WV}, s[40:43], s95 offen offset:{j*1024} lds")
        stamp(a, 2 + st, 3)
    dma(0); dma(1)
    issued = 2
    a(f"v_lshlrev_b32 v32, 2, v0\nv_add_u32 v32, {L_XF}, v32\nv_mov_b32 v33, 0\nds_write_b32 v32, v33")
    main = a; a = Asm()
    srd(a, 32, 28, WS_BYTES); srd(a, 52, 26, 256)
    common_setup(a, 6, 7, 8)
    BA, PW16, PW4, A0, A64, A512, U2, PV16, PT16, PTW, YST = 1, 6, 7, 8, 9, 10, 11, 12, 13, 14, 15
    UFV, GFV, P0, P1, YLD, YSW, YSR, XAD, DF, PM = 210, 211, 212, 213, 214, 215, 216, 217, 218, 224
    UK, TBW, TBR, US, SKV, GOV = 21, 24, 25, 26, 28, 29
    a(f"""
    s_lshl_b32 s91, s31, 6
    s_lshl_b32 s80, s56, 1
    s_add_u32 s91, s91, s80
    s_lshr_b32 s80, s84, 1
    s_add_u32 s91, s91, s80
    s_and_b32 s80, s91, -2
    s_lshl_b32 s80, s80, 1
    s_load_dword s89, s[20:21], s80
    v_and_b32 v32, 31, v0
    v_lshrrev_b32 v33, 5, v0
    v_and_b32 v34, 15, v0
    v_lshrrev_b32 v35, 4, v0
    v_and_b32 v36, 7, v0
    v_lshrrev_b32 v37, 3, v0
    v_min_u32 v38, 29, v32
    v_lshlrev_b32 v38, 4, v38
    v_mul_u32_u24 v39, {USZ}, v33
    v_add3_u32 v30, v38, v39, s65
    s_mul_i32 s80, s84, {4*PSL}
    s_add_u32 s80, s80, {L_OLD}
    v_add_u32 v{PW16}, s80, v{L16}
    v_add_u32 v{PW4}, s80, v{L4H}
    s_lshl_b32 s81, s63, 8
    v_lshlrev_b32 v38, 4, v35
    v_lshl_add_u32 v{A0}, v34, 2, v38
    s_sub_u32 s80, s81, 60
    v_add_u32 v{A0}, s80, v{A0}
    v_add_u32 v{A64}, 64, v{A0}
    v_add_u32 v{A512}, 512, v{A0}
    v_add_u32 v{U2}, 2, v{L16}
    v_add_u32 v{PV16}, s65, v{L16}
    s_xor_b32 s80, s84, 1
    s_lshl_b32 s82, s80, 2
    s_add_u32 s82, s82, {L_XF}
    v_mov_b32 v{PTW}, s82
    s_mul_i32 s80, s80, {PRIV}
    s_add_u32 s80, s80, {L_PRIV}
    v_add_u32 v{PT16}, s80, v{L16}
    v_and_b32 v39, 1, v0
    v_mul_u32_u24 v39, {USZ}, v39
    v_bfe_u32 v40, v0, 1, 3
    v_lshlrev_b32 v41, 6, v40
    v_sub_u32 v39, v39, v41
    s_add_u32 s80, s65, 448
    s_add_u32 s80, s80, s81
    v_add3_u32 v{BA}, v39, v38, s80
    v_and_b32 v38, 3, v0
    v_lshlrev_b32 v{GOV}, 2, v38
    v_lshlrev_b32 v38, 4, v38
    v_bfe_u32 v39, v0, 2, 2
    v_lshl_add_u32 v38, v39, 7, v38
    v_lshl_add_u32 v38, v33, 6, v38
    v_bfe_u32 v41, v0, 4, 1
    v_lshl_add_u32 v{YST}, v41, 9, v38
    v_lshlrev_b32 v{UFV}, 9, v{L4H}
    v_lshlrev_b32 v{GFV}, 11, v36
    v_mul_u32_u24 v38, {CST}, v37
    v_lshl_add_u32 v{YLD}, v36, 4, v38
    v_xor_b32 v42, v36, v35
    v_lshl_add_u32 v{US}, v42, 4, v38
    v_xor_b32 v42, 4, v42
    v_lshl_add_u32 v{US+1}, v42, 4, v38
    v_xor_b32 v38, v36, v37
    v_lshlrev_b32 v38, 4, v38
    v_lshl_add_u32 v38, v37, 7, v38
    s_add_u32 s80, s65, 6400
    v_add_u32 v{YSW}, s80, v38
    s_lshl_b32 s80, s63, 1
    v_lshl_add_u32 v38, v33, 2, s80
    v_xor_b32 v38, v38, v36
    v_lshlrev_b32 v38, 4, v38
    v_lshl_add_u32 v38, v34, 7, v38
    s_and_b32 s80, s64, 1
    s_mul_i32 s80, s80, {PRIV}
    s_add_u32 s80, s80, {L_PRIV+6400}
    v_add_u32 v{YSR}, s80, v38
    s_lshl_b32 s80, s64, 1
    v_xor_b32 v38, s80, v40
    v_lshlrev_b32 v38, 4, v38
    v_lshl_add_u32 v38, v32, 7, v38
    v_lshl_add_u32 v38, v33, 3, v38
    s_lshl_b32 s80, s63, 12
    s_add_u32 s80, s80, {L_X}
    v_add_u32 v{XAD}, s80, v38
    v_and_b32 v38, 1, v0
    v_lshl_or_b32 v39, v38, 2, v39
    v_xor_b32 v41, v41, v33
    v_lshl_or_b32 v39, v41, 3, v39
    v_bfe_u32 v38, v0, 1, 1
    v_lshlrev_b32 v38, 4, v38
    v_mov_b32 v41, 0x3f80
    v_lshlrev_b32 v38, v38, v41
    """)
    for i in range(8): a(f"v_cmp_eq_u32 vcc, {i}, v39\ns_nop 1\nv_cndmask_b32 v{PM+i}, 0, v38, vcc")
    a(f"""
    s_lshl_b32 s80, s56, 16
    s_lshl_b32 s82, s84, 14
    s_add_u32 s80, s80, s82
    s_lshl_b32 s82, s31, 7
    s_add_u32 s80, s80, s82
    v_lshlrev_b32 v38, 13, v33
    v_lshl_add_u32 v38, v32, 2, v38
    v_add_u32 v{UK+1}, s80, v38
    v_add_u32 v{UK}, -3072, v{UK+1}
    v_add_u32 v{UK+2}, 4096, v{UK+1}
    s_lshl_b32 s80, s31, 9
    v_lshl_add_u32 v{SKV}, v32, 4, s80
    s_lshl_b32 s80, s84, 1
    v_add_u32 v38, s80, v33
    v_sub_u32 v38, 7, v38
    v_xor_b32 v38, v38, v36
    v_lshlrev_b32 v38, 4, v38
    v_lshl_add_u32 v38, v32, 8, v38
    v_add_u32 v{TBW}, {TB}, v38
    s_lshl_b32 s80, s84, 11
    s_add_u32 s80, s80, {TB}
    v_add_u32 v{TBR}, s80, v{L16}
    s_lshl_b32 s10, s31, 2
    s_add_u32 s10, s10, s84
    s_mul_i32 s10, s10, {16*CST}
    s_lshl_b32 s80, s56, 7
    s_sub_u32 s10, s10, s80
    s_add_u32 s10, s10, {UW + 248*16}
    s_add_u32 s11, s10, {8*CST}
    s_lshl_b32 s87, s31, 8
    s_add_u32 s87, s87, {UF}
    s_lshr_b32 s86, s31, 1
    s_lshl_b32 s86, s86, 1
    s_and_b32 s80, s75, 1
    s_add_u32 s86, s86, s80
    s_lshr_b32 s80, s75, 1
    s_and_b32 s80, s80, 3
    s_lshl_b32 s80, s80, 6
    s_add_u32 s86, s86, s80
    s_lshl_b32 s86, s86, 8
    s_add_u32 s86, s86, {UF}
    v_lshl_add_u32 v39, v35, 2, v34
    s_waitcnt lgkmcnt(0)
    s_and_b32 s80, s91, 1
    s_lshl_b32 s80, s80, 4
    s_lshr_b32 s89, s89, s80
    s_and_b32 s89, s89, 0xffff
    v_mov_b32 v38, s89
    """)
    for i in range(4): a(f"v_cmp_eq_u32 vcc, {15-i}, v39\ns_nop 1\nv_cndmask_b32 v{DF+i}, 0, v38, vcc")
    for x in ones(38): a(x)
    for i in range(32): a(f"v_mov_b32 v{VS+i}, v38")
    defer = a.lines; a = main
    cuts = [0, HS0] + [HS0 + (len(defer) - HS0) * (n + 1) // 7 for n in range(7)]
    for n in range(1, len(cuts) - 1):
        while cuts[n] < len(defer) and ("vcc" in defer[cuts[n]] or defer[cuts[n]].startswith(("s_nop", "s_cselect", "s_addc"))): cuts[n] += 1
    a.lines += defer[:cuts[1]]
    for s_ in range(8):
        a(f"s_waitcnt vmcnt({6*(issued-1-s_)}){' lgkmcnt(0)' if s_ == 0 else ''}\ns_barrier")
        while issued < min(8, s_ + NS): dma(issued); issued += 1
        if s_ < 7: a.lines += defer[cuts[s_+1]:cuts[s_+2]]
    a("s_lshr_b32 s92, s92, 2")
    for st in range(8):
        if st == WQ1: a("s_barrier")
        a(f"s_add_u32 s95, s94, {st}\ns_and_b32 s95, s95, 7\ns_add_u32 m0, s92, {L_WQ+st*4096}\ns_mul_i32 s95, s95, 196608")
        a(f"buffer_load_dwordx4 v{WV}, s[40:43], s95 offen lds")
    if WQ1 >= 8: a("s_barrier")
    stamp(a, 10, 3)
    KR, VR, SK, GOH, KF, VF, SF, U, UP, GX, GG = 32, 43, 52, 56, 64, 86, 102, 110, 128, 144, 152
    srd(a, 40, 12, 0x200000); srd(a, 48, 14, 0x200000)
    for i in range(3): a(f"buffer_load_dword v{KR+i}, v{UK}, s[40:43], 0 offen offset:{i*1024} nt")
    for i in range(8): a(f"buffer_load_dword v{KR+3+i}, v{UK+1+i//4}, s[40:43], 0 offen offset:{(i%4)*1024} nt")
    for i in range(8): a(f"buffer_load_dword v{VR+i}, v{UK+1+i//4}, s[48:51], 0 offen offset:{(i%4)*1024} nt")
    srd(a, 40, 16, 4096); srd(a, 48, 22, 1024)
    a(f"""
    s_lshl_b32 s12, s57, 7
    s_lshl_b32 s80, s58, 3
    s_add_u32 s12, s12, s80
    s_lshl_b32 s80, s84, 1
    s_add_u32 s12, s12, s80
    s_lshl_b32 s80, s12, 10
    s_lshl_b32 s12, s12, 2
    s_add_u32 s12, s12, {GW}
    buffer_load_dwordx4 {vr(SK,4)}, v{SKV}, s[40:43], 0 offen
    buffer_load_dwordx4 {vr(GG,4)}, v{L16}, s[48:51], 0 offen
    buffer_load_dwordx4 {vr(GX,4)}, v{L16}, s[36:39], s80 offen
    buffer_load_dwordx4 {vr(GX+4,4)}, v{L16}, s[36:39], s80 offen offset:1024
    buffer_load_dword v{GOH}, v{GOV}, s[52:55], 0 offen sc1
    s_waitcnt vmcnt(24)
    s_barrier
    s_setprio 0
    """)
    stamp(a, 1); stamp(a, 11, 3)
    a(f"ds_write_b128 v30, {vr(Z4,4)} offset:4096")
    srd(a, 40, 24, 0x200000)
    a(f"""
    s_mul_i32 s13, s91, {CST}
    s_lshl_b32 s80, s63, 11
    s_add_u32 s7, s13, s80
    s_add_u32 s7, s7, {YW}
    s_add_u32 s13, s13, {UW}
    s_mov_b32 s88, s7
    s_add_u32 s89, s7, 1024
    s_and_b32 s4, s64, 1
    s_lshl_b32 s4, s4, 1
    s_lshl_b32 s5, s57, 2
    s_add_u32 s4, s4, s5
    s_lshl_b32 s4, s4, 15
    s_lshl_b32 s5, s61, 10
    s_add_u32 s4, s4, s5
    s_add_u32 s4, s4, {OW}
    s_add_u32 s5, s4, 0x8000
    s_mov_b32 s8, 1
    s_lshl_b32 s14, s75, 1
    s_add_u32 s14, s14, s63
    s_lshl_b32 s14, s14, 7
    s_add_u32 s14, s14, {GW}
    s_lshl_b32 s15, s76, 2
    s_add_u32 s15, s15, s84
    s_mul_i32 s15, s15, {16*CST}
    s_lshl_b32 s82, s75, 7
    s_add_u32 s15, s15, s82
    s_add_u32 s15, s15, {YW}
    s_add_u32 s16, s15, {8*CST}
    s_lshl_b32 s17, s76, 8
    s_add_u32 s17, s17, {CF}
    s_lshl_b32 s82, s91, 12
    s_add_u32 s82, s82, s80
    s_add_u32 s92, s18, s82
    s_addc_u32 s93, s19, 0
    s_mov_b32 s83, 99
    s_mov_b32 s82, 2
    s_mov_b32 s6, 0xffff0000
    s_waitcnt vmcnt(4)
    """)
    stamp(a, 2)
    a(f"buffer_load_dword v57, v{KF2}, {WS}, s74 offen sc1")
    for i in range(11): a(f"v_lshlrev_b32 v{KF+2*i}, 16, v{KR+i}\nv_and_b32 v{KF+2*i+1}, s6, v{KR+i}")
    for i in range(8): a(f"v_lshlrev_b32 v{VF+2*i}, 16, v{VR+i}\nv_and_b32 v{VF+2*i+1}, s6, v{VR+i}")
    for ch in range(2):
        for t in range(4):
            src = SK + 2*ch + t//2
            a(f"v_lshlrev_b32 v{SF+2*t+ch}, 16, v{src}" if t % 2 == 0 else f"v_and_b32 v{SF+2*t+ch}, s6, v{src}")
    for i in range(8):
        u = vr(U+2*i, 2)
        a(f"v_pk_mul_f32 {u}, {vr(KF+2*i,2)}, {vr(SF+6,2)}")
        for t in (2, 1, 0): a(f"v_pk_fma_f32 {u}, {vr(KF+2*(i+3-t),2)}, {vr(SF+2*t,2)}, {u}")
        a(f"v_pk_mul_f32 {u}, {u}, {vr(VF+2*i,2)}")
    for ch in range(2):
        for i in range(4): a(f"v_cvt_pk_bf16_f32 v{KR+4*ch+i}, v{U+2*(7-2*i)+ch}, v{U+2*(6-2*i)+ch}")
    a(f"""
    ds_write_b128 v{TBW}, {vr(KR,4)}
    ds_write_b128 v{TBW}, {vr(KR+4,4)} offset:128
    v_mov_b32 v48, 0
    v_mov_b32 v49, 0
    s_waitcnt vmcnt(0) lgkmcnt(0)
    {mark(W_TB)}
    """)

    for i in range(4):
        a(f"v_dot2_f32_bf16 v48, v{GX+i}, v{GG+i}, v48\nv_dot2_f32_bf16 v49, v{GX+4+i}, v{GG+i}, v49")
    a("s_nop 2")
    for d in ("row_shr:1 row_mask:0xf bank_mask:0xf bound_ctrl:0", "row_shr:2 row_mask:0xf bank_mask:0xf bound_ctrl:0",
              "row_shr:4 row_mask:0xf bank_mask:0xf bound_ctrl:0", "row_shr:8 row_mask:0xf bank_mask:0xf bound_ctrl:0",
              "row_bcast:15 row_mask:0xa bank_mask:0xf", "row_bcast:31 row_mask:0xc bank_mask:0xf"):
        a(f"v_add_f32_dpp v48, v48, v48 {d}\nv_add_f32_dpp v49, v49, v49 {d}\ns_nop 0")
    a(f"""
    v_cvt_pk_bf16_f32 v50, v48, v49
    v_lshlrev_b32 v48, 16, v50
    v_and_b32 v49, s6, v50
    v_mul_f32 v48, {f32(-LOG2E)}, v48
    v_mul_f32 v49, {f32(-LOG2E)}, v49
    v_exp_f32 v48, v48
    v_exp_f32 v49, v49
    s_nop 0
    v_add_f32 v48, 1.0, v48
    v_add_f32 v49, 1.0, v49
    v_rcp_f32 v48, v48
    v_rcp_f32 v49, v49
    s_nop 0
    v_cvt_pk_bf16_f32 v50, v48, v49
    v_lshlrev_b32 v{UP+8}, 16, v50
    v_and_b32 v{UP+9}, s6, v50
    v_mov_b32 v{UP+10}, v{US}
    v_mov_b32 v{UP+11}, v{US+1}
    """)
    all_set(a, late, GOH, GOV, "0", "s[52:55]")
    lds_wait(a, XW4, W_TB, 56)
    a(f"ds_read_b128 {vr(UP,4)}, v{TBR}\nds_read_b128 {vr(UP+4,4)}, v{TBR} offset:1024")
    stamp(a, 3); stamp(a, 12, 3)
    all_set(a, late, 57, KF2, "s74")
    att_loads()
    a("s_waitcnt lgkmcnt(0)")
    a(f"""
    buffer_store_dwordx4 {vr(UP,4)}, v{UP+10}, {WS}, s10 offen sc1
    buffer_store_dwordx4 {vr(UP+4,4)}, v{UP+11}, {WS}, s11 offen sc1
    s_mov_b32 exec_lo, 0
    s_mov_b32 exec_hi, 0x80000000
    buffer_store_dwordx2 {vr(UP+8,2)}, v{VZ}, {WS}, s12 offen sc1
    s_mov_b64 exec, -1
    """)
    stamp(a, 4); stamp(a, 13, 3)
    att_q()
    lds_wait(a, XW4, W_QR, 56)
    a("s_setprio 1")
    stamp(a, 5); stamp(a, 6)
    for i in range(12): a(f"s_load_dword s100, s[92:93], {i*128}")

    a("s_branch B_go")

    a.label("A_compute")
    XA, WA, AK, AV, AQ, XF, FR, FQ, GO = 6, [14, 15, 1], 20, 36, 48, 64, 192, [208, 212, 216, 28, 32], 19
    a(f"""
    v_and_b32 v20, 31, v0
    v_lshrrev_b32 v21, 5, v0
    v_bfe_u32 v22, v0, 1, 3
    v_xor_b32 v22, v22, v21
    s_lshl_b32 s80, s30, 12
    v_lshlrev_b32 v20, 7, v20
    v_lshl_add_u32 v20, v22, 4, v20
    v_add_u32 v{XA}, s80, v20
    """)
    for ks in range(1, 4): a(f"v_xor_b32 v{XA+ks}, {ks*32}, v{XA}")
    for ks in range(4): a(f"v_add_u32 v{XA+4+ks}, {2*SLOT}, v{XA+ks}")
    a(f"""
    v_bfe_u32 v20, v0, 2, 2
    v_lshl_add_u32 v20, v21, 3, v20
    v_lshlrev_b32 v20, 6, v20
    v_bfe_u32 v22, v0, 4, 1
    v_lshl_add_u32 v20, v22, 5, v20
    v_and_b32 v23, 3, v0
    v_lshl_add_u32 v20, v23, 3, v20
    v_add_u32 v{WA[0]}, 16384, v20
    v_add_u32 v{WA[1]}, {16384+2*SLOT}, v20
    v_add_u32 v{WA[2]}, {L_WQ}, v20
    v_lshlrev_b32 v228, 2, v23
    v_mov_b32 v55, v22
    s_waitcnt lgkmcnt(0)
    """)
    srd(a, 32, 28, WS_BYTES); srd(a, 52, 26, 256)
    a(f"""
    s_cmp_lg_u32 s2, 0
    s_cbranch_scc1 A_noclear
    s_lshl_b32 s80, s30, 14
    s_add_u32 s80, s80, {FW}
    v_lshlrev_b32 v24, 8, v0
    v_mov_b32 v28, 0
    v_mov_b32 v29, 0
    v_mov_b32 v30, 0
    v_mov_b32 v31, 0
    v_mov_b32 v25, 1
    buffer_store_dwordx4 v[28:31], v24, {WS}, s80 offen sc1
    s_lshl_b32 s80, s30, 2
    s_waitcnt vmcnt(0)
    s_mov_b64 exec, 1
    buffer_store_dword v25, v28, s[52:55], s80 offen sc1
    s_mov_b64 exec, -1
    """)
    a.label("A_noclear")
    main = a; a = Asm()
    srd(a, 36, 4, 0x200000); srd(a, 40, 24, 0x200000)
    common_setup(a, 52, 53, 54)
    a(f"""
    v_and_b32 v16, 0x33, v0
    v_bfe_u32 v17, v0, 2, 1
    v_lshl_or_b32 v16, v17, 3, v16
    v_bfe_u32 v17, v0, 3, 1
    v_lshl_or_b32 v16, v17, 2, v16
    v_lshlrev_b32 v16, 4, v16
    v_lshl_add_u32 v17, v55, 16, v{VOF}
    s_lshl_b32 s80, s30, 10
    s_add_u32 s80, s80, {L_QX}
    v_add_u32 v18, s80, v{L16}
    s_lshl_b32 s10, s58, 17
    s_lshl_b32 s80, s57, 2
    s_add_u32 s81, s80, s30
    s_lshl_b32 s81, s81, 10
    s_add_u32 s10, s10, s81
    s_add_u32 s12, s10, {VW}
    s_add_u32 s10, s10, {KW}
    s_add_u32 s11, s10, 0x10000
    s_mov_b32 s13, {f32(0.25*LOG2E)}
    s_lshl_b32 s81, s64, 1
    s_add_u32 s80, s80, s81
    s_lshl_b32 s80, s80, 15
    s_lshl_b32 s82, s61, 10
    s_add_u32 s80, s80, s82
    s_add_u32 s86, s80, {OW}
    s_add_u32 s87, s86, 0x8000
    s_mov_b32 s8, 99
    s_lshl_b32 s82, s63, 2
    s_add_u32 s82, s82, s81
    s_mul_i32 s14, s82, {PSL}
    s_add_u32 s14, s14, {L_OLD}
    s_xor_b32 s16, s30, 2
    s_mul_i32 s15, s30, {2*PSL}
    s_mul_i32 s16, s16, {2*PSL}
    s_add_u32 s15, s15, {L_YNG}
    s_add_u32 s16, s16, {L_YNG}
    s_mov_b32 s83, {CDROP}
    s_mov_b32 s82, 99
    s_mov_b32 s92, s18
    s_mov_b32 s93, s19
    """)
    for x in ones(229): a(x)
    defer = a.lines; a = main
    cuts = [CS0 + (len(defer) - CS0) * n // 28 for n in range(29)]
    for n in range(28):
        while cuts[n] < len(defer) and ("vcc" in defer[cuts[n]] or defer[cuts[n]].startswith(("s_nop", "s_cselect", "s_addc"))): cuts[n] += 1
    a.lines += defer[:cuts[0]]
    a("s_barrier")
    stamp(a, 1); stamp(a, 1, 3); stamp(a, 2, 4)
    def reads(g):
        st, ks = g >> 2, g & 3
        slot = st % NS
        bs, off = slot // 2, (slot % 2) * SLOT
        f = FR + 8 * (g % 3)
        r = [f"ds_read_b128 {vr(XF+4*g,4)}, v{XA+4*bs+ks} offset:{off}"]
        for ty in range(2):
            for j in range(2):
                r.append(f"ds_read_b64_tr_b16 {vr(f+4*ty+2*j,2)}, v{WA[bs]} offset:{off+ks*2048+ty*1024+j*256}")
        return r
    for r in reads(0) + reads(1): a(r)
    for g in range(32):
        nxt = reads(g + 2) if g + 2 < 32 else []
        if nxt and (g + 2) % 4 == 0:
            a("s_waitcnt lgkmcnt(0)\ns_barrier")
            stamp(a, 1 + (g + 2) // 4, 3)
        else:
            a(f"s_waitcnt lgkmcnt({5 if g < 31 else 0})")
        f, x = FR + 8 * (g % 3), XF + 4 * g
        if "nord" in EXP: nxt = []
        if "nomm" not in EXP: a(f"{M32} {vr(AK,16)}, {vr(f,4)}, {vr(x,4)}, {'0' if g == 0 else vr(AK,16)}")
        for r in nxt[0:3]: a(r)
        if "nomm" not in EXP: a(f"{M32} {vr(AV,16)}, {vr(x,4)}, {vr(f+4,4)}, {'0' if g == 0 else vr(AV,16)}")
        for r in nxt[3:5]: a(r)
        if g < 28: a.lines += defer[cuts[g]:cuts[g+1]]
    stamp(a, 2); stamp(a, 9, 3); stamp(a, 3, 4)
    a("s_setprio 3\ns_nop 9")
    for i in range(8): a(f"v_cvt_pk_bf16_f32 v{AK+i}, v{AK+2*i}, v{AK+2*i+1}")
    a(f"buffer_store_dwordx4 {vr(AK,4)}, v16, {WS}, s10 offen sc1")
    a(f"buffer_store_dwordx4 {vr(AK+4,4)}, v16, {WS}, s11 offen sc1")
    for i in range(8): a(f"v_cvt_pk_bf16_f32 v{AV+i}, v{AV+2*i}, v{AV+2*i+1}")
    a(f"buffer_store_dwordx4 {vr(AV,4)}, v17, {WS}, s12 offen sc1")
    a(f"buffer_store_dwordx4 {vr(AV+4,4)}, v17, {WS}, s12 offen offset:512 sc1")
    a(f"buffer_load_dword v{GO}, v228, s[52:55], 0 offen sc1\ns_barrier")
    stamp(a, 3); stamp(a, 10, 3)
    a(f"""
    v_add_u32 v6, s14, v{L16}
    v_add_u32 v7, s14, v{L4H}
    v_add_u32 v8, s15, v{L16}
    v_add_u32 v9, s15, v{L4H}
    v_add_u32 v10, s16, v{L16}
    v_add_u32 v11, s16, v{L4H}
    """)
    for i in range(16, 32): a(f"v_mov_b32 v{VS+i}, v229")
    a("s_waitcnt vmcnt(0)")
    all_set(a, late, GO, 228, "0", "s[52:55]")
    arrive(a, 0, 12)
    stamp(a, 4); stamp(a, 12, 3)
    a("s_barrier")
    stamp(a, 11, 3)
    order = [28, 29, 30, 31] + list(range(28))
    qrd = lambda n: [f"ds_read_b64_tr_b16 {vr(FQ[n%5]+2*j,2)}, v{WA[2]} offset:{order[n]*1024+j*256}" for j in range(2)]
    for n in range(4):
        for r in qrd(n): a(r)
    for n in range(32):
        if n == KFG: a(f"buffer_load_dword v12, v{KF2}, {WS}, s74 offen sc1")
        a(f"s_waitcnt lgkmcnt({min(6, 2*(31-n))})")
        a(f"{M32} {vr(AQ,16)}, {vr(FQ[n%5],4)}, {vr(XF+4*order[n],4)}, {'0' if n == 0 else vr(AQ,16)}")
        if n + 4 < 32:
            for r in qrd(n + 4): a(r)
        if 4 <= n < 20: a(f"v_mov_b32 v{VS+n-4}, v229")
    a("s_nop 11")
    for i in range(16): a(f"v_mul_f32 v{AQ+i}, s13, v{AQ+i}")
    for i in range(8): a(f"v_cvt_pk_bf16_f32 v{AQ+i}, v{AQ+2*i}, v{AQ+2*i+1}")
    a(f"""
    ds_write_b128 v18, {vr(AQ,4)}
    ds_write_b128 v18, {vr(AQ+4,4)} offset:4096
    s_waitcnt lgkmcnt(0)
    {mark(W_QW)}
    s_waitcnt vmcnt(0)
    """)
    all_set(a, late, 12, KF2, "s74")
    stamp(a, 5); stamp(a, 13, 3)
    att_loads()
    att_q()
    a(f"s_waitcnt lgkmcnt(0)\n{mark(W_QR)}\ns_setprio 2")
    stamp(a, 6); stamp(a, 14, 3)

    a.label("B_go")
    for j in range(4): a(f"{M32} {vr(ACC+16*j,16)}, {vr(Z4,4)}, {vr(Z4,4)}, 0")
    a(f"{M32} {vr(S+48,16)}, {vr(Z4,4)}, {vr(Z4,4)}, 0")
    a("s_add_u32 s70, s70, 4096\ns_add_u32 s71, s71, 3072\ns_mov_b32 s84, 3")
    qk = lambda j, st: f"{M32} {vr(S+16*j,16)}, {vr(KS+4*st,4)}, {vr(Q+4*j,4)}, 0"
    pv = lambda j, st, s: f"{SM} {vr(ACC+16*j,16)}, {vr(VS+8*st+4*s,4)}, {vr(S+16*j+8*s,8)}, v{IDX}"
    a("s_waitcnt vmcnt(9)"); a(qk(0, 0)); a(qk(1, 0))
    for i in range(4): a(f"v_mov_b32 v{Z4+i}, -1")
    a("s_nop 6")
    if STAMP: a("s_mov_b32 s21, 0")
    stamp(a, 7)
    wodma = lambda m: [f"s_add_u32 m0, s77, {m*1024}", f"s_add_u32 s85, s78, {m*16384}", f"buffer_load_dwordx4 v{WOV}, s[44:47], s85 offen lds"]
    xdma = ["s_mov_b32 m0, s79", "s_nop 0", f"buffer_load_dwordx4 v{XOV}, s[36:39], 0 offen lds"]
    def body(last, extras, waits):
        for m in range(4):
            for j in range(4):
                jp, mp = (j - 1) % 4, (m if j else (m - 1) % 4)
                ins = {}
                def put(p, x): ins.setdefault(p, []).extend(x if isinstance(x, list) else [x])
                if j == 1 and waits[m] is not None: put(1, f"s_waitcnt vmcnt({waits[m]})")
                put(1, pv(jp, mp, 0))
                put(6, pv(jp, mp, 1))
                if j == 0 and (not last or m == 0): put(8, ldv((m + 3) % 4, "s71", m*1024))
                if not (last and m == 3 and j >= 2): put(11, qk((j + 2) % 4, m if j < 2 else (m + 1) % 4))
                if j == 1 and not last: put(13, ldk(m, "s70", m*1024))
                if j == 2 and not last:
                    if m < 2: put(8, wodma(m))
                    if m == 2: put(8, ["s_cmp_eq_u32 s84, 1", "s_cbranch_scc1 B_x"] + wodma(2) + ["s_branch B_xd", "B_x:"] + xdma + ["B_xd:"])
                    if m == 3: put(8, ["s_cmp_le_u32 s84, s8", "s_cbranch_scc1 B_nocl"] + [f"buffer_store_dwordx4 {vr(Z4,4)}, v{L16}, {WS}, s{r} offen sc1" for r in (88, 89)]
                                   + ["s_mov_b32 s88, s4", "s_mov_b32 s89, s5", "B_nocl:"])
                if not last and m == 1 and j == 3: put(4, (["s_cmp_lg_u32 s84, 3", "s_cbranch_scc1 B_nof"] if F1 else []) + [f"buffer_load_dword v{QA+1}, v{KFV}, {WS}, s74 offen sc1"] + (["B_nof:"] if F1 else []))
                if not last and m == 3 and j == 3: put(3, (["s_cmp_lg_u32 s84, 2", "s_cbranch_scc1 B_nof2"] if F1 else []) + ["s_waitcnt vmcnt(7)", lambda: all_set(a, late, QA + 1, KFV, "s74")] + (["B_nof2:"] if F1 else []))
                for p, x in extras.get((m, j), []): put(p, x)
                for e in range(16):
                    for x in ins.get(e, []):
                        if callable(x): x()
                        else: a(x)
                    a(f"v_exp_f32 v{S+16*j+e}, v{S+16*j+e}")
    a(".p2align 6")
    a.label("B_loop")
    body(False, {(3, 1): [(14, ["s_add_u32 s77, s77, 3072", "s_add_u32 s78, s78, 49152"])],
                 (3, 2): [(14, ["s_add_u32 s70, s70, 4096", "s_add_u32 s71, s71, 4096", "s_sub_u32 s84, s84, 1"])],
                 (CDT, 0): [(3, ["s_cmp_lg_u32 s84, s83", "s_cbranch_scc1 B_keep", "s_setprio 0", "B_keep:"])],
                 (3, 3): [(8, ["s_cmp_lg_u32 s84, s82", "s_cbranch_scc1 B_nouf", lambda: arrive(a, 1, QA)]
                              + [f"s_load_dword s100, s[92:93], {i*128}" for i in range(12, 16)] + ["B_nouf:"]),
                          (14, "s_cmp_lg_u32 s84, 0")]}, [8, 9, 10, 11] if F1 else [8, 9, 11, 12])
    a("s_cbranch_scc1 B_loop")
    stamp(a, 8)
    a("s_cmp_lt_u32 s30, 4\ns_cbranch_scc1 B_final")

    CA = 32
    ABUF, BBUF = [96, 160], [128, 64]
    a(f"""
    s_lshl_b32 s80, s91, 12
    s_add_u32 s92, s18, s80
    s_addc_u32 s93, s19, 0
    s_mov_b32 s94, 4096
    s_mov_b32 s95, 0x20000
    buffer_load_dword v{P0}, v{UFV}, {WS}, s87 offen sc1
    buffer_load_dword v{P1}, v{GFV}, {WS}, s86 offen sc1
    """)
    def lda(rr):
        b = ABUF[rr % 2]
        o = []
        if rr == 0:
            o.append(f"buffer_load_dword v{b}, v{A0}, s[92:95], 0 offen")
            for i in range(1, 4): o.append(f"v_add_u32 v{A0}, 4, v{A0}\nbuffer_load_dword v{b+i}, v{A0}, s[92:95], 0 offen")
        else:
            o.append(f"buffer_load_dwordx4 {vr(b,4)}, v{A64}, s[92:95], 0 offen offset:{64*(rr-1)}")
        for aa in range(1, 8):
            o.append(f"buffer_load_dwordx4 {vr(b+4*aa,4)}, v{A512}, s[92:95], 0 offen offset:{512*(aa-1)+64*rr}")
        return o
    ldb = lambda rr: [f"ds_read_b128 {vr(BBUF[rr%2]+4*bb,4)}, v{BA} offset:{64*rr+512*(7-bb)}" for bb in range(8)]
    udma = lambda rho, q: [f"s_add_u32 m0, s65, {rho*USZ}", "s_nop 0",
                           f"buffer_load_dwordx4 v{L16 if rho else U2}, {WS}, s13 offen offset:{q*1024} sc1 lds",
                           f"buffer_load_dwordx4 v{L16 if rho else U2}, {WS}, s13 offen offset:{q*1024+1024} sc1 lds"]
    wrh = lambda j: [f"ds_write_b128 v{PW16}, {vr(ACC+16*j,4)} offset:{j*PSL}", f"ds_write_b128 v{PW16}, {vr(ACC+16*j+4,4)} offset:{j*PSL+1024}",
                     f"ds_write_b32 v{PW4}, v{ACC+16*j+8} offset:{j*PSL+2048}"]
    LA0, LA1 = lda(0), lda(1)
    exh = {(0, 0): [(3, lambda: arrive(a, 2, QA))],
           (1, 1): [(3, [mark(W_LH), lambda: all_set(a, late, P0, UFV, "s87"), lambda: all_set(a, late, P1, GFV, "s86")]),
                    (8, udma(1, 0)), (13, udma(1, 2))],
           (1, 2): [(4, udma(0, 0)), (13, udma(0, 2))],
           (1, 3): [(4, f"buffer_load_dword v{G}, v{L4H}, {WS}, s14 offen sc1")],
           (3, 1): [(9 + i, LA1[i]) for i in range(4)],
           (3, 2): [(3 + i, wrh(0)[i]) for i in range(3)] + [(8 + i, LA1[4 + i]) for i in range(4)],
           (3, 3): [(0, LA0[0:4])] + [(3 + i, wrh(1)[i]) for i in range(3)] + [(7 + i, LA0[4 + i]) for i in range(7)]}
    body(True, exh, [12 if F1 else 13, 2, None, 9])
    a(f"""
    s_waitcnt vmcnt(19)
    s_mov_b64 exec, 1
    ds_write_b16 v{PV16}, v{VZ} offset:4094
    s_mov_b64 exec, -1
    {pv(3,3,0)}
    {pv(3,3,1)}
    s_setprio {CVP}
    """)
    stamp(a, 9)
    for x in ldb(0) + wrh(2): a(x)
    a("s_nop 0")
    for x in wrh(3): a(x)
    a(f"s_waitcnt lgkmcnt(0)\n{mark(W_PO)}")
    for rr in range(4):
        ab, bb_ = ABUF[rr % 2], BBUF[rr % 2]
        nb = ldb(rr + 1) if rr < 3 else []
        mm = lambda aa, b, c=None: f"{M16} {vr(CA+4*(aa+b),4)}, {vr(ab+4*aa,4)}, {vr(bb_+4*b,4)}, {c or vr(CA+4*(aa+b),4)}"
        a(f"s_waitcnt vmcnt({[0, 8, 8, 0][rr]}){' lgkmcnt(0)' if rr else ''}")
        if rr == CVR: a("s_setprio 1")
        if rr == 3:
            a(f"buffer_load_dword v{P0}, v{UFV}, {WS}, s17 offen sc1\nbuffer_load_dword v{P1}, v{CFV}, {WS}, s101 offen sc1")
        if rr == 0:
            a("s_cmp_lg_u32 s63, 0\ns_cbranch_scc1 CV_nodiag")
            for b in range(8): a(f"{M16} {vr(CA+4*b,4)}, {vr(DF,4)}, {vr(bb_+4*b,4)}, 0")
            for b in range(8): a(mm(0, b))
            a("s_branch CV_row1")
            a.label("CV_nodiag")
            for b in range(8): a(mm(0, b, "0"))
            a.label("CV_row1")
        cnt = 0
        na = lda(rr + 2) if rr < 2 else []
        for aa in range(8):
            for b in range(8 - aa):
                if rr == 0 and aa == 0: continue
                a(mm(aa, b))
                cnt += 1
                if cnt % 3 == 0 and nb: a(nb.pop(0))
            if na: a(na.pop(0))
    stamp(a, 11)
    XI, YP = 96, 128
    a(f"s_setprio {XP}")
    a("s_cmp_lg_u32 s63, 0\ns_cbranch_scc1 CV_odd")
    for odd in range(2):
        if odd: a.label("CV_odd")
        a("s_nop 4" if not odd else "s_nop 0")
        for n in range(4): a(f"ds_write_b128 v{PV16}, {vr(CA+16*(1-odd)+4*n,4)} offset:{n*1024}")
        a(f"s_waitcnt lgkmcnt(0)\n{mark(W_XCH)}")
        lds_wait(a, PTW, W_XCH, XI)
        for n in range(4): a(f"ds_read_b128 {vr(XI+4*n,4)}, v{PT16} offset:{n*1024}")
        for n in range(4):
            c = CA + 16*odd + 4*n
            a(f"s_waitcnt lgkmcnt({3-n})")
            a(f"v_pk_add_f32 {vr(c,2)}, {vr(c,2)}, {vr(XI+4*n,2)}\nv_pk_add_f32 {vr(c+2,2)}, {vr(c+2,2)}, {vr(XI+4*n+2,2)}")
            a(f"v_cvt_pk_bf16_f32 v{YP+2*n}, v{c}, v{c+1}\nv_cvt_pk_bf16_f32 v{YP+2*n+1}, v{c+2}, v{c+3}")
        if not odd: a("s_branch CV_st")
    a.label("CV_st")
    a("s_nop 0")
    for p in range(2):
        a(f"v_permlane16_swap_b32 v{YP+4*p}, v{YP+4*p+2}\nv_permlane16_swap_b32 v{YP+4*p+1}, v{YP+4*p+3}")
        a(f"buffer_store_dwordx4 {vr(YP+4*p,4)}, v{YST}, {WS}, s7 offen offset:{1024*p} sc1")
    a("s_waitcnt vmcnt(2)")
    all_set(a, late, P0, UFV, "s17"); all_set(a, late, P1, CFV, "s101")
    yload = [f"buffer_load_dwordx4 {vr(YA+4*q,4)}, v{YLD}, {WS}, s{15+q} offen sc1" for q in range(2)]
    a(f"s_setprio {XP2}")
    stamp(a, 12)
    lds_wait(a, XW8, W_LH, 9)
    a(f"""
    v_xor_b32 v9, 16, v{XAD}
    v_xor_b32 v10, 64, v{XAD}
    v_xor_b32 v11, 80, v{XAD}
    ds_read_b64 {vr(XR,2)}, v{XAD}
    ds_read_b64 {vr(XR+2,2)}, v9
    ds_read_b64 {vr(XR+4,2)}, v10
    ds_read_b64 {vr(XR+6,2)}, v11
    v_sub_f32 v{G+1}, 1.0, v{G}
    ds_write_b32 v{XGA}, v{G} offset:2048
    """)
    c_wo()
    a(f"v_xor_b32 v9, 16, v{YSR}\nv_mov_b32 v{G+2}, v{G+1}\nv_mov_b32 v{G+3}, v{G+1}")
    for i in range(8):
        a(f"v_lshlrev_b32 v{XG+2*i}, 16, v{XR+i}\nv_and_b32 v{XG+2*i+1}, s6, v{XR+i}")
        a(f"v_pk_mul_f32 {vr(XG+2*i,2)}, {vr(XG+2*i,2)}, {vr(G+2,2)}")
    for x in yload: a(x)
    def ystage():
        a(f"""
        ds_write_b128 v{YSW}, {vr(YA,4)}
        ds_write_b128 v{YSW}, {vr(YA+4,4)} offset:1024
        s_waitcnt lgkmcnt(0)
        {mark(W_YS)}
        """)
        stamp(a, 10)
        lds_wait(a, XW4, W_YS, 10)
        for b in (1, 0):
            for sg in range(2): a(f"ds_read_b128 {vr(YF+8*b+4*sg,4)}, v{[YSR, 9][sg]} offset:{(1-b)*2*PRIV}")
        for b in (1, 0):
            a(f"s_waitcnt lgkmcnt({2*b})")
            a(f"{M32} {vr(YA+16*b,16)}, {vr(YF+8*b,4)}, {vr(PM,4)}, 0")
            a(f"{M32} {vr(YA+16*b,16)}, {vr(YF+8*b+4,4)}, {vr(PM+4,4)}, {vr(YA+16*b,16)}")
    def xymul():
        for i in range(4): a(f"v_pk_mul_f32 {vr(YA+16+2*i,2)}, {vr(YA+16+2*i,2)}, {vr(XG+8+2*i,2)}")
        a(f"ds_write_b128 v{XYA}, {vr(YA+16,4)}\nds_write_b128 v{XYA}, {vr(YA+20,4)} offset:1024\ns_nop 0")
        for i in range(4): a(f"v_pk_mul_f32 {vr(YA+2*i,2)}, {vr(YA+2*i,2)}, {vr(XG+2*i,2)}")
    if YSM:
        a(f"s_mov_b32 s90, {SPIN}")
        a.label("Y_try")
        a(f"""
        ds_read_b32 v11, v{XW4} offset:{W_OL}
        s_waitcnt vmcnt(0)
        v_max3_u32 v10, v{YA}, v{YA+1}, v{YA+2}
        v_max3_u32 v10, v{YA+3}, v{YA+4}, v10
        v_max3_u32 v10, v{YA+5}, v{YA+6}, v10
        v_max_u32 v10, v{YA+7}, v10
        v_cmp_eq_u32 vcc, -1, v10
        s_sub_u32 s90, s90, 1
        s_cbranch_scc1 Y_have
        s_cmp_eq_u64 vcc, 0
        s_cbranch_scc1 Y_have
        """)
        for x in yload: a(x)
        a("s_waitcnt lgkmcnt(0)\nv_cmp_eq_u32 vcc, 1, v11\ns_nop 0\ns_cmp_eq_u64 vcc, exec\ns_cbranch_scc0 Y_try\ns_setprio 3")
        stamp(a, 13)
        for x in oload: a(x)
        a("s_waitcnt vmcnt(8)")
        fresh(a, late, list(range(YA, YA+8)), yload, 10)
        ystage()
        a("s_nop 9")
        xymul()
        a("s_branch C_mm")
        a.label("Y_have")
    else:
        a("s_waitcnt vmcnt(0)")
        fresh(a, late, list(range(YA, YA+8)), yload, 10)
    if YSM == 2:
        a(f"""
        s_waitcnt lgkmcnt(0)
        v_cmp_eq_u32 vcc, 1, v11
        s_nop 0
        s_cmp_eq_u64 vcc, exec
        s_cbranch_scc0 Y_norm
        s_setprio 3
        """)
        stamp(a, 13)
        for x in oload: a(x)
        ystage()
        a("s_nop 9")
        xymul()
        a("s_branch C_mm")
        a.label("Y_norm")
    ystage()
    a("s_setprio 0")
    lds_wait(a, XW4, W_OL, 10)
    a("s_setprio 3")
    stamp(a, 13)
    for x in oload: a(x)
    xymul()
    a("s_branch C_mm")

    a.label("B_final")
    rdp = lambda dst, a16, off: [f"ds_read_b128 {vr(dst,4)}, v{a16} offset:{off}", f"ds_read_b128 {vr(dst+4,4)}, v{a16} offset:{off+1024}",
                                 f"ds_read_b32 v{dst+8}, v{a16+1} offset:{off+2048}"]
    wrp = lambda j: [f"ds_write_b128 v8, {vr(ACC+16*j,4)} offset:{j*PSL}", f"ds_write_b128 v8, {vr(ACC+16*j+4,4)} offset:{j*PSL+1024}",
                     f"ds_write_b32 v9, v{ACC+16*j+8} offset:{j*PSL+2048}"]
    PA, PB = [208, 176, 160, 186], [96, 112]
    r0 = rdp(PA[0], 6, 0); r1 = rdp(PA[1], 6, 8*PSL); r2 = rdp(PA[2], 6, PSL); r3 = rdp(PA[3], 6, 9*PSL)
    w0, w1 = wrp(0), wrp(1)
    def add9(d, s_):
        return [f"v_pk_add_f32 {vr(d+2*i,2)}, {vr(d+2*i,2)}, {vr(s_+2*i,2)}" for i in range(4)] + [f"v_add_f32 v{d+8}, v{d+8}, v{s_+8}"]
    ex = {(1, 1): [(3, mark(W_LC))],
          (2, 2): [(8, f"buffer_load_dword v13, v{CFV}, {WS}, s101 offen sc1")],
          (3, 0): [(9, [lambda: lds_wait(a, XW4, W_PO, 12), "s_setprio 3"]), (12, r0[0]), (13, r0[1]), (14, r0[2])],
          (3, 1): [(3, r1[0]), (4, r1[1]), (8, r1[2]), (9, r2[0]), (13, r2[1]), (14, r2[2])],
          (3, 2): [(2, r3[0]), (3, w0[0]), (4, r3[1]), (8, w0[1]), (9, r3[2]), (10, w0[2])],
          (3, 3): [(3, w1[0]), (4, w1[1]), (5, w1[2]), (9, ["s_waitcnt lgkmcnt(0)", mark(W_PY)]),
                   (12, [lambda: lds_wait(a, XW4, W_PY, 12)] + rdp(PB[0], 10, 0)), (13, rdp(PB[1], 10, PSL))]}
    body(True, ex, [10 if F1 else 11, 5, 2, 0])
    stamp(a, 9)
    O2, O3 = ACC + 32, ACC + 48
    for x in add9(PA[0], PA[1])[:2]: a(x)
    a(f"{pv(3,3,0)}\n{pv(3,3,1)}")
    for x in add9(PA[0], PA[1])[2:] + add9(O2, PA[0]) + add9(PA[2], PA[3]): a(x)
    a("s_waitcnt lgkmcnt(0)")
    a(mark(W_PR))
    for x in add9(O2, PB[0]) + add9(PA[2], PB[1]) + add9(O3, PA[2]): a(x)
    a(f"v_mov_b32 v14, 0\nv_mov_b32 v15, 0")
    for o in (O2, O3):
        for i in range(4): a(f"v_pk_fma_f32 v[14:15], {vr(o+2*i,2)}, 0, v[14:15] op_sel_hi:[1,0,1]")
    a(f"""
    v_add_f32 v14, v14, v15
    v_min_f32 v15, v{O2+8}, v{O3+8}
    v_add_f32 v14, v14, v{O2+8}
    v_add_f32 v14, v14, v{O3+8}
    v_cmp_lt_f32 vcc, {f32(2.0**-60)}, v15
    s_mov_b64 s[92:93], vcc
    v_cmp_gt_f32 vcc, {f32(2.0**60)}, v14
    s_and_b64 s[92:93], s[92:93], vcc
    s_cmp_eq_u64 s[92:93], exec
    s_cbranch_scc0 B_slow
    """)
    a.label("B_fin")
    a(f"v_rcp_f32 v14, v{O2+8}\nv_rcp_f32 v12, v{O3+8}\ns_nop 0")
    for jj, (o, r) in enumerate(((O2, 14), (O3, 12))):
        for i in range(4): a(f"v_pk_mul_f32 {vr(o+2*i,2)}, {vr(o+2*i,2)}, {vr(r,2)} op_sel_hi:[1,0]")
        for i in range(4): a(f"v_cvt_pk_bf16_f32 v{208+4*jj+i}, v{o+2*i}, v{o+2*i+1}")
        a(f"buffer_store_dwordx4 {vr(208+4*jj,4)}, v{L16}, {WS}, s{86+jj} offen sc1")
    stamp(a, 10)
    all_set(a, late, 13, CFV, "s101")
    if not OLATE:
        for x in oload: a(x)
    stamp(a, 11)
    lds_wait(a, XW8, W_LH, 12)
    c_wo()
    lds_wait(a, XW4, W_PR, 12)
    if HOL: a(mark(W_OL))
    if OLATE:
        for x in oload: a(x)
    stamp(a, 13)

    a.label("C_mm")
    for j in range(8):
        a(f"s_waitcnt vmcnt({7-j})")
        fresh(a, late, list(range(OB+4*j, OB+4*j+4)), oload[j:], 6, 7 - j)
        for ai in (1, 0):
            a(f"{M32} {vr(AC+16*ai,16)}, {vr(WF+4*(8*ai+j),4)}, {vr(OB+4*j,4)}, {'0' if j == 0 else vr(AC+16*ai,16)}")
    stamp(a, 14)
    a("s_nop 10")
    for r in (2, 3, 1):
        a(f"ds_write_b128 v{RBA+r}, {vr(AC+8*r,4)}\nds_write_b128 v{RBA+r}, {vr(AC+8*r+4,4)} offset:1024")
    a(f"s_cmp_lt_u32 s30, 4\ns_waitcnt lgkmcnt(0)\ns_barrier\ns_cbranch_scc0 C_havexy")
    a(f"ds_read_b128 {vr(YA,4)}, v{XYA}\nds_read_b128 {vr(YA+4,4)}, v{XYA} offset:1024\nds_read_b32 v{G}, v{XGA} offset:2048")
    a.label("C_havexy")
    for r in range(6): a(f"ds_read_b128 {vr(RD+4*r,4)}, v{RBA} offset:{r*1024}")
    for r in range(3):
        a(f"s_waitcnt lgkmcnt({4-2*r})")
        for i in range(4): a(f"v_pk_add_f32 {vr(AC+2*i,2)}, {vr(AC+2*i,2)}, {vr(RD+8*r+2*i,2)}")
    for i in range(4): a(f"v_pk_fma_f32 {vr(AC+2*i,2)}, {vr(AC+2*i,2)}, {vr(G,2)}, {vr(YA+2*i,2)} op_sel_hi:[1,0,1]")
    for i in range(4): a(f"v_cvt_pk_bf16_f32 v{PK4+i}, v{AC+2*i}, v{AC+2*i+1}")
    a(f"""
    s_nop 0
    v_permlane32_swap_b32 v{PK4}, v{PK4+2}
    v_permlane32_swap_b32 v{PK4+1}, v{PK4+3}
    buffer_store_dwordx4 {vr(PK4,4)}, v{OUTV}, s[40:43], s69 offen
    """)
    if STAMP: a("s_waitcnt vmcnt(0)")
    stamp(a, 15)
    if STAMP: a("v_writelane_b32 v255, s21, 40")
    stamp_flush(a)
    a("s_endpgm")

    a.label("B_slow")
    a(f"""
    s_add_u32 s70, s66, {KW}
    s_add_u32 s71, s66, {VW}
    s_mov_b32 s84, 0
    v_mov_b32 v208, 0xff800000
    v_mov_b32 v209, 0xff800000
    """)
    a.label("B_slow1")
    a(f"""
    s_add_u32 s85, s70, s84
    {ldk(0, "s85", 0)}
    s_waitcnt vmcnt(0)
    {M32} {vr(S,16)}, {vr(KS,4)}, {vr(Q+8,4)}, 0
    {M32} {vr(S+16,16)}, {vr(KS,4)}, {vr(Q+12,4)}, 0
    s_nop 11
    """)
    for jj in range(2):
        for i in range(8): a(f"v_max3_f32 v{208+jj}, v{S+16*jj+2*i}, v{S+16*jj+2*i+1}, v{208+jj}")
    a("""
    s_add_u32 s84, s84, 1024
    s_cmp_lt_u32 s84, 0x10000
    s_cbranch_scc1 B_slow1
    v_mov_b32 v210, v208
    v_mov_b32 v211, v209
    s_nop 1
    v_permlane32_swap_b32 v208, v210
    v_permlane32_swap_b32 v209, v211
    v_max_f32 v208, v208, v210
    v_max_f32 v209, v209, v211
    s_mov_b32 s84, 0
    """)
    for jj in range(2):
        for i in range(16): a(f"v_sub_f32 v{S+32+16*jj+i}, 0, v{208+jj}\nv_mov_b32 v{ACC+32+16*jj+i}, 0")
    for i in range(8): a(f"v_mov_b32 v{VS+i}, 0x3f803f80")
    a.label("B_slow2")
    a(f"s_add_u32 s85, s70, s84\ns_add_u32 s89, s71, s84\n{ldk(0, 's85', 0)}")
    for x in ldv(0, "s89", 0): a(x)
    a(f"""
    s_waitcnt vmcnt(0)
    {M32} {vr(S,16)}, {vr(KS,4)}, {vr(Q+8,4)}, {vr(S+32,16)}
    {M32} {vr(S+16,16)}, {vr(KS,4)}, {vr(Q+12,4)}, {vr(S+48,16)}
    s_nop 11
    """)
    for i in range(32): a(f"v_exp_f32 v{S+i}, v{S+i}")
    a("s_nop 1")
    for jj in range(2):
        for s in range(2):
            a(f"{SM} {vr(ACC+32+16*jj,16)}, {vr(VS+4*s,4)}, {vr(S+16*jj+8*s,8)}, v{IDX}")
    a("""
    s_add_u32 s84, s84, 1024
    s_cmp_lt_u32 s84, 0x10000
    s_cbranch_scc1 B_slow2
    s_nop 11
    s_branch B_fin
    """)
    a.lines += late.lines
    a.label("K_end")
    a("s_endpgm")
    return a

def build():
    ref = open(f"cdna_kernels/{NAME}.s.ref").read().split("\n")
    head = [l for l in ref if l.startswith(";") and "@launch" not in l]
    t = kernel().text()
    bad = check(t)
    head += """; One launch, 256 workgroups of 8 waves (one per CU), three phases with hand-offs through d_ws:
;   A  waves 4-7 stage x / wqkv into LDS, waves 0-3 compute k, v (published, write-through) and q (kept on chip);
;      waves 4-7 then compute the gate and u = shiftconv(k) * v (published channel-major)
;   B  attention for 128 tokens x 2 heads, keys split over four waves per head; exp2 results feed a sparse MFMA as raw
;      fp32 (high halves selected), a ones row of v gives the row sums; waves 4-7 also run the long causal convolution
;      of two channels as Toeplitz MFMAs; waves 0-3 combine, check the softmax range and normalise
;   C  64 x 64 output tile: g * (o @ wo) + (1 - g) * x * y
; Flags live in d_ws, are cleared by workgroup 0 and released through d_debug; o and y are reset to all-ones first and
; consumers reload what has not arrived yet. Every wait is bounded.""".split("\n")
    out = "\n".join(head) + f"\n; @launch grid=(256,1,1) block=(512,1,1) lds={LDS}\n"
    out += f'.amdgcn_target "amdgcn-amd-amdhsa--gfx950"\n.text\n.globl {NAME}_kernel\n.p2align 8\n.type {NAME}_kernel,@function\n' + t
    out += f""".section .rodata,"a"
.p2align 6
.amdhsa_kernel {NAME}_kernel
  .amdhsa_next_free_vgpr 256
  .amdhsa_next_free_sgpr 102
  .amdhsa_accum_offset 256
  .amdhsa_group_segment_fixed_size 0
  .amdhsa_kernarg_size 104
  .amdhsa_user_sgpr_count 2
  .amdhsa_user_sgpr_kernarg_segment_ptr 1
  .amdhsa_system_sgpr_workgroup_id_x 1
  .amdhsa_float_denorm_mode_32 3
.end_amdhsa_kernel
"""
    return out, bad

if __name__ == "__main__":
    out, bad = build()
    for b in bad: print("HAZARD", b)
    path = sys.argv[1] if len(sys.argv) > 1 else "fused.s"
    open(path, "w").write(out)
    print("wrote", path, len(out), "bytes;", len(bad), "hazards; lds", LDS)
```

```python
import os, sys, struct
from asmlib import Asm, vr, sr, check

NAME = "gated_mix__mha_block__ssm_conv_h3__prompt"
KW, VW, UW, YW, OW, GW = 0x200000, 0x400000, 0x600000, 0x840000, 0xA80000, 0xE00000
CST = 4352
FW = 0xE10000
FS = 256
QF, UF, CF = FW, FW + 4, FW + 8
WS_BYTES = 0xE60000
M32 = "v_mfma_f32_32x32x16_bf16"
M16 = "v_mfma_f32_16x16x32_bf16"
SM = "v_smfmac_f32_32x32x32_bf16"
LOG2E = 1.4426950408889634
STAMP = int(os.environ.get("STAMP", "0"))
env = lambda k, d: type(d)(os.environ.get(k, d))
NS = env("NS", 3)
EXP = env("EXP", "")
STG = env("STG", 4)
STM = env("STM", 8 // STG)
WQ1 = env("WQ1", 4)
KFG = env("KFG", 14)
CDROP, CDT = env("CDROP", 2), env("CDT", 0)
XP, XP2 = env("XP", 3), env("XP2", 3)
OFIRST = env("OFIRST", 0)
YSM = env("YSM", 1)
CVR = env("CVR", 3)
F1 = env("F1", 1)
QROT = env("QROT", 1)
HOL = env("HOL", 1)
CVP = env("CVP", 0)
HS0 = env("HS0", 150)
CS0 = env("CS0", 150)
OLATE = env("OLATE", 1)
YLATE = env("YLATE", 1)
TOUCH = env("TOUCH", 2)
TW = 0xF00000
SPIN = 40000

SLOT = 24576
L_X = 65536
L_PRIV = 73728
USZ = 4576
PRIV = 2 * USZ
PSL = 2176
L_OLD = L_PRIV + 4 * PRIV
L_YNG = L_OLD + 16 * PSL
L_XF = L_YNG + 8 * PSL
L_WQ = L_OLD
L_QX = L_YNG
TB = L_QX + 8192
L_RB = L_OLD
LDS = L_XF + 256
W_XCH, W_QW, W_KV, W_TB, W_PO, W_QR, W_PR, W_CNT, W_PY, W_LH, W_LC, W_YS, W_OL = 0, 16, 32, 48, 64, 80, 96, 128, 144, 160, 176, 192, 208

def f32(x):
    return "0x%08x" % struct.unpack("<I", struct.pack("<f", x))[0]

def srd(a, d, b, nbytes):
    a(f"s_mov_b32 s{d}, s{b}\ns_mov_b32 s{d+1}, s{b+1}\ns_mov_b32 s{d+2}, {hex(nbytes)}\ns_mov_b32 s{d+3}, 0x20000")

def stamp(a, i, mode=1):
    if not STAMP or (STAMP != mode and i not in (0, 15)): return
    a(f"""
    s_memtime s[96:97]
    s_memrealtime s[98:99]
    s_waitcnt lgkmcnt(0)
    v_writelane_b32 v255, s96, {2*i}
    v_writelane_b32 v255, s98, {2*i+1}
    """)
def stamp_flush(a):
    if not STAMP: return
    a(f"""
    s_lshl_b32 s96, s2, 3
    s_add_u32 s96, s96, s30
    s_lshl_b32 s96, s96, 8
    s_add_u32 s96, s96, {TW}
    s_mov_b32 s34, 0x1400000
    v_lshlrev_b32 v6, 2, v0
    buffer_store_dword v255, v6, s[32:35], s96 offen
    """)

WS = "s[32:35]"
IDX, L16, VOF, L4H = 2, 3, 4, 5
KF2, VZ, WOA, RBA, XYA, XGA, OUTV = 222, 223, 232, 233, 237, 238, 239
CFV, KFV, MYW, XW4, WOV, XOV, QA, Z4, XW, ONE, XW8 = 240, 241, 242, 243, 244, 245, 246, 248, 252, 253, 254
_uid = [0]
def uid(p):
    _uid[0] += 1
    return f"{p}{_uid[0]}"

def poll(a, voff, soff, tmp, srd_=WS):
    L = uid("POLL")
    a(f"s_mov_b32 s90, {SPIN}")
    a.label(L)
    a(f"""
    buffer_load_dword v{tmp}, v{voff}, {srd_}, {soff} offen sc1
    s_waitcnt vmcnt(0)
    v_cmp_eq_u32 vcc, 1, v{tmp}
    s_sub_u32 s90, s90, 1
    s_cbranch_scc1 {L}_out
    s_cmp_eq_u64 vcc, exec
    s_cbranch_scc0 {L}
    """)
    a.label(f"{L}_out")

def all_set(a, late, val, voff, soff, srd_=WS):
    L = uid("AS")
    a(f"v_cmp_eq_u32 vcc, 1, v{val}\ns_nop 0\ns_cmp_eq_u64 vcc, exec\ns_cbranch_scc0 {L}")
    a.label(f"{L}_ok")
    late.label(L)
    poll(late, voff, soff, val, srd_)
    late(f"s_branch {L}_ok")

def lds_wait(a, vaddr, off, tmp):
    L = uid("LW")
    a("s_mov_b32 s90, 0x400000")
    a.label(L)
    a(f"""
    ds_read_b32 v{tmp}, v{vaddr} offset:{off}
    s_waitcnt lgkmcnt(0)
    v_cmp_eq_u32 vcc, 1, v{tmp}
    s_sub_u32 s90, s90, 1
    s_cbranch_scc1 {L}_out
    s_cmp_eq_u64 vcc, exec
    s_cbranch_scc0 {L}
    """)
    a.label(f"{L}_out")

mark = lambda off: f"ds_write_b32 v{MYW}, v{ONE} offset:{off}"

def arrive(a, k, tmp, n=4):
    L = uid("AR")
    a(f"""
    s_mov_b64 exec, 1
    ds_add_rtn_u32 v{tmp}, v{XW}, v{ONE} offset:{W_CNT+4*k}
    s_waitcnt lgkmcnt(0)
    v_cmp_eq_u32 vcc, {n-1}, v{tmp}
    s_nop 4
    s_cbranch_vccz {L}
    buffer_store_dword v{ONE}, v{VZ}, {WS}, s62 offen offset:{4*k} sc1
    """)
    a.label(L)
    a("s_mov_b64 exec, -1")

def fresh(a, late, regs, reload, tmp, keep=0):
    L = uid("FR")
    chk = [f"v_max3_u32 v{tmp}, v{regs[0]}, v{regs[1]}, v{regs[2]}"]
    r = list(regs[3:])
    while len(r) >= 2: chk.append(f"v_max3_u32 v{tmp}, v{r.pop(0)}, v{r.pop(0)}, v{tmp}")
    if r: chk.append(f"v_max_u32 v{tmp}, v{r[0]}, v{tmp}")
    chk += [f"v_cmp_eq_u32 vcc, -1, v{tmp}", "s_nop 0", "s_cmp_eq_u64 vcc, 0"]
    a("\n".join(chk)); a(f"s_cbranch_scc0 {L}")
    a.label(f"{L}_ok")
    late.label(L)
    late(f"s_mov_b32 s90, {SPIN}")
    late.label(f"{L}_l")
    if STAMP: late("s_add_u32 s21, s21, 1")
    late("\n".join(reload) + f"\ns_waitcnt vmcnt({keep})\n" + "\n".join(chk))
    late(f"s_cbranch_scc1 {L}_ok\ns_sub_u32 s90, s90, 1\ns_cbranch_scc0 {L}_l\ns_branch {L}_ok")

def lines(t):
    return [l.strip() for l in t.strip().split("\n") if l.strip()]

def kernel():
    a = Asm(); late = Asm()
    a.label(f"{NAME}_kernel")
    a(f"""
    s_cmp_ge_u32 s2, 256
    s_cbranch_scc1 K_end
    """)
    if STAMP == 4: a("v_mov_b32 v255, 0"); stamp(a, 0)
    if TOUCH == 2:
        a("""
        v_lshlrev_b32 v221, 7, v0
        v_min_u32 v221, K_end-A_pc, v221
        s_getpc_b64 s[80:81]
        A_pc:
        global_load_dword v221, v221, s[80:81]
        """)
    a(f"""
    s_load_dwordx8 s[4:11], s[0:1], 0
    s_load_dwordx16 s[12:27], s[0:1], 32
    s_load_dwordx2 s[28:29], s[0:1], 96
    v_lshrrev_b32 v1, 6, v0
    v_and_b32 v0, 63, v0
    s_and_b32 s31, s2, 7
    v_readfirstlane_b32 s30, v1
    s_lshr_b32 s56, s2, 3
    s_lshr_b32 s57, s31, 1
    s_lshl_b32 s57, s57, 2
    s_lshr_b32 s59, s56, 3
    s_add_u32 s57, s57, s59
    s_and_b32 s58, s31, 1
    s_lshl_b32 s58, s58, 3
    s_and_b32 s60, s56, 7
    s_add_u32 s58, s58, s60
    """)
    if STAMP == 4: stamp(a, 1, 4)
    elif STAMP: a("v_mov_b32 v255, 0"); stamp(a, 0)
    a("s_cmp_lt_u32 s30, 4\ns_cbranch_scc1 A_compute")

    Q, ACC, S, KS, VS = 16, 32, 96, 160, 176
    WF, OB, AC, YA, YF, XR, RD, PK4, XG = 16, 80, 112, 144, 176, 192, 80, 104, 112
    G = 208
    def common_setup(a, t0, t1, t2):
        a(f"""
        s_and_b32 s63, s30, 1
        s_lshr_b32 s64, s30, 1
        s_lshl_b32 s61, s58, 1
        s_add_u32 s61, s61, s63
        s_lshl_b32 s62, s2, 8
        s_add_u32 s62, s62, {FW}
        s_lshl_b32 s66, s61, 16
        s_lshl_b32 s67, s63, 12
        s_add_u32 s67, s67, {L_QX}
        s_cmp_eq_u32 s64, 0
        s_cselect_b32 s68, 2048, 0
        s_xor_b32 s69, s68, 2048
        s_add_u32 s68, s68, s67
        s_add_u32 s69, s69, s67
        v_lshlrev_b32 v{L16}, 4, v0
        v_add_u32 v{QA}, s68, v{L16}
        v_add_u32 v{QA+1}, s69, v{L16}
        s_lshr_b32 s71, s57, 2
        s_add_u32 s71, s71, {QROT}
        s_mul_i32 s71, s71, {1 if QROT else 0}
        s_add_u32 s71, s71, s64
        s_and_b32 s79, s71, 3
        s_lshl_b32 s70, s79, 14
        s_add_u32 s70, s70, s66
        s_add_u32 s71, s70, {VW}
        s_add_u32 s70, s70, {KW}
        s_mov_b32 s72, 0xffff
        s_mov_b32 s73, 0xffff
        s_lshl_b32 s74, s60, 3
        s_lshr_b32 s75, s58, 3
        s_add_u32 s74, s74, s75
        s_lshl_b32 s75, s79, 1
        s_add_u32 s74, s74, s75
        s_lshl_b32 s74, s74, 8
        s_add_u32 s74, s74, {QF}
        s_lshl_b32 s75, s31, 2
        s_add_u32 s75, s75, s59
        s_mov_b32 s76, s60
        s_lshl_b32 s77, s63, 15
        s_lshl_b32 s78, s64, 13
        s_add_u32 s77, s77, s78
        s_lshl_b32 s78, s64, 17
        s_lshl_b32 s85, s76, 7
        s_add_u32 s78, s78, s85
        s_lshl_b32 s79, s63, 6
        s_add_u32 s78, s78, s79
        s_lshl_b32 s79, s30, 10
        s_add_u32 s79, s79, {L_X}
        v_and_b32 v{t0}, 31, v0
        v_lshlrev_b32 v{L4H}, 2, v{t0}
        v_lshrrev_b32 v{t1}, 5, v0
        v_lshlrev_b32 v{OUTV}, 10, v{t0}
        v_lshl_add_u32 v{OUTV}, v{t1}, 4, v{OUTV}
        v_and_b32 v{t0}, 15, v0
        v_lshlrev_b32 v{t0}, 4, v{t0}
        v_lshl_add_u32 v{VOF}, v{t1}, 8, v{t0}
        v_mov_b32 v{IDX}, 0xdddd
        v_and_b32 v{t0}, 3, v0
        v_lshlrev_b32 v{XW4}, 2, v{t0}
        v_add_u32 v{XW4}, {L_XF}, v{XW4}
        v_bfe_u32 v{t2}, v0, 2, 2
        v_lshlrev_b32 v{KFV}, 14, v{t0}
        v_and_b32 v{KF2}, 0x4000, v{KFV}
        v_lshl_add_u32 v{t2}, v{t1}, 2, v{t2}
        v_lshlrev_b32 v{t2}, 6, v{t2}
        v_lshl_add_u32 v{t2}, v{t0}, 3, v{t2}
        s_and_b32 s80, s64, 1
        v_bfe_u32 v{WOA}, v0, 4, 1
        v_xor_b32 v{WOA}, s80, v{WOA}
        v_lshl_add_u32 v{t2}, v{WOA}, 5, v{t2}
        s_lshr_b32 s80, s64, 1
        s_lshl_b32 s80, s80, 15
        s_lshl_b32 s81, s64, 13
        s_add_u32 s80, s80, s81
        s_and_b32 s82, s76, 1
        s_lshl_b32 s82, s82, 12
        s_add_u32 s80, s80, s82
        v_add_u32 v{WOA}, s80, v{t2}
        v_lshrrev_b32 v{t2}, 2, v0
        v_lshlrev_b32 v{t2}, 10, v{t2}
        v_lshl_add_u32 v{WOV}, v{t0}, 4, v{t2}
        s_lshl_b32 s83, s75, 1
        s_add_u32 s83, s83, s63
        s_lshl_b32 s83, s83, 15
        s_add_u32 s81, s81, s83
        s_add_u32 s81, s81, {OW}
        s_add_u32 s67, s81, s82
        s_xor_b32 s82, s82, 4096
        s_add_u32 s68, s81, s82
        s_add_u32 s69, s83, s85
        s_lshl_b32 s80, s64, 5
        s_add_u32 s69, s69, s80
        s_lshl_b32 s80, s75, 6
        s_lshl_b32 s81, s30, 3
        s_add_u32 s80, s80, s81
        v_lshrrev_b32 v{t2}, 3, v0
        v_add_u32 v{t2}, s80, v{t2}
        v_lshlrev_b32 v{t2}, 10, v{t2}
        v_lshrrev_b32 v{t1}, 4, v0
        s_lshl_b32 s81, s63, 2
        v_xor_b32 v{t1}, s81, v{t1}
        v_and_b32 v{t0}, 7, v0
        v_xor_b32 v{t1}, v{t1}, v{t0}
        v_lshl_add_u32 v{t2}, v{t1}, 4, v{t2}
        v_add_u32 v{XOV}, s85, v{t2}
        v_lshlrev_b32 v{XW8}, 2, v{t0}
        v_add_u32 v{XW8}, {L_XF}, v{XW8}
        v_bfe_u32 v{t1}, v0, 3, 1
        v_lshlrev_b32 v{t0}, 11, v{t0}
        v_lshl_add_u32 v{CFV}, v{t1}, 8, v{t0}
        s_lshr_b32 s80, s75, 1
        s_and_b32 s84, s80, 3
        s_lshl_b32 s84, s84, 6
        s_lshr_b32 s80, s80, 2
        s_lshl_b32 s80, s80, 1
        s_add_u32 s80, s80, s84
        s_lshl_b32 s80, s80, 8
        s_add_u32 s101, s80, {CF}
        s_add_u32 s81, s81, s64
        """)
        for r in range(4):
            a(f"s_xor_b32 s80, s81, {r}\ns_mul_i32 s80, s80, 6144\ns_add_u32 s80, s80, {L_RB+max(r-1,0)*2048}\nv_add_u32 v{RBA+r}, s80, v{L16}")
        a(f"""
        s_and_b32 s84, s30, 3
        s_mul_i32 s65, s84, {PRIV}
        s_add_u32 s65, s65, {L_PRIV}
        s_add_u32 s80, s65, 4096
        v_add_u32 v{XYA}, s80, v{L16}
        v_add_u32 v{XGA}, s80, v{L4H}
        s_lshl_b32 s80, s84, 2
        s_add_u32 s80, s80, {L_XF}
        v_mov_b32 v{MYW}, s80
        v_mov_b32 v{XW}, {L_XF}
        v_mov_b32 v{ONE}, 1
        v_mov_b32 v{VZ}, 0
        """)
        for i in range(4): a(f"v_mov_b32 v{Z4+i}, 0")
        srd(a, 44, 8, 0x80000)
    ones = lambda t: lines(f"v_and_b32 v{t}, 27, v0\nv_cmp_eq_u32 vcc, 16, v{t}\nv_mov_b32 v{t}, 0x3f803f80\ns_nop 0\nv_cndmask_b32 v{t}, 0, v{t}, vcc")
    ldk = lambda st, so, off: f"buffer_load_dwordx4 {vr(KS+4*st,4)}, v{L16}, {WS}, {so} offen offset:{off} sc1"
    def ldv(st, so, off):
        return ["s_mov_b64 exec, s[72:73]",
                f"buffer_load_dwordx4 {vr(VS+8*st,4)}, v{VOF}, {WS}, {so} offen offset:{off} sc1",
                f"buffer_load_dwordx4 {vr(VS+8*st+4,4)}, v{VOF}, {WS}, {so} offen offset:{off+512} sc1",
                "s_mov_b64 exec, -1"]
    def att_q():
        lds_wait(a, XW4, W_QW, Q)
        for j in range(4): a(f"ds_read_b128 {vr(Q+4*j,4)}, v{QA+j//2} offset:{(j%2)*1024}")
    def att_loads():
        a(ldk(0, "s70", 0))
        for m in range(3):
            for x in ldv(m, "s71", m*1024): a(x)
            a(ldk(m+1, "s70", (m+1)*1024))
    def c_wo():
        a(f"v_xor_b32 v6, 4096, v{WOA}\nv_xor_b32 v7, 0x8000, v{WOA}\nv_xor_b32 v8, 0x9000, v{WOA}")
        for ai in range(2):
            for j in range(8):
                for jj in range(2):
                    a(f"ds_read_b64_tr_b16 {vr(WF+4*(8*ai+j)+2*jj,2)}, v{[WOA,6,7,8][2*ai+j//4]} offset:{(j%4)*1024+jj*512}")
                if j % 4 == 3 and 8*ai+j < 15: a("s_waitcnt lgkmcnt(4)")
    oload = [f"buffer_load_dwordx4 {vr(OB+4*j,4)}, v{L16}, {WS}, s{67+j//4} offen offset:{(j%4)*1024} sc1" for j in range(8)]

    XV, WV = 16, 20
    a(f"""
    s_setprio 1
    s_sub_u32 s84, s30, 4
    s_lshl_b32 s80, s57, 7
    s_lshl_b32 s81, s84, 5
    s_add_u32 s80, s80, s81
    v_lshrrev_b32 v6, 3, v0
    v_add_u32 v6, s80, v6
    v_lshlrev_b32 v6, 10, v6
    v_and_b32 v7, 7, v0
    v_lshrrev_b32 v8, 4, v0
    v_xor_b32 v9, v7, v8
    v_lshl_add_u32 v{XV}, v9, 4, v6
    v_xor_b32 v9, 4, v9
    v_lshl_add_u32 v{XV+1}, v9, 4, v6
    v_add_u32 v{XV+1}, 7168, v{XV+1}
    v_add_u32 v{XV+2}, {2*7168}, v{XV}
    v_add_u32 v{XV+3}, {2*7168}, v{XV+1}
    s_lshl_b32 s81, s84, 4
    v_lshrrev_b32 v6, 2, v0
    v_add_u32 v6, s81, v6
    v_mul_u32_u24 v6, 3072, v6
    v_and_b32 v7, 3, v0
    v_lshl_add_u32 v6, v7, 4, v6
    s_lshl_b32 s81, s58, 6
    v_add_u32 v{WV}, s81, v6
    s_lshl_b32 s92, s84, 12
    s_lshl_b32 s93, s84, 11
    s_add_u32 s93, s93, {16384-1024}
    s_lshl_b32 s94, s59, 1
    s_add_u32 s94, s94, s60
    {"s_mov_b32 s94, 0" if "nostag" in EXP else ""}
    {"s_add_u32 s94, s59, s60" if STG < 8 else ""}
    {f"s_and_b32 s94, s94, {STG-1}" if STG < 8 else ""}
    {f"s_mul_i32 s94, s94, {STM}" if STG < 8 else ""}
    {"v_and_b32 v20, 0xfff0, v16" if "wl2" in EXP else ""}
    {"v_and_b32 v16, 0xfff0, v16" if "xl2" in EXP else ""}
    {"v_and_b32 v17, 0xfff0, v17" if "xl2" in EXP else ""}
    {"v_and_b32 v18, 0xfff0, v18" if "xl2" in EXP else ""}
    {"v_and_b32 v19, 0xfff0, v19" if "xl2" in EXP else ""}
    s_waitcnt lgkmcnt(0)
    """)
    srd(a, 36, 4, 0x200000); srd(a, 40, 6, 0x180000)
    stamp(a, 1, 3)
    def dma(st):
        base = (st % NS) * SLOT
        a(f"s_add_u32 s95, s94, {st}\ns_and_b32 s95, s95, 7\ns_lshl_b32 s100, s95, 7\ns_add_u32 m0, s92, {base}\ns_mul_i32 s95, s95, 196608")
        for j in range(4): a(f"buffer_load_dwordx4 v{XV+j}, s[36:39], s100 offen offset:{j*1024} lds")
        a(f"s_add_u32 m0, s93, {base}\ns_nop 0")
        for j in (1, 2): a(f"buffer_load_dwordx4 v{WV}, s[40:43], s95 offen offset:{j*1024} lds")
        stamp(a, 2 + st, 3)
    dma(0); dma(1)
    issued = 2
    a(f"v_lshlrev_b32 v32, 2, v0\nv_add_u32 v32, {L_XF}, v32\nv_mov_b32 v33, 0\nds_write_b32 v32, v33")
    main = a; a = Asm()
    srd(a, 32, 28, WS_BYTES); srd(a, 52, 26, 256)
    common_setup(a, 6, 7, 8)
    BA, PW16, PW4, A0, A64, A512, U2, PV16, PT16, PTW, YST = 1, 6, 7, 8, 9, 10, 11, 12, 13, 14, 15
    UFV, GFV, P0, P1, YLD, YSW, YSR, XAD, DF, PM = 210, 211, 212, 213, 214, 215, 216, 217, 218, 224
    UK, TBW, TBR, US, SKV, GOV = 21, 24, 25, 26, 28, 29
    a(f"""
    s_lshl_b32 s91, s31, 6
    s_lshl_b32 s80, s56, 1
    s_add_u32 s91, s91, s80
    s_lshr_b32 s80, s84, 1
    s_add_u32 s91, s91, s80
    s_and_b32 s80, s91, -2
    s_lshl_b32 s80, s80, 1
    s_load_dword s89, s[20:21], s80
    v_and_b32 v32, 31, v0
    v_lshrrev_b32 v33, 5, v0
    v_and_b32 v34, 15, v0
    v_lshrrev_b32 v35, 4, v0
    v_and_b32 v36, 7, v0
    v_lshrrev_b32 v37, 3, v0
    v_min_u32 v38, 29, v32
    v_lshlrev_b32 v38, 4, v38
    v_mul_u32_u24 v39, {USZ}, v33
    v_add3_u32 v30, v38, v39, s65
    s_mul_i32 s80, s84, {4*PSL}
    s_add_u32 s80, s80, {L_OLD}
    v_add_u32 v{PW16}, s80, v{L16}
    v_add_u32 v{PW4}, s80, v{L4H}
    s_lshl_b32 s81, s63, 8
    v_lshlrev_b32 v38, 4, v35
    v_lshl_add_u32 v{A0}, v34, 2, v38
    s_sub_u32 s80, s81, 60
    v_add_u32 v{A0}, s80, v{A0}
    v_add_u32 v{A64}, 64, v{A0}
    v_add_u32 v{A512}, 512, v{A0}
    v_add_u32 v{U2}, 2, v{L16}
    v_add_u32 v{PV16}, s65, v{L16}
    s_xor_b32 s80, s84, 1
    s_lshl_b32 s82, s80, 2
    s_add_u32 s82, s82, {L_XF}
    v_mov_b32 v{PTW}, s82
    s_mul_i32 s80, s80, {PRIV}
    s_add_u32 s80, s80, {L_PRIV}
    v_add_u32 v{PT16}, s80, v{L16}
    v_and_b32 v39, 1, v0
    v_mul_u32_u24 v39, {USZ}, v39
    v_bfe_u32 v40, v0, 1, 3
    v_lshlrev_b32 v41, 6, v40
    v_sub_u32 v39, v39, v41
    s_add_u32 s80, s65, 448
    s_add_u32 s80, s80, s81
    v_add3_u32 v{BA}, v39, v38, s80
    v_and_b32 v38, 3, v0
    v_lshlrev_b32 v{GOV}, 2, v38
    v_lshlrev_b32 v38, 4, v38
    v_bfe_u32 v39, v0, 2, 2
    v_lshl_add_u32 v38, v39, 7, v38
    v_lshl_add_u32 v38, v33, 6, v38
    v_bfe_u32 v41, v0, 4, 1
    v_lshl_add_u32 v{YST}, v41, 9, v38
    v_lshlrev_b32 v{UFV}, 9, v{L4H}
    v_lshlrev_b32 v{GFV}, 11, v36
    v_mul_u32_u24 v38, {CST}, v37
    v_lshl_add_u32 v{YLD}, v36, 4, v38
    v_xor_b32 v42, v36, v35
    v_lshl_add_u32 v{US}, v42, 4, v38
    v_xor_b32 v42, 4, v42
    v_lshl_add_u32 v{US+1}, v42, 4, v38
    v_xor_b32 v38, v36, v37
    v_lshlrev_b32 v38, 4, v38
    v_lshl_add_u32 v38, v37, 7, v38
    s_add_u32 s80, s65, 6400
    v_add_u32 v{YSW}, s80, v38
    s_lshl_b32 s80, s63, 1
    v_lshl_add_u32 v38, v33, 2, s80
    v_xor_b32 v38, v38, v36
    v_lshlrev_b32 v38, 4, v38
    v_lshl_add_u32 v38, v34, 7, v38
    s_and_b32 s80, s64, 1
    s_mul_i32 s80, s80, {PRIV}
    s_add_u32 s80, s80, {L_PRIV+6400}
    v_add_u32 v{YSR}, s80, v38
    s_lshl_b32 s80, s64, 1
    v_xor_b32 v38, s80, v40
    v_lshlrev_b32 v38, 4, v38
    v_lshl_add_u32 v38, v32, 7, v38
    v_lshl_add_u32 v38, v33, 3, v38
    s_lshl_b32 s80, s63, 12
    s_add_u32 s80, s80, {L_X}
    v_add_u32 v{XAD}, s80, v38
    v_and_b32 v38, 1, v0
    v_lshl_or_b32 v39, v38, 2, v39
    v_xor_b32 v41, v41, v33
    v_lshl_or_b32 v39, v41, 3, v39
    v_bfe_u32 v38, v0, 1, 1
    v_lshlrev_b32 v38, 4, v38
    v_mov_b32 v41, 0x3f80
    v_lshlrev_b32 v38, v38, v41
    """)
    for i in range(8): a(f"v_cmp_eq_u32 vcc, {i}, v39\ns_nop 1\nv_cndmask_b32 v{PM+i}, 0, v38, vcc")
    a(f"""
    s_lshl_b32 s80, s56, 16
    s_lshl_b32 s82, s84, 14
    s_add_u32 s80, s80, s82
    s_lshl_b32 s82, s31, 7
    s_add_u32 s80, s80, s82
    v_lshlrev_b32 v38, 13, v33
    v_lshl_add_u32 v38, v32, 2, v38
    v_add_u32 v{UK+1}, s80, v38
    v_add_u32 v{UK}, -3072, v{UK+1}
    v_add_u32 v{UK+2}, 4096, v{UK+1}
    s_lshl_b32 s80, s31, 9
    v_lshl_add_u32 v{SKV}, v32, 4, s80
    s_lshl_b32 s80, s84, 1
    v_add_u32 v38, s80, v33
    v_sub_u32 v38, 7, v38
    v_xor_b32 v38, v38, v36
    v_lshlrev_b32 v38, 4, v38
    v_lshl_add_u32 v38, v32, 8, v38
    v_add_u32 v{TBW}, {TB}, v38
    s_lshl_b32 s80, s84, 11
    s_add_u32 s80, s80, {TB}
    v_add_u32 v{TBR}, s80, v{L16}
    s_lshl_b32 s10, s31, 2
    s_add_u32 s10, s10, s84
    s_mul_i32 s10, s10, {16*CST}
    s_lshl_b32 s80, s56, 7
    s_sub_u32 s10, s10, s80
    s_add_u32 s10, s10, {UW + 248*16}
    s_add_u32 s11, s10, {8*CST}
    s_lshl_b32 s87, s31, 8
    s_add_u32 s87, s87, {UF}
    s_lshr_b32 s86, s31, 1
    s_lshl_b32 s86, s86, 1
    s_and_b32 s80, s75, 1
    s_add_u32 s86, s86, s80
    s_lshr_b32 s80, s75, 1
    s_and_b32 s80, s80, 3
    s_lshl_b32 s80, s80, 6
    s_add_u32 s86, s86, s80
    s_lshl_b32 s86, s86, 8
    s_add_u32 s86, s86, {UF}
    v_lshl_add_u32 v39, v35, 2, v34
    s_waitcnt lgkmcnt(0)
    s_and_b32 s80, s91, 1
    s_lshl_b32 s80, s80, 4
    s_lshr_b32 s89, s89, s80
    s_and_b32 s89, s89, 0xffff
    v_mov_b32 v38, s89
    """)
    for i in range(4): a(f"v_cmp_eq_u32 vcc, {15-i}, v39\ns_nop 1\nv_cndmask_b32 v{DF+i}, 0, v38, vcc")
    for x in ones(38): a(x)
    for i in range(32): a(f"v_mov_b32 v{VS+i}, v38")
    defer = a.lines; a = main
    cuts = [0, HS0] + [HS0 + (len(defer) - HS0) * (n + 1) // 7 for n in range(7)]
    for n in range(1, len(cuts) - 1):
        while cuts[n] < len(defer) and ("vcc" in defer[cuts[n]] or defer[cuts[n]].startswith(("s_nop", "s_cselect", "s_addc"))): cuts[n] += 1
    a.lines += defer[:cuts[1]]
    for s_ in range(8):
        a(f"s_waitcnt vmcnt({6*(issued-1-s_)}){' lgkmcnt(0)' if s_ == 0 else ''}\ns_barrier")
        while issued < min(8, s_ + NS): dma(issued); issued += 1
        if s_ < 7: a.lines += defer[cuts[s_+1]:cuts[s_+2]]
    a("s_lshr_b32 s92, s92, 2")
    for st in range(8):
        if st == WQ1: a("s_barrier")
        a(f"s_add_u32 s95, s94, {st}\ns_and_b32 s95, s95, 7\ns_add_u32 m0, s92, {L_WQ+st*4096}\ns_mul_i32 s95, s95, 196608")
        a(f"buffer_load_dwordx4 v{WV}, s[40:43], s95 offen lds")
    if WQ1 >= 8: a("s_barrier")
    stamp(a, 10, 3)
    KR, VR, SK, GOH, KF, VF, SF, U, UP, GX, GG = 32, 43, 52, 56, 64, 86, 102, 110, 128, 144, 152
    srd(a, 40, 12, 0x200000); srd(a, 48, 14, 0x200000)
    for i in range(3): a(f"buffer_load_dword v{KR+i}, v{UK}, s[40:43], 0 offen offset:{i*1024} nt")
    for i in range(8): a(f"buffer_load_dword v{KR+3+i}, v{UK+1+i//4}, s[40:43], 0 offen offset:{(i%4)*1024} nt")
    for i in range(8): a(f"buffer_load_dword v{VR+i}, v{UK+1+i//4}, s[48:51], 0 offen offset:{(i%4)*1024} nt")
    srd(a, 40, 16, 4096); srd(a, 48, 22, 1024)
    a(f"""
    s_lshl_b32 s12, s57, 7
    s_lshl_b32 s80, s58, 3
    s_add_u32 s12, s12, s80
    s_lshl_b32 s80, s84, 1
    s_add_u32 s12, s12, s80
    s_lshl_b32 s80, s12, 10
    s_lshl_b32 s12, s12, 2
    s_add_u32 s12, s12, {GW}
    buffer_load_dwordx4 {vr(SK,4)}, v{SKV}, s[40:43], 0 offen
    buffer_load_dwordx4 {vr(GG,4)}, v{L16}, s[48:51], 0 offen
    buffer_load_dwordx4 {vr(GX,4)}, v{L16}, s[36:39], s80 offen
    buffer_load_dwordx4 {vr(GX+4,4)}, v{L16}, s[36:39], s80 offen offset:1024
    buffer_load_dword v{GOH}, v{GOV}, s[52:55], 0 offen sc1
    s_waitcnt vmcnt(24)
    s_barrier
    s_setprio 0
    """)
    stamp(a, 1); stamp(a, 11, 3)
    a(f"ds_write_b128 v30, {vr(Z4,4)} offset:4096")
    srd(a, 40, 24, 0x200000)
    a(f"""
    s_mul_i32 s13, s91, {CST}
    s_lshl_b32 s80, s63, 11
    s_add_u32 s7, s13, s80
    s_add_u32 s7, s7, {YW}
    s_add_u32 s13, s13, {UW}
    s_mov_b32 s88, s7
    s_add_u32 s89, s7, 1024
    s_and_b32 s4, s64, 1
    s_lshl_b32 s4, s4, 1
    s_lshl_b32 s5, s57, 2
    s_add_u32 s4, s4, s5
    s_lshl_b32 s4, s4, 15
    s_lshl_b32 s5, s61, 10
    s_add_u32 s4, s4, s5
    s_add_u32 s4, s4, {OW}
    s_add_u32 s5, s4, 0x8000
    s_mov_b32 s8, 1
    s_lshl_b32 s14, s75, 1
    s_add_u32 s14, s14, s63
    s_lshl_b32 s14, s14, 7
    s_add_u32 s14, s14, {GW}
    s_lshl_b32 s15, s76, 2
    s_add_u32 s15, s15, s84
    s_mul_i32 s15, s15, {16*CST}
    s_lshl_b32 s82, s75, 7
    s_add_u32 s15, s15, s82
    s_add_u32 s15, s15, {YW}
    s_add_u32 s16, s15, {8*CST}
    s_lshl_b32 s17, s76, 8
    s_add_u32 s17, s17, {CF}
    s_lshl_b32 s82, s91, 12
    s_add_u32 s82, s82, s80
    s_add_u32 s92, s18, s82
    s_addc_u32 s93, s19, 0
    s_mov_b32 s83, 99
    s_mov_b32 s82, 2
    s_mov_b32 s6, 0xffff0000
    s_waitcnt vmcnt(4)
    """)
    stamp(a, 2)
    a(f"buffer_load_dword v57, v{KF2}, {WS}, s74 offen sc1")
    for i in range(11): a(f"v_lshlrev_b32 v{KF+2*i}, 16, v{KR+i}\nv_and_b32 v{KF+2*i+1}, s6, v{KR+i}")
    for i in range(8): a(f"v_lshlrev_b32 v{VF+2*i}, 16, v{VR+i}\nv_and_b32 v{VF+2*i+1}, s6, v{VR+i}")
    for ch in range(2):
        for t in range(4):
            src = SK + 2*ch + t//2
            a(f"v_lshlrev_b32 v{SF+2*t+ch}, 16, v{src}" if t % 2 == 0 else f"v_and_b32 v{SF+2*t+ch}, s6, v{src}")
    for i in range(8):
        u = vr(U+2*i, 2)
        a(f"v_pk_mul_f32 {u}, {vr(KF+2*i,2)}, {vr(SF+6,2)}")
        for t in (2, 1, 0): a(f"v_pk_fma_f32 {u}, {vr(KF+2*(i+3-t),2)}, {vr(SF+2*t,2)}, {u}")
        a(f"v_pk_mul_f32 {u}, {u}, {vr(VF+2*i,2)}")
    for ch in range(2):
        for i in range(4): a(f"v_cvt_pk_bf16_f32 v{KR+4*ch+i}, v{U+2*(7-2*i)+ch}, v{U+2*(6-2*i)+ch}")
    a(f"""
    ds_write_b128 v{TBW}, {vr(KR,4)}
    ds_write_b128 v{TBW}, {vr(KR+4,4)} offset:128
    v_mov_b32 v48, 0
    v_mov_b32 v49, 0
    s_waitcnt vmcnt(0) lgkmcnt(0)
    {mark(W_TB)}
    """)

    for i in range(4):
        a(f"v_dot2_f32_bf16 v48, v{GX+i}, v{GG+i}, v48\nv_dot2_f32_bf16 v49, v{GX+4+i}, v{GG+i}, v49")
    a("s_nop 2")
    for d in ("row_shr:1 row_mask:0xf bank_mask:0xf bound_ctrl:0", "row_shr:2 row_mask:0xf bank_mask:0xf bound_ctrl:0",
              "row_shr:4 row_mask:0xf bank_mask:0xf bound_ctrl:0", "row_shr:8 row_mask:0xf bank_mask:0xf bound_ctrl:0",
              "row_bcast:15 row_mask:0xa bank_mask:0xf", "row_bcast:31 row_mask:0xc bank_mask:0xf"):
        a(f"v_add_f32_dpp v48, v48, v48 {d}\nv_add_f32_dpp v49, v49, v49 {d}\ns_nop 0")
    a(f"""
    v_cvt_pk_bf16_f32 v50, v48, v49
    v_lshlrev_b32 v48, 16, v50
    v_and_b32 v49, s6, v50
    v_mul_f32 v48, {f32(-LOG2E)}, v48
    v_mul_f32 v49, {f32(-LOG2E)}, v49
    v_exp_f32 v48, v48
    v_exp_f32 v49, v49
    s_nop 0
    v_add_f32 v48, 1.0, v48
    v_add_f32 v49, 1.0, v49
    v_rcp_f32 v48, v48
    v_rcp_f32 v49, v49
    s_nop 0
    v_cvt_pk_bf16_f32 v50, v48, v49
    v_lshlrev_b32 v{UP+8}, 16, v50
    v_and_b32 v{UP+9}, s6, v50
    v_mov_b32 v{UP+10}, v{US}
    v_mov_b32 v{UP+11}, v{US+1}
    """)
    all_set(a, late, GOH, GOV, "0", "s[52:55]")
    lds_wait(a, XW4, W_TB, 56)
    a(f"ds_read_b128 {vr(UP,4)}, v{TBR}\nds_read_b128 {vr(UP+4,4)}, v{TBR} offset:1024")
    stamp(a, 3); stamp(a, 12, 3)
    all_set(a, late, 57, KF2, "s74")
    att_loads()
    a("s_waitcnt lgkmcnt(0)")
    a(f"""
    buffer_store_dwordx4 {vr(UP,4)}, v{UP+10}, {WS}, s10 offen sc1
    buffer_store_dwordx4 {vr(UP+4,4)}, v{UP+11}, {WS}, s11 offen sc1
    s_mov_b32 exec_lo, 0
    s_mov_b32 exec_hi, 0x80000000
    buffer_store_dwordx2 {vr(UP+8,2)}, v{VZ}, {WS}, s12 offen sc1
    s_mov_b64 exec, -1
    """)
    stamp(a, 4); stamp(a, 13, 3)
    att_q()
    lds_wait(a, XW4, W_QR, 56)
    a("s_setprio 1")
    stamp(a, 5); stamp(a, 6)
    for i in range(12): a(f"s_load_dword s100, s[92:93], {i*128}")

    a("s_branch B_go")

    a.label("A_compute")
    XA, WA, AK, AV, AQ, XF, FR, FQ, GO = 6, [14, 15, 1], 20, 36, 48, 64, 192, [208, 212, 216, 28, 32], 19
    a(f"""
    v_and_b32 v20, 31, v0
    v_lshrrev_b32 v21, 5, v0
    v_bfe_u32 v22, v0, 1, 3
    v_xor_b32 v22, v22, v21
    s_lshl_b32 s80, s30, 12
    v_lshlrev_b32 v20, 7, v20
    v_lshl_add_u32 v20, v22, 4, v20
    v_add_u32 v{XA}, s80, v20
    """)
    for ks in range(1, 4): a(f"v_xor_b32 v{XA+ks}, {ks*32}, v{XA}")
    for ks in range(4): a(f"v_add_u32 v{XA+4+ks}, {2*SLOT}, v{XA+ks}")
    a(f"""
    v_bfe_u32 v20, v0, 2, 2
    v_lshl_add_u32 v20, v21, 3, v20
    v_lshlrev_b32 v20, 6, v20
    v_bfe_u32 v22, v0, 4, 1
    v_lshl_add_u32 v20, v22, 5, v20
    v_and_b32 v23, 3, v0
    v_lshl_add_u32 v20, v23, 3, v20
    v_add_u32 v{WA[0]}, 16384, v20
    v_add_u32 v{WA[1]}, {16384+2*SLOT}, v20
    v_add_u32 v{WA[2]}, {L_WQ}, v20
    v_lshlrev_b32 v228, 2, v23
    v_mov_b32 v55, v22
    s_waitcnt lgkmcnt(0)
    """)
    srd(a, 32, 28, WS_BYTES); srd(a, 52, 26, 256)
    a(f"""
    s_cmp_lg_u32 s2, 0
    s_cbranch_scc1 A_noclear
    s_lshl_b32 s80, s30, 14
    s_add_u32 s80, s80, {FW}
    v_lshlrev_b32 v24, 8, v0
    v_mov_b32 v28, 0
    v_mov_b32 v29, 0
    v_mov_b32 v30, 0
    v_mov_b32 v31, 0
    v_mov_b32 v25, 1
    buffer_store_dwordx4 v[28:31], v24, {WS}, s80 offen sc1
    s_lshl_b32 s80, s30, 2
    s_waitcnt vmcnt(0)
    s_mov_b64 exec, 1
    buffer_store_dword v25, v28, s[52:55], s80 offen sc1
    s_mov_b64 exec, -1
    """)
    a.label("A_noclear")
    main = a; a = Asm()
    srd(a, 36, 4, 0x200000); srd(a, 40, 24, 0x200000)
    common_setup(a, 52, 53, 54)
    a(f"""
    v_and_b32 v16, 0x33, v0
    v_bfe_u32 v17, v0, 2, 1
    v_lshl_or_b32 v16, v17, 3, v16
    v_bfe_u32 v17, v0, 3, 1
    v_lshl_or_b32 v16, v17, 2, v16
    v_lshlrev_b32 v16, 4, v16
    v_lshl_add_u32 v17, v55, 16, v{VOF}
    s_lshl_b32 s80, s30, 10
    s_add_u32 s80, s80, {L_QX}
    v_add_u32 v18, s80, v{L16}
    s_lshl_b32 s10, s58, 17
    s_lshl_b32 s80, s57, 2
    s_add_u32 s81, s80, s30
    s_lshl_b32 s81, s81, 10
    s_add_u32 s10, s10, s81
    s_add_u32 s12, s10, {VW}
    s_add_u32 s10, s10, {KW}
    s_add_u32 s11, s10, 0x10000
    s_mov_b32 s13, {f32(0.25*LOG2E)}
    s_lshl_b32 s81, s64, 1
    s_add_u32 s80, s80, s81
    s_lshl_b32 s80, s80, 15
    s_lshl_b32 s82, s61, 10
    s_add_u32 s80, s80, s82
    s_add_u32 s86, s80, {OW}
    s_add_u32 s87, s86, 0x8000
    s_mov_b32 s8, 99
    s_lshl_b32 s82, s63, 2
    s_add_u32 s82, s82, s81
    s_mul_i32 s14, s82, {PSL}
    s_add_u32 s14, s14, {L_OLD}
    s_xor_b32 s16, s30, 2
    s_mul_i32 s15, s30, {2*PSL}
    s_mul_i32 s16, s16, {2*PSL}
    s_add_u32 s15, s15, {L_YNG}
    s_add_u32 s16, s16, {L_YNG}
    s_mov_b32 s83, {CDROP}
    s_mov_b32 s82, 99
    s_mov_b32 s92, s18
    s_mov_b32 s93, s19
    """)
    for x in ones(229): a(x)
    defer = a.lines; a = main
    cuts = [CS0 + (len(defer) - CS0) * n // 28 for n in range(29)]
    for n in range(28):
        while cuts[n] < len(defer) and ("vcc" in defer[cuts[n]] or defer[cuts[n]].startswith(("s_nop", "s_cselect", "s_addc"))): cuts[n] += 1
    a.lines += defer[:cuts[0]]
    a("s_barrier")
    stamp(a, 1); stamp(a, 1, 3); stamp(a, 2, 4)
    def reads(g):
        st, ks = g >> 2, g & 3
        slot = st % NS
        bs, off = slot // 2, (slot % 2) * SLOT
        f = FR + 8 * (g % 3)
        r = [f"ds_read_b128 {vr(XF+4*g,4)}, v{XA+4*bs+ks} offset:{off}"]
        for ty in range(2):
            for j in range(2):
                r.append(f"ds_read_b64_tr_b16 {vr(f+4*ty+2*j,2)}, v{WA[bs]} offset:{off+ks*2048+ty*1024+j*256}")
        return r
    for r in reads(0) + reads(1): a(r)
    for g in range(32):
        nxt = reads(g + 2) if g + 2 < 32 else []
        if nxt and (g + 2) % 4 == 0:
            a("s_waitcnt lgkmcnt(0)\ns_barrier")
            stamp(a, 1 + (g + 2) // 4, 3)
        else:
            a(f"s_waitcnt lgkmcnt({5 if g < 31 else 0})")
        f, x = FR + 8 * (g % 3), XF + 4 * g
        if "nord" in EXP: nxt = []
        if "nomm" not in EXP: a(f"{M32} {vr(AK,16)}, {vr(f,4)}, {vr(x,4)}, {'0' if g == 0 else vr(AK,16)}")
        for r in nxt[0:3]: a(r)
        if "nomm" not in EXP: a(f"{M32} {vr(AV,16)}, {vr(x,4)}, {vr(f+4,4)}, {'0' if g == 0 else vr(AV,16)}")
        for r in nxt[3:5]: a(r)
        if g < 28: a.lines += defer[cuts[g]:cuts[g+1]]
    stamp(a, 2); stamp(a, 9, 3); stamp(a, 3, 4)
    a("s_setprio 3\ns_nop 9")
    for i in range(8): a(f"v_cvt_pk_bf16_f32 v{AK+i}, v{AK+2*i}, v{AK+2*i+1}")
    a(f"buffer_store_dwordx4 {vr(AK,4)}, v16, {WS}, s10 offen sc1")
    a(f"buffer_store_dwordx4 {vr(AK+4,4)}, v16, {WS}, s11 offen sc1")
    for i in range(8): a(f"v_cvt_pk_bf16_f32 v{AV+i}, v{AV+2*i}, v{AV+2*i+1}")
    a(f"buffer_store_dwordx4 {vr(AV,4)}, v17, {WS}, s12 offen sc1")
    a(f"buffer_store_dwordx4 {vr(AV+4,4)}, v17, {WS}, s12 offen offset:512 sc1")
    a(f"buffer_load_dword v{GO}, v228, s[52:55], 0 offen sc1\ns_barrier")
    stamp(a, 3); stamp(a, 10, 3)
    a(f"""
    v_add_u32 v6, s14, v{L16}
    v_add_u32 v7, s14, v{L4H}
    v_add_u32 v8, s15, v{L16}
    v_add_u32 v9, s15, v{L4H}
    v_add_u32 v10, s16, v{L16}
    v_add_u32 v11, s16, v{L4H}
    """)
    for i in range(16, 32): a(f"v_mov_b32 v{VS+i}, v229")
    a("s_waitcnt vmcnt(0)")
    all_set(a, late, GO, 228, "0", "s[52:55]")
    arrive(a, 0, 12)
    stamp(a, 4); stamp(a, 12, 3)
    a("s_barrier")
    stamp(a, 11, 3)
    order = [28, 29, 30, 31] + list(range(28))
    qrd = lambda n: [f"ds_read_b64_tr_b16 {vr(FQ[n%5]+2*j,2)}, v{WA[2]} offset:{order[n]*1024+j*256}" for j in range(2)]
    for n in range(4):
        for r in qrd(n): a(r)
    for n in range(32):
        if n == KFG: a(f"buffer_load_dword v12, v{KF2}, {WS}, s74 offen sc1")
        a(f"s_waitcnt lgkmcnt({min(6, 2*(31-n))})")
        a(f"{M32} {vr(AQ,16)}, {vr(FQ[n%5],4)}, {vr(XF+4*order[n],4)}, {'0' if n == 0 else vr(AQ,16)}")
        if n + 4 < 32:
            for r in qrd(n + 4): a(r)
        if 4 <= n < 20: a(f"v_mov_b32 v{VS+n-4}, v229")
    a("s_nop 11")
    for i in range(16): a(f"v_mul_f32 v{AQ+i}, s13, v{AQ+i}")
    for i in range(8): a(f"v_cvt_pk_bf16_f32 v{AQ+i}, v{AQ+2*i}, v{AQ+2*i+1}")
    a(f"""
    ds_write_b128 v18, {vr(AQ,4)}
    ds_write_b128 v18, {vr(AQ+4,4)} offset:4096
    s_waitcnt lgkmcnt(0)
    {mark(W_QW)}
    s_waitcnt vmcnt(0)
    """)
    all_set(a, late, 12, KF2, "s74")
    stamp(a, 5); stamp(a, 13, 3)
    att_loads()
    att_q()
    a(f"s_waitcnt lgkmcnt(0)\n{mark(W_QR)}\ns_setprio 2")
    stamp(a, 6); stamp(a, 14, 3)

    a.label("B_go")
    for j in range(4): a(f"{M32} {vr(ACC+16*j,16)}, {vr(Z4,4)}, {vr(Z4,4)}, 0")
    a(f"{M32} {vr(S+48,16)}, {vr(Z4,4)}, {vr(Z4,4)}, 0")
    a("s_add_u32 s70, s70, 4096\ns_add_u32 s71, s71, 3072\ns_mov_b32 s84, 3")
    qk = lambda j, st: f"{M32} {vr(S+16*j,16)}, {vr(KS+4*st,4)}, {vr(Q+4*j,4)}, 0"
    pv = lambda j, st, s: f"{SM} {vr(ACC+16*j,16)}, {vr(VS+8*st+4*s,4)}, {vr(S+16*j+8*s,8)}, v{IDX}"
    a("s_waitcnt vmcnt(9)"); a(qk(0, 0)); a(qk(1, 0))
    for i in range(4): a(f"v_mov_b32 v{Z4+i}, -1")
    a("s_nop 6")
    if STAMP: a("s_mov_b32 s21, 0")
    stamp(a, 7)
    wodma = lambda m: [f"s_add_u32 m0, s77, {m*1024}", f"s_add_u32 s85, s78, {m*16384}", f"buffer_load_dwordx4 v{WOV}, s[44:47], s85 offen lds"]
    xdma = ["s_mov_b32 m0, s79", "s_nop 0", f"buffer_load_dwordx4 v{XOV}, s[36:39], 0 offen lds"]
    def body(last, extras, waits):
        for m in range(4):
            for j in range(4):
                jp, mp = (j - 1) % 4, (m if j else (m - 1) % 4)
                ins = {}
                def put(p, x): ins.setdefault(p, []).extend(x if isinstance(x, list) else [x])
                if j == 1 and waits[m] is not None: put(1, f"s_waitcnt vmcnt({waits[m]})")
                put(1, pv(jp, mp, 0))
                put(6, pv(jp, mp, 1))
                if j == 0 and (not last or m == 0): put(8, ldv((m + 3) % 4, "s71", m*1024))
                if not (last and m == 3 and j >= 2): put(11, qk((j + 2) % 4, m if j < 2 else (m + 1) % 4))
                if j == 1 and not last: put(13, ldk(m, "s70", m*1024))
                if j == 2 and not last:
                    if m < 2: put(8, wodma(m))
                    if m == 2: put(8, ["s_cmp_eq_u32 s84, 1", "s_cbranch_scc1 B_x"] + wodma(2) + ["s_branch B_xd", "B_x:"] + xdma + ["B_xd:"])
                    if m == 3: put(8, ["s_cmp_le_u32 s84, s8", "s_cbranch_scc1 B_nocl"] + [f"buffer_store_dwordx4 {vr(Z4,4)}, v{L16}, {WS}, s{r} offen sc1" for r in (88, 89)]
                                   + ["s_mov_b32 s88, s4", "s_mov_b32 s89, s5", "B_nocl:"])
                if not last and m == 1 and j == 3: put(4, (["s_cmp_lg_u32 s84, 3", "s_cbranch_scc1 B_nof"] if F1 else []) + [f"buffer_load_dword v{QA+1}, v{KFV}, {WS}, s74 offen sc1"] + (["B_nof:"] if F1 else []))
                if not last and m == 3 and j == 3: put(3, (["s_cmp_lg_u32 s84, 2", "s_cbranch_scc1 B_nof2"] if F1 else []) + ["s_waitcnt vmcnt(7)", lambda: all_set(a, late, QA + 1, KFV, "s74")] + (["B_nof2:"] if F1 else []))
                for p, x in extras.get((m, j), []): put(p, x)
                for e in range(16):
                    for x in ins.get(e, []):
                        if callable(x): x()
                        else: a(x)
                    a(f"v_exp_f32 v{S+16*j+e}, v{S+16*j+e}")
    a(".p2align 6")
    a.label("B_loop")
    body(False, {(3, 1): [(14, ["s_add_u32 s77, s77, 3072", "s_add_u32 s78, s78, 49152"])],
                 (3, 2): [(14, ["s_add_u32 s70, s70, 4096", "s_add_u32 s71, s71, 4096", "s_sub_u32 s84, s84, 1"])],
                 (CDT, 0): [(3, ["s_cmp_lg_u32 s84, s83", "s_cbranch_scc1 B_keep", "s_setprio 0", "B_keep:"])],
                 (3, 3): [(8, ["s_cmp_lg_u32 s84, s82", "s_cbranch_scc1 B_nouf", lambda: arrive(a, 1, QA)]
                              + [f"s_load_dword s100, s[92:93], {i*128}" for i in range(12, 16)] + ["B_nouf:"]),
                          (14, "s_cmp_lg_u32 s84, 0")]}, [8, 9, 10, 11] if F1 else [8, 9, 11, 12])
    a("s_cbranch_scc1 B_loop")
    stamp(a, 8)
    a("s_cmp_lt_u32 s30, 4\ns_cbranch_scc1 B_final")

    CA = 32
    ABUF, BBUF = [96, 160], [128, 64]
    a(f"""
    s_lshl_b32 s80, s91, 12
    s_add_u32 s92, s18, s80
    s_addc_u32 s93, s19, 0
    s_mov_b32 s94, 4096
    s_mov_b32 s95, 0x20000
    buffer_load_dword v{P0}, v{UFV}, {WS}, s87 offen sc1
    buffer_load_dword v{P1}, v{GFV}, {WS}, s86 offen sc1
    """)
    def lda(rr):
        b = ABUF[rr % 2]
        o = []
        if rr == 0:
            o.append(f"buffer_load_dword v{b}, v{A0}, s[92:95], 0 offen")
            for i in range(1, 4): o.append(f"v_add_u32 v{A0}, 4, v{A0}\nbuffer_load_dword v{b+i}, v{A0}, s[92:95], 0 offen")
        else:
            o.append(f"buffer_load_dwordx4 {vr(b,4)}, v{A64}, s[92:95], 0 offen offset:{64*(rr-1)}")
        for aa in range(1, 8):
            o.append(f"buffer_load_dwordx4 {vr(b+4*aa,4)}, v{A512}, s[92:95], 0 offen offset:{512*(aa-1)+64*rr}")
        return o
    ldb = lambda rr: [f"ds_read_b128 {vr(BBUF[rr%2]+4*bb,4)}, v{BA} offset:{64*rr+512*(7-bb)}" for bb in range(8)]
    udma = lambda rho, q: [f"s_add_u32 m0, s65, {rho*USZ}", "s_nop 0",
                           f"buffer_load_dwordx4 v{L16 if rho else U2}, {WS}, s13 offen offset:{q*1024} sc1 lds",
                           f"buffer_load_dwordx4 v{L16 if rho else U2}, {WS}, s13 offen offset:{q*1024+1024} sc1 lds"]
    wrh = lambda j: [f"ds_write_b128 v{PW16}, {vr(ACC+16*j,4)} offset:{j*PSL}", f"ds_write_b128 v{PW16}, {vr(ACC+16*j+4,4)} offset:{j*PSL+1024}",
                     f"ds_write_b32 v{PW4}, v{ACC+16*j+8} offset:{j*PSL+2048}"]
    LA0, LA1 = lda(0), lda(1)
    exh = {(0, 0): [(3, lambda: arrive(a, 2, QA))],
           (1, 1): [(3, [mark(W_LH), lambda: all_set(a, late, P0, UFV, "s87"), lambda: all_set(a, late, P1, GFV, "s86")]),
                    (8, udma(1, 0)), (13, udma(1, 2))],
           (1, 2): [(4, udma(0, 0)), (13, udma(0, 2))],
           (1, 3): [(4, f"buffer_load_dword v{G}, v{L4H}, {WS}, s14 offen sc1")],
           (3, 1): [(9 + i, LA1[i]) for i in range(4)],
           (3, 2): [(3 + i, wrh(0)[i]) for i in range(3)] + [(8 + i, LA1[4 + i]) for i in range(4)],
           (3, 3): [(0, LA0[0:4])] + [(3 + i, wrh(1)[i]) for i in range(3)] + [(7 + i, LA0[4 + i]) for i in range(7)]}
    body(True, exh, [12 if F1 else 13, 2, None, 9])
    a(f"""
    s_waitcnt vmcnt(19)
    s_mov_b64 exec, 1
    ds_write_b16 v{PV16}, v{VZ} offset:4094
    s_mov_b64 exec, -1
    {pv(3,3,0)}
    {pv(3,3,1)}
    s_setprio {CVP}
    """)
    stamp(a, 9)
    for x in ldb(0) + wrh(2): a(x)
    a("s_nop 0")
    for x in wrh(3): a(x)
    a(f"s_waitcnt lgkmcnt(0)\n{mark(W_PO)}")
    for rr in range(4):
        ab, bb_ = ABUF[rr % 2], BBUF[rr % 2]
        nb = ldb(rr + 1) if rr < 3 else []
        mm = lambda aa, b, c=None: f"{M16} {vr(CA+4*(aa+b),4)}, {vr(ab+4*aa,4)}, {vr(bb_+4*b,4)}, {c or vr(CA+4*(aa+b),4)}"
        a(f"s_waitcnt vmcnt({[0, 8, 8, 0][rr]}){' lgkmcnt(0)' if rr else ''}")
        if rr == CVR: a("s_setprio 1")
        if rr == 3:
            a(f"buffer_load_dword v{P0}, v{UFV}, {WS}, s17 offen sc1\nbuffer_load_dword v{P1}, v{CFV}, {WS}, s101 offen sc1")
        if rr == 0:
            a("s_cmp_lg_u32 s63, 0\ns_cbranch_scc1 CV_nodiag")
            for b in range(8): a(f"{M16} {vr(CA+4*b,4)}, {vr(DF,4)}, {vr(bb_+4*b,4)}, 0")
            for b in range(8): a(mm(0, b))
            a("s_branch CV_row1")
            a.label("CV_nodiag")
            for b in range(8): a(mm(0, b, "0"))
            a.label("CV_row1")
        cnt = 0
        na = lda(rr + 2) if rr < 2 else []
        for aa in range(8):
            for b in range(8 - aa):
                if rr == 0 and aa == 0: continue
                a(mm(aa, b))
                cnt += 1
                if cnt % 3 == 0 and nb: a(nb.pop(0))
            if na: a(na.pop(0))
    stamp(a, 11)
    XI, YP = 96, 128
    a(f"s_setprio {XP}")
    a("s_cmp_lg_u32 s63, 0\ns_cbranch_scc1 CV_odd")
    for odd in range(2):
        if odd: a.label("CV_odd")
        a("s_nop 4" if not odd else "s_nop 0")
        for n in range(4): a(f"ds_write_b128 v{PV16}, {vr(CA+16*(1-odd)+4*n,4)} offset:{n*1024}")
        a(f"s_waitcnt lgkmcnt(0)\n{mark(W_XCH)}")
        lds_wait(a, PTW, W_XCH, XI)
        for n in range(4): a(f"ds_read_b128 {vr(XI+4*n,4)}, v{PT16} offset:{n*1024}")
        for n in range(4):
            c = CA + 16*odd + 4*n
            a(f"s_waitcnt lgkmcnt({3-n})")
            a(f"v_pk_add_f32 {vr(c,2)}, {vr(c,2)}, {vr(XI+4*n,2)}\nv_pk_add_f32 {vr(c+2,2)}, {vr(c+2,2)}, {vr(XI+4*n+2,2)}")
            a(f"v_cvt_pk_bf16_f32 v{YP+2*n}, v{c}, v{c+1}\nv_cvt_pk_bf16_f32 v{YP+2*n+1}, v{c+2}, v{c+3}")
        if not odd: a("s_branch CV_st")
    a.label("CV_st")
    a("s_nop 0")
    for p in range(2):
        a(f"v_permlane16_swap_b32 v{YP+4*p}, v{YP+4*p+2}\nv_permlane16_swap_b32 v{YP+4*p+1}, v{YP+4*p+3}")
        a(f"buffer_store_dwordx4 {vr(YP+4*p,4)}, v{YST}, {WS}, s7 offen offset:{1024*p} sc1")
    a("s_waitcnt vmcnt(2)")
    all_set(a, late, P0, UFV, "s17"); all_set(a, late, P1, CFV, "s101")
    yload = [f"buffer_load_dwordx4 {vr(YA+4*q,4)}, v{YLD}, {WS}, s{15+q} offen sc1" for q in range(2)]
    a(f"s_setprio {XP2}")
    stamp(a, 12)
    lds_wait(a, XW8, W_LH, 9)
    a(f"""
    v_xor_b32 v9, 16, v{XAD}
    v_xor_b32 v10, 64, v{XAD}
    v_xor_b32 v11, 80, v{XAD}
    ds_read_b64 {vr(XR,2)}, v{XAD}
    ds_read_b64 {vr(XR+2,2)}, v9
    ds_read_b64 {vr(XR+4,2)}, v10
    ds_read_b64 {vr(XR+6,2)}, v11
    v_sub_f32 v{G+1}, 1.0, v{G}
    ds_write_b32 v{XGA}, v{G} offset:2048
    """)
    c_wo()
    a(f"v_xor_b32 v9, 16, v{YSR}\nv_mov_b32 v{G+2}, v{G+1}\nv_mov_b32 v{G+3}, v{G+1}")
    for i in range(8):
        a(f"v_lshlrev_b32 v{XG+2*i}, 16, v{XR+i}\nv_and_b32 v{XG+2*i+1}, s6, v{XR+i}")
        a(f"v_pk_mul_f32 {vr(XG+2*i,2)}, {vr(XG+2*i,2)}, {vr(G+2,2)}")
    for x in yload: a(x)
    def ystage():
        a(f"""
        ds_write_b128 v{YSW}, {vr(YA,4)}
        ds_write_b128 v{YSW}, {vr(YA+4,4)} offset:1024
        s_waitcnt lgkmcnt(0)
        {mark(W_YS)}
        """)
        stamp(a, 10)
        lds_wait(a, XW4, W_YS, 10)
        for b in (1, 0):
            for sg in range(2): a(f"ds_read_b128 {vr(YF+8*b+4*sg,4)}, v{[YSR, 9][sg]} offset:{(1-b)*2*PRIV}")
        for b in (1, 0):
            a(f"s_waitcnt lgkmcnt({2*b})")
            a(f"{M32} {vr(YA+16*b,16)}, {vr(YF+8*b,4)}, {vr(PM,4)}, 0")
            a(f"{M32} {vr(YA+16*b,16)}, {vr(YF+8*b+4,4)}, {vr(PM+4,4)}, {vr(YA+16*b,16)}")
    def xymul():
        for i in range(4): a(f"v_pk_mul_f32 {vr(YA+16+2*i,2)}, {vr(YA+16+2*i,2)}, {vr(XG+8+2*i,2)}")
        a(f"ds_write_b128 v{XYA}, {vr(YA+16,4)}\nds_write_b128 v{XYA}, {vr(YA+20,4)} offset:1024\ns_nop 0")
        for i in range(4): a(f"v_pk_mul_f32 {vr(YA+2*i,2)}, {vr(YA+2*i,2)}, {vr(XG+2*i,2)}")
    if YSM:
        a(f"s_mov_b32 s90, {SPIN}")
        a.label("Y_try")
        a(f"""
        ds_read_b32 v11, v{XW4} offset:{W_OL}
        s_waitcnt vmcnt(0)
        v_max3_u32 v10, v{YA}, v{YA+1}, v{YA+2}
        v_max3_u32 v10, v{YA+3}, v{YA+4}, v10
        v_max3_u32 v10, v{YA+5}, v{YA+6}, v10
        v_max_u32 v10, v{YA+7}, v10
        v_cmp_eq_u32 vcc, -1, v10
        s_sub_u32 s90, s90, 1
        s_cbranch_scc1 Y_have
        s_cmp_eq_u64 vcc, 0
        s_cbranch_scc1 Y_have
        """)
        for x in yload: a(x)
        a("s_waitcnt lgkmcnt(0)\nv_cmp_eq_u32 vcc, 1, v11\ns_nop 0\ns_cmp_eq_u64 vcc, exec\ns_cbranch_scc0 Y_try\ns_setprio 3")
        stamp(a, 13)
        for x in oload: a(x)
        a("s_waitcnt vmcnt(8)")
        fresh(a, late, list(range(YA, YA+8)), yload, 10)
        ystage()
        a("s_nop 9")
        xymul()
        a("s_branch C_mm")
        a.label("Y_have")
    else:
        a("s_waitcnt vmcnt(0)")
        fresh(a, late, list(range(YA, YA+8)), yload, 10)
    if YSM == 2:
        a(f"""
        s_waitcnt lgkmcnt(0)
        v_cmp_eq_u32 vcc, 1, v11
        s_nop 0
        s_cmp_eq_u64 vcc, exec
        s_cbranch_scc0 Y_norm
        s_setprio 3
        """)
        stamp(a, 13)
        for x in oload: a(x)
        ystage()
        a("s_nop 9")
        xymul()
        a("s_branch C_mm")
        a.label("Y_norm")
    ystage()
    a("s_setprio 0")
    lds_wait(a, XW4, W_OL, 10)
    a("s_setprio 3")
    stamp(a, 13)
    for x in oload: a(x)
    xymul()
    a("s_branch C_mm")

    a.label("B_final")
    rdp = lambda dst, a16, off: [f"ds_read_b128 {vr(dst,4)}, v{a16} offset:{off}", f"ds_read_b128 {vr(dst+4,4)}, v{a16} offset:{off+1024}",
                                 f"ds_read_b32 v{dst+8}, v{a16+1} offset:{off+2048}"]
    wrp = lambda j: [f"ds_write_b128 v8, {vr(ACC+16*j,4)} offset:{j*PSL}", f"ds_write_b128 v8, {vr(ACC+16*j+4,4)} offset:{j*PSL+1024}",
                     f"ds_write_b32 v9, v{ACC+16*j+8} offset:{j*PSL+2048}"]
    PA, PB = [208, 176, 160, 186], [96, 112]
    r0 = rdp(PA[0], 6, 0); r1 = rdp(PA[1], 6, 8*PSL); r2 = rdp(PA[2], 6, PSL); r3 = rdp(PA[3], 6, 9*PSL)
    w0, w1 = wrp(0), wrp(1)
    def add9(d, s_):
        return [f"v_pk_add_f32 {vr(d+2*i,2)}, {vr(d+2*i,2)}, {vr(s_+2*i,2)}" for i in range(4)] + [f"v_add_f32 v{d+8}, v{d+8}, v{s_+8}"]
    ex = {(1, 1): [(3, mark(W_LC))],
          (2, 2): [(8, f"buffer_load_dword v13, v{CFV}, {WS}, s101 offen sc1")],
          (3, 0): [(9, [lambda: lds_wait(a, XW4, W_PO, 12), "s_setprio 3"]), (12, r0[0]), (13, r0[1]), (14, r0[2])],
          (3, 1): [(3, r1[0]), (4, r1[1]), (8, r1[2]), (9, r2[0]), (13, r2[1]), (14, r2[2])],
          (3, 2): [(2, r3[0]), (3, w0[0]), (4, r3[1]), (8, w0[1]), (9, r3[2]), (10, w0[2])],
          (3, 3): [(3, w1[0]), (4, w1[1]), (5, w1[2]), (9, ["s_waitcnt lgkmcnt(0)", mark(W_PY)]),
                   (12, [lambda: lds_wait(a, XW4, W_PY, 12)] + rdp(PB[0], 10, 0)), (13, rdp(PB[1], 10, PSL))]}
    body(True, ex, [10 if F1 else 11, 5, 2, 0])
    stamp(a, 9)
    O2, O3 = ACC + 32, ACC + 48
    for x in add9(PA[0], PA[1])[:2]: a(x)
    a(f"{pv(3,3,0)}\n{pv(3,3,1)}")
    for x in add9(PA[0], PA[1])[2:] + add9(O2, PA[0]) + add9(PA[2], PA[3]): a(x)
    a("s_waitcnt lgkmcnt(0)")
    a(mark(W_PR))
    for x in add9(O2, PB[0]) + add9(PA[2], PB[1]) + add9(O3, PA[2]): a(x)
    a(f"v_mov_b32 v14, 0\nv_mov_b32 v15, 0")
    for o in (O2, O3):
        for i in range(4): a(f"v_pk_fma_f32 v[14:15], {vr(o+2*i,2)}, 0, v[14:15] op_sel_hi:[1,0,1]")
    a(f"""
    v_add_f32 v14, v14, v15
    v_min_f32 v15, v{O2+8}, v{O3+8}
    v_add_f32 v14, v14, v{O2+8}
    v_add_f32 v14, v14, v{O3+8}
    v_cmp_lt_f32 vcc, {f32(2.0**-60)}, v15
    s_mov_b64 s[92:93], vcc
    v_cmp_gt_f32 vcc, {f32(2.0**60)}, v14
    s_and_b64 s[92:93], s[92:93], vcc
    s_cmp_eq_u64 s[92:93], exec
    s_cbranch_scc0 B_slow
    """)
    a.label("B_fin")
    a(f"v_rcp_f32 v14, v{O2+8}\nv_rcp_f32 v12, v{O3+8}\ns_nop 0")
    for jj, (o, r) in enumerate(((O2, 14), (O3, 12))):
        for i in range(4): a(f"v_pk_mul_f32 {vr(o+2*i,2)}, {vr(o+2*i,2)}, {vr(r,2)} op_sel_hi:[1,0]")
        for i in range(4): a(f"v_cvt_pk_bf16_f32 v{208+4*jj+i}, v{o+2*i}, v{o+2*i+1}")
        a(f"buffer_store_dwordx4 {vr(208+4*jj,4)}, v{L16}, {WS}, s{86+jj} offen sc1")
    stamp(a, 10)
    all_set(a, late, 13, CFV, "s101")
    if not OLATE:
        for x in oload: a(x)
    stamp(a, 11)
    lds_wait(a, XW8, W_LH, 12)
    c_wo()
    lds_wait(a, XW4, W_PR, 12)
    if HOL: a(mark(W_OL))
    if OLATE:
        for x in oload: a(x)
    stamp(a, 13)

    a.label("C_mm")
    for j in range(8):
        a(f"s_waitcnt vmcnt({7-j})")
        fresh(a, late, list(range(OB+4*j, OB+4*j+4)), oload[j:], 6, 7 - j)
        for ai in (1, 0):
            a(f"{M32} {vr(AC+16*ai,16)}, {vr(WF+4*(8*ai+j),4)}, {vr(OB+4*j,4)}, {'0' if j == 0 else vr(AC+16*ai,16)}")
    stamp(a, 14)
    a("s_nop 10")
    for r in (2, 3, 1):
        a(f"ds_write_b128 v{RBA+r}, {vr(AC+8*r,4)}\nds_write_b128 v{RBA+r}, {vr(AC+8*r+4,4)} offset:1024")
    a(f"s_cmp_lt_u32 s30, 4\ns_waitcnt lgkmcnt(0)\ns_barrier\ns_cbranch_scc0 C_havexy")
    a(f"ds_read_b128 {vr(YA,4)}, v{XYA}\nds_read_b128 {vr(YA+4,4)}, v{XYA} offset:1024\nds_read_b32 v{G}, v{XGA} offset:2048")
    a.label("C_havexy")
    for r in range(6): a(f"ds_read_b128 {vr(RD+4*r,4)}, v{RBA} offset:{r*1024}")
    for r in range(3):
        a(f"s_waitcnt lgkmcnt({4-2*r})")
        for i in range(4): a(f"v_pk_add_f32 {vr(AC+2*i,2)}, {vr(AC+2*i,2)}, {vr(RD+8*r+2*i,2)}")
    for i in range(4): a(f"v_pk_fma_f32 {vr(AC+2*i,2)}, {vr(AC+2*i,2)}, {vr(G,2)}, {vr(YA+2*i,2)} op_sel_hi:[1,0,1]")
    for i in range(4): a(f"v_cvt_pk_bf16_f32 v{PK4+i}, v{AC+2*i}, v{AC+2*i+1}")
    a(f"""
    s_nop 0
    v_permlane32_swap_b32 v{PK4}, v{PK4+2}
    v_permlane32_swap_b32 v{PK4+1}, v{PK4+3}
    buffer_store_dwordx4 {vr(PK4,4)}, v{OUTV}, s[40:43], s69 offen
    """)
    if STAMP: a("s_waitcnt vmcnt(0)")
    stamp(a, 15)
    if STAMP: a("v_writelane_b32 v255, s21, 40")
    stamp_flush(a)
    a("s_endpgm")

    a.label("B_slow")
    a(f"""
    s_add_u32 s70, s66, {KW}
    s_add_u32 s71, s66, {VW}
    s_mov_b32 s84, 0
    v_mov_b32 v208, 0xff800000
    v_mov_b32 v209, 0xff800000
    """)
    a.label("B_slow1")
    a(f"""
    s_add_u32 s85, s70, s84
    {ldk(0, "s85", 0)}
    s_waitcnt vmcnt(0)
    {M32} {vr(S,16)}, {vr(KS,4)}, {vr(Q+8,4)}, 0
    {M32} {vr(S+16,16)}, {vr(KS,4)}, {vr(Q+12,4)}, 0
    s_nop 11
    """)
    for jj in range(2):
        for i in range(8): a(f"v_max3_f32 v{208+jj}, v{S+16*jj+2*i}, v{S+16*jj+2*i+1}, v{208+jj}")
    a("""
    s_add_u32 s84, s84, 1024
    s_cmp_lt_u32 s84, 0x10000
    s_cbranch_scc1 B_slow1
    v_mov_b32 v210, v208
    v_mov_b32 v211, v209
    s_nop 1
    v_permlane32_swap_b32 v208, v210
    v_permlane32_swap_b32 v209, v211
    v_max_f32 v208, v208, v210
    v_max_f32 v209, v209, v211
    s_mov_b32 s84, 0
    """)
    for jj in range(2):
        for i in range(16): a(f"v_sub_f32 v{S+32+16*jj+i}, 0, v{208+jj}\nv_mov_b32 v{ACC+32+16*jj+i}, 0")
    for i in range(8): a(f"v_mov_b32 v{VS+i}, 0x3f803f80")
    a.label("B_slow2")
    a(f"s_add_u32 s85, s70, s84\ns_add_u32 s89, s71, s84\n{ldk(0, 's85', 0)}")
    for x in ldv(0, "s89", 0): a(x)
    a(f"""
    s_waitcnt vmcnt(0)
    {M32} {vr(S,16)}, {vr(KS,4)}, {vr(Q+8,4)}, {vr(S+32,16)}
    {M32} {vr(S+16,16)}, {vr(KS,4)}, {vr(Q+12,4)}, {vr(S+48,16)}
    s_nop 11
    """)
    for i in range(32): a(f"v_exp_f32 v{S+i}, v{S+i}")
    a("s_nop 1")
    for jj in range(2):
        for s in range(2):
            a(f"{SM} {vr(ACC+32+16*jj,16)}, {vr(VS+4*s,4)}, {vr(S+16*jj+8*s,8)}, v{IDX}")
    a("""
    s_add_u32 s84, s84, 1024
    s_cmp_lt_u32 s84, 0x10000
    s_cbranch_scc1 B_slow2
    s_nop 11
    s_branch B_fin
    """)
    a.lines += late.lines
    a.label("K_end")
    a("s_endpgm")
    return a

def build():
    ref = open(f"cdna_kernels/{NAME}.s.ref").read().split("\n")
    head = [l for l in ref if l.startswith(";") and "@launch" not in l]
    t = kernel().text()
    bad = check(t)
    head += """; One launch, 256 workgroups of 8 waves (one per CU), three phases with hand-offs through d_ws:
;   A  waves 4-7 stage x / wqkv into LDS, waves 0-3 compute k, v (published, write-through) and q (kept on chip);
;      waves 4-7 then compute the gate and u = shiftconv(k) * v (published channel-major)
;   B  attention for 128 tokens x 2 heads, keys split over four waves per head; exp2 results feed a sparse MFMA as raw
;      fp32 (high halves selected), a ones row of v gives the row sums; waves 4-7 also run the long causal convolution
;      of two channels as Toeplitz MFMAs; waves 0-3 combine, check the softmax range and normalise
;   C  64 x 64 output tile: g * (o @ wo) + (1 - g) * x * y
; Flags live in d_ws, are cleared by workgroup 0 and released through d_debug; o and y are reset to all-ones first and
; consumers reload what has not arrived yet. Every wait is bounded.""".split("\n")
    out = "\n".join(head) + f"\n; @launch grid=(256,1,1) block=(512,1,1) lds={LDS}\n"
    out += f'.amdgcn_target "amdgcn-amd-amdhsa--gfx950"\n.text\n.globl {NAME}_kernel\n.p2align 8\n.type {NAME}_kernel,@function\n' + t
    out += f""".section .rodata,"a"
.p2align 6
.amdhsa_kernel {NAME}_kernel
  .amdhsa_next_free_vgpr 256
  .amdhsa_next_free_sgpr 102
  .amdhsa_accum_offset 256
  .amdhsa_group_segment_fixed_size 0
  .amdhsa_kernarg_size 104
  .amdhsa_user_sgpr_count 2
  .amdhsa_user_sgpr_kernarg_segment_ptr 1
  .amdhsa_system_sgpr_workgroup_id_x 1
  .amdhsa_float_denorm_mode_32 3
.end_amdhsa_kernel
"""
    return out, bad

if __name__ == "__main__":
    out, bad = build()
    for b in bad: print("HAZARD", b)
    path = sys.argv[1] if len(sys.argv) > 1 else "fused.s"
    open(path, "w").write(out)
    print("wrote", path, len(out), "bytes;", len(bad), "hazards; lds", LDS)
```

```python
import os, sys, struct
from asmlib import Asm, vr, sr, check

NAME = "gated_mix__mha_block__ssm_conv_h3__prompt"
KW, VW, UW, YW, OW, GW = 0x200000, 0x400000, 0x600000, 0x840000, 0xA80000, 0xE00000
CST = 4352
FW = 0xE10000
FS = 256
QF, UF, CF = FW, FW + 4, FW + 8
WS_BYTES = 0xE60000
M32 = "v_mfma_f32_32x32x16_bf16"
M16 = "v_mfma_f32_16x16x32_bf16"
SM = "v_smfmac_f32_32x32x32_bf16"
LOG2E = 1.4426950408889634
STAMP = int(os.environ.get("STAMP", "0"))
env = lambda k, d: type(d)(os.environ.get(k, d))
NS = env("NS", 3)
EXP = env("EXP", "")
STG = env("STG", 4)
STM = env("STM", 8 // STG)
WQ1 = env("WQ1", 4)
KFG = env("KFG", 14)
CDROP, CDT = env("CDROP", 2), env("CDT", 0)
XP, XP2 = env("XP", 3), env("XP2", 3)
OFIRST = env("OFIRST", 0)
YSM = env("YSM", 1)
CVR = env("CVR", 3)
F1 = env("F1", 1)
QROT = env("QROT", 1)
TLBT = env("TLBT", 3)
HOL = env("HOL", 1)
CVP = env("CVP", 0)
HS0 = env("HS0", 150)
CS0 = env("CS0", 150)
OLATE = env("OLATE", 1)
YLATE = env("YLATE", 1)
TOUCH = env("TOUCH", 2)
TW = 0xF00000
SPIN = 40000

SLOT = 24576
L_X = 65536
L_PRIV = 73728
USZ = 4576
PRIV = 2 * USZ
PSL = 2176
L_OLD = L_PRIV + 4 * PRIV
L_YNG = L_OLD + 16 * PSL
L_XF = L_YNG + 8 * PSL
L_WQ = L_OLD
L_QX = L_YNG
TB = L_QX + 8192
L_RB = L_OLD
LDS = L_XF + 256
W_XCH, W_QW, W_KV, W_TB, W_PO, W_QR, W_PR, W_CNT, W_PY, W_LH, W_LC, W_YS, W_OL = 0, 16, 32, 48, 64, 80, 96, 128, 144, 160, 176, 192, 208

def f32(x):
    return "0x%08x" % struct.unpack("<I", struct.pack("<f", x))[0]

def srd(a, d, b, nbytes):
    a(f"s_mov_b32 s{d}, s{b}\ns_mov_b32 s{d+1}, s{b+1}\ns_mov_b32 s{d+2}, {hex(nbytes)}\ns_mov_b32 s{d+3}, 0x20000")

def stamp(a, i, mode=1):
    if not STAMP or (STAMP != mode and i not in (0, 15)): return
    a(f"""
    s_memtime s[96:97]
    s_memrealtime s[98:99]
    s_waitcnt lgkmcnt(0)
    v_writelane_b32 v255, s96, {2*i}
    v_writelane_b32 v255, s98, {2*i+1}
    """)
def stamp_flush(a):
    if not STAMP: return
    a(f"""
    s_lshl_b32 s96, s2, 3
    s_add_u32 s96, s96, s30
    s_lshl_b32 s96, s96, 8
    s_add_u32 s96, s96, {TW}
    s_mov_b32 s34, 0x1400000
    v_lshlrev_b32 v6, 2, v0
    buffer_store_dword v255, v6, s[32:35], s96 offen
    """)

WS = "s[32:35]"
IDX, L16, VOF, L4H = 2, 3, 4, 5
KF2, VZ, WOA, RBA, XYA, XGA, OUTV = 222, 223, 232, 233, 237, 238, 239
CFV, KFV, MYW, XW4, WOV, XOV, QA, Z4, XW, ONE, XW8 = 240, 241, 242, 243, 244, 245, 246, 248, 252, 253, 254
_uid = [0]
def uid(p):
    _uid[0] += 1
    return f"{p}{_uid[0]}"

def poll(a, voff, soff, tmp, srd_=WS):
    L = uid("POLL")
    a(f"s_mov_b32 s90, {SPIN}")
    a.label(L)
    a(f"""
    buffer_load_dword v{tmp}, v{voff}, {srd_}, {soff} offen sc1
    s_waitcnt vmcnt(0)
    v_cmp_eq_u32 vcc, 1, v{tmp}
    s_sub_u32 s90, s90, 1
    s_cbranch_scc1 {L}_out
    s_cmp_eq_u64 vcc, exec
    s_cbranch_scc0 {L}
    """)
    a.label(f"{L}_out")

def all_set(a, late, val, voff, soff, srd_=WS):
    L = uid("AS")
    a(f"v_cmp_eq_u32 vcc, 1, v{val}\ns_nop 0\ns_cmp_eq_u64 vcc, exec\ns_cbranch_scc0 {L}")
    a.label(f"{L}_ok")
    late.label(L)
    poll(late, voff, soff, val, srd_)
    late(f"s_branch {L}_ok")

def lds_wait(a, vaddr, off, tmp):
    L = uid("LW")
    a("s_mov_b32 s90, 0x400000")
    a.label(L)
    a(f"""
    ds_read_b32 v{tmp}, v{vaddr} offset:{off}
    s_waitcnt lgkmcnt(0)
    v_cmp_eq_u32 vcc, 1, v{tmp}
    s_sub_u32 s90, s90, 1
    s_cbranch_scc1 {L}_out
    s_cmp_eq_u64 vcc, exec
    s_cbranch_scc0 {L}
    """)
    a.label(f"{L}_out")

mark = lambda off: f"ds_write_b32 v{MYW}, v{ONE} offset:{off}"

def arrive(a, k, tmp, n=4):
    L = uid("AR")
    a(f"""
    s_mov_b64 exec, 1
    ds_add_rtn_u32 v{tmp}, v{XW}, v{ONE} offset:{W_CNT+4*k}
    s_waitcnt lgkmcnt(0)
    v_cmp_eq_u32 vcc, {n-1}, v{tmp}
    s_nop 4
    s_cbranch_vccz {L}
    buffer_store_dword v{ONE}, v{VZ}, {WS}, s62 offen offset:{4*k} sc1
    """)
    a.label(L)
    a("s_mov_b64 exec, -1")

def fresh(a, late, regs, reload, tmp, keep=0):
    L = uid("FR")
    chk = [f"v_max3_u32 v{tmp}, v{regs[0]}, v{regs[1]}, v{regs[2]}"]
    r = list(regs[3:])
    while len(r) >= 2: chk.append(f"v_max3_u32 v{tmp}, v{r.pop(0)}, v{r.pop(0)}, v{tmp}")
    if r: chk.append(f"v_max_u32 v{tmp}, v{r[0]}, v{tmp}")
    chk += [f"v_cmp_eq_u32 vcc, -1, v{tmp}", "s_nop 0", "s_cmp_eq_u64 vcc, 0"]
    a("\n".join(chk)); a(f"s_cbranch_scc0 {L}")
    a.label(f"{L}_ok")
    late.label(L)
    late(f"s_mov_b32 s90, {SPIN}")
    late.label(f"{L}_l")
    if STAMP: late("s_add_u32 s21, s21, 1")
    late("\n".join(reload) + f"\ns_waitcnt vmcnt({keep})\n" + "\n".join(chk))
    late(f"s_cbranch_scc1 {L}_ok\ns_sub_u32 s90, s90, 1\ns_cbranch_scc0 {L}_l\ns_branch {L}_ok")

def lines(t):
    return [l.strip() for l in t.strip().split("\n") if l.strip()]

def kernel():
    a = Asm(); late = Asm()
    a.label(f"{NAME}_kernel")
    a(f"""
    s_cmp_ge_u32 s2, 256
    s_cbranch_scc1 K_end
    """)
    if STAMP == 4: a("v_mov_b32 v255, 0"); stamp(a, 0)
    if TOUCH == 2:
        a("""
        v_lshlrev_b32 v221, 7, v0
        v_min_u32 v221, K_end-A_pc, v221
        s_getpc_b64 s[80:81]
        A_pc:
        global_load_dword v221, v221, s[80:81]
        """)
    a(f"""
    s_load_dwordx8 s[4:11], s[0:1], 0
    s_load_dwordx16 s[12:27], s[0:1], 32
    s_load_dwordx2 s[28:29], s[0:1], 96
    v_lshrrev_b32 v1, 6, v0
    v_and_b32 v0, 63, v0
    s_and_b32 s31, s2, 7
    v_readfirstlane_b32 s30, v1
    s_lshr_b32 s56, s2, 3
    s_lshr_b32 s57, s31, 1
    s_lshl_b32 s57, s57, 2
    s_lshr_b32 s59, s56, 3
    s_add_u32 s57, s57, s59
    s_and_b32 s58, s31, 1
    s_lshl_b32 s58, s58, 3
    s_and_b32 s60, s56, 7
    s_add_u32 s58, s58, s60
    """)
    if STAMP == 4: stamp(a, 1, 4)
    elif STAMP: a("v_mov_b32 v255, 0"); stamp(a, 0)
    a("s_cmp_lt_u32 s30, 4\ns_cbranch_scc1 A_compute")

    Q, ACC, S, KS, VS = 16, 32, 96, 160, 176
    WF, OB, AC, YA, YF, XR, RD, PK4, XG = 16, 80, 112, 144, 176, 192, 80, 104, 112
    G = 208
    def common_setup(a, t0, t1, t2):
        a(f"""
        s_and_b32 s63, s30, 1
        s_lshr_b32 s64, s30, 1
        s_lshl_b32 s61, s58, 1
        s_add_u32 s61, s61, s63
        s_lshl_b32 s62, s2, 8
        s_add_u32 s62, s62, {FW}
        s_lshl_b32 s66, s61, 16
        s_lshl_b32 s67, s63, 12
        s_add_u32 s67, s67, {L_QX}
        s_cmp_eq_u32 s64, 0
        s_cselect_b32 s68, 2048, 0
        s_xor_b32 s69, s68, 2048
        s_add_u32 s68, s68, s67
        s_add_u32 s69, s69, s67
        v_lshlrev_b32 v{L16}, 4, v0
        v_add_u32 v{QA}, s68, v{L16}
        v_add_u32 v{QA+1}, s69, v{L16}
        s_lshr_b32 s71, s57, 2
        s_add_u32 s71, s71, {QROT}
        s_mul_i32 s71, s71, {1 if QROT else 0}
        s_add_u32 s71, s71, s64
        s_and_b32 s79, s71, 3
        s_lshl_b32 s70, s79, 14
        s_add_u32 s70, s70, s66
        s_add_u32 s71, s70, {VW}
        s_add_u32 s70, s70, {KW}
        s_mov_b32 s72, 0xffff
        s_mov_b32 s73, 0xffff
        s_lshl_b32 s74, s60, 3
        s_lshr_b32 s75, s58, 3
        s_add_u32 s74, s74, s75
        s_lshl_b32 s75, s79, 1
        s_add_u32 s74, s74, s75
        s_lshl_b32 s74, s74, 8
        s_add_u32 s74, s74, {QF}
        s_lshl_b32 s75, s31, 2
        s_add_u32 s75, s75, s59
        s_mov_b32 s76, s60
        s_lshl_b32 s77, s63, 15
        s_lshl_b32 s78, s64, 13
        s_add_u32 s77, s77, s78
        s_lshl_b32 s78, s64, 17
        s_lshl_b32 s85, s76, 7
        s_add_u32 s78, s78, s85
        s_lshl_b32 s79, s63, 6
        s_add_u32 s78, s78, s79
        s_lshl_b32 s79, s30, 10
        s_add_u32 s79, s79, {L_X}
        v_and_b32 v{t0}, 31, v0
        v_lshlrev_b32 v{L4H}, 2, v{t0}
        v_lshrrev_b32 v{t1}, 5, v0
        v_lshlrev_b32 v{OUTV}, 10, v{t0}
        v_lshl_add_u32 v{OUTV}, v{t1}, 4, v{OUTV}
        v_and_b32 v{t0}, 15, v0
        v_lshlrev_b32 v{t0}, 4, v{t0}
        v_lshl_add_u32 v{VOF}, v{t1}, 8, v{t0}
        v_mov_b32 v{IDX}, 0xdddd
        v_and_b32 v{t0}, 3, v0
        v_lshlrev_b32 v{XW4}, 2, v{t0}
        v_add_u32 v{XW4}, {L_XF}, v{XW4}
        v_bfe_u32 v{t2}, v0, 2, 2
        v_lshlrev_b32 v{KFV}, 14, v{t0}
        v_and_b32 v{KF2}, 0x4000, v{KFV}
        v_lshl_add_u32 v{t2}, v{t1}, 2, v{t2}
        v_lshlrev_b32 v{t2}, 6, v{t2}
        v_lshl_add_u32 v{t2}, v{t0}, 3, v{t2}
        s_and_b32 s80, s64, 1
        v_bfe_u32 v{WOA}, v0, 4, 1
        v_xor_b32 v{WOA}, s80, v{WOA}
        v_lshl_add_u32 v{t2}, v{WOA}, 5, v{t2}
        s_lshr_b32 s80, s64, 1
        s_lshl_b32 s80, s80, 15
        s_lshl_b32 s81, s64, 13
        s_add_u32 s80, s80, s81
        s_and_b32 s82, s76, 1
        s_lshl_b32 s82, s82, 12
        s_add_u32 s80, s80, s82
        v_add_u32 v{WOA}, s80, v{t2}
        v_lshrrev_b32 v{t2}, 2, v0
        v_lshlrev_b32 v{t2}, 10, v{t2}
        v_lshl_add_u32 v{WOV}, v{t0}, 4, v{t2}
        s_lshl_b32 s83, s75, 1
        s_add_u32 s83, s83, s63
        s_lshl_b32 s83, s83, 15
        s_add_u32 s81, s81, s83
        s_add_u32 s81, s81, {OW}
        s_add_u32 s67, s81, s82
        s_xor_b32 s82, s82, 4096
        s_add_u32 s68, s81, s82
        s_add_u32 s69, s83, s85
        s_lshl_b32 s80, s64, 5
        s_add_u32 s69, s69, s80
        s_lshl_b32 s80, s75, 6
        s_lshl_b32 s81, s30, 3
        s_add_u32 s80, s80, s81
        v_lshrrev_b32 v{t2}, 3, v0
        v_add_u32 v{t2}, s80, v{t2}
        v_lshlrev_b32 v{t2}, 10, v{t2}
        v_lshrrev_b32 v{t1}, 4, v0
        s_lshl_b32 s81, s63, 2
        v_xor_b32 v{t1}, s81, v{t1}
        v_and_b32 v{t0}, 7, v0
        v_xor_b32 v{t1}, v{t1}, v{t0}
        v_lshl_add_u32 v{t2}, v{t1}, 4, v{t2}
        v_add_u32 v{XOV}, s85, v{t2}
        v_lshlrev_b32 v{XW8}, 2, v{t0}
        v_add_u32 v{XW8}, {L_XF}, v{XW8}
        v_bfe_u32 v{t1}, v0, 3, 1
        v_lshlrev_b32 v{t0}, 11, v{t0}
        v_lshl_add_u32 v{CFV}, v{t1}, 8, v{t0}
        s_lshr_b32 s80, s75, 1
        s_and_b32 s84, s80, 3
        s_lshl_b32 s84, s84, 6
        s_lshr_b32 s80, s80, 2
        s_lshl_b32 s80, s80, 1
        s_add_u32 s80, s80, s84
        s_lshl_b32 s80, s80, 8
        s_add_u32 s101, s80, {CF}
        s_add_u32 s81, s81, s64
        """)
        for r in range(4):
            a(f"s_xor_b32 s80, s81, {r}\ns_mul_i32 s80, s80, 6144\ns_add_u32 s80, s80, {L_RB+max(r-1,0)*2048}\nv_add_u32 v{RBA+r}, s80, v{L16}")
        a(f"""
        s_and_b32 s84, s30, 3
        s_mul_i32 s65, s84, {PRIV}
        s_add_u32 s65, s65, {L_PRIV}
        s_add_u32 s80, s65, 4096
        v_add_u32 v{XYA}, s80, v{L16}
        v_add_u32 v{XGA}, s80, v{L4H}
        s_lshl_b32 s80, s84, 2
        s_add_u32 s80, s80, {L_XF}
        v_mov_b32 v{MYW}, s80
        v_mov_b32 v{XW}, {L_XF}
        v_mov_b32 v{ONE}, 1
        v_mov_b32 v{VZ}, 0
        """)
        for i in range(4): a(f"v_mov_b32 v{Z4+i}, 0")
        srd(a, 44, 8, 0x80000)
    ones = lambda t: lines(f"v_and_b32 v{t}, 27, v0\nv_cmp_eq_u32 vcc, 16, v{t}\nv_mov_b32 v{t}, 0x3f803f80\ns_nop 0\nv_cndmask_b32 v{t}, 0, v{t}, vcc")
    ldk = lambda st, so, off: f"buffer_load_dwordx4 {vr(KS+4*st,4)}, v{L16}, {WS}, {so} offen offset:{off} sc1"
    def ldv(st, so, off):
        return ["s_mov_b64 exec, s[72:73]",
                f"buffer_load_dwordx4 {vr(VS+8*st,4)}, v{VOF}, {WS}, {so} offen offset:{off} sc1",
                f"buffer_load_dwordx4 {vr(VS+8*st+4,4)}, v{VOF}, {WS}, {so} offen offset:{off+512} sc1",
                "s_mov_b64 exec, -1"]
    def att_q():
        lds_wait(a, XW4, W_QW, Q)
        for j in range(4): a(f"ds_read_b128 {vr(Q+4*j,4)}, v{QA+j//2} offset:{(j%2)*1024}")
    def att_loads():
        a(ldk(0, "s70", 0))
        for m in range(3):
            for x in ldv(m, "s71", m*1024): a(x)
            a(ldk(m+1, "s70", (m+1)*1024))
    def c_wo():
        a(f"v_xor_b32 v6, 4096, v{WOA}\nv_xor_b32 v7, 0x8000, v{WOA}\nv_xor_b32 v8, 0x9000, v{WOA}")
        for ai in range(2):
            for j in range(8):
                for jj in range(2):
                    a(f"ds_read_b64_tr_b16 {vr(WF+4*(8*ai+j)+2*jj,2)}, v{[WOA,6,7,8][2*ai+j//4]} offset:{(j%4)*1024+jj*512}")
                if j % 4 == 3 and 8*ai+j < 15: a("s_waitcnt lgkmcnt(4)")
    oload = [f"buffer_load_dwordx4 {vr(OB+4*j,4)}, v{L16}, {WS}, s{67+j//4} offen offset:{(j%4)*1024} sc1" for j in range(8)]

    XV, WV = 16, 20
    a(f"""
    s_setprio 1
    s_sub_u32 s84, s30, 4
    s_lshl_b32 s80, s57, 7
    s_lshl_b32 s81, s84, 5
    s_add_u32 s80, s80, s81
    v_lshrrev_b32 v6, 3, v0
    v_add_u32 v6, s80, v6
    v_lshlrev_b32 v6, 10, v6
    v_and_b32 v7, 7, v0
    v_lshrrev_b32 v8, 4, v0
    v_xor_b32 v9, v7, v8
    v_lshl_add_u32 v{XV}, v9, 4, v6
    v_xor_b32 v9, 4, v9
    v_lshl_add_u32 v{XV+1}, v9, 4, v6
    v_add_u32 v{XV+1}, 7168, v{XV+1}
    v_add_u32 v{XV+2}, {2*7168}, v{XV}
    v_add_u32 v{XV+3}, {2*7168}, v{XV+1}
    s_lshl_b32 s81, s84, 4
    v_lshrrev_b32 v6, 2, v0
    v_add_u32 v6, s81, v6
    v_mul_u32_u24 v6, 3072, v6
    v_and_b32 v7, 3, v0
    v_lshl_add_u32 v6, v7, 4, v6
    s_lshl_b32 s81, s58, 6
    v_add_u32 v{WV}, s81, v6
    s_lshl_b32 s92, s84, 12
    s_lshl_b32 s93, s84, 11
    s_add_u32 s93, s93, {16384-1024}
    s_lshl_b32 s94, s59, 1
    s_add_u32 s94, s94, s60
    {"s_mov_b32 s94, 0" if "nostag" in EXP else ""}
    {"s_add_u32 s94, s59, s60" if STG < 8 else ""}
    {f"s_and_b32 s94, s94, {STG-1}" if STG < 8 else ""}
    {f"s_mul_i32 s94, s94, {STM}" if STG < 8 else ""}
    {"v_and_b32 v20, 0xfff0, v16" if "wl2" in EXP else ""}
    {"v_and_b32 v16, 0xfff0, v16" if "xl2" in EXP else ""}
    {"v_and_b32 v17, 0xfff0, v17" if "xl2" in EXP else ""}
    {"v_and_b32 v18, 0xfff0, v18" if "xl2" in EXP else ""}
    {"v_and_b32 v19, 0xfff0, v19" if "xl2" in EXP else ""}
    s_waitcnt lgkmcnt(0)
    """)
    srd(a, 36, 4, 0x200000); srd(a, 40, 6, 0x180000)
    stamp(a, 1, 3)
    def dma(st):
        base = (st % NS) * SLOT
        a(f"s_add_u32 s95, s94, {st}\ns_and_b32 s95, s95, 7\ns_lshl_b32 s100, s95, 7\ns_add_u32 m0, s92, {base}\ns_mul_i32 s95, s95, 196608")
        for j in range(4): a(f"buffer_load_dwordx4 v{XV+j}, s[36:39], s100 offen offset:{j*1024} lds")
        a(f"s_add_u32 m0, s93, {base}\ns_nop 0")
        for j in (1, 2): a(f"buffer_load_dwordx4 v{WV}, s[40:43], s95 offen offset:{j*1024} lds")
        stamp(a, 2 + st, 3)
    dma(0); dma(1)
    issued = 2
    a(f"v_lshlrev_b32 v32, 2, v0\nv_add_u32 v32, {L_XF}, v32\nv_mov_b32 v33, 0\nds_write_b32 v32, v33")
    main = a; a = Asm()
    srd(a, 32, 28, WS_BYTES); srd(a, 52, 26, 256)
    common_setup(a, 6, 7, 8)
    BA, PW16, PW4, A0, A64, A512, U2, PV16, PT16, PTW, YST = 1, 6, 7, 8, 9, 10, 11, 12, 13, 14, 15
    UFV, GFV, P0, P1, YLD, YSW, YSR, XAD, DF, PM = 210, 211, 212, 213, 214, 215, 216, 217, 218, 224
    UK, TBW, TBR, US, SKV, GOV = 21, 24, 25, 26, 28, 29
    a(f"""
    s_lshl_b32 s91, s31, 6
    s_lshl_b32 s80, s56, 1
    s_add_u32 s91, s91, s80
    s_lshr_b32 s80, s84, 1
    s_add_u32 s91, s91, s80
    s_and_b32 s80, s91, -2
    s_lshl_b32 s80, s80, 1
    s_load_dword s89, s[20:21], s80
    v_and_b32 v32, 31, v0
    v_lshrrev_b32 v33, 5, v0
    v_and_b32 v34, 15, v0
    v_lshrrev_b32 v35, 4, v0
    v_and_b32 v36, 7, v0
    v_lshrrev_b32 v37, 3, v0
    v_min_u32 v38, 29, v32
    v_lshlrev_b32 v38, 4, v38
    v_mul_u32_u24 v39, {USZ}, v33
    v_add3_u32 v30, v38, v39, s65
    s_mul_i32 s80, s84, {4*PSL}
    s_add_u32 s80, s80, {L_OLD}
    v_add_u32 v{PW16}, s80, v{L16}
    v_add_u32 v{PW4}, s80, v{L4H}
    s_lshl_b32 s81, s63, 8
    v_lshlrev_b32 v38, 4, v35
    v_lshl_add_u32 v{A0}, v34, 2, v38
    s_sub_u32 s80, s81, 60
    v_add_u32 v{A0}, s80, v{A0}
    v_add_u32 v{A64}, 64, v{A0}
    v_add_u32 v{A512}, 512, v{A0}
    v_add_u32 v{U2}, 2, v{L16}
    v_add_u32 v{PV16}, s65, v{L16}
    s_xor_b32 s80, s84, 1
    s_lshl_b32 s82, s80, 2
    s_add_u32 s82, s82, {L_XF}
    v_mov_b32 v{PTW}, s82
    s_mul_i32 s80, s80, {PRIV}
    s_add_u32 s80, s80, {L_PRIV}
    v_add_u32 v{PT16}, s80, v{L16}
    v_and_b32 v39, 1, v0
    v_mul_u32_u24 v39, {USZ}, v39
    v_bfe_u32 v40, v0, 1, 3
    v_lshlrev_b32 v41, 6, v40
    v_sub_u32 v39, v39, v41
    s_add_u32 s80, s65, 448
    s_add_u32 s80, s80, s81
    v_add3_u32 v{BA}, v39, v38, s80
    v_and_b32 v38, 3, v0
    v_lshlrev_b32 v{GOV}, 2, v38
    v_lshlrev_b32 v38, 4, v38
    v_bfe_u32 v39, v0, 2, 2
    v_lshl_add_u32 v38, v39, 7, v38
    v_lshl_add_u32 v38, v33, 6, v38
    v_bfe_u32 v41, v0, 4, 1
    v_lshl_add_u32 v{YST}, v41, 9, v38
    v_lshlrev_b32 v{UFV}, 9, v{L4H}
    v_lshlrev_b32 v{GFV}, 11, v36
    v_mul_u32_u24 v38, {CST}, v37
    v_lshl_add_u32 v{YLD}, v36, 4, v38
    v_xor_b32 v42, v36, v35
    v_lshl_add_u32 v{US}, v42, 4, v38
    v_xor_b32 v42, 4, v42
    v_lshl_add_u32 v{US+1}, v42, 4, v38
    v_xor_b32 v38, v36, v37
    v_lshlrev_b32 v38, 4, v38
    v_lshl_add_u32 v38, v37, 7, v38
    s_add_u32 s80, s65, 6400
    v_add_u32 v{YSW}, s80, v38
    s_lshl_b32 s80, s63, 1
    v_lshl_add_u32 v38, v33, 2, s80
    v_xor_b32 v38, v38, v36
    v_lshlrev_b32 v38, 4, v38
    v_lshl_add_u32 v38, v34, 7, v38
    s_and_b32 s80, s64, 1
    s_mul_i32 s80, s80, {PRIV}
    s_add_u32 s80, s80, {L_PRIV+6400}
    v_add_u32 v{YSR}, s80, v38
    s_lshl_b32 s80, s64, 1
    v_xor_b32 v38, s80, v40
    v_lshlrev_b32 v38, 4, v38
    v_lshl_add_u32 v38, v32, 7, v38
    v_lshl_add_u32 v38, v33, 3, v38
    s_lshl_b32 s80, s63, 12
    s_add_u32 s80, s80, {L_X}
    v_add_u32 v{XAD}, s80, v38
    v_and_b32 v38, 1, v0
    v_lshl_or_b32 v39, v38, 2, v39
    v_xor_b32 v41, v41, v33
    v_lshl_or_b32 v39, v41, 3, v39
    v_bfe_u32 v38, v0, 1, 1
    v_lshlrev_b32 v38, 4, v38
    v_mov_b32 v41, 0x3f80
    v_lshlrev_b32 v38, v38, v41
    """)
    for i in range(8): a(f"v_cmp_eq_u32 vcc, {i}, v39\ns_nop 1\nv_cndmask_b32 v{PM+i}, 0, v38, vcc")
    a(f"""
    s_lshl_b32 s80, s56, 16
    s_lshl_b32 s82, s84, 14
    s_add_u32 s80, s80, s82
    s_lshl_b32 s82, s31, 7
    s_add_u32 s80, s80, s82
    v_lshlrev_b32 v38, 13, v33
    v_lshl_add_u32 v38, v32, 2, v38
    v_add_u32 v{UK+1}, s80, v38
    v_add_u32 v{UK}, -3072, v{UK+1}
    v_add_u32 v{UK+2}, 4096, v{UK+1}
    s_lshl_b32 s80, s31, 9
    v_lshl_add_u32 v{SKV}, v32, 4, s80
    s_lshl_b32 s80, s84, 1
    v_add_u32 v38, s80, v33
    v_sub_u32 v38, 7, v38
    v_xor_b32 v38, v38, v36
    v_lshlrev_b32 v38, 4, v38
    v_lshl_add_u32 v38, v32, 8, v38
    v_add_u32 v{TBW}, {TB}, v38
    s_lshl_b32 s80, s84, 11
    s_add_u32 s80, s80, {TB}
    v_add_u32 v{TBR}, s80, v{L16}
    s_lshl_b32 s10, s31, 2
    s_add_u32 s10, s10, s84
    s_mul_i32 s10, s10, {16*CST}
    s_lshl_b32 s80, s56, 7
    s_sub_u32 s10, s10, s80
    s_add_u32 s10, s10, {UW + 248*16}
    s_add_u32 s11, s10, {8*CST}
    s_lshl_b32 s87, s31, 8
    s_add_u32 s87, s87, {UF}
    s_lshr_b32 s86, s31, 1
    s_lshl_b32 s86, s86, 1
    s_and_b32 s80, s75, 1
    s_add_u32 s86, s86, s80
    s_lshr_b32 s80, s75, 1
    s_and_b32 s80, s80, 3
    s_lshl_b32 s80, s80, 6
    s_add_u32 s86, s86, s80
    s_lshl_b32 s86, s86, 8
    s_add_u32 s86, s86, {UF}
    v_lshl_add_u32 v39, v35, 2, v34
    s_waitcnt lgkmcnt(0)
    s_and_b32 s80, s91, 1
    s_lshl_b32 s80, s80, 4
    s_lshr_b32 s89, s89, s80
    s_and_b32 s89, s89, 0xffff
    v_mov_b32 v38, s89
    """)
    for i in range(4): a(f"v_cmp_eq_u32 vcc, {15-i}, v39\ns_nop 1\nv_cndmask_b32 v{DF+i}, 0, v38, vcc")
    for x in ones(38): a(x)
    for i in range(32): a(f"v_mov_b32 v{VS+i}, v38")
    defer = a.lines; a = main
    cuts = [0, HS0] + [HS0 + (len(defer) - HS0) * (n + 1) // 7 for n in range(7)]
    for n in range(1, len(cuts) - 1):
        while cuts[n] < len(defer) and ("vcc" in defer[cuts[n]] or defer[cuts[n]].startswith(("s_nop", "s_cselect", "s_addc"))): cuts[n] += 1
    a.lines += defer[:cuts[1]]
    for s_ in range(8):
        a(f"s_waitcnt vmcnt({6*(issued-1-s_)}){' lgkmcnt(0)' if s_ == 0 else ''}\ns_barrier")
        while issued < min(8, s_ + NS): dma(issued); issued += 1
        if s_ < 7: a.lines += defer[cuts[s_+1]:cuts[s_+2]]
    a("s_lshr_b32 s92, s92, 2")
    for st in range(8):
        if st == WQ1: a("s_barrier")
        a(f"s_add_u32 s95, s94, {st}\ns_and_b32 s95, s95, 7\ns_add_u32 m0, s92, {L_WQ+st*4096}\ns_mul_i32 s95, s95, 196608")
        a(f"buffer_load_dwordx4 v{WV}, s[40:43], s95 offen lds")
    if WQ1 >= 8: a("s_barrier")
    stamp(a, 10, 3)
    KR, VR, SK, GOH, KF, VF, SF, U, UP, GX, GG = 32, 43, 52, 56, 64, 86, 102, 110, 128, 144, 152
    srd(a, 40, 12, 0x200000); srd(a, 48, 14, 0x200000)
    for i in range(3): a(f"buffer_load_dword v{KR+i}, v{UK}, s[40:43], 0 offen offset:{i*1024} nt")
    for i in range(8): a(f"buffer_load_dword v{KR+3+i}, v{UK+1+i//4}, s[40:43], 0 offen offset:{(i%4)*1024} nt")
    for i in range(8): a(f"buffer_load_dword v{VR+i}, v{UK+1+i//4}, s[48:51], 0 offen offset:{(i%4)*1024} nt")
    srd(a, 40, 16, 4096); srd(a, 48, 22, 1024)
    a(f"""
    s_lshl_b32 s12, s57, 7
    s_lshl_b32 s80, s58, 3
    s_add_u32 s12, s12, s80
    s_lshl_b32 s80, s84, 1
    s_add_u32 s12, s12, s80
    s_lshl_b32 s80, s12, 10
    s_lshl_b32 s12, s12, 2
    s_add_u32 s12, s12, {GW}
    buffer_load_dwordx4 {vr(SK,4)}, v{SKV}, s[40:43], 0 offen
    buffer_load_dwordx4 {vr(GG,4)}, v{L16}, s[48:51], 0 offen
    buffer_load_dwordx4 {vr(GX,4)}, v{L16}, s[36:39], s80 offen
    buffer_load_dwordx4 {vr(GX+4,4)}, v{L16}, s[36:39], s80 offen offset:1024
    buffer_load_dword v{GOH}, v{GOV}, s[52:55], 0 offen sc1
    s_waitcnt vmcnt(24)
    s_barrier
    s_setprio 0
    """)
    stamp(a, 1); stamp(a, 11, 3)
    a(f"ds_write_b128 v30, {vr(Z4,4)} offset:4096")
    srd(a, 40, 24, 0x200000)
    a(f"""
    s_mul_i32 s13, s91, {CST}
    s_lshl_b32 s80, s63, 11
    s_add_u32 s7, s13, s80
    s_add_u32 s7, s7, {YW}
    s_add_u32 s13, s13, {UW}
    s_mov_b32 s88, s7
    s_add_u32 s89, s7, 1024
    s_and_b32 s4, s64, 1
    s_lshl_b32 s4, s4, 1
    s_lshl_b32 s5, s57, 2
    s_add_u32 s4, s4, s5
    s_lshl_b32 s4, s4, 15
    s_lshl_b32 s5, s61, 10
    s_add_u32 s4, s4, s5
    s_add_u32 s4, s4, {OW}
    s_add_u32 s5, s4, 0x8000
    s_mov_b32 s8, 1
    s_lshl_b32 s14, s75, 1
    s_add_u32 s14, s14, s63
    s_lshl_b32 s14, s14, 7
    s_add_u32 s14, s14, {GW}
    s_lshl_b32 s15, s76, 2
    s_add_u32 s15, s15, s84
    s_mul_i32 s15, s15, {16*CST}
    s_lshl_b32 s82, s75, 7
    s_add_u32 s15, s15, s82
    s_add_u32 s15, s15, {YW}
    s_add_u32 s16, s15, {8*CST}
    s_lshl_b32 s17, s76, 8
    s_add_u32 s17, s17, {CF}
    s_lshl_b32 s82, s91, 12
    s_add_u32 s82, s82, s80
    s_add_u32 s92, s18, s82
    s_addc_u32 s93, s19, 0
    s_mov_b32 s83, 99
    s_mov_b32 s82, 2
    s_mov_b32 s6, 0xffff0000
    s_waitcnt vmcnt(4)
    """)
    stamp(a, 2)
    a(f"buffer_load_dword v57, v{KF2}, {WS}, s74 offen sc1")
    for i in range(11): a(f"v_lshlrev_b32 v{KF+2*i}, 16, v{KR+i}\nv_and_b32 v{KF+2*i+1}, s6, v{KR+i}")
    for i in range(8): a(f"v_lshlrev_b32 v{VF+2*i}, 16, v{VR+i}\nv_and_b32 v{VF+2*i+1}, s6, v{VR+i}")
    for ch in range(2):
        for t in range(4):
            src = SK + 2*ch + t//2
            a(f"v_lshlrev_b32 v{SF+2*t+ch}, 16, v{src}" if t % 2 == 0 else f"v_and_b32 v{SF+2*t+ch}, s6, v{src}")
    for i in range(8):
        u = vr(U+2*i, 2)
        a(f"v_pk_mul_f32 {u}, {vr(KF+2*i,2)}, {vr(SF+6,2)}")
        for t in (2, 1, 0): a(f"v_pk_fma_f32 {u}, {vr(KF+2*(i+3-t),2)}, {vr(SF+2*t,2)}, {u}")
        a(f"v_pk_mul_f32 {u}, {u}, {vr(VF+2*i,2)}")
    for ch in range(2):
        for i in range(4): a(f"v_cvt_pk_bf16_f32 v{KR+4*ch+i}, v{U+2*(7-2*i)+ch}, v{U+2*(6-2*i)+ch}")
    a(f"""
    ds_write_b128 v{TBW}, {vr(KR,4)}
    ds_write_b128 v{TBW}, {vr(KR+4,4)} offset:128
    v_mov_b32 v48, 0
    v_mov_b32 v49, 0
    s_waitcnt vmcnt(0) lgkmcnt(0)
    {mark(W_TB)}
    """)

    for i in range(4):
        a(f"v_dot2_f32_bf16 v48, v{GX+i}, v{GG+i}, v48\nv_dot2_f32_bf16 v49, v{GX+4+i}, v{GG+i}, v49")
    a("s_nop 2")
    for d in ("row_shr:1 row_mask:0xf bank_mask:0xf bound_ctrl:0", "row_shr:2 row_mask:0xf bank_mask:0xf bound_ctrl:0",
              "row_shr:4 row_mask:0xf bank_mask:0xf bound_ctrl:0", "row_shr:8 row_mask:0xf bank_mask:0xf bound_ctrl:0",
              "row_bcast:15 row_mask:0xa bank_mask:0xf", "row_bcast:31 row_mask:0xc bank_mask:0xf"):
        a(f"v_add_f32_dpp v48, v48, v48 {d}\nv_add_f32_dpp v49, v49, v49 {d}\ns_nop 0")
    a(f"""
    v_cvt_pk_bf16_f32 v50, v48, v49
    v_lshlrev_b32 v48, 16, v50
    v_and_b32 v49, s6, v50
    v_mul_f32 v48, {f32(-LOG2E)}, v48
    v_mul_f32 v49, {f32(-LOG2E)}, v49
    v_exp_f32 v48, v48
    v_exp_f32 v49, v49
    s_nop 0
    v_add_f32 v48, 1.0, v48
    v_add_f32 v49, 1.0, v49
    v_rcp_f32 v48, v48
    v_rcp_f32 v49, v49
    s_nop 0
    v_cvt_pk_bf16_f32 v50, v48, v49
    v_lshlrev_b32 v{UP+8}, 16, v50
    v_and_b32 v{UP+9}, s6, v50
    v_mov_b32 v{UP+10}, v{US}
    v_mov_b32 v{UP+11}, v{US+1}
    """)
    all_set(a, late, GOH, GOV, "0", "s[52:55]")
    lds_wait(a, XW4, W_TB, 56)
    a(f"ds_read_b128 {vr(UP,4)}, v{TBR}\nds_read_b128 {vr(UP+4,4)}, v{TBR} offset:1024")
    stamp(a, 3); stamp(a, 12, 3)
    all_set(a, late, 57, KF2, "s74")
    att_loads()
    a("s_waitcnt lgkmcnt(0)")
    a(f"""
    buffer_store_dwordx4 {vr(UP,4)}, v{UP+10}, {WS}, s10 offen sc1
    buffer_store_dwordx4 {vr(UP+4,4)}, v{UP+11}, {WS}, s11 offen sc1
    s_mov_b32 exec_lo, 0
    s_mov_b32 exec_hi, 0x80000000
    buffer_store_dwordx2 {vr(UP+8,2)}, v{VZ}, {WS}, s12 offen sc1
    s_mov_b64 exec, -1
    """)
    stamp(a, 4); stamp(a, 13, 3)
    att_q()
    lds_wait(a, XW4, W_QR, 56)
    a("s_setprio 1")
    stamp(a, 5); stamp(a, 6)
    for i in range(12): a(f"s_load_dword s100, s[92:93], {i*128}")

    a("s_branch B_go")

    a.label("A_compute")
    XA, WA, AK, AV, AQ, XF, FR, FQ, GO = 6, [14, 15, 1], 20, 36, 48, 64, 192, [208, 212, 216, 28, 32], 19
    a(f"""
    v_and_b32 v20, 31, v0
    v_lshrrev_b32 v21, 5, v0
    v_bfe_u32 v22, v0, 1, 3
    v_xor_b32 v22, v22, v21
    s_lshl_b32 s80, s30, 12
    v_lshlrev_b32 v20, 7, v20
    v_lshl_add_u32 v20, v22, 4, v20
    v_add_u32 v{XA}, s80, v20
    """)
    for ks in range(1, 4): a(f"v_xor_b32 v{XA+ks}, {ks*32}, v{XA}")
    for ks in range(4): a(f"v_add_u32 v{XA+4+ks}, {2*SLOT}, v{XA+ks}")
    a(f"""
    v_bfe_u32 v20, v0, 2, 2
    v_lshl_add_u32 v20, v21, 3, v20
    v_lshlrev_b32 v20, 6, v20
    v_bfe_u32 v22, v0, 4, 1
    v_lshl_add_u32 v20, v22, 5, v20
    v_and_b32 v23, 3, v0
    v_lshl_add_u32 v20, v23, 3, v20
    v_add_u32 v{WA[0]}, 16384, v20
    v_add_u32 v{WA[1]}, {16384+2*SLOT}, v20
    v_add_u32 v{WA[2]}, {L_WQ}, v20
    v_lshlrev_b32 v228, 2, v23
    v_mov_b32 v55, v22
    s_waitcnt lgkmcnt(0)
    """)
    srd(a, 32, 28, WS_BYTES); srd(a, 52, 26, 256)
    a(f"""
    s_cmp_lg_u32 s2, 0
    s_cbranch_scc1 A_noclear
    s_lshl_b32 s80, s30, 14
    s_add_u32 s80, s80, {FW}
    v_lshlrev_b32 v24, 8, v0
    v_mov_b32 v28, 0
    v_mov_b32 v29, 0
    v_mov_b32 v30, 0
    v_mov_b32 v31, 0
    v_mov_b32 v25, 1
    buffer_store_dwordx4 v[28:31], v24, {WS}, s80 offen sc1
    s_lshl_b32 s80, s30, 2
    s_waitcnt vmcnt(0)
    s_mov_b64 exec, 1
    buffer_store_dword v25, v28, s[52:55], s80 offen sc1
    s_mov_b64 exec, -1
    """)
    a.label("A_noclear")
    if TLBT & 1:
        a(f"""
        s_lshl_b32 s80, s58, 17
        s_lshl_b32 s81, s57, 2
        s_add_u32 s81, s81, s30
        s_lshl_b32 s81, s81, 10
        s_add_u32 s80, s80, s81
        s_add_u32 s80, s80, {KW}
        v_and_b32 v24, 1, v0
        v_bfe_u32 v25, v0, 1, 1
        v_lshlrev_b32 v24, 16, v24
        v_lshl_add_u32 v24, v25, 21, v24
        buffer_load_dword v220, v24, {WS}, s80 offen
        """)
    main = a; a = Asm()
    srd(a, 36, 4, 0x200000); srd(a, 40, 24, 0x200000)
    common_setup(a, 52, 53, 54)
    a(f"""
    v_and_b32 v16, 0x33, v0
    v_bfe_u32 v17, v0, 2, 1
    v_lshl_or_b32 v16, v17, 3, v16
    v_bfe_u32 v17, v0, 3, 1
    v_lshl_or_b32 v16, v17, 2, v16
    v_lshlrev_b32 v16, 4, v16
    v_lshl_add_u32 v17, v55, 16, v{VOF}
    s_lshl_b32 s80, s30, 10
    s_add_u32 s80, s80, {L_QX}
    v_add_u32 v18, s80, v{L16}
    s_lshl_b32 s10, s58, 17
    s_lshl_b32 s80, s57, 2
    s_add_u32 s81, s80, s30
    s_lshl_b32 s81, s81, 10
    s_add_u32 s10, s10, s81
    s_add_u32 s12, s10, {VW}
    s_add_u32 s10, s10, {KW}
    s_add_u32 s11, s10, 0x10000
    s_mov_b32 s13, {f32(0.25*LOG2E)}
    s_lshl_b32 s81, s64, 1
    s_add_u32 s80, s80, s81
    s_lshl_b32 s80, s80, 15
    s_lshl_b32 s82, s61, 10
    s_add_u32 s80, s80, s82
    s_add_u32 s86, s80, {OW}
    s_add_u32 s87, s86, 0x8000
    s_mov_b32 s8, 99
    s_lshl_b32 s82, s63, 2
    s_add_u32 s82, s82, s81
    s_mul_i32 s14, s82, {PSL}
    s_add_u32 s14, s14, {L_OLD}
    s_xor_b32 s16, s30, 2
    s_mul_i32 s15, s30, {2*PSL}
    s_mul_i32 s16, s16, {2*PSL}
    s_add_u32 s15, s15, {L_YNG}
    s_add_u32 s16, s16, {L_YNG}
    s_mov_b32 s83, {CDROP}
    s_mov_b32 s82, 99
    s_mov_b32 s92, s18
    s_mov_b32 s93, s19
    """)
    for x in ones(229): a(x)
    defer = a.lines; a = main
    cuts = [CS0 + (len(defer) - CS0) * n // 28 for n in range(29)]
    for n in range(28):
        while cuts[n] < len(defer) and ("vcc" in defer[cuts[n]] or defer[cuts[n]].startswith(("s_nop", "s_cselect", "s_addc"))): cuts[n] += 1
    a.lines += defer[:cuts[0]]
    a("s_barrier")
    stamp(a, 1); stamp(a, 1, 3); stamp(a, 2, 4)
    def reads(g):
        st, ks = g >> 2, g & 3
        slot = st % NS
        bs, off = slot // 2, (slot % 2) * SLOT
        f = FR + 8 * (g % 3)
        r = [f"ds_read_b128 {vr(XF+4*g,4)}, v{XA+4*bs+ks} offset:{off}"]
        for ty in range(2):
            for j in range(2):
                r.append(f"ds_read_b64_tr_b16 {vr(f+4*ty+2*j,2)}, v{WA[bs]} offset:{off+ks*2048+ty*1024+j*256}")
        return r
    for r in reads(0) + reads(1): a(r)
    for g in range(32):
        nxt = reads(g + 2) if g + 2 < 32 else []
        if nxt and (g + 2) % 4 == 0:
            a("s_waitcnt lgkmcnt(0)\ns_barrier")
            stamp(a, 1 + (g + 2) // 4, 3)
        else:
            a(f"s_waitcnt lgkmcnt({5 if g < 31 else 0})")
        f, x = FR + 8 * (g % 3), XF + 4 * g
        if "nord" in EXP: nxt = []
        if "nomm" not in EXP: a(f"{M32} {vr(AK,16)}, {vr(f,4)}, {vr(x,4)}, {'0' if g == 0 else vr(AK,16)}")
        for r in nxt[0:3]: a(r)
        if "nomm" not in EXP: a(f"{M32} {vr(AV,16)}, {vr(x,4)}, {vr(f+4,4)}, {'0' if g == 0 else vr(AV,16)}")
        for r in nxt[3:5]: a(r)
        if g < 28: a.lines += defer[cuts[g]:cuts[g+1]]
    stamp(a, 2); stamp(a, 9, 3); stamp(a, 3, 4)
    a("s_setprio 3\ns_nop 9")
    for i in range(8): a(f"v_cvt_pk_bf16_f32 v{AK+i}, v{AK+2*i}, v{AK+2*i+1}")
    a(f"buffer_store_dwordx4 {vr(AK,4)}, v16, {WS}, s10 offen sc1")
    a(f"buffer_store_dwordx4 {vr(AK+4,4)}, v16, {WS}, s11 offen sc1")
    for i in range(8): a(f"v_cvt_pk_bf16_f32 v{AV+i}, v{AV+2*i}, v{AV+2*i+1}")
    a(f"buffer_store_dwordx4 {vr(AV,4)}, v17, {WS}, s12 offen sc1")
    a(f"buffer_store_dwordx4 {vr(AV+4,4)}, v17, {WS}, s12 offen offset:512 sc1")
    a(f"buffer_load_dword v{GO}, v228, s[52:55], 0 offen sc1\ns_barrier")
    stamp(a, 3); stamp(a, 10, 3)
    a(f"""
    v_add_u32 v6, s14, v{L16}
    v_add_u32 v7, s14, v{L4H}
    v_add_u32 v8, s15, v{L16}
    v_add_u32 v9, s15, v{L4H}
    v_add_u32 v10, s16, v{L16}
    v_add_u32 v11, s16, v{L4H}
    """)
    for i in range(16, 32): a(f"v_mov_b32 v{VS+i}, v229")
    a("s_waitcnt vmcnt(0)")
    all_set(a, late, GO, 228, "0", "s[52:55]")
    arrive(a, 0, 12)
    stamp(a, 4); stamp(a, 12, 3)
    a("s_barrier")
    stamp(a, 11, 3)
    order = [28, 29, 30, 31] + list(range(28))
    qrd = lambda n: [f"ds_read_b64_tr_b16 {vr(FQ[n%5]+2*j,2)}, v{WA[2]} offset:{order[n]*1024+j*256}" for j in range(2)]
    for n in range(4):
        for r in qrd(n): a(r)
    for n in range(32):
        if n == KFG: a(f"buffer_load_dword v12, v{KF2}, {WS}, s74 offen sc1")
        a(f"s_waitcnt lgkmcnt({min(6, 2*(31-n))})")
        a(f"{M32} {vr(AQ,16)}, {vr(FQ[n%5],4)}, {vr(XF+4*order[n],4)}, {'0' if n == 0 else vr(AQ,16)}")
        if n + 4 < 32:
            for r in qrd(n + 4): a(r)
        if 4 <= n < 20: a(f"v_mov_b32 v{VS+n-4}, v229")
    a("s_nop 11")
    for i in range(16): a(f"v_mul_f32 v{AQ+i}, s13, v{AQ+i}")
    for i in range(8): a(f"v_cvt_pk_bf16_f32 v{AQ+i}, v{AQ+2*i}, v{AQ+2*i+1}")
    a(f"""
    ds_write_b128 v18, {vr(AQ,4)}
    ds_write_b128 v18, {vr(AQ+4,4)} offset:4096
    s_waitcnt lgkmcnt(0)
    {mark(W_QW)}
    s_waitcnt vmcnt(0)
    """)
    all_set(a, late, 12, KF2, "s74")
    stamp(a, 5); stamp(a, 13, 3)
    att_loads()
    att_q()
    a(f"s_waitcnt lgkmcnt(0)\n{mark(W_QR)}\ns_setprio 2")
    stamp(a, 6); stamp(a, 14, 3)

    a.label("B_go")
    for j in range(4): a(f"{M32} {vr(ACC+16*j,16)}, {vr(Z4,4)}, {vr(Z4,4)}, 0")
    a(f"{M32} {vr(S+48,16)}, {vr(Z4,4)}, {vr(Z4,4)}, 0")
    a("s_add_u32 s70, s70, 4096\ns_add_u32 s71, s71, 3072\ns_mov_b32 s84, 3")
    qk = lambda j, st: f"{M32} {vr(S+16*j,16)}, {vr(KS+4*st,4)}, {vr(Q+4*j,4)}, 0"
    pv = lambda j, st, s: f"{SM} {vr(ACC+16*j,16)}, {vr(VS+8*st+4*s,4)}, {vr(S+16*j+8*s,8)}, v{IDX}"
    a("s_waitcnt vmcnt(9)"); a(qk(0, 0)); a(qk(1, 0))
    for i in range(4): a(f"v_mov_b32 v{Z4+i}, -1")
    a("s_nop 6")
    if STAMP: a("s_mov_b32 s21, 0")
    stamp(a, 7)
    wodma = lambda m: [f"s_add_u32 m0, s77, {m*1024}", f"s_add_u32 s85, s78, {m*16384}", f"buffer_load_dwordx4 v{WOV}, s[44:47], s85 offen lds"]
    xdma = ["s_mov_b32 m0, s79", "s_nop 0", f"buffer_load_dwordx4 v{XOV}, s[36:39], 0 offen lds"]
    def body(last, extras, waits):
        for m in range(4):
            for j in range(4):
                jp, mp = (j - 1) % 4, (m if j else (m - 1) % 4)
                ins = {}
                def put(p, x): ins.setdefault(p, []).extend(x if isinstance(x, list) else [x])
                if j == 1 and waits[m] is not None: put(1, f"s_waitcnt vmcnt({waits[m]})")
                put(1, pv(jp, mp, 0))
                put(6, pv(jp, mp, 1))
                if j == 0 and (not last or m == 0): put(8, ldv((m + 3) % 4, "s71", m*1024))
                if not (last and m == 3 and j >= 2): put(11, qk((j + 2) % 4, m if j < 2 else (m + 1) % 4))
                if j == 1 and not last: put(13, ldk(m, "s70", m*1024))
                if j == 2 and not last:
                    if m < 2: put(8, wodma(m))
                    if m == 2: put(8, ["s_cmp_eq_u32 s84, 1", "s_cbranch_scc1 B_x"] + wodma(2) + ["s_branch B_xd", "B_x:"] + xdma + ["B_xd:"])
                    if m == 3: put(8, ["s_cmp_le_u32 s84, s8", "s_cbranch_scc1 B_nocl"] + [f"buffer_store_dwordx4 {vr(Z4,4)}, v{L16}, {WS}, s{r} offen sc1" for r in (88, 89)]
                                   + ["s_mov_b32 s88, s4", "s_mov_b32 s89, s5", "B_nocl:"])
                if not last and m == 1 and j == 3: put(4, (["s_cmp_lg_u32 s84, 3", "s_cbranch_scc1 B_nof"] if F1 else []) + [f"buffer_load_dword v{QA+1}, v{KFV}, {WS}, s74 offen sc1"] + (["B_nof:"] if F1 else []))
                if not last and m == 3 and j == 3: put(3, (["s_cmp_lg_u32 s84, 2", "s_cbranch_scc1 B_nof2"] if F1 else []) + ["s_waitcnt vmcnt(7)", lambda: all_set(a, late, QA + 1, KFV, "s74")] + (["B_nof2:"] if F1 else []))
                for p, x in extras.get((m, j), []): put(p, x)
                for e in range(16):
                    for x in ins.get(e, []):
                        if callable(x): x()
                        else: a(x)
                    a(f"v_exp_f32 v{S+16*j+e}, v{S+16*j+e}")
    a(".p2align 6")
    a.label("B_loop")
    body(False, {(3, 1): [(14, ["s_add_u32 s77, s77, 3072", "s_add_u32 s78, s78, 49152"])],
                 (3, 2): [(14, ["s_add_u32 s70, s70, 4096", "s_add_u32 s71, s71, 4096", "s_sub_u32 s84, s84, 1"])],
                 (CDT, 0): [(3, ["s_cmp_lg_u32 s84, s83", "s_cbranch_scc1 B_keep", "s_setprio 0", "B_keep:"])],
                 (3, 3): [(8, ["s_cmp_lg_u32 s84, s82", "s_cbranch_scc1 B_nouf", lambda: arrive(a, 1, QA)]
                              + [f"s_load_dword s100, s[92:93], {i*128}" for i in range(12, 16)] + ["B_nouf:"]),
                          (14, "s_cmp_lg_u32 s84, 0")]}, [8, 9, 10, 11] if F1 else [8, 9, 11, 12])
    a("s_cbranch_scc1 B_loop")
    stamp(a, 8)
    a("s_cmp_lt_u32 s30, 4\ns_cbranch_scc1 B_final")

    CA = 32
    ABUF, BBUF = [96, 160], [128, 64]
    a(f"""
    s_lshl_b32 s80, s91, 12
    s_add_u32 s92, s18, s80
    s_addc_u32 s93, s19, 0
    s_mov_b32 s94, 4096
    s_mov_b32 s95, 0x20000
    buffer_load_dword v{P0}, v{UFV}, {WS}, s87 offen sc1
    buffer_load_dword v{P1}, v{GFV}, {WS}, s86 offen sc1
    """)
    def lda(rr):
        b = ABUF[rr % 2]
        o = []
        if rr == 0:
            o.append(f"buffer_load_dword v{b}, v{A0}, s[92:95], 0 offen")
            for i in range(1, 4): o.append(f"v_add_u32 v{A0}, 4, v{A0}\nbuffer_load_dword v{b+i}, v{A0}, s[92:95], 0 offen")
        else:
            o.append(f"buffer_load_dwordx4 {vr(b,4)}, v{A64}, s[92:95], 0 offen offset:{64*(rr-1)}")
        for aa in range(1, 8):
            o.append(f"buffer_load_dwordx4 {vr(b+4*aa,4)}, v{A512}, s[92:95], 0 offen offset:{512*(aa-1)+64*rr}")
        return o
    ldb = lambda rr: [f"ds_read_b128 {vr(BBUF[rr%2]+4*bb,4)}, v{BA} offset:{64*rr+512*(7-bb)}" for bb in range(8)]
    udma = lambda rho, q: [f"s_add_u32 m0, s65, {rho*USZ}", "s_nop 0",
                           f"buffer_load_dwordx4 v{L16 if rho else U2}, {WS}, s13 offen offset:{q*1024} sc1 lds",
                           f"buffer_load_dwordx4 v{L16 if rho else U2}, {WS}, s13 offen offset:{q*1024+1024} sc1 lds"]
    wrh = lambda j: [f"ds_write_b128 v{PW16}, {vr(ACC+16*j,4)} offset:{j*PSL}", f"ds_write_b128 v{PW16}, {vr(ACC+16*j+4,4)} offset:{j*PSL+1024}",
                     f"ds_write_b32 v{PW4}, v{ACC+16*j+8} offset:{j*PSL+2048}"]
    LA0, LA1 = lda(0), lda(1)
    exh = {(0, 0): [(3, lambda: arrive(a, 2, QA))],
           (1, 1): [(3, [mark(W_LH), lambda: all_set(a, late, P0, UFV, "s87"), lambda: all_set(a, late, P1, GFV, "s86")]),
                    (8, udma(1, 0)), (13, udma(1, 2))],
           (1, 2): [(4, udma(0, 0)), (13, udma(0, 2))],
           (1, 3): [(4, f"buffer_load_dword v{G}, v{L4H}, {WS}, s14 offen sc1")],
           (3, 1): [(9 + i, LA1[i]) for i in range(4)],
           (3, 2): [(3 + i, wrh(0)[i]) for i in range(3)] + [(8 + i, LA1[4 + i]) for i in range(4)],
           (3, 3): [(0, LA0[0:4])] + [(3 + i, wrh(1)[i]) for i in range(3)] + [(7 + i, LA0[4 + i]) for i in range(7)]}
    body(True, exh, [12 if F1 else 13, 2, None, 9])
    a(f"""
    s_waitcnt vmcnt(19)
    s_mov_b64 exec, 1
    ds_write_b16 v{PV16}, v{VZ} offset:4094
    s_mov_b64 exec, -1
    {pv(3,3,0)}
    {pv(3,3,1)}
    s_setprio {CVP}
    """)
    stamp(a, 9)
    for x in ldb(0) + wrh(2): a(x)
    a("s_nop 0")
    for x in wrh(3): a(x)
    a(f"s_waitcnt lgkmcnt(0)\n{mark(W_PO)}")
    for rr in range(4):
        ab, bb_ = ABUF[rr % 2], BBUF[rr % 2]
        nb = ldb(rr + 1) if rr < 3 else []
        mm = lambda aa, b, c=None: f"{M16} {vr(CA+4*(aa+b),4)}, {vr(ab+4*aa,4)}, {vr(bb_+4*b,4)}, {c or vr(CA+4*(aa+b),4)}"
        a(f"s_waitcnt vmcnt({[0, 8, 8, 0][rr]}){' lgkmcnt(0)' if rr else ''}")
        if rr == CVR: a("s_setprio 1")
        if rr == 3:
            a(f"buffer_load_dword v{P0}, v{UFV}, {WS}, s17 offen sc1\nbuffer_load_dword v{P1}, v{CFV}, {WS}, s101 offen sc1")
        if rr == 0:
            a("s_cmp_lg_u32 s63, 0\ns_cbranch_scc1 CV_nodiag")
            for b in range(8): a(f"{M16} {vr(CA+4*b,4)}, {vr(DF,4)}, {vr(bb_+4*b,4)}, 0")
            for b in range(8): a(mm(0, b))
            a("s_branch CV_row1")
            a.label("CV_nodiag")
            for b in range(8): a(mm(0, b, "0"))
            a.label("CV_row1")
        cnt = 0
        na = lda(rr + 2) if rr < 2 else []
        for aa in range(8):
            for b in range(8 - aa):
                if rr == 0 and aa == 0: continue
                a(mm(aa, b))
                cnt += 1
                if cnt % 3 == 0 and nb: a(nb.pop(0))
            if na: a(na.pop(0))
    stamp(a, 11)
    XI, YP = 96, 128
    a(f"s_setprio {XP}")
    a("s_cmp_lg_u32 s63, 0\ns_cbranch_scc1 CV_odd")
    for odd in range(2):
        if odd: a.label("CV_odd")
        a("s_nop 4" if not odd else "s_nop 0")
        for n in range(4): a(f"ds_write_b128 v{PV16}, {vr(CA+16*(1-odd)+4*n,4)} offset:{n*1024}")
        a(f"s_waitcnt lgkmcnt(0)\n{mark(W_XCH)}")
        lds_wait(a, PTW, W_XCH, XI)
        for n in range(4): a(f"ds_read_b128 {vr(XI+4*n,4)}, v{PT16} offset:{n*1024}")
        for n in range(4):
            c = CA + 16*odd + 4*n
            a(f"s_waitcnt lgkmcnt({3-n})")
            a(f"v_pk_add_f32 {vr(c,2)}, {vr(c,2)}, {vr(XI+4*n,2)}\nv_pk_add_f32 {vr(c+2,2)}, {vr(c+2,2)}, {vr(XI+4*n+2,2)}")
            a(f"v_cvt_pk_bf16_f32 v{YP+2*n}, v{c}, v{c+1}\nv_cvt_pk_bf16_f32 v{YP+2*n+1}, v{c+2}, v{c+3}")
        if not odd: a("s_branch CV_st")
    a.label("CV_st")
    a("s_nop 0")
    for p in range(2):
        a(f"v_permlane16_swap_b32 v{YP+4*p}, v{YP+4*p+2}\nv_permlane16_swap_b32 v{YP+4*p+1}, v{YP+4*p+3}")
        a(f"buffer_store_dwordx4 {vr(YP+4*p,4)}, v{YST}, {WS}, s7 offen offset:{1024*p} sc1")
    a("s_waitcnt vmcnt(2)")
    all_set(a, late, P0, UFV, "s17"); all_set(a, late, P1, CFV, "s101")
    yload = [f"buffer_load_dwordx4 {vr(YA+4*q,4)}, v{YLD}, {WS}, s{15+q} offen sc1" for q in range(2)]
    a(f"s_setprio {XP2}")
    stamp(a, 12)
    lds_wait(a, XW8, W_LH, 9)
    a(f"""
    v_xor_b32 v9, 16, v{XAD}
    v_xor_b32 v10, 64, v{XAD}
    v_xor_b32 v11, 80, v{XAD}
    ds_read_b64 {vr(XR,2)}, v{XAD}
    ds_read_b64 {vr(XR+2,2)}, v9
    ds_read_b64 {vr(XR+4,2)}, v10
    ds_read_b64 {vr(XR+6,2)}, v11
    v_sub_f32 v{G+1}, 1.0, v{G}
    ds_write_b32 v{XGA}, v{G} offset:2048
    """)
    c_wo()
    a(f"v_xor_b32 v9, 16, v{YSR}\nv_mov_b32 v{G+2}, v{G+1}\nv_mov_b32 v{G+3}, v{G+1}")
    for i in range(8):
        a(f"v_lshlrev_b32 v{XG+2*i}, 16, v{XR+i}\nv_and_b32 v{XG+2*i+1}, s6, v{XR+i}")
        a(f"v_pk_mul_f32 {vr(XG+2*i,2)}, {vr(XG+2*i,2)}, {vr(G+2,2)}")
    for x in yload: a(x)
    def ystage():
        a(f"""
        ds_write_b128 v{YSW}, {vr(YA,4)}
        ds_write_b128 v{YSW}, {vr(YA+4,4)} offset:1024
        s_waitcnt lgkmcnt(0)
        {mark(W_YS)}
        """)
        stamp(a, 10)
        lds_wait(a, XW4, W_YS, 10)
        for b in (1, 0):
            for sg in range(2): a(f"ds_read_b128 {vr(YF+8*b+4*sg,4)}, v{[YSR, 9][sg]} offset:{(1-b)*2*PRIV}")
        for b in (1, 0):
            a(f"s_waitcnt lgkmcnt({2*b})")
            a(f"{M32} {vr(YA+16*b,16)}, {vr(YF+8*b,4)}, {vr(PM,4)}, 0")
            a(f"{M32} {vr(YA+16*b,16)}, {vr(YF+8*b+4,4)}, {vr(PM+4,4)}, {vr(YA+16*b,16)}")
    def xymul():
        for i in range(4): a(f"v_pk_mul_f32 {vr(YA+16+2*i,2)}, {vr(YA+16+2*i,2)}, {vr(XG+8+2*i,2)}")
        a(f"ds_write_b128 v{XYA}, {vr(YA+16,4)}\nds_write_b128 v{XYA}, {vr(YA+20,4)} offset:1024\ns_nop 0")
        for i in range(4): a(f"v_pk_mul_f32 {vr(YA+2*i,2)}, {vr(YA+2*i,2)}, {vr(XG+2*i,2)}")
    if YSM:
        a(f"s_mov_b32 s90, {SPIN}")
        a.label("Y_try")
        a(f"""
        ds_read_b32 v11, v{XW4} offset:{W_OL}
        s_waitcnt vmcnt(0)
        v_max3_u32 v10, v{YA}, v{YA+1}, v{YA+2}
        v_max3_u32 v10, v{YA+3}, v{YA+4}, v10
        v_max3_u32 v10, v{YA+5}, v{YA+6}, v10
        v_max_u32 v10, v{YA+7}, v10
        v_cmp_eq_u32 vcc, -1, v10
        s_sub_u32 s90, s90, 1
        s_cbranch_scc1 Y_have
        s_cmp_eq_u64 vcc, 0
        s_cbranch_scc1 Y_have
        """)
        for x in yload: a(x)
        a("s_waitcnt lgkmcnt(0)\nv_cmp_eq_u32 vcc, 1, v11\ns_nop 0\ns_cmp_eq_u64 vcc, exec\ns_cbranch_scc0 Y_try\ns_setprio 3")
        stamp(a, 13)
        for x in oload: a(x)
        a("s_waitcnt vmcnt(8)")
        fresh(a, late, list(range(YA, YA+8)), yload, 10)
        ystage()
        a("s_nop 9")
        xymul()
        a("s_branch C_mm")
        a.label("Y_have")
    else:
        a("s_waitcnt vmcnt(0)")
        fresh(a, late, list(range(YA, YA+8)), yload, 10)
    if YSM == 2:
        a(f"""
        s_waitcnt lgkmcnt(0)
        v_cmp_eq_u32 vcc, 1, v11
        s_nop 0
        s_cmp_eq_u64 vcc, exec
        s_cbranch_scc0 Y_norm
        s_setprio 3
        """)
        stamp(a, 13)
        for x in oload: a(x)
        ystage()
        a("s_nop 9")
        xymul()
        a("s_branch C_mm")
        a.label("Y_norm")
    ystage()
    a("s_setprio 0")
    lds_wait(a, XW4, W_OL, 10)
    a("s_setprio 3")
    stamp(a, 13)
    for x in oload: a(x)
    xymul()
    a("s_branch C_mm")

    a.label("B_final")
    rdp = lambda dst, a16, off: [f"ds_read_b128 {vr(dst,4)}, v{a16} offset:{off}", f"ds_read_b128 {vr(dst+4,4)}, v{a16} offset:{off+1024}",
                                 f"ds_read_b32 v{dst+8}, v{a16+1} offset:{off+2048}"]
    wrp = lambda j: [f"ds_write_b128 v8, {vr(ACC+16*j,4)} offset:{j*PSL}", f"ds_write_b128 v8, {vr(ACC+16*j+4,4)} offset:{j*PSL+1024}",
                     f"ds_write_b32 v9, v{ACC+16*j+8} offset:{j*PSL+2048}"]
    PA, PB = [208, 176, 160, 186], [96, 112]
    r0 = rdp(PA[0], 6, 0); r1 = rdp(PA[1], 6, 8*PSL); r2 = rdp(PA[2], 6, PSL); r3 = rdp(PA[3], 6, 9*PSL)
    w0, w1 = wrp(0), wrp(1)
    def add9(d, s_):
        return [f"v_pk_add_f32 {vr(d+2*i,2)}, {vr(d+2*i,2)}, {vr(s_+2*i,2)}" for i in range(4)] + [f"v_add_f32 v{d+8}, v{d+8}, v{s_+8}"]
    ex = {(1, 1): [(3, mark(W_LC))],
          (0, 2): ([(8, f"buffer_load_dword v221, v{OUTV}, s[40:43], s69 offen")] if TLBT & 2 else []),
          (2, 2): [(8, f"buffer_load_dword v13, v{CFV}, {WS}, s101 offen sc1")],
          (3, 0): [(9, [lambda: lds_wait(a, XW4, W_PO, 12), "s_setprio 3"]), (12, r0[0]), (13, r0[1]), (14, r0[2])],
          (3, 1): [(3, r1[0]), (4, r1[1]), (8, r1[2]), (9, r2[0]), (13, r2[1]), (14, r2[2])],
          (3, 2): [(2, r3[0]), (3, w0[0]), (4, r3[1]), (8, w0[1]), (9, r3[2]), (10, w0[2])],
          (3, 3): [(3, w1[0]), (4, w1[1]), (5, w1[2]), (9, ["s_waitcnt lgkmcnt(0)", mark(W_PY)]),
                   (12, [lambda: lds_wait(a, XW4, W_PY, 12)] + rdp(PB[0], 10, 0)), (13, rdp(PB[1], 10, PSL))]}
    body(True, ex, [10 if F1 else 11, 5, 2, 0])
    stamp(a, 9)
    O2, O3 = ACC + 32, ACC + 48
    for x in add9(PA[0], PA[1])[:2]: a(x)
    a(f"{pv(3,3,0)}\n{pv(3,3,1)}")
    for x in add9(PA[0], PA[1])[2:] + add9(O2, PA[0]) + add9(PA[2], PA[3]): a(x)
    a("s_waitcnt lgkmcnt(0)")
    a(mark(W_PR))
    for x in add9(O2, PB[0]) + add9(PA[2], PB[1]) + add9(O3, PA[2]): a(x)
    a(f"v_mov_b32 v14, 0\nv_mov_b32 v15, 0")
    for o in (O2, O3):
        for i in range(4): a(f"v_pk_fma_f32 v[14:15], {vr(o+2*i,2)}, 0, v[14:15] op_sel_hi:[1,0,1]")
    a(f"""
    v_add_f32 v14, v14, v15
    v_min_f32 v15, v{O2+8}, v{O3+8}
    v_add_f32 v14, v14, v{O2+8}
    v_add_f32 v14, v14, v{O3+8}
    v_cmp_lt_f32 vcc, {f32(2.0**-60)}, v15
    s_mov_b64 s[92:93], vcc
    v_cmp_gt_f32 vcc, {f32(2.0**60)}, v14
    s_and_b64 s[92:93], s[92:93], vcc
    s_cmp_eq_u64 s[92:93], exec
    s_cbranch_scc0 B_slow
    """)
    a.label("B_fin")
    a(f"v_rcp_f32 v14, v{O2+8}\nv_rcp_f32 v12, v{O3+8}\ns_nop 0")
    for jj, (o, r) in enumerate(((O2, 14), (O3, 12))):
        for i in range(4): a(f"v_pk_mul_f32 {vr(o+2*i,2)}, {vr(o+2*i,2)}, {vr(r,2)} op_sel_hi:[1,0]")
        for i in range(4): a(f"v_cvt_pk_bf16_f32 v{208+4*jj+i}, v{o+2*i}, v{o+2*i+1}")
        a(f"buffer_store_dwordx4 {vr(208+4*jj,4)}, v{L16}, {WS}, s{86+jj} offen sc1")
    stamp(a, 10)
    all_set(a, late, 13, CFV, "s101")
    if not OLATE:
        for x in oload: a(x)
    stamp(a, 11)
    lds_wait(a, XW8, W_LH, 12)
    c_wo()
    lds_wait(a, XW4, W_PR, 12)
    if HOL: a(mark(W_OL))
    if OLATE:
        for x in oload: a(x)
    stamp(a, 13)

    a.label("C_mm")
    for j in range(8):
        a(f"s_waitcnt vmcnt({7-j})")
        fresh(a, late, list(range(OB+4*j, OB+4*j+4)), oload[j:], 6, 7 - j)
        for ai in (1, 0):
            a(f"{M32} {vr(AC+16*ai,16)}, {vr(WF+4*(8*ai+j),4)}, {vr(OB+4*j,4)}, {'0' if j == 0 else vr(AC+16*ai,16)}")
    stamp(a, 14)
    a("s_nop 10")
    for r in (2, 3, 1):
        a(f"ds_write_b128 v{RBA+r}, {vr(AC+8*r,4)}\nds_write_b128 v{RBA+r}, {vr(AC+8*r+4,4)} offset:1024")
    a(f"s_cmp_lt_u32 s30, 4\ns_waitcnt lgkmcnt(0)\ns_barrier\ns_cbranch_scc0 C_havexy")
    a(f"ds_read_b128 {vr(YA,4)}, v{XYA}\nds_read_b128 {vr(YA+4,4)}, v{XYA} offset:1024\nds_read_b32 v{G}, v{XGA} offset:2048")
    a.label("C_havexy")
    for r in range(6): a(f"ds_read_b128 {vr(RD+4*r,4)}, v{RBA} offset:{r*1024}")
    for r in range(3):
        a(f"s_waitcnt lgkmcnt({4-2*r})")
        for i in range(4): a(f"v_pk_add_f32 {vr(AC+2*i,2)}, {vr(AC+2*i,2)}, {vr(RD+8*r+2*i,2)}")
    for i in range(4): a(f"v_pk_fma_f32 {vr(AC+2*i,2)}, {vr(AC+2*i,2)}, {vr(G,2)}, {vr(YA+2*i,2)} op_sel_hi:[1,0,1]")
    for i in range(4): a(f"v_cvt_pk_bf16_f32 v{PK4+i}, v{AC+2*i}, v{AC+2*i+1}")
    a(f"""
    s_nop 0
    v_permlane32_swap_b32 v{PK4}, v{PK4+2}
    v_permlane32_swap_b32 v{PK4+1}, v{PK4+3}
    buffer_store_dwordx4 {vr(PK4,4)}, v{OUTV}, s[40:43], s69 offen
    """)
    if STAMP: a("s_waitcnt vmcnt(0)")
    stamp(a, 15)
    if STAMP: a("v_writelane_b32 v255, s21, 40")
    stamp_flush(a)
    a("s_endpgm")

    a.label("B_slow")
    a(f"""
    s_add_u32 s70, s66, {KW}
    s_add_u32 s71, s66, {VW}
    s_mov_b32 s84, 0
    v_mov_b32 v208, 0xff800000
    v_mov_b32 v209, 0xff800000
    """)
    a.label("B_slow1")
    a(f"""
    s_add_u32 s85, s70, s84
    {ldk(0, "s85", 0)}
    s_waitcnt vmcnt(0)
    {M32} {vr(S,16)}, {vr(KS,4)}, {vr(Q+8,4)}, 0
    {M32} {vr(S+16,16)}, {vr(KS,4)}, {vr(Q+12,4)}, 0
    s_nop 11
    """)
    for jj in range(2):
        for i in range(8): a(f"v_max3_f32 v{208+jj}, v{S+16*jj+2*i}, v{S+16*jj+2*i+1}, v{208+jj}")
    a("""
    s_add_u32 s84, s84, 1024
    s_cmp_lt_u32 s84, 0x10000
    s_cbranch_scc1 B_slow1
    v_mov_b32 v210, v208
    v_mov_b32 v211, v209
    s_nop 1
    v_permlane32_swap_b32 v208, v210
    v_permlane32_swap_b32 v209, v211
    v_max_f32 v208, v208, v210
    v_max_f32 v209, v209, v211
    s_mov_b32 s84, 0
    """)
    for jj in range(2):
        for i in range(16): a(f"v_sub_f32 v{S+32+16*jj+i}, 0, v{208+jj}\nv_mov_b32 v{ACC+32+16*jj+i}, 0")
    for i in range(8): a(f"v_mov_b32 v{VS+i}, 0x3f803f80")
    a.label("B_slow2")
    a(f"s_add_u32 s85, s70, s84\ns_add_u32 s89, s71, s84\n{ldk(0, 's85', 0)}")
    for x in ldv(0, "s89", 0): a(x)
    a(f"""
    s_waitcnt vmcnt(0)
    {M32} {vr(S,16)}, {vr(KS,4)}, {vr(Q+8,4)}, {vr(S+32,16)}
    {M32} {vr(S+16,16)}, {vr(KS,4)}, {vr(Q+12,4)}, {vr(S+48,16)}
    s_nop 11
    """)
    for i in range(32): a(f"v_exp_f32 v{S+i}, v{S+i}")
    a("s_nop 1")
    for jj in range(2):
        for s in range(2):
            a(f"{SM} {vr(ACC+32+16*jj,16)}, {vr(VS+4*s,4)}, {vr(S+16*jj+8*s,8)}, v{IDX}")
    a("""
    s_add_u32 s84, s84, 1024
    s_cmp_lt_u32 s84, 0x10000
    s_cbranch_scc1 B_slow2
    s_nop 11
    s_branch B_fin
    """)
    a.lines += late.lines
    a.label("K_end")
    a("s_endpgm")
    return a

def build():
    ref = open(f"cdna_kernels/{NAME}.s.ref").read().split("\n")
    head = [l for l in ref if l.startswith(";") and "@launch" not in l]
    t = kernel().text()
    bad = check(t)
    head += """; One launch, 256 workgroups of 8 waves (one per CU), three phases with hand-offs through d_ws:
;   A  waves 4-7 stage x / wqkv into LDS, waves 0-3 compute k, v (published, write-through) and q (kept on chip);
;      waves 4-7 then compute the gate and u = shiftconv(k) * v (published channel-major)
;   B  attention for 128 tokens x 2 heads, keys split over four waves per head; exp2 results feed a sparse MFMA as raw
;      fp32 (high halves selected), a ones row of v gives the row sums; waves 4-7 also run the long causal convolution
;      of two channels as Toeplitz MFMAs; waves 0-3 combine, check the softmax range and normalise
;   C  64 x 64 output tile: g * (o @ wo) + (1 - g) * x * y
; Flags live in d_ws, are cleared by workgroup 0 and released through d_debug; o and y are reset to all-ones first and
; consumers reload what has not arrived yet. Every wait is bounded.""".split("\n")
    out = "\n".join(head) + f"\n; @launch grid=(256,1,1) block=(512,1,1) lds={LDS}\n"
    out += f'.amdgcn_target "amdgcn-amd-amdhsa--gfx950"\n.text\n.globl {NAME}_kernel\n.p2align 8\n.type {NAME}_kernel,@function\n' + t
    out += f""".section .rodata,"a"
.p2align 6
.amdhsa_kernel {NAME}_kernel
  .amdhsa_next_free_vgpr 256
  .amdhsa_next_free_sgpr 102
  .amdhsa_accum_offset 256
  .amdhsa_group_segment_fixed_size 0
  .amdhsa_kernarg_size 104
  .amdhsa_user_sgpr_count 2
  .amdhsa_user_sgpr_kernarg_segment_ptr 1
  .amdhsa_system_sgpr_workgroup_id_x 1
  .amdhsa_float_denorm_mode_32 3
.end_amdhsa_kernel
"""
    return out, bad

if __name__ == "__main__":
    out, bad = build()
    for b in bad: print("HAZARD", b)
    path = sys.argv[1] if len(sys.argv) > 1 else "fused.s"
    open(path, "w").write(out)
    print("wrote", path, len(out), "bytes;", len(bad), "hazards; lds", LDS)
```

```python
import os, sys, struct
from asmlib import Asm, vr, sr, check

NAME = "gated_mix__mha_block__ssm_conv_h3__prompt"
KW, VW, UW, YW, OW, GW = 0x200000, 0x400000, 0x600000, 0x840000, 0xA80000, 0xE00000
CST = 4352
FW = 0xE10000
FS = 256
QF, UF, CF = FW, FW + 4, FW + 8
WS_BYTES = 0xE60000
M32 = "v_mfma_f32_32x32x16_bf16"
M16 = "v_mfma_f32_16x16x32_bf16"
SM = "v_smfmac_f32_32x32x32_bf16"
LOG2E = 1.4426950408889634
STAMP = int(os.environ.get("STAMP", "0"))
env = lambda k, d: type(d)(os.environ.get(k, d))
NS = env("NS", 3)
EXP = env("EXP", "")
STG = env("STG", 4)
STM = env("STM", 8 // STG)
WQ1 = env("WQ1", 4)
KFG = env("KFG", 14)
CDROP, CDT = env("CDROP", 2), env("CDT", 0)
XP, XP2 = env("XP", 3), env("XP2", 3)
OFIRST = env("OFIRST", 0)
YSM = env("YSM", 1)
CVR = env("CVR", 3)
F1 = env("F1", 1)
QROT = env("QROT", 1)
DELAY = env("DELAY", "")
HW12 = env("HW12", 0)
KSW = env("KSW", 1)
HOL = env("HOL", 1)
CVP = env("CVP", 0)
HS0 = env("HS0", 150)
CS0 = env("CS0", 150)
OLATE = env("OLATE", 1)
YLATE = env("YLATE", 1)
TOUCH = env("TOUCH", 2)
TW = 0xF00000
SPIN = 40000

SLOT = 24576
L_X = 65536
L_PRIV = 73728
USZ = 4576
PRIV = 2 * USZ
PSL = 2176
L_OLD = L_PRIV + 4 * PRIV
L_YNG = L_OLD + 16 * PSL
L_XF = L_YNG + 8 * PSL
L_WQ = L_OLD
L_QX = L_YNG
TB = L_QX + 8192
L_RB = L_OLD
LDS = L_XF + 256
W_XCH, W_QW, W_KV, W_TB, W_PO, W_QR, W_PR, W_CNT, W_PY, W_LH, W_LC, W_YS, W_OL = 0, 16, 32, 48, 64, 80, 96, 128, 144, 160, 176, 192, 208

def f32(x):
    return "0x%08x" % struct.unpack("<I", struct.pack("<f", x))[0]

def srd(a, d, b, nbytes):
    a(f"s_mov_b32 s{d}, s{b}\ns_mov_b32 s{d+1}, s{b+1}\ns_mov_b32 s{d+2}, {hex(nbytes)}\ns_mov_b32 s{d+3}, 0x20000")

def stamp(a, i, mode=1):
    if not STAMP or (STAMP != mode and i not in (0, 15)): return
    a(f"""
    s_memtime s[96:97]
    s_memrealtime s[98:99]
    s_waitcnt lgkmcnt(0)
    v_writelane_b32 v255, s96, {2*i}
    v_writelane_b32 v255, s98, {2*i+1}
    """)
def stamp_flush(a):
    if not STAMP: return
    a(f"""
    s_lshl_b32 s96, s2, 3
    s_add_u32 s96, s96, s30
    s_lshl_b32 s96, s96, 8
    s_add_u32 s96, s96, {TW}
    s_mov_b32 s34, 0x1400000
    v_lshlrev_b32 v6, 2, v0
    buffer_store_dword v255, v6, s[32:35], s96 offen
    """)

WS = "s[32:35]"
IDX, L16, VOF, L4H = 2, 3, 4, 5
KF2, VZ, WOA, RBA, XYA, XGA, OUTV = 222, 223, 232, 233, 237, 238, 239
CFV, KFV, MYW, XW4, WOV, XOV, QA, Z4, XW, ONE, XW8 = 240, 241, 242, 243, 244, 245, 246, 248, 252, 253, 254
_uid = [0]
def uid(p):
    _uid[0] += 1
    return f"{p}{_uid[0]}"

def poll(a, voff, soff, tmp, srd_=WS):
    L = uid("POLL")
    a(f"s_mov_b32 s90, {SPIN}")
    a.label(L)
    a(f"""
    buffer_load_dword v{tmp}, v{voff}, {srd_}, {soff} offen sc1
    s_waitcnt vmcnt(0)
    v_cmp_eq_u32 vcc, 1, v{tmp}
    s_sub_u32 s90, s90, 1
    s_cbranch_scc1 {L}_out
    s_cmp_eq_u64 vcc, exec
    s_cbranch_scc0 {L}
    """)
    a.label(f"{L}_out")

def all_set(a, late, val, voff, soff, srd_=WS):
    L = uid("AS")
    a(f"v_cmp_eq_u32 vcc, 1, v{val}\ns_nop 0\ns_cmp_eq_u64 vcc, exec\ns_cbranch_scc0 {L}")
    a.label(f"{L}_ok")
    late.label(L)
    poll(late, voff, soff, val, srd_)
    late(f"s_branch {L}_ok")

def lds_wait(a, vaddr, off, tmp):
    L = uid("LW")
    a("s_mov_b32 s90, 0x400000")
    a.label(L)
    a(f"""
    ds_read_b32 v{tmp}, v{vaddr} offset:{off}
    s_waitcnt lgkmcnt(0)
    v_cmp_eq_u32 vcc, 1, v{tmp}
    s_sub_u32 s90, s90, 1
    s_cbranch_scc1 {L}_out
    s_cmp_eq_u64 vcc, exec
    s_cbranch_scc0 {L}
    """)
    a.label(f"{L}_out")

mark = lambda off: f"ds_write_b32 v{MYW}, v{ONE} offset:{off}"

def arrive(a, k, tmp, n=4):
    L = uid("AR")
    a(f"""
    s_mov_b64 exec, 1
    ds_add_rtn_u32 v{tmp}, v{XW}, v{ONE} offset:{W_CNT+4*k}
    s_waitcnt lgkmcnt(0)
    v_cmp_eq_u32 vcc, {n-1}, v{tmp}
    s_nop 4
    s_cbranch_vccz {L}
    buffer_store_dword v{ONE}, v{VZ}, {WS}, s62 offen offset:{4*k} sc1
    """)
    a.label(L)
    a("s_mov_b64 exec, -1")

def fresh(a, late, regs, reload, tmp, keep=0):
    L = uid("FR")
    chk = [f"v_max3_u32 v{tmp}, v{regs[0]}, v{regs[1]}, v{regs[2]}"]
    r = list(regs[3:])
    while len(r) >= 2: chk.append(f"v_max3_u32 v{tmp}, v{r.pop(0)}, v{r.pop(0)}, v{tmp}")
    if r: chk.append(f"v_max_u32 v{tmp}, v{r[0]}, v{tmp}")
    chk += [f"v_cmp_eq_u32 vcc, -1, v{tmp}", "s_nop 0", "s_cmp_eq_u64 vcc, 0"]
    a("\n".join(chk)); a(f"s_cbranch_scc0 {L}")
    a.label(f"{L}_ok")
    late.label(L)
    late(f"s_mov_b32 s90, {SPIN}")
    late.label(f"{L}_l")
    if STAMP: late("s_add_u32 s21, s21, 1")
    late("\n".join(reload) + f"\ns_waitcnt vmcnt({keep})\n" + "\n".join(chk))
    late(f"s_cbranch_scc1 {L}_ok\ns_sub_u32 s90, s90, 1\ns_cbranch_scc0 {L}_l\ns_branch {L}_ok")

def delay(a, tag):
    for d in DELAY.split(","):
        p = d.split(":")
        if p[0] != tag: continue
        L = uid("DL")
        a(f"s_and_b32 s90, s2, {int(p[1])-1}\ns_cmp_lg_u32 s90, {p[2]}\ns_cbranch_scc1 {L}_o\ns_mov_b32 s90, {p[3]}")
        a.label(L)
        a(f"s_sub_u32 s90, s90, 1\ns_cmp_lg_u32 s90, 0\ns_cbranch_scc1 {L}")
        a.label(f"{L}_o")

def lines(t):
    return [l.strip() for l in t.strip().split("\n") if l.strip()]

def kernel():
    a = Asm(); late = Asm()
    a.label(f"{NAME}_kernel")
    a(f"""
    s_cmp_ge_u32 s2, 256
    s_cbranch_scc1 K_end
    """)
    if STAMP == 4: a("v_mov_b32 v255, 0"); stamp(a, 0)
    if TOUCH == 2:
        a("""
        v_lshlrev_b32 v221, 7, v0
        v_min_u32 v221, K_end-A_pc, v221
        s_getpc_b64 s[80:81]
        A_pc:
        global_load_dword v221, v221, s[80:81]
        """)
    a(f"""
    s_load_dwordx8 s[4:11], s[0:1], 0
    s_load_dwordx16 s[12:27], s[0:1], 32
    s_load_dwordx2 s[28:29], s[0:1], 96
    v_lshrrev_b32 v1, 6, v0
    v_and_b32 v0, 63, v0
    s_and_b32 s31, s2, 7
    v_readfirstlane_b32 s30, v1
    s_lshr_b32 s56, s2, 3
    s_lshr_b32 s57, s31, 1
    s_lshl_b32 s57, s57, 2
    s_lshr_b32 s59, s56, 3
    s_add_u32 s57, s57, s59
    s_and_b32 s58, s31, 1
    s_lshl_b32 s58, s58, 3
    s_and_b32 s60, s56, 7
    s_add_u32 s58, s58, s60
    """)
    if STAMP == 4: stamp(a, 1, 4)
    elif STAMP: a("v_mov_b32 v255, 0"); stamp(a, 0)
    delay(a, "start")
    a("s_cmp_lt_u32 s30, 4\ns_cbranch_scc1 A_compute")

    Q, ACC, S, KS, VS = 16, 32, 96, 160, 176
    WF, OB, AC, YA, YF, XR, RD, PK4, XG = 16, 80, 112, 144, 176, 192, 80, 104, 112
    G = 208
    def common_setup(a, t0, t1, t2):
        a(f"""
        s_and_b32 s63, s30, 1
        s_lshr_b32 s64, s30, 1
        s_lshl_b32 s61, s58, 1
        s_add_u32 s61, s61, s63
        s_lshl_b32 s62, s2, 8
        s_add_u32 s62, s62, {FW}
        s_lshl_b32 s66, s61, 16
        s_lshl_b32 s67, s63, 12
        s_add_u32 s67, s67, {L_QX}
        s_cmp_eq_u32 s64, 0
        s_cselect_b32 s68, 2048, 0
        s_xor_b32 s69, s68, 2048
        s_add_u32 s68, s68, s67
        s_add_u32 s69, s69, s67
        v_lshlrev_b32 v{L16}, 4, v0
        v_add_u32 v{QA}, s68, v{L16}
        v_add_u32 v{QA+1}, s69, v{L16}
        s_lshr_b32 s71, s57, 2
        s_add_u32 s71, s71, {QROT}
        s_mul_i32 s71, s71, {1 if QROT else 0}
        s_add_u32 s71, s71, s64
        s_and_b32 s79, s71, 3
        s_lshl_b32 s70, s79, 14
        s_add_u32 s70, s70, s66
        s_add_u32 s71, s70, {VW}
        s_add_u32 s70, s70, {KW}
        s_mov_b32 s72, 0xffff
        s_mov_b32 s73, 0xffff
        s_lshl_b32 s74, s60, 3
        s_lshr_b32 s75, s58, 3
        s_add_u32 s74, s74, s75
        s_lshl_b32 s75, s79, 1
        s_add_u32 s74, s74, s75
        s_lshl_b32 s74, s74, 8
        s_add_u32 s74, s74, {QF}
        s_lshl_b32 s75, s31, 2
        s_add_u32 s75, s75, s59
        s_mov_b32 s76, s60
        s_lshl_b32 s77, s63, 15
        s_lshl_b32 s78, s64, 13
        s_add_u32 s77, s77, s78
        s_lshl_b32 s78, s64, 17
        s_lshl_b32 s85, s76, 7
        s_add_u32 s78, s78, s85
        s_lshl_b32 s79, s63, 6
        s_add_u32 s78, s78, s79
        s_lshl_b32 s79, s30, 10
        s_add_u32 s79, s79, {L_X}
        v_and_b32 v{t0}, 31, v0
        v_lshlrev_b32 v{L4H}, 2, v{t0}
        v_lshrrev_b32 v{t1}, 5, v0
        v_lshlrev_b32 v{OUTV}, 10, v{t0}
        v_lshl_add_u32 v{OUTV}, v{t1}, 4, v{OUTV}
        v_and_b32 v{t0}, 15, v0
        v_lshlrev_b32 v{t0}, 4, v{t0}
        v_lshl_add_u32 v{VOF}, v{t1}, 8, v{t0}
        v_mov_b32 v{IDX}, 0xdddd
        v_and_b32 v{t0}, 3, v0
        v_lshlrev_b32 v{XW4}, 2, v{t0}
        v_add_u32 v{XW4}, {L_XF}, v{XW4}
        v_bfe_u32 v{t2}, v0, 2, 2
        v_lshlrev_b32 v{KFV}, 14, v{t0}
        v_and_b32 v{KF2}, 0x4000, v{KFV}
        v_lshl_add_u32 v{t2}, v{t1}, 2, v{t2}
        v_lshlrev_b32 v{t2}, 6, v{t2}
        v_lshl_add_u32 v{t2}, v{t0}, 3, v{t2}
        s_and_b32 s80, s64, 1
        v_bfe_u32 v{WOA}, v0, 4, 1
        v_xor_b32 v{WOA}, s80, v{WOA}
        v_lshl_add_u32 v{t2}, v{WOA}, 5, v{t2}
        s_lshr_b32 s80, s64, 1
        s_lshl_b32 s80, s80, 15
        s_and_b32 s81, s31, 1
        s_xor_b32 s81, s81, {KSW & 1}
        s_mul_i32 s81, s81, {2 if KSW else 0}
        s_xor_b32 s81, s81, s64
        s_lshl_b32 s81, s81, 13
        s_add_u32 s80, s80, s81
        s_and_b32 s82, s76, 1
        s_lshl_b32 s82, s82, 12
        s_add_u32 s80, s80, s82
        v_add_u32 v{WOA}, s80, v{t2}
        v_lshrrev_b32 v{t2}, 2, v0
        v_lshlrev_b32 v{t2}, 10, v{t2}
        v_lshl_add_u32 v{WOV}, v{t0}, 4, v{t2}
        s_lshl_b32 s83, s75, 1
        s_add_u32 s83, s83, s63
        s_lshl_b32 s83, s83, 15
        s_add_u32 s81, s81, s83
        s_add_u32 s81, s81, {OW}
        s_add_u32 s67, s81, s82
        s_xor_b32 s82, s82, 4096
        s_add_u32 s68, s81, s82
        s_add_u32 s69, s83, s85
        s_lshl_b32 s80, s64, 5
        s_add_u32 s69, s69, s80
        s_lshl_b32 s80, s75, 6
        s_lshl_b32 s81, s30, 3
        s_add_u32 s80, s80, s81
        v_lshrrev_b32 v{t2}, 3, v0
        v_add_u32 v{t2}, s80, v{t2}
        v_lshlrev_b32 v{t2}, 10, v{t2}
        v_lshrrev_b32 v{t1}, 4, v0
        s_lshl_b32 s81, s63, 2
        v_xor_b32 v{t1}, s81, v{t1}
        v_and_b32 v{t0}, 7, v0
        v_xor_b32 v{t1}, v{t1}, v{t0}
        v_lshl_add_u32 v{t2}, v{t1}, 4, v{t2}
        v_add_u32 v{XOV}, s85, v{t2}
        v_lshlrev_b32 v{XW8}, 2, v{t0}
        v_add_u32 v{XW8}, {L_XF}, v{XW8}
        v_bfe_u32 v{t1}, v0, 3, 1
        v_lshlrev_b32 v{t0}, 11, v{t0}
        v_lshl_add_u32 v{CFV}, v{t1}, 8, v{t0}
        s_lshr_b32 s80, s75, 1
        s_and_b32 s84, s80, 3
        s_lshl_b32 s84, s84, 6
        s_lshr_b32 s80, s80, 2
        s_lshl_b32 s80, s80, 1
        s_add_u32 s80, s80, s84
        s_lshl_b32 s80, s80, 8
        s_add_u32 s101, s80, {CF}
        s_add_u32 s81, s81, s64
        """)
        for r in range(4):
            a(f"s_xor_b32 s80, s81, {r}\ns_mul_i32 s80, s80, 6144\ns_add_u32 s80, s80, {L_RB+max(r-1,0)*2048}\nv_add_u32 v{RBA+r}, s80, v{L16}")
        a(f"""
        s_and_b32 s84, s30, 3
        s_mul_i32 s65, s84, {PRIV}
        s_add_u32 s65, s65, {L_PRIV}
        s_add_u32 s80, s65, 4096
        v_add_u32 v{XYA}, s80, v{L16}
        v_add_u32 v{XGA}, s80, v{L4H}
        s_lshl_b32 s80, s84, 2
        s_add_u32 s80, s80, {L_XF}
        v_mov_b32 v{MYW}, s80
        v_mov_b32 v{XW}, {L_XF}
        v_mov_b32 v{ONE}, 1
        v_mov_b32 v{VZ}, 0
        """)
        for i in range(4): a(f"v_mov_b32 v{Z4+i}, 0")
        srd(a, 44, 8, 0x80000)
    ones = lambda t: lines(f"v_and_b32 v{t}, 27, v0\nv_cmp_eq_u32 vcc, 16, v{t}\nv_mov_b32 v{t}, 0x3f803f80\ns_nop 0\nv_cndmask_b32 v{t}, 0, v{t}, vcc")
    ldk = lambda st, so, off: f"buffer_load_dwordx4 {vr(KS+4*st,4)}, v{L16}, {WS}, {so} offen offset:{off} sc1"
    def ldv(st, so, off):
        return ["s_mov_b64 exec, s[72:73]",
                f"buffer_load_dwordx4 {vr(VS+8*st,4)}, v{VOF}, {WS}, {so} offen offset:{off} sc1",
                f"buffer_load_dwordx4 {vr(VS+8*st+4,4)}, v{VOF}, {WS}, {so} offen offset:{off+512} sc1",
                "s_mov_b64 exec, -1"]
    def att_q():
        lds_wait(a, XW4, W_QW, Q)
        for j in range(4): a(f"ds_read_b128 {vr(Q+4*j,4)}, v{QA+j//2} offset:{(j%2)*1024}")
    def att_loads():
        a(ldk(0, "s70", 0))
        for m in range(3):
            for x in ldv(m, "s71", m*1024): a(x)
            a(ldk(m+1, "s70", (m+1)*1024))
    def c_wo():
        a(f"v_xor_b32 v6, 4096, v{WOA}\nv_xor_b32 v7, 0x8000, v{WOA}\nv_xor_b32 v8, 0x9000, v{WOA}")
        for ai in range(2):
            for j in range(8):
                for jj in range(2):
                    a(f"ds_read_b64_tr_b16 {vr(WF+4*(8*ai+j)+2*jj,2)}, v{[WOA,6,7,8][2*ai+j//4]} offset:{(j%4)*1024+jj*512}")
                if j % 4 == 3 and 8*ai+j < 15: a("s_waitcnt lgkmcnt(4)")
    oload = [f"buffer_load_dwordx4 {vr(OB+4*j,4)}, v{L16}, {WS}, s{67+j//4} offen offset:{(j%4)*1024} sc1" for j in range(8)]

    XV, WV = 16, 20
    a(f"""
    s_setprio 1
    s_sub_u32 s84, s30, 4
    s_lshl_b32 s80, s57, 7
    s_lshl_b32 s81, s84, 5
    s_add_u32 s80, s80, s81
    v_lshrrev_b32 v6, 3, v0
    v_add_u32 v6, s80, v6
    v_lshlrev_b32 v6, 10, v6
    v_and_b32 v7, 7, v0
    v_lshrrev_b32 v8, 4, v0
    v_xor_b32 v9, v7, v8
    v_lshl_add_u32 v{XV}, v9, 4, v6
    v_xor_b32 v9, 4, v9
    v_lshl_add_u32 v{XV+1}, v9, 4, v6
    v_add_u32 v{XV+1}, 7168, v{XV+1}
    v_add_u32 v{XV+2}, {2*7168}, v{XV}
    v_add_u32 v{XV+3}, {2*7168}, v{XV+1}
    s_lshl_b32 s81, s84, 4
    v_lshrrev_b32 v6, 2, v0
    v_add_u32 v6, s81, v6
    v_mul_u32_u24 v6, 3072, v6
    v_and_b32 v7, 3, v0
    v_lshl_add_u32 v6, v7, 4, v6
    s_lshl_b32 s81, s58, 6
    v_add_u32 v{WV}, s81, v6
    s_lshl_b32 s92, s84, 12
    s_lshl_b32 s93, s84, 11
    s_add_u32 s93, s93, {16384-1024}
    s_lshl_b32 s94, s59, 1
    s_add_u32 s94, s94, s60
    {"s_mov_b32 s94, 0" if "nostag" in EXP else ""}
    {"s_add_u32 s94, s59, s60" if STG < 8 else ""}
    {f"s_and_b32 s94, s94, {STG-1}" if STG < 8 else ""}
    {f"s_mul_i32 s94, s94, {STM}" if STG < 8 else ""}
    {"v_and_b32 v20, 0xfff0, v16" if "wl2" in EXP else ""}
    {"v_and_b32 v16, 0xfff0, v16" if "xl2" in EXP else ""}
    {"v_and_b32 v17, 0xfff0, v17" if "xl2" in EXP else ""}
    {"v_and_b32 v18, 0xfff0, v18" if "xl2" in EXP else ""}
    {"v_and_b32 v19, 0xfff0, v19" if "xl2" in EXP else ""}
    s_waitcnt lgkmcnt(0)
    """)
    srd(a, 36, 4, 0x200000); srd(a, 40, 6, 0x180000)
    stamp(a, 1, 3)
    def dma(st):
        base = (st % NS) * SLOT
        a(f"s_add_u32 s95, s94, {st}\ns_and_b32 s95, s95, 7\ns_lshl_b32 s100, s95, 7\ns_add_u32 m0, s92, {base}\ns_mul_i32 s95, s95, 196608")
        for j in range(4): a(f"buffer_load_dwordx4 v{XV+j}, s[36:39], s100 offen offset:{j*1024} lds")
        a(f"s_add_u32 m0, s93, {base}\ns_nop 0")
        for j in (1, 2): a(f"buffer_load_dwordx4 v{WV}, s[40:43], s95 offen offset:{j*1024} lds")
        stamp(a, 2 + st, 3)
    dma(0); dma(1)
    issued = 2
    a(f"v_lshlrev_b32 v32, 2, v0\nv_add_u32 v32, {L_XF}, v32\nv_mov_b32 v33, 0\nds_write_b32 v32, v33")
    main = a; a = Asm()
    srd(a, 32, 28, WS_BYTES); srd(a, 52, 26, 256)
    common_setup(a, 6, 7, 8)
    BA, PW16, PW4, A0, A64, A512, U2, PV16, PT16, PTW, YST = 1, 6, 7, 8, 9, 10, 11, 12, 13, 14, 15
    UFV, GFV, P0, P1, YLD, YSW, YSR, XAD, DF, PM = 210, 211, 212, 213, 214, 215, 216, 217, 218, 224
    UK, TBW, TBR, US, SKV, GOV = 21, 24, 25, 26, 28, 29
    a(f"""
    s_lshl_b32 s91, s31, 6
    s_lshl_b32 s80, s56, 1
    s_add_u32 s91, s91, s80
    s_lshr_b32 s80, s84, 1
    s_add_u32 s91, s91, s80
    s_and_b32 s80, s91, -2
    s_lshl_b32 s80, s80, 1
    s_load_dword s89, s[20:21], s80
    v_and_b32 v32, 31, v0
    v_lshrrev_b32 v33, 5, v0
    v_and_b32 v34, 15, v0
    v_lshrrev_b32 v35, 4, v0
    v_and_b32 v36, 7, v0
    v_lshrrev_b32 v37, 3, v0
    v_min_u32 v38, 29, v32
    v_lshlrev_b32 v38, 4, v38
    v_mul_u32_u24 v39, {USZ}, v33
    v_add3_u32 v30, v38, v39, s65
    s_mul_i32 s80, s84, {4*PSL}
    s_add_u32 s80, s80, {L_OLD}
    v_add_u32 v{PW16}, s80, v{L16}
    v_add_u32 v{PW4}, s80, v{L4H}
    s_lshl_b32 s81, s63, 8
    v_lshlrev_b32 v38, 4, v35
    v_lshl_add_u32 v{A0}, v34, 2, v38
    s_sub_u32 s80, s81, 60
    v_add_u32 v{A0}, s80, v{A0}
    v_add_u32 v{A64}, 64, v{A0}
    v_add_u32 v{A512}, 512, v{A0}
    v_add_u32 v{U2}, 2, v{L16}
    v_add_u32 v{PV16}, s65, v{L16}
    s_xor_b32 s80, s84, 1
    s_lshl_b32 s82, s80, 2
    s_add_u32 s82, s82, {L_XF}
    v_mov_b32 v{PTW}, s82
    s_mul_i32 s80, s80, {PRIV}
    s_add_u32 s80, s80, {L_PRIV}
    v_add_u32 v{PT16}, s80, v{L16}
    v_and_b32 v39, 1, v0
    v_mul_u32_u24 v39, {USZ}, v39
    v_bfe_u32 v40, v0, 1, 3
    v_lshlrev_b32 v41, 6, v40
    v_sub_u32 v39, v39, v41
    s_add_u32 s80, s65, 448
    s_add_u32 s80, s80, s81
    v_add3_u32 v{BA}, v39, v38, s80
    v_and_b32 v38, 3, v0
    v_lshlrev_b32 v{GOV}, 2, v38
    v_lshlrev_b32 v38, 4, v38
    v_bfe_u32 v39, v0, 2, 2
    v_lshl_add_u32 v38, v39, 7, v38
    v_lshl_add_u32 v38, v33, 6, v38
    v_bfe_u32 v41, v0, 4, 1
    v_lshl_add_u32 v{YST}, v41, 9, v38
    v_lshlrev_b32 v{UFV}, 9, v{L4H}
    v_lshlrev_b32 v{GFV}, 11, v36
    v_mul_u32_u24 v38, {CST}, v37
    v_lshl_add_u32 v{YLD}, v36, 4, v38
    v_xor_b32 v42, v36, v35
    v_lshl_add_u32 v{US}, v42, 4, v38
    v_xor_b32 v42, 4, v42
    v_lshl_add_u32 v{US+1}, v42, 4, v38
    v_xor_b32 v38, v36, v37
    v_lshlrev_b32 v38, 4, v38
    v_lshl_add_u32 v38, v37, 7, v38
    s_add_u32 s80, s65, 6400
    v_add_u32 v{YSW}, s80, v38
    s_lshl_b32 s80, s63, 1
    v_lshl_add_u32 v38, v33, 2, s80
    v_xor_b32 v38, v38, v36
    v_lshlrev_b32 v38, 4, v38
    v_lshl_add_u32 v38, v34, 7, v38
    s_and_b32 s80, s64, 1
    s_mul_i32 s80, s80, {PRIV}
    s_add_u32 s80, s80, {L_PRIV+6400}
    v_add_u32 v{YSR}, s80, v38
    s_lshl_b32 s80, s64, 1
    v_xor_b32 v38, s80, v40
    v_lshlrev_b32 v38, 4, v38
    v_lshl_add_u32 v38, v32, 7, v38
    v_lshl_add_u32 v38, v33, 3, v38
    s_lshl_b32 s80, s63, 12
    s_add_u32 s80, s80, {L_X}
    v_add_u32 v{XAD}, s80, v38
    v_and_b32 v38, 1, v0
    v_lshl_or_b32 v39, v38, 2, v39
    v_xor_b32 v41, v41, v33
    v_lshl_or_b32 v39, v41, 3, v39
    v_bfe_u32 v38, v0, 1, 1
    v_lshlrev_b32 v38, 4, v38
    v_mov_b32 v41, 0x3f80
    v_lshlrev_b32 v38, v38, v41
    """)
    for i in range(8): a(f"v_cmp_eq_u32 vcc, {i}, v39\ns_nop 1\nv_cndmask_b32 v{PM+i}, 0, v38, vcc")
    a(f"""
    s_lshl_b32 s80, s56, 16
    s_lshl_b32 s82, s84, 14
    s_add_u32 s80, s80, s82
    s_lshl_b32 s82, s31, 7
    s_add_u32 s80, s80, s82
    v_lshlrev_b32 v38, 13, v33
    v_lshl_add_u32 v38, v32, 2, v38
    v_add_u32 v{UK+1}, s80, v38
    v_add_u32 v{UK}, -3072, v{UK+1}
    v_add_u32 v{UK+2}, 4096, v{UK+1}
    s_lshl_b32 s80, s31, 9
    v_lshl_add_u32 v{SKV}, v32, 4, s80
    s_lshl_b32 s80, s84, 1
    v_add_u32 v38, s80, v33
    v_sub_u32 v38, 7, v38
    v_xor_b32 v38, v38, v36
    v_lshlrev_b32 v38, 4, v38
    v_lshl_add_u32 v38, v32, 8, v38
    v_add_u32 v{TBW}, {TB}, v38
    s_lshl_b32 s80, s84, 11
    s_add_u32 s80, s80, {TB}
    v_add_u32 v{TBR}, s80, v{L16}
    s_lshl_b32 s10, s31, 2
    s_add_u32 s10, s10, s84
    s_mul_i32 s10, s10, {16*CST}
    s_lshl_b32 s80, s56, 7
    s_sub_u32 s10, s10, s80
    s_add_u32 s10, s10, {UW + 248*16}
    s_add_u32 s11, s10, {8*CST}
    s_lshl_b32 s87, s31, 8
    s_add_u32 s87, s87, {UF}
    s_lshr_b32 s86, s31, 1
    s_lshl_b32 s86, s86, 1
    s_and_b32 s80, s75, 1
    s_add_u32 s86, s86, s80
    s_lshr_b32 s80, s75, 1
    s_and_b32 s80, s80, 3
    s_lshl_b32 s80, s80, 6
    s_add_u32 s86, s86, s80
    s_lshl_b32 s86, s86, 8
    s_add_u32 s86, s86, {UF}
    v_lshl_add_u32 v39, v35, 2, v34
    s_waitcnt lgkmcnt(0)
    s_and_b32 s80, s91, 1
    s_lshl_b32 s80, s80, 4
    s_lshr_b32 s89, s89, s80
    s_and_b32 s89, s89, 0xffff
    v_mov_b32 v38, s89
    """)
    for i in range(4): a(f"v_cmp_eq_u32 vcc, {15-i}, v39\ns_nop 1\nv_cndmask_b32 v{DF+i}, 0, v38, vcc")
    for x in ones(38): a(x)
    for i in range(32): a(f"v_mov_b32 v{VS+i}, v38")
    defer = a.lines; a = main
    cuts = [0, HS0] + [HS0 + (len(defer) - HS0) * (n + 1) // 7 for n in range(7)]
    for n in range(1, len(cuts) - 1):
        while cuts[n] < len(defer) and ("vcc" in defer[cuts[n]] or defer[cuts[n]].startswith(("s_nop", "s_cselect", "s_addc"))): cuts[n] += 1
    a.lines += defer[:cuts[1]]
    for s_ in range(8):
        a(f"s_waitcnt vmcnt({6*(issued-1-s_)}){' lgkmcnt(0)' if s_ == 0 else ''}\ns_barrier")
        while issued < min(8, s_ + NS): dma(issued); issued += 1
        if s_ < 7: a.lines += defer[cuts[s_+1]:cuts[s_+2]]
    a("s_lshr_b32 s92, s92, 2")
    for st in range(8):
        if st == WQ1: a("s_barrier")
        a(f"s_add_u32 s95, s94, {st}\ns_and_b32 s95, s95, 7\ns_add_u32 m0, s92, {L_WQ+st*4096}\ns_mul_i32 s95, s95, 196608")
        a(f"buffer_load_dwordx4 v{WV}, s[40:43], s95 offen lds")
    if WQ1 >= 8: a("s_barrier")
    stamp(a, 10, 3)
    KR, VR, SK, GOH, KF, VF, SF, U, UP, GX, GG = 32, 43, 52, 56, 64, 86, 102, 110, 128, 144, 152
    srd(a, 40, 12, 0x200000); srd(a, 48, 14, 0x200000)
    for i in range(3): a(f"buffer_load_dword v{KR+i}, v{UK}, s[40:43], 0 offen offset:{i*1024} nt")
    for i in range(8): a(f"buffer_load_dword v{KR+3+i}, v{UK+1+i//4}, s[40:43], 0 offen offset:{(i%4)*1024} nt")
    for i in range(8): a(f"buffer_load_dword v{VR+i}, v{UK+1+i//4}, s[48:51], 0 offen offset:{(i%4)*1024} nt")
    srd(a, 40, 16, 4096); srd(a, 48, 22, 1024)
    a(f"""
    s_lshl_b32 s12, s57, 7
    s_lshl_b32 s80, s58, 3
    s_add_u32 s12, s12, s80
    s_lshl_b32 s80, s84, 1
    s_add_u32 s12, s12, s80
    s_lshl_b32 s80, s12, 10
    s_lshl_b32 s12, s12, 2
    s_add_u32 s12, s12, {GW}
    buffer_load_dwordx4 {vr(SK,4)}, v{SKV}, s[40:43], 0 offen
    buffer_load_dwordx4 {vr(GG,4)}, v{L16}, s[48:51], 0 offen
    buffer_load_dwordx4 {vr(GX,4)}, v{L16}, s[36:39], s80 offen
    buffer_load_dwordx4 {vr(GX+4,4)}, v{L16}, s[36:39], s80 offen offset:1024
    buffer_load_dword v{GOH}, v{GOV}, s[52:55], 0 offen sc1
    s_waitcnt vmcnt(24)
    s_barrier
    s_setprio 0
    """)
    stamp(a, 1); stamp(a, 11, 3)
    a(f"ds_write_b128 v30, {vr(Z4,4)} offset:4096")
    srd(a, 40, 24, 0x200000)
    a(f"""
    s_mul_i32 s13, s91, {CST}
    s_lshl_b32 s80, s63, 11
    s_add_u32 s7, s13, s80
    s_add_u32 s7, s7, {YW}
    s_add_u32 s13, s13, {UW}
    s_mov_b32 s88, s7
    s_add_u32 s89, s7, 1024
    s_and_b32 s4, s64, 1
    s_lshl_b32 s4, s4, 1
    s_lshl_b32 s5, s57, 2
    s_add_u32 s4, s4, s5
    s_lshl_b32 s4, s4, 15
    s_lshl_b32 s5, s61, 10
    s_add_u32 s4, s4, s5
    s_add_u32 s4, s4, {OW}
    s_add_u32 s5, s4, 0x8000
    s_mov_b32 s8, 1
    s_lshl_b32 s14, s75, 1
    s_add_u32 s14, s14, s63
    s_lshl_b32 s14, s14, 7
    s_add_u32 s14, s14, {GW}
    s_lshl_b32 s15, s76, 2
    s_add_u32 s15, s15, s84
    s_mul_i32 s15, s15, {16*CST}
    s_lshl_b32 s82, s75, 7
    s_add_u32 s15, s15, s82
    s_add_u32 s15, s15, {YW}
    s_add_u32 s16, s15, {8*CST}
    s_lshl_b32 s17, s76, 8
    s_add_u32 s17, s17, {CF}
    s_lshl_b32 s82, s91, 12
    s_add_u32 s82, s82, s80
    s_add_u32 s92, s18, s82
    s_addc_u32 s93, s19, 0
    s_mov_b32 s83, 99
    s_mov_b32 s82, 2
    s_mov_b32 s6, 0xffff0000
    s_waitcnt vmcnt(4)
    """)
    stamp(a, 2)
    a(f"buffer_load_dword v57, v{KF2}, {WS}, s74 offen sc1")
    for i in range(11): a(f"v_lshlrev_b32 v{KF+2*i}, 16, v{KR+i}\nv_and_b32 v{KF+2*i+1}, s6, v{KR+i}")
    for i in range(8): a(f"v_lshlrev_b32 v{VF+2*i}, 16, v{VR+i}\nv_and_b32 v{VF+2*i+1}, s6, v{VR+i}")
    for ch in range(2):
        for t in range(4):
            src = SK + 2*ch + t//2
            a(f"v_lshlrev_b32 v{SF+2*t+ch}, 16, v{src}" if t % 2 == 0 else f"v_and_b32 v{SF+2*t+ch}, s6, v{src}")
    for i in range(8):
        u = vr(U+2*i, 2)
        a(f"v_pk_mul_f32 {u}, {vr(KF+2*i,2)}, {vr(SF+6,2)}")
        for t in (2, 1, 0): a(f"v_pk_fma_f32 {u}, {vr(KF+2*(i+3-t),2)}, {vr(SF+2*t,2)}, {u}")
        a(f"v_pk_mul_f32 {u}, {u}, {vr(VF+2*i,2)}")
    for ch in range(2):
        for i in range(4): a(f"v_cvt_pk_bf16_f32 v{KR+4*ch+i}, v{U+2*(7-2*i)+ch}, v{U+2*(6-2*i)+ch}")
    a(f"""
    ds_write_b128 v{TBW}, {vr(KR,4)}
    ds_write_b128 v{TBW}, {vr(KR+4,4)} offset:128
    v_mov_b32 v48, 0
    v_mov_b32 v49, 0
    s_waitcnt vmcnt(0) lgkmcnt(0)
    {mark(W_TB)}
    """)

    for i in range(4):
        a(f"v_dot2_f32_bf16 v48, v{GX+i}, v{GG+i}, v48\nv_dot2_f32_bf16 v49, v{GX+4+i}, v{GG+i}, v49")
    a("s_nop 2")
    for d in ("row_shr:1 row_mask:0xf bank_mask:0xf bound_ctrl:0", "row_shr:2 row_mask:0xf bank_mask:0xf bound_ctrl:0",
              "row_shr:4 row_mask:0xf bank_mask:0xf bound_ctrl:0", "row_shr:8 row_mask:0xf bank_mask:0xf bound_ctrl:0",
              "row_bcast:15 row_mask:0xa bank_mask:0xf", "row_bcast:31 row_mask:0xc bank_mask:0xf"):
        a(f"v_add_f32_dpp v48, v48, v48 {d}\nv_add_f32_dpp v49, v49, v49 {d}\ns_nop 0")
    a(f"""
    v_cvt_pk_bf16_f32 v50, v48, v49
    v_lshlrev_b32 v48, 16, v50
    v_and_b32 v49, s6, v50
    v_mul_f32 v48, {f32(-LOG2E)}, v48
    v_mul_f32 v49, {f32(-LOG2E)}, v49
    v_exp_f32 v48, v48
    v_exp_f32 v49, v49
    s_nop 0
    v_add_f32 v48, 1.0, v48
    v_add_f32 v49, 1.0, v49
    v_rcp_f32 v48, v48
    v_rcp_f32 v49, v49
    s_nop 0
    v_cvt_pk_bf16_f32 v50, v48, v49
    v_lshlrev_b32 v{UP+8}, 16, v50
    v_and_b32 v{UP+9}, s6, v50
    v_mov_b32 v{UP+10}, v{US}
    v_mov_b32 v{UP+11}, v{US+1}
    """)
    all_set(a, late, GOH, GOV, "0", "s[52:55]")
    lds_wait(a, XW4, W_TB, 56)
    a(f"ds_read_b128 {vr(UP,4)}, v{TBR}\nds_read_b128 {vr(UP+4,4)}, v{TBR} offset:1024")
    stamp(a, 3); stamp(a, 12, 3)
    all_set(a, late, 57, KF2, "s74")
    att_loads()
    a("s_waitcnt lgkmcnt(0)")
    a(f"""
    buffer_store_dwordx4 {vr(UP,4)}, v{UP+10}, {WS}, s10 offen sc1
    buffer_store_dwordx4 {vr(UP+4,4)}, v{UP+11}, {WS}, s11 offen sc1
    s_mov_b32 exec_lo, 0
    s_mov_b32 exec_hi, 0x80000000
    buffer_store_dwordx2 {vr(UP+8,2)}, v{VZ}, {WS}, s12 offen sc1
    s_mov_b64 exec, -1
    """)
    stamp(a, 4); stamp(a, 13, 3)
    att_q()
    lds_wait(a, XW4, W_QR, 56)
    delay(a, "hgo")
    a("s_setprio 1")
    stamp(a, 5); stamp(a, 6)
    for i in range(12): a(f"s_load_dword s100, s[92:93], {i*128}")

    a("s_branch B_go" if not HW12 else "s_branch B_goh")

    a.label("A_compute")
    XA, WA, AK, AV, AQ, XF, FR, FQ, GO = 6, [14, 15, 1], 20, 36, 48, 64, 192, [208, 212, 216, 28, 32], 19
    a(f"""
    v_and_b32 v20, 31, v0
    v_lshrrev_b32 v21, 5, v0
    v_bfe_u32 v22, v0, 1, 3
    v_xor_b32 v22, v22, v21
    s_lshl_b32 s80, s30, 12
    v_lshlrev_b32 v20, 7, v20
    v_lshl_add_u32 v20, v22, 4, v20
    v_add_u32 v{XA}, s80, v20
    """)
    for ks in range(1, 4): a(f"v_xor_b32 v{XA+ks}, {ks*32}, v{XA}")
    for ks in range(4): a(f"v_add_u32 v{XA+4+ks}, {2*SLOT}, v{XA+ks}")
    a(f"""
    v_bfe_u32 v20, v0, 2, 2
    v_lshl_add_u32 v20, v21, 3, v20
    v_lshlrev_b32 v20, 6, v20
    v_bfe_u32 v22, v0, 4, 1
    v_lshl_add_u32 v20, v22, 5, v20
    v_and_b32 v23, 3, v0
    v_lshl_add_u32 v20, v23, 3, v20
    v_add_u32 v{WA[0]}, 16384, v20
    v_add_u32 v{WA[1]}, {16384+2*SLOT}, v20
    v_add_u32 v{WA[2]}, {L_WQ}, v20
    v_lshlrev_b32 v228, 2, v23
    v_mov_b32 v55, v22
    s_waitcnt lgkmcnt(0)
    """)
    srd(a, 32, 28, WS_BYTES); srd(a, 52, 26, 256)
    a(f"""
    s_cmp_lg_u32 s2, 0
    s_cbranch_scc1 A_noclear
    s_lshl_b32 s80, s30, 14
    s_add_u32 s80, s80, {FW}
    v_lshlrev_b32 v24, 8, v0
    v_mov_b32 v28, 0
    v_mov_b32 v29, 0
    v_mov_b32 v30, 0
    v_mov_b32 v31, 0
    v_mov_b32 v25, 1
    buffer_store_dwordx4 v[28:31], v24, {WS}, s80 offen sc1
    s_lshl_b32 s80, s30, 2
    s_waitcnt vmcnt(0)
    s_mov_b64 exec, 1
    buffer_store_dword v25, v28, s[52:55], s80 offen sc1
    s_mov_b64 exec, -1
    """)
    a.label("A_noclear")
    main = a; a = Asm()
    srd(a, 36, 4, 0x200000); srd(a, 40, 24, 0x200000)
    common_setup(a, 52, 53, 54)
    a(f"""
    v_and_b32 v16, 0x33, v0
    v_bfe_u32 v17, v0, 2, 1
    v_lshl_or_b32 v16, v17, 3, v16
    v_bfe_u32 v17, v0, 3, 1
    v_lshl_or_b32 v16, v17, 2, v16
    v_lshlrev_b32 v16, 4, v16
    v_lshl_add_u32 v17, v55, 16, v{VOF}
    s_lshl_b32 s80, s30, 10
    s_add_u32 s80, s80, {L_QX}
    v_add_u32 v18, s80, v{L16}
    s_lshl_b32 s10, s58, 17
    s_lshl_b32 s80, s57, 2
    s_add_u32 s81, s80, s30
    s_lshl_b32 s81, s81, 10
    s_add_u32 s10, s10, s81
    s_add_u32 s12, s10, {VW}
    s_add_u32 s10, s10, {KW}
    s_add_u32 s11, s10, 0x10000
    s_mov_b32 s13, {f32(0.25*LOG2E)}
    s_lshl_b32 s81, s64, 1
    s_add_u32 s80, s80, s81
    s_lshl_b32 s80, s80, 15
    s_lshl_b32 s82, s61, 10
    s_add_u32 s80, s80, s82
    s_add_u32 s86, s80, {OW}
    s_add_u32 s87, s86, 0x8000
    s_mov_b32 s8, 99
    s_lshl_b32 s82, s63, 2
    s_add_u32 s82, s82, s81
    s_mul_i32 s14, s82, {PSL}
    s_add_u32 s14, s14, {L_OLD}
    s_xor_b32 s16, s30, 2
    s_mul_i32 s15, s30, {2*PSL}
    s_mul_i32 s16, s16, {2*PSL}
    s_add_u32 s15, s15, {L_YNG}
    s_add_u32 s16, s16, {L_YNG}
    s_mov_b32 s83, {CDROP}
    s_mov_b32 s82, 99
    s_mov_b32 s92, s18
    s_mov_b32 s93, s19
    """)
    for x in ones(229): a(x)
    defer = a.lines; a = main
    cuts = [CS0 + (len(defer) - CS0) * n // 28 for n in range(29)]
    for n in range(28):
        while cuts[n] < len(defer) and ("vcc" in defer[cuts[n]] or defer[cuts[n]].startswith(("s_nop", "s_cselect", "s_addc"))): cuts[n] += 1
    a.lines += defer[:cuts[0]]
    a("s_barrier")
    stamp(a, 1); stamp(a, 1, 3); stamp(a, 2, 4)
    def reads(g):
        st, ks = g >> 2, g & 3
        slot = st % NS
        bs, off = slot // 2, (slot % 2) * SLOT
        f = FR + 8 * (g % 3)
        r = [f"ds_read_b128 {vr(XF+4*g,4)}, v{XA+4*bs+ks} offset:{off}"]
        for ty in range(2):
            for j in range(2):
                r.append(f"ds_read_b64_tr_b16 {vr(f+4*ty+2*j,2)}, v{WA[bs]} offset:{off+ks*2048+ty*1024+j*256}")
        return r
    for r in reads(0) + reads(1): a(r)
    for g in range(32):
        nxt = reads(g + 2) if g + 2 < 32 else []
        if nxt and (g + 2) % 4 == 0:
            a("s_waitcnt lgkmcnt(0)\ns_barrier")
            stamp(a, 1 + (g + 2) // 4, 3)
        else:
            a(f"s_waitcnt lgkmcnt({5 if g < 31 else 0})")
        f, x = FR + 8 * (g % 3), XF + 4 * g
        if "nord" in EXP: nxt = []
        if "nomm" not in EXP: a(f"{M32} {vr(AK,16)}, {vr(f,4)}, {vr(x,4)}, {'0' if g == 0 else vr(AK,16)}")
        for r in nxt[0:3]: a(r)
        if "nomm" not in EXP: a(f"{M32} {vr(AV,16)}, {vr(x,4)}, {vr(f+4,4)}, {'0' if g == 0 else vr(AV,16)}")
        for r in nxt[3:5]: a(r)
        if g < 28: a.lines += defer[cuts[g]:cuts[g+1]]
    stamp(a, 2); stamp(a, 9, 3); stamp(a, 3, 4)
    delay(a, "kv")
    a("s_setprio 3\ns_nop 9")
    for i in range(8): a(f"v_cvt_pk_bf16_f32 v{AK+i}, v{AK+2*i}, v{AK+2*i+1}")
    a(f"buffer_store_dwordx4 {vr(AK,4)}, v16, {WS}, s10 offen sc1")
    a(f"buffer_store_dwordx4 {vr(AK+4,4)}, v16, {WS}, s11 offen sc1")
    for i in range(8): a(f"v_cvt_pk_bf16_f32 v{AV+i}, v{AV+2*i}, v{AV+2*i+1}")
    a(f"buffer_store_dwordx4 {vr(AV,4)}, v17, {WS}, s12 offen sc1")
    a(f"buffer_store_dwordx4 {vr(AV+4,4)}, v17, {WS}, s12 offen offset:512 sc1")
    a(f"buffer_load_dword v{GO}, v228, s[52:55], 0 offen sc1\ns_barrier")
    stamp(a, 3); stamp(a, 10, 3)
    a(f"""
    v_add_u32 v6, s14, v{L16}
    v_add_u32 v7, s14, v{L4H}
    v_add_u32 v8, s15, v{L16}
    v_add_u32 v9, s15, v{L4H}
    v_add_u32 v10, s16, v{L16}
    v_add_u32 v11, s16, v{L4H}
    """)
    for i in range(16, 32): a(f"v_mov_b32 v{VS+i}, v229")
    a("s_waitcnt vmcnt(0)")
    all_set(a, late, GO, 228, "0", "s[52:55]")
    arrive(a, 0, 12)
    stamp(a, 4); stamp(a, 12, 3)
    a("s_barrier")
    stamp(a, 11, 3)
    order = [28, 29, 30, 31] + list(range(28))
    qrd = lambda n: [f"ds_read_b64_tr_b16 {vr(FQ[n%5]+2*j,2)}, v{WA[2]} offset:{order[n]*1024+j*256}" for j in range(2)]
    for n in range(4):
        for r in qrd(n): a(r)
    for n in range(32):
        if n == KFG: a(f"buffer_load_dword v12, v{KF2}, {WS}, s74 offen sc1")
        a(f"s_waitcnt lgkmcnt({min(6, 2*(31-n))})")
        a(f"{M32} {vr(AQ,16)}, {vr(FQ[n%5],4)}, {vr(XF+4*order[n],4)}, {'0' if n == 0 else vr(AQ,16)}")
        if n + 4 < 32:
            for r in qrd(n + 4): a(r)
        if 4 <= n < 20: a(f"v_mov_b32 v{VS+n-4}, v229")
    a("s_nop 11")
    for i in range(16): a(f"v_mul_f32 v{AQ+i}, s13, v{AQ+i}")
    for i in range(8): a(f"v_cvt_pk_bf16_f32 v{AQ+i}, v{AQ+2*i}, v{AQ+2*i+1}")
    a(f"""
    ds_write_b128 v18, {vr(AQ,4)}
    ds_write_b128 v18, {vr(AQ+4,4)} offset:4096
    s_waitcnt lgkmcnt(0)
    {mark(W_QW)}
    s_waitcnt vmcnt(0)
    """)
    all_set(a, late, 12, KF2, "s74")
    stamp(a, 5); stamp(a, 13, 3)
    att_loads()
    att_q()
    a(f"s_waitcnt lgkmcnt(0)\n{mark(W_QR)}\ns_setprio 2")
    stamp(a, 6); stamp(a, 14, 3)

    if HW12:
        a("s_mov_b32 s21, 0\ns_branch B_go")
        a.label("B_goh")
        a("s_mov_b32 s21, 1")
    a.label("B_go")
    for j in range(4): a(f"{M32} {vr(ACC+16*j,16)}, {vr(Z4,4)}, {vr(Z4,4)}, 0")
    a(f"{M32} {vr(S+48,16)}, {vr(Z4,4)}, {vr(Z4,4)}, 0")
    a("s_add_u32 s70, s70, 4096\ns_add_u32 s71, s71, 3072\ns_mov_b32 s84, 3")
    qk = lambda j, st: f"{M32} {vr(S+16*j,16)}, {vr(KS+4*st,4)}, {vr(Q+4*j,4)}, 0"
    pv = lambda j, st, s: f"{SM} {vr(ACC+16*j,16)}, {vr(VS+8*st+4*s,4)}, {vr(S+16*j+8*s,8)}, v{IDX}"
    if HW12:
        a("s_waitcnt vmcnt(12)\ns_cmp_lg_u32 s21, 0\ns_cbranch_scc1 B_k0\ns_waitcnt vmcnt(9)")
        a.label("B_k0")
    else: a("s_waitcnt vmcnt(9)")
    a(qk(0, 0)); a(qk(1, 0))
    for i in range(4): a(f"v_mov_b32 v{Z4+i}, -1")
    a("s_nop 6")
    if STAMP: a("s_mov_b32 s21, 0")
    stamp(a, 7)
    wodma = lambda m: [f"s_add_u32 m0, s77, {m*1024}", f"s_add_u32 s85, s78, {m*16384}", f"buffer_load_dwordx4 v{WOV}, s[44:47], s85 offen lds"]
    xdma = ["s_mov_b32 m0, s79", "s_nop 0", f"buffer_load_dwordx4 v{XOV}, s[36:39], 0 offen lds"]
    def body(last, extras, waits):
        for m in range(4):
            for j in range(4):
                jp, mp = (j - 1) % 4, (m if j else (m - 1) % 4)
                ins = {}
                def put(p, x): ins.setdefault(p, []).extend(x if isinstance(x, list) else [x])
                if j == 1 and waits[m] is not None: put(1, f"s_waitcnt vmcnt({waits[m]})")
                put(1, pv(jp, mp, 0))
                put(6, pv(jp, mp, 1))
                if j == 0 and (not last or m == 0): put(8, ldv((m + 3) % 4, "s71", m*1024))
                if not (last and m == 3 and j >= 2): put(11, qk((j + 2) % 4, m if j < 2 else (m + 1) % 4))
                if j == 1 and not last: put(13, ldk(m, "s70", m*1024))
                if j == 2 and not last:
                    if m < 2: put(8, wodma(m))
                    if m == 2: put(8, ["s_cmp_eq_u32 s84, 1", "s_cbranch_scc1 B_x"] + wodma(2) + ["s_branch B_xd", "B_x:"] + xdma + ["B_xd:"])
                    if m == 3: put(8, ["s_cmp_le_u32 s84, s8", "s_cbranch_scc1 B_nocl"] + [f"buffer_store_dwordx4 {vr(Z4,4)}, v{L16}, {WS}, s{r} offen sc1" for r in (88, 89)]
                                   + ["s_mov_b32 s88, s4", "s_mov_b32 s89, s5", "B_nocl:"])
                if not last and m == 1 and j == 3: put(4, (["s_cmp_lg_u32 s84, 3", "s_cbranch_scc1 B_nof"] if F1 else []) + [f"buffer_load_dword v{QA+1}, v{KFV}, {WS}, s74 offen sc1"] + (["B_nof:"] if F1 else []))
                if not last and m == 3 and j == 3: put(3, (["s_cmp_lg_u32 s84, 2", "s_cbranch_scc1 B_nof2"] if F1 else []) + ["s_waitcnt vmcnt(7)", lambda: all_set(a, late, QA + 1, KFV, "s74")] + (["B_nof2:"] if F1 else []))
                for p, x in extras.get((m, j), []): put(p, x)
                for e in range(16):
                    for x in ins.get(e, []):
                        if callable(x): x()
                        else: a(x)
                    a(f"v_exp_f32 v{S+16*j+e}, v{S+16*j+e}")
    a(".p2align 6")
    a.label("B_loop")
    body(False, {(3, 1): [(14, ["s_add_u32 s77, s77, 3072", "s_add_u32 s78, s78, 49152"])],
                 (3, 2): [(14, ["s_add_u32 s70, s70, 4096", "s_add_u32 s71, s71, 4096", "s_sub_u32 s84, s84, 1"])],
                 (CDT, 0): [(3, ["s_cmp_lg_u32 s84, s83", "s_cbranch_scc1 B_keep", "s_setprio 0", "B_keep:"])],
                 (3, 3): [(8, ["s_cmp_lg_u32 s84, s82", "s_cbranch_scc1 B_nouf", lambda: arrive(a, 1, QA)]
                              + [f"s_load_dword s100, s[92:93], {i*128}" for i in range(12, 16)] + ["B_nouf:"]),
                          (14, "s_cmp_lg_u32 s84, 0")]}, [8, 9, 10, 11] if F1 else [8, 9, 11, 12])
    a("s_cbranch_scc1 B_loop")
    stamp(a, 8)
    a("s_cmp_lt_u32 s30, 4\ns_cbranch_scc1 B_final")

    CA = 32
    ABUF, BBUF = [96, 160], [128, 64]
    a(f"""
    s_lshl_b32 s80, s91, 12
    s_add_u32 s92, s18, s80
    s_addc_u32 s93, s19, 0
    s_mov_b32 s94, 4096
    s_mov_b32 s95, 0x20000
    buffer_load_dword v{P0}, v{UFV}, {WS}, s87 offen sc1
    buffer_load_dword v{P1}, v{GFV}, {WS}, s86 offen sc1
    """)
    def lda(rr):
        b = ABUF[rr % 2]
        o = []
        if rr == 0:
            o.append(f"buffer_load_dword v{b}, v{A0}, s[92:95], 0 offen")
            for i in range(1, 4): o.append(f"v_add_u32 v{A0}, 4, v{A0}\nbuffer_load_dword v{b+i}, v{A0}, s[92:95], 0 offen")
        else:
            o.append(f"buffer_load_dwordx4 {vr(b,4)}, v{A64}, s[92:95], 0 offen offset:{64*(rr-1)}")
        for aa in range(1, 8):
            o.append(f"buffer_load_dwordx4 {vr(b+4*aa,4)}, v{A512}, s[92:95], 0 offen offset:{512*(aa-1)+64*rr}")
        return o
    ldb = lambda rr: [f"ds_read_b128 {vr(BBUF[rr%2]+4*bb,4)}, v{BA} offset:{64*rr+512*(7-bb)}" for bb in range(8)]
    udma = lambda rho, q: [f"s_add_u32 m0, s65, {rho*USZ}", "s_nop 0",
                           f"buffer_load_dwordx4 v{L16 if rho else U2}, {WS}, s13 offen offset:{q*1024} sc1 lds",
                           f"buffer_load_dwordx4 v{L16 if rho else U2}, {WS}, s13 offen offset:{q*1024+1024} sc1 lds"]
    wrh = lambda j: [f"ds_write_b128 v{PW16}, {vr(ACC+16*j,4)} offset:{j*PSL}", f"ds_write_b128 v{PW16}, {vr(ACC+16*j+4,4)} offset:{j*PSL+1024}",
                     f"ds_write_b32 v{PW4}, v{ACC+16*j+8} offset:{j*PSL+2048}"]
    LA0, LA1 = lda(0), lda(1)
    exh = {(0, 0): [(3, lambda: arrive(a, 2, QA))],
           (1, 1): [(3, [mark(W_LH), lambda: all_set(a, late, P0, UFV, "s87"), lambda: all_set(a, late, P1, GFV, "s86")]),
                    (8, udma(1, 0)), (13, udma(1, 2))],
           (1, 2): [(4, udma(0, 0)), (13, udma(0, 2))],
           (1, 3): [(4, f"buffer_load_dword v{G}, v{L4H}, {WS}, s14 offen sc1")],
           (3, 1): [(9 + i, LA1[i]) for i in range(4)],
           (3, 2): [(3 + i, wrh(0)[i]) for i in range(3)] + [(8 + i, LA1[4 + i]) for i in range(4)],
           (3, 3): [(0, LA0[0:4])] + [(3 + i, wrh(1)[i]) for i in range(3)] + [(7 + i, LA0[4 + i]) for i in range(7)]}
    body(True, exh, [12 if F1 else 13, 2, None, 9])
    a(f"""
    s_waitcnt vmcnt(19)
    s_mov_b64 exec, 1
    ds_write_b16 v{PV16}, v{VZ} offset:4094
    s_mov_b64 exec, -1
    {pv(3,3,0)}
    {pv(3,3,1)}
    s_setprio {CVP}
    """)
    stamp(a, 9)
    for x in ldb(0) + wrh(2): a(x)
    a("s_nop 0")
    for x in wrh(3): a(x)
    a(f"s_waitcnt lgkmcnt(0)\n{mark(W_PO)}")
    for rr in range(4):
        ab, bb_ = ABUF[rr % 2], BBUF[rr % 2]
        nb = ldb(rr + 1) if rr < 3 else []
        mm = lambda aa, b, c=None: f"{M16} {vr(CA+4*(aa+b),4)}, {vr(ab+4*aa,4)}, {vr(bb_+4*b,4)}, {c or vr(CA+4*(aa+b),4)}"
        a(f"s_waitcnt vmcnt({[0, 8, 8, 0][rr]}){' lgkmcnt(0)' if rr else ''}")
        if rr == CVR: a("s_setprio 1")
        if rr == 3:
            a(f"buffer_load_dword v{P0}, v{UFV}, {WS}, s17 offen sc1\nbuffer_load_dword v{P1}, v{CFV}, {WS}, s101 offen sc1")
        if rr == 0:
            a("s_cmp_lg_u32 s63, 0\ns_cbranch_scc1 CV_nodiag")
            for b in range(8): a(f"{M16} {vr(CA+4*b,4)}, {vr(DF,4)}, {vr(bb_+4*b,4)}, 0")
            for b in range(8): a(mm(0, b))
            a("s_branch CV_row1")
            a.label("CV_nodiag")
            for b in range(8): a(mm(0, b, "0"))
            a.label("CV_row1")
        cnt = 0
        na = lda(rr + 2) if rr < 2 else []
        for aa in range(8):
            for b in range(8 - aa):
                if rr == 0 and aa == 0: continue
                a(mm(aa, b))
                cnt += 1
                if cnt % 3 == 0 and nb: a(nb.pop(0))
            if na: a(na.pop(0))
    stamp(a, 11)
    XI, YP = 96, 128
    delay(a, "conv")
    a(f"s_setprio {XP}")
    a("s_cmp_lg_u32 s63, 0\ns_cbranch_scc1 CV_odd")
    for odd in range(2):
        if odd: a.label("CV_odd")
        a("s_nop 4" if not odd else "s_nop 0")
        for n in range(4): a(f"ds_write_b128 v{PV16}, {vr(CA+16*(1-odd)+4*n,4)} offset:{n*1024}")
        a(f"s_waitcnt lgkmcnt(0)\n{mark(W_XCH)}")
        lds_wait(a, PTW, W_XCH, XI)
        for n in range(4): a(f"ds_read_b128 {vr(XI+4*n,4)}, v{PT16} offset:{n*1024}")
        for n in range(4):
            c = CA + 16*odd + 4*n
            a(f"s_waitcnt lgkmcnt({3-n})")
            a(f"v_pk_add_f32 {vr(c,2)}, {vr(c,2)}, {vr(XI+4*n,2)}\nv_pk_add_f32 {vr(c+2,2)}, {vr(c+2,2)}, {vr(XI+4*n+2,2)}")
            a(f"v_cvt_pk_bf16_f32 v{YP+2*n}, v{c}, v{c+1}\nv_cvt_pk_bf16_f32 v{YP+2*n+1}, v{c+2}, v{c+3}")
        if not odd: a("s_branch CV_st")
    a.label("CV_st")
    a("s_nop 0")
    for p in range(2):
        a(f"v_permlane16_swap_b32 v{YP+4*p}, v{YP+4*p+2}\nv_permlane16_swap_b32 v{YP+4*p+1}, v{YP+4*p+3}")
        a(f"buffer_store_dwordx4 {vr(YP+4*p,4)}, v{YST}, {WS}, s7 offen offset:{1024*p} sc1")
    a("s_waitcnt vmcnt(2)")
    all_set(a, late, P0, UFV, "s17"); all_set(a, late, P1, CFV, "s101")
    yload = [f"buffer_load_dwordx4 {vr(YA+4*q,4)}, v{YLD}, {WS}, s{15+q} offen sc1" for q in range(2)]
    a(f"s_setprio {XP2}")
    stamp(a, 12)
    lds_wait(a, XW8, W_LH, 9)
    a(f"""
    v_xor_b32 v9, 16, v{XAD}
    v_xor_b32 v10, 64, v{XAD}
    v_xor_b32 v11, 80, v{XAD}
    ds_read_b64 {vr(XR,2)}, v{XAD}
    ds_read_b64 {vr(XR+2,2)}, v9
    ds_read_b64 {vr(XR+4,2)}, v10
    ds_read_b64 {vr(XR+6,2)}, v11
    v_sub_f32 v{G+1}, 1.0, v{G}
    ds_write_b32 v{XGA}, v{G} offset:2048
    """)
    c_wo()
    a(f"v_xor_b32 v9, 16, v{YSR}\nv_mov_b32 v{G+2}, v{G+1}\nv_mov_b32 v{G+3}, v{G+1}")
    for i in range(8):
        a(f"v_lshlrev_b32 v{XG+2*i}, 16, v{XR+i}\nv_and_b32 v{XG+2*i+1}, s6, v{XR+i}")
        a(f"v_pk_mul_f32 {vr(XG+2*i,2)}, {vr(XG+2*i,2)}, {vr(G+2,2)}")
    for x in yload: a(x)
    def ystage():
        a(f"""
        ds_write_b128 v{YSW}, {vr(YA,4)}
        ds_write_b128 v{YSW}, {vr(YA+4,4)} offset:1024
        s_waitcnt lgkmcnt(0)
        {mark(W_YS)}
        """)
        stamp(a, 10)
        lds_wait(a, XW4, W_YS, 10)
        for b in (1, 0):
            for sg in range(2): a(f"ds_read_b128 {vr(YF+8*b+4*sg,4)}, v{[YSR, 9][sg]} offset:{(1-b)*2*PRIV}")
        for b in (1, 0):
            a(f"s_waitcnt lgkmcnt({2*b})")
            a(f"{M32} {vr(YA+16*b,16)}, {vr(YF+8*b,4)}, {vr(PM,4)}, 0")
            a(f"{M32} {vr(YA+16*b,16)}, {vr(YF+8*b+4,4)}, {vr(PM+4,4)}, {vr(YA+16*b,16)}")
    def xymul():
        for i in range(4): a(f"v_pk_mul_f32 {vr(YA+16+2*i,2)}, {vr(YA+16+2*i,2)}, {vr(XG+8+2*i,2)}")
        a(f"ds_write_b128 v{XYA}, {vr(YA+16,4)}\nds_write_b128 v{XYA}, {vr(YA+20,4)} offset:1024\ns_nop 0")
        for i in range(4): a(f"v_pk_mul_f32 {vr(YA+2*i,2)}, {vr(YA+2*i,2)}, {vr(XG+2*i,2)}")
    if YSM:
        a(f"s_mov_b32 s90, {SPIN}")
        a.label("Y_try")
        a(f"""
        ds_read_b32 v11, v{XW4} offset:{W_OL}
        s_waitcnt vmcnt(0)
        v_max3_u32 v10, v{YA}, v{YA+1}, v{YA+2}
        v_max3_u32 v10, v{YA+3}, v{YA+4}, v10
        v_max3_u32 v10, v{YA+5}, v{YA+6}, v10
        v_max_u32 v10, v{YA+7}, v10
        v_cmp_eq_u32 vcc, -1, v10
        s_sub_u32 s90, s90, 1
        s_cbranch_scc1 Y_have
        s_cmp_eq_u64 vcc, 0
        s_cbranch_scc1 Y_have
        """)
        for x in yload: a(x)
        a("s_waitcnt lgkmcnt(0)\nv_cmp_eq_u32 vcc, 1, v11\ns_nop 0\ns_cmp_eq_u64 vcc, exec\ns_cbranch_scc0 Y_try\ns_setprio 3")
        stamp(a, 13)
        for x in oload: a(x)
        a("s_waitcnt vmcnt(8)")
        fresh(a, late, list(range(YA, YA+8)), yload, 10)
        ystage()
        a("s_nop 9")
        xymul()
        a("s_branch C_mm")
        a.label("Y_have")
    else:
        a("s_waitcnt vmcnt(0)")
        fresh(a, late, list(range(YA, YA+8)), yload, 10)
    if YSM == 2:
        a(f"""
        s_waitcnt lgkmcnt(0)
        v_cmp_eq_u32 vcc, 1, v11
        s_nop 0
        s_cmp_eq_u64 vcc, exec
        s_cbranch_scc0 Y_norm
        s_setprio 3
        """)
        stamp(a, 13)
        for x in oload: a(x)
        ystage()
        a("s_nop 9")
        xymul()
        a("s_branch C_mm")
        a.label("Y_norm")
    ystage()
    a("s_setprio 0")
    lds_wait(a, XW4, W_OL, 10)
    a("s_setprio 3")
    stamp(a, 13)
    for x in oload: a(x)
    xymul()
    a("s_branch C_mm")

    a.label("B_final")
    delay(a, "fin")
    rdp = lambda dst, a16, off: [f"ds_read_b128 {vr(dst,4)}, v{a16} offset:{off}", f"ds_read_b128 {vr(dst+4,4)}, v{a16} offset:{off+1024}",
                                 f"ds_read_b32 v{dst+8}, v{a16+1} offset:{off+2048}"]
    wrp = lambda j: [f"ds_write_b128 v8, {vr(ACC+16*j,4)} offset:{j*PSL}", f"ds_write_b128 v8, {vr(ACC+16*j+4,4)} offset:{j*PSL+1024}",
                     f"ds_write_b32 v9, v{ACC+16*j+8} offset:{j*PSL+2048}"]
    PA, PB = [208, 176, 160, 186], [96, 112]
    r0 = rdp(PA[0], 6, 0); r1 = rdp(PA[1], 6, 8*PSL); r2 = rdp(PA[2], 6, PSL); r3 = rdp(PA[3], 6, 9*PSL)
    w0, w1 = wrp(0), wrp(1)
    def add9(d, s_):
        return [f"v_pk_add_f32 {vr(d+2*i,2)}, {vr(d+2*i,2)}, {vr(s_+2*i,2)}" for i in range(4)] + [f"v_add_f32 v{d+8}, v{d+8}, v{s_+8}"]
    ex = {(1, 1): [(3, mark(W_LC))],
          (2, 2): [(8, f"buffer_load_dword v13, v{CFV}, {WS}, s101 offen sc1")],
          (3, 0): [(9, [lambda: lds_wait(a, XW4, W_PO, 12), "s_setprio 3"]), (12, r0[0]), (13, r0[1]), (14, r0[2])],
          (3, 1): [(3, r1[0]), (4, r1[1]), (8, r1[2]), (9, r2[0]), (13, r2[1]), (14, r2[2])],
          (3, 2): [(2, r3[0]), (3, w0[0]), (4, r3[1]), (8, w0[1]), (9, r3[2]), (10, w0[2])],
          (3, 3): [(3, w1[0]), (4, w1[1]), (5, w1[2]), (9, ["s_waitcnt lgkmcnt(0)", mark(W_PY)]),
                   (12, [lambda: lds_wait(a, XW4, W_PY, 12)] + rdp(PB[0], 10, 0)), (13, rdp(PB[1], 10, PSL))]}
    body(True, ex, [10 if F1 else 11, 5, 2, 0])
    stamp(a, 9)
    O2, O3 = ACC + 32, ACC + 48
    for x in add9(PA[0], PA[1])[:2]: a(x)
    a(f"{pv(3,3,0)}\n{pv(3,3,1)}")
    for x in add9(PA[0], PA[1])[2:] + add9(O2, PA[0]) + add9(PA[2], PA[3]): a(x)
    a("s_waitcnt lgkmcnt(0)")
    a(mark(W_PR))
    for x in add9(O2, PB[0]) + add9(PA[2], PB[1]) + add9(O3, PA[2]): a(x)
    a(f"v_mov_b32 v14, 0\nv_mov_b32 v15, 0")
    for o in (O2, O3):
        for i in range(4): a(f"v_pk_fma_f32 v[14:15], {vr(o+2*i,2)}, 0, v[14:15] op_sel_hi:[1,0,1]")
    a(f"""
    v_add_f32 v14, v14, v15
    v_min_f32 v15, v{O2+8}, v{O3+8}
    v_add_f32 v14, v14, v{O2+8}
    v_add_f32 v14, v14, v{O3+8}
    v_cmp_lt_f32 vcc, {f32(2.0**-60)}, v15
    s_mov_b64 s[92:93], vcc
    v_cmp_gt_f32 vcc, {f32(2.0**60)}, v14
    s_and_b64 s[92:93], s[92:93], vcc
    s_cmp_eq_u64 s[92:93], exec
    s_cbranch_scc0 B_slow
    """)
    a.label("B_fin")
    delay(a, "ost")
    a(f"v_rcp_f32 v14, v{O2+8}\nv_rcp_f32 v12, v{O3+8}\ns_nop 0")
    for jj, (o, r) in enumerate(((O2, 14), (O3, 12))):
        for i in range(4): a(f"v_pk_mul_f32 {vr(o+2*i,2)}, {vr(o+2*i,2)}, {vr(r,2)} op_sel_hi:[1,0]")
        for i in range(4): a(f"v_cvt_pk_bf16_f32 v{208+4*jj+i}, v{o+2*i}, v{o+2*i+1}")
        a(f"buffer_store_dwordx4 {vr(208+4*jj,4)}, v{L16}, {WS}, s{86+jj} offen sc1")
    stamp(a, 10)
    all_set(a, late, 13, CFV, "s101")
    if not OLATE:
        for x in oload: a(x)
    stamp(a, 11)
    lds_wait(a, XW8, W_LH, 12)
    c_wo()
    lds_wait(a, XW4, W_PR, 12)
    if HOL: a(mark(W_OL))
    if OLATE:
        for x in oload: a(x)
    stamp(a, 13)

    a.label("C_mm")
    for j in range(8):
        a(f"s_waitcnt vmcnt({7-j})")
        fresh(a, late, list(range(OB+4*j, OB+4*j+4)), oload[j:], 6, 7 - j)
        for ai in (1, 0):
            a(f"{M32} {vr(AC+16*ai,16)}, {vr(WF+4*(8*ai+j),4)}, {vr(OB+4*j,4)}, {'0' if j == 0 else vr(AC+16*ai,16)}")
    stamp(a, 14)
    a("s_nop 10")
    for r in ((2, 3, 1) if "norb" not in EXP else ()):
        a(f"ds_write_b128 v{RBA+r}, {vr(AC+8*r,4)}\nds_write_b128 v{RBA+r}, {vr(AC+8*r+4,4)} offset:1024")
    a(f"s_cmp_lt_u32 s30, 4\ns_waitcnt lgkmcnt(0)\ns_barrier\ns_cbranch_scc0 C_havexy")
    a(f"ds_read_b128 {vr(YA,4)}, v{XYA}\nds_read_b128 {vr(YA+4,4)}, v{XYA} offset:1024\nds_read_b32 v{G}, v{XGA} offset:2048")
    a.label("C_havexy")
    for r in range(6 if "norb" not in EXP else 0): a(f"ds_read_b128 {vr(RD+4*r,4)}, v{RBA} offset:{r*1024}")
    for r in range(3):
        a(f"s_waitcnt lgkmcnt({4-2*r})")
        for i in range(4): a(f"v_pk_add_f32 {vr(AC+2*i,2)}, {vr(AC+2*i,2)}, {vr(RD+8*r+2*i,2)}")
    for i in range(4): a(f"v_pk_fma_f32 {vr(AC+2*i,2)}, {vr(AC+2*i,2)}, {vr(G,2)}, {vr(YA+2*i,2)} op_sel_hi:[1,0,1]")
    for i in range(4): a(f"v_cvt_pk_bf16_f32 v{PK4+i}, v{AC+2*i}, v{AC+2*i+1}")
    a(f"""
    s_nop 0
    v_permlane32_swap_b32 v{PK4}, v{PK4+2}
    v_permlane32_swap_b32 v{PK4+1}, v{PK4+3}
    buffer_store_dwordx4 {vr(PK4,4)}, v{OUTV}, s[40:43], s69 offen
    """)
    if STAMP: a("s_waitcnt vmcnt(0)")
    stamp(a, 15)
    if STAMP: a("v_writelane_b32 v255, s21, 40")
    stamp_flush(a)
    a("s_endpgm")

    a.label("B_slow")
    a(f"""
    s_add_u32 s70, s66, {KW}
    s_add_u32 s71, s66, {VW}
    s_mov_b32 s84, 0
    v_mov_b32 v208, 0xff800000
    v_mov_b32 v209, 0xff800000
    """)
    a.label("B_slow1")
    a(f"""
    s_add_u32 s85, s70, s84
    {ldk(0, "s85", 0)}
    s_waitcnt vmcnt(0)
    {M32} {vr(S,16)}, {vr(KS,4)}, {vr(Q+8,4)}, 0
    {M32} {vr(S+16,16)}, {vr(KS,4)}, {vr(Q+12,4)}, 0
    s_nop 11
    """)
    for jj in range(2):
        for i in range(8): a(f"v_max3_f32 v{208+jj}, v{S+16*jj+2*i}, v{S+16*jj+2*i+1}, v{208+jj}")
    a("""
    s_add_u32 s84, s84, 1024
    s_cmp_lt_u32 s84, 0x10000
    s_cbranch_scc1 B_slow1
    v_mov_b32 v210, v208
    v_mov_b32 v211, v209
    s_nop 1
    v_permlane32_swap_b32 v208, v210
    v_permlane32_swap_b32 v209, v211
    v_max_f32 v208, v208, v210
    v_max_f32 v209, v209, v211
    s_mov_b32 s84, 0
    """)
    for jj in range(2):
        for i in range(16): a(f"v_sub_f32 v{S+32+16*jj+i}, 0, v{208+jj}\nv_mov_b32 v{ACC+32+16*jj+i}, 0")
    for i in range(8): a(f"v_mov_b32 v{VS+i}, 0x3f803f80")
    a.label("B_slow2")
    a(f"s_add_u32 s85, s70, s84\ns_add_u32 s89, s71, s84\n{ldk(0, 's85', 0)}")
    for x in ldv(0, "s89", 0): a(x)
    a(f"""
    s_waitcnt vmcnt(0)
    {M32} {vr(S,16)}, {vr(KS,4)}, {vr(Q+8,4)}, {vr(S+32,16)}
    {M32} {vr(S+16,16)}, {vr(KS,4)}, {vr(Q+12,4)}, {vr(S+48,16)}
    s_nop 11
    """)
    for i in range(32): a(f"v_exp_f32 v{S+i}, v{S+i}")
    a("s_nop 1")
    for jj in range(2):
        for s in range(2):
            a(f"{SM} {vr(ACC+32+16*jj,16)}, {vr(VS+4*s,4)}, {vr(S+16*jj+8*s,8)}, v{IDX}")
    a("""
    s_add_u32 s84, s84, 1024
    s_cmp_lt_u32 s84, 0x10000
    s_cbranch_scc1 B_slow2
    s_nop 11
    s_branch B_fin
    """)
    a.lines += late.lines
    a.label("K_end")
    a("s_endpgm")
    return a

def build():
    ref = open(f"cdna_kernels/{NAME}.s.ref").read().split("\n")
    head = [l for l in ref if l.startswith(";") and "@launch" not in l]
    t = kernel().text()
    bad = check(t)
    head += """; One launch, 256 workgroups of 8 waves (one per CU), three phases with hand-offs through d_ws:
;   A  waves 4-7 stage x / wqkv into LDS, waves 0-3 compute k, v (published, write-through) and q (kept on chip);
;      waves 4-7 then compute the gate and u = shiftconv(k) * v (published channel-major)
;   B  attention for 128 tokens x 2 heads, keys split over four waves per head; exp2 results feed a sparse MFMA as raw
;      fp32 (high halves selected), a ones row of v gives the row sums; waves 4-7 also run the long causal convolution
;      of two channels as Toeplitz MFMAs; waves 0-3 combine, check the softmax range and normalise
;   C  64 x 64 output tile: g * (o @ wo) + (1 - g) * x * y
; Flags live in d_ws, are cleared by workgroup 0 and released through d_debug; o and y are reset to all-ones first and
; consumers reload what has not arrived yet. Every wait is bounded.""".split("\n")
    out = "\n".join(head) + f"\n; @launch grid=(256,1,1) block=(512,1,1) lds={LDS}\n"
    out += f'.amdgcn_target "amdgcn-amd-amdhsa--gfx950"\n.text\n.globl {NAME}_kernel\n.p2align 8\n.type {NAME}_kernel,@function\n' + t
    out += f""".section .rodata,"a"
.p2align 6
.amdhsa_kernel {NAME}_kernel
  .amdhsa_next_free_vgpr 256
  .amdhsa_next_free_sgpr 102
  .amdhsa_accum_offset 256
  .amdhsa_group_segment_fixed_size 0
  .amdhsa_kernarg_size 104
  .amdhsa_user_sgpr_count 2
  .amdhsa_user_sgpr_kernarg_segment_ptr 1
  .amdhsa_system_sgpr_workgroup_id_x 1
  .amdhsa_float_denorm_mode_32 3
.end_amdhsa_kernel
"""
    return out, bad

if __name__ == "__main__":
    out, bad = build()
    for b in bad: print("HAZARD", b)
    path = sys.argv[1] if len(sys.argv) > 1 else "fused.s"
    open(path, "w").write(out)
    print("wrote", path, len(out), "bytes;", len(bad), "hazards; lds", LDS)
```

```python
import os, sys, struct
from asmlib import Asm, vr, sr, check

NAME = "gated_mix__mha_block__ssm_conv_h3__prompt"
KW, VW, UW, YW, OW, GW = 0x200000, 0x400000, 0x600000, 0x840000, 0xA80000, 0xE00000
CST = 4352
FW = 0xE10000
FS = 256
QF, UF, CF = FW, FW + 4, FW + 8
WS_BYTES = 0xE60000
M32 = "v_mfma_f32_32x32x16_bf16"
M16 = "v_mfma_f32_16x16x32_bf16"
SM = "v_smfmac_f32_32x32x32_bf16"
LOG2E = 1.4426950408889634
STAMP = int(os.environ.get("STAMP", "0"))
env = lambda k, d: type(d)(os.environ.get(k, d))
NS = env("NS", 3)
EXP = env("EXP", "")
STG = env("STG", 4)
STM = env("STM", 8 // STG)
WQ1 = env("WQ1", 4)
KFG = env("KFG", 14)
CDROP, CDT = env("CDROP", 2), env("CDT", 0)
XP, XP2 = env("XP", 3), env("XP2", 3)
OFIRST = env("OFIRST", 0)
YSM = env("YSM", 1)
CVR = env("CVR", 3)
F1 = env("F1", 1)
QROT = env("QROT", 1)
DELAY = env("DELAY", "")
HW12 = env("HW12", 0)
KSW = env("KSW", 1)
NTX, NTW, WF1 = env("NTX", 0), env("NTW", 0), env("WF1", 0)
PSH, RM, XPH = env("PSH", 3), env("RM", 1), env("XPH", 0)
HOL = env("HOL", 1)
CVP = env("CVP", 0)
HS0 = env("HS0", 150)
CS0 = env("CS0", 150)
OLATE = env("OLATE", 1)
YLATE = env("YLATE", 1)
TOUCH = env("TOUCH", 2)
TW = 0xF00000
SPIN = 40000

SLOT = 24576
L_X = 65536
L_PRIV = 73728
USZ = 4576
PRIV = 2 * USZ
PSL = 2176
L_OLD = L_PRIV + 4 * PRIV
L_YNG = L_OLD + 16 * PSL
L_XF = L_YNG + 8 * PSL
L_WQ = L_OLD
L_QX = L_YNG
TB = L_QX + 8192
L_RB = L_OLD
LDS = L_XF + 256
W_XCH, W_QW, W_KV, W_TB, W_PO, W_QR, W_PR, W_CNT, W_PY, W_LH, W_LC, W_YS, W_OL = 0, 16, 32, 48, 64, 80, 96, 128, 144, 160, 176, 192, 208

def f32(x):
    return "0x%08x" % struct.unpack("<I", struct.pack("<f", x))[0]

def srd(a, d, b, nbytes):
    a(f"s_mov_b32 s{d}, s{b}\ns_mov_b32 s{d+1}, s{b+1}\ns_mov_b32 s{d+2}, {hex(nbytes)}\ns_mov_b32 s{d+3}, 0x20000")

def stamp(a, i, mode=1):
    if not STAMP or (STAMP != mode and i not in (0, 15)): return
    a(f"""
    s_memtime s[96:97]
    s_memrealtime s[98:99]
    s_waitcnt lgkmcnt(0)
    v_writelane_b32 v255, s96, {2*i}
    v_writelane_b32 v255, s98, {2*i+1}
    """)
def stamp_flush(a):
    if not STAMP: return
    a(f"""
    s_lshl_b32 s96, s2, 3
    s_add_u32 s96, s96, s30
    s_lshl_b32 s96, s96, 8
    s_add_u32 s96, s96, {TW}
    s_mov_b32 s34, 0x1400000
    v_lshlrev_b32 v6, 2, v0
    buffer_store_dword v255, v6, s[32:35], s96 offen
    """)

WS = "s[32:35]"
IDX, L16, VOF, L4H = 2, 3, 4, 5
KF2, VZ, WOA, RBA, XYA, XGA, OUTV = 222, 223, 232, 233, 237, 238, 239
CFV, KFV, MYW, XW4, WOV, XOV, QA, Z4, XW, ONE, XW8 = 240, 241, 242, 243, 244, 245, 246, 248, 252, 253, 254
_uid = [0]
def uid(p):
    _uid[0] += 1
    return f"{p}{_uid[0]}"

def poll(a, voff, soff, tmp, srd_=WS):
    L = uid("POLL")
    a(f"s_mov_b32 s90, {SPIN}")
    a.label(L)
    a(f"""
    buffer_load_dword v{tmp}, v{voff}, {srd_}, {soff} offen sc1
    s_waitcnt vmcnt(0)
    v_cmp_eq_u32 vcc, 1, v{tmp}
    s_sub_u32 s90, s90, 1
    s_cbranch_scc1 {L}_out
    s_cmp_eq_u64 vcc, exec
    s_cbranch_scc0 {L}
    """)
    a.label(f"{L}_out")

def all_set(a, late, val, voff, soff, srd_=WS):
    L = uid("AS")
    a(f"v_cmp_eq_u32 vcc, 1, v{val}\ns_nop 0\ns_cmp_eq_u64 vcc, exec\ns_cbranch_scc0 {L}")
    a.label(f"{L}_ok")
    late.label(L)
    poll(late, voff, soff, val, srd_)
    late(f"s_branch {L}_ok")

def lds_wait(a, vaddr, off, tmp):
    L = uid("LW")
    a("s_mov_b32 s90, 0x400000")
    a.label(L)
    a(f"""
    ds_read_b32 v{tmp}, v{vaddr} offset:{off}
    s_waitcnt lgkmcnt(0)
    v_cmp_eq_u32 vcc, 1, v{tmp}
    s_sub_u32 s90, s90, 1
    s_cbranch_scc1 {L}_out
    s_cmp_eq_u64 vcc, exec
    s_cbranch_scc0 {L}
    """)
    a.label(f"{L}_out")

mark = lambda off: f"ds_write_b32 v{MYW}, v{ONE} offset:{off}"

def arrive(a, k, tmp, n=4):
    L = uid("AR")
    a(f"""
    s_mov_b64 exec, 1
    ds_add_rtn_u32 v{tmp}, v{XW}, v{ONE} offset:{W_CNT+4*k}
    s_waitcnt lgkmcnt(0)
    v_cmp_eq_u32 vcc, {n-1}, v{tmp}
    s_nop 4
    s_cbranch_vccz {L}
    buffer_store_dword v{ONE}, v{VZ}, {WS}, s62 offen offset:{4*k} sc1
    """)
    a.label(L)
    a("s_mov_b64 exec, -1")

def fresh(a, late, regs, reload, tmp, keep=0):
    L = uid("FR")
    chk = [f"v_max3_u32 v{tmp}, v{regs[0]}, v{regs[1]}, v{regs[2]}"]
    r = list(regs[3:])
    while len(r) >= 2: chk.append(f"v_max3_u32 v{tmp}, v{r.pop(0)}, v{r.pop(0)}, v{tmp}")
    if r: chk.append(f"v_max_u32 v{tmp}, v{r[0]}, v{tmp}")
    chk += [f"v_cmp_eq_u32 vcc, -1, v{tmp}", "s_nop 0", "s_cmp_eq_u64 vcc, 0"]
    a("\n".join(chk)); a(f"s_cbranch_scc0 {L}")
    a.label(f"{L}_ok")
    late.label(L)
    late(f"s_mov_b32 s90, {SPIN}")
    late.label(f"{L}_l")
    if STAMP: late("s_add_u32 s21, s21, 1")
    late("\n".join(reload) + f"\ns_waitcnt vmcnt({keep})\n" + "\n".join(chk))
    late(f"s_cbranch_scc1 {L}_ok\ns_sub_u32 s90, s90, 1\ns_cbranch_scc0 {L}_l\ns_branch {L}_ok")

def delay(a, tag):
    for d in DELAY.split(","):
        p = d.split(":")
        if p[0] != tag: continue
        L = uid("DL")
        a(f"s_and_b32 s90, s2, {int(p[1])-1}\ns_cmp_lg_u32 s90, {p[2]}\ns_cbranch_scc1 {L}_o\ns_mov_b32 s90, {p[3]}")
        a.label(L)
        a(f"s_sub_u32 s90, s90, 1\ns_cmp_lg_u32 s90, 0\ns_cbranch_scc1 {L}")
        a.label(f"{L}_o")

def lines(t):
    return [l.strip() for l in t.strip().split("\n") if l.strip()]

def kernel():
    a = Asm(); late = Asm()
    a.label(f"{NAME}_kernel")
    a(f"""
    s_cmp_ge_u32 s2, 256
    s_cbranch_scc1 K_end
    """)
    if STAMP == 4: a("v_mov_b32 v255, 0"); stamp(a, 0)
    if TOUCH == 2:
        a("""
        v_lshlrev_b32 v221, 7, v0
        v_min_u32 v221, K_end-A_pc, v221
        s_getpc_b64 s[80:81]
        A_pc:
        global_load_dword v221, v221, s[80:81]
        """)
    a(f"""
    s_load_dwordx8 s[4:11], s[0:1], 0
    s_load_dwordx16 s[12:27], s[0:1], 32
    s_load_dwordx2 s[28:29], s[0:1], 96
    v_lshrrev_b32 v1, 6, v0
    v_and_b32 v0, 63, v0
    s_and_b32 s31, s2, 7
    v_readfirstlane_b32 s30, v1
    s_lshr_b32 s56, s2, 3
    s_lshr_b32 s57, s31, 1
    s_lshl_b32 s57, s57, 2
    s_lshr_b32 s59, s56, 3
    s_add_u32 s57, s57, s59
    s_and_b32 s58, s31, 1
    s_lshl_b32 s58, s58, 3
    s_and_b32 s60, s56, 7
    s_add_u32 s58, s58, s60
    """)
    if STAMP == 4: stamp(a, 1, 4)
    elif STAMP: a("v_mov_b32 v255, 0"); stamp(a, 0)
    delay(a, "start")
    a("s_cmp_lt_u32 s30, 4\ns_cbranch_scc1 A_compute")

    Q, ACC, S, KS, VS = 16, 32, 96, 160, 176
    WF, OB, AC, YA, YF, XR, RD, PK4, XG = 16, 80, 112, 144, 176, 192, 80, 104, 112
    G = 208
    def common_setup(a, t0, t1, t2):
        a(f"""
        s_and_b32 s63, s30, 1
        s_lshr_b32 s64, s30, 1
        s_lshl_b32 s61, s58, 1
        s_add_u32 s61, s61, s63
        s_lshl_b32 s62, s2, 8
        s_add_u32 s62, s62, {FW}
        s_lshl_b32 s66, s61, 16
        s_lshl_b32 s67, s63, 12
        s_add_u32 s67, s67, {L_QX}
        s_cmp_eq_u32 s64, 0
        s_cselect_b32 s68, 2048, 0
        s_xor_b32 s69, s68, 2048
        s_add_u32 s68, s68, s67
        s_add_u32 s69, s69, s67
        v_lshlrev_b32 v{L16}, 4, v0
        v_add_u32 v{QA}, s68, v{L16}
        v_add_u32 v{QA+1}, s69, v{L16}
        s_lshr_b32 s71, s57, 2
        s_add_u32 s71, s71, {QROT}
        s_mul_i32 s71, s71, {1 if QROT else 0}
        s_add_u32 s71, s71, s64
        s_and_b32 s79, s71, 3
        s_lshl_b32 s70, s79, 14
        s_add_u32 s70, s70, s66
        s_add_u32 s71, s70, {VW}
        s_add_u32 s70, s70, {KW}
        s_mov_b32 s72, 0xffff
        s_mov_b32 s73, 0xffff
        s_lshl_b32 s74, s60, 3
        s_lshr_b32 s75, s58, 3
        s_add_u32 s74, s74, s75
        s_lshl_b32 s75, s79, 1
        s_add_u32 s74, s74, s75
        s_lshl_b32 s74, s74, 8
        s_add_u32 s74, s74, {QF}
        s_lshl_b32 s75, s31, 2
        s_add_u32 s75, s75, s59
        s_mov_b32 s76, s60
        s_lshl_b32 s77, s63, 15
        s_lshl_b32 s78, s64, 13
        s_add_u32 s77, s77, s78
        s_lshl_b32 s78, s64, 17
        s_lshl_b32 s85, s76, 7
        s_add_u32 s78, s78, s85
        s_lshl_b32 s79, s63, 6
        s_add_u32 s78, s78, s79
        s_lshl_b32 s79, s30, 10
        s_add_u32 s79, s79, {L_X}
        v_and_b32 v{t0}, 31, v0
        v_lshlrev_b32 v{L4H}, 2, v{t0}
        v_lshrrev_b32 v{t1}, 5, v0
        v_lshlrev_b32 v{OUTV}, 10, v{t0}
        v_lshl_add_u32 v{OUTV}, v{t1}, 4, v{OUTV}
        v_and_b32 v{t0}, 15, v0
        v_lshlrev_b32 v{t0}, 4, v{t0}
        v_lshl_add_u32 v{VOF}, v{t1}, 8, v{t0}
        v_mov_b32 v{IDX}, 0xdddd
        v_and_b32 v{t0}, 3, v0
        v_lshlrev_b32 v{XW4}, 2, v{t0}
        v_add_u32 v{XW4}, {L_XF}, v{XW4}
        v_bfe_u32 v{t2}, v0, 2, 2
        v_lshlrev_b32 v{KFV}, 14, v{t0}
        v_and_b32 v{KF2}, 0x4000, v{KFV}
        v_lshl_add_u32 v{t2}, v{t1}, 2, v{t2}
        v_lshlrev_b32 v{t2}, 6, v{t2}
        v_lshl_add_u32 v{t2}, v{t0}, 3, v{t2}
        s_and_b32 s80, s64, 1
        v_bfe_u32 v{WOA}, v0, 4, 1
        v_xor_b32 v{WOA}, s80, v{WOA}
        v_lshl_add_u32 v{t2}, v{WOA}, 5, v{t2}
        s_lshr_b32 s80, s64, 1
        s_lshl_b32 s80, s80, 15
        s_and_b32 s81, s31, 1
        s_xor_b32 s81, s81, {KSW & 1}
        s_mul_i32 s81, s81, {2 if KSW else 0}
        s_xor_b32 s81, s81, s64
        s_lshl_b32 s81, s81, 13
        s_add_u32 s80, s80, s81
        s_and_b32 s82, s76, 1
        s_lshl_b32 s82, s82, 12
        s_add_u32 s80, s80, s82
        v_add_u32 v{WOA}, s80, v{t2}
        v_lshrrev_b32 v{t2}, 2, v0
        v_lshlrev_b32 v{t2}, 10, v{t2}
        v_lshl_add_u32 v{WOV}, v{t0}, 4, v{t2}
        s_lshl_b32 s83, s75, 1
        s_add_u32 s83, s83, s63
        s_lshl_b32 s83, s83, 15
        s_add_u32 s81, s81, s83
        s_add_u32 s81, s81, {OW}
        s_add_u32 s67, s81, s82
        s_xor_b32 s82, s82, 4096
        s_add_u32 s68, s81, s82
        s_add_u32 s69, s83, s85
        s_lshl_b32 s80, s64, 5
        s_add_u32 s69, s69, s80
        s_lshl_b32 s80, s75, 6
        s_lshl_b32 s81, s30, 3
        s_add_u32 s80, s80, s81
        v_lshrrev_b32 v{t2}, 3, v0
        v_add_u32 v{t2}, s80, v{t2}
        v_lshlrev_b32 v{t2}, 10, v{t2}
        v_lshrrev_b32 v{t1}, 4, v0
        s_lshl_b32 s81, s63, 2
        v_xor_b32 v{t1}, s81, v{t1}
        v_and_b32 v{t0}, 7, v0
        v_xor_b32 v{t1}, v{t1}, v{t0}
        v_lshl_add_u32 v{t2}, v{t1}, 4, v{t2}
        v_add_u32 v{XOV}, s85, v{t2}
        v_lshlrev_b32 v{XW8}, 2, v{t0}
        v_add_u32 v{XW8}, {L_XF}, v{XW8}
        v_bfe_u32 v{t1}, v0, 3, 1
        v_lshlrev_b32 v{t0}, 11, v{t0}
        v_lshl_add_u32 v{CFV}, v{t1}, 8, v{t0}
        s_lshr_b32 s80, s75, 1
        s_and_b32 s84, s80, 3
        s_lshl_b32 s84, s84, 6
        s_lshr_b32 s80, s80, 2
        s_lshl_b32 s80, s80, 1
        s_add_u32 s80, s80, s84
        s_lshl_b32 s80, s80, 8
        s_add_u32 s101, s80, {CF}
        s_add_u32 s81, s81, s64
        """)
        for r in range(4):
            a(f"s_xor_b32 s80, s81, {r}\ns_mul_i32 s80, s80, 6144\ns_add_u32 s80, s80, {L_RB+max(r-1,0)*2048}\nv_add_u32 v{RBA+r}, s80, v{L16}")
        a(f"""
        s_and_b32 s84, s30, 3
        s_mul_i32 s65, s84, {PRIV}
        s_add_u32 s65, s65, {L_PRIV}
        s_add_u32 s80, s65, 4096
        v_add_u32 v{XYA}, s80, v{L16}
        v_add_u32 v{XGA}, s80, v{L4H}
        s_lshl_b32 s80, s84, 2
        s_add_u32 s80, s80, {L_XF}
        v_mov_b32 v{MYW}, s80
        v_mov_b32 v{XW}, {L_XF}
        v_mov_b32 v{ONE}, 1
        v_mov_b32 v{VZ}, 0
        """)
        for i in range(4): a(f"v_mov_b32 v{Z4+i}, 0")
        srd(a, 44, 8, 0x80000)
    ones = lambda t: lines(f"v_and_b32 v{t}, 27, v0\nv_cmp_eq_u32 vcc, 16, v{t}\nv_mov_b32 v{t}, 0x3f803f80\ns_nop 0\nv_cndmask_b32 v{t}, 0, v{t}, vcc")
    ldk = lambda st, so, off: f"buffer_load_dwordx4 {vr(KS+4*st,4)}, v{L16}, {WS}, {so} offen offset:{off} sc1"
    def ldv(st, so, off):
        return ["s_mov_b64 exec, s[72:73]",
                f"buffer_load_dwordx4 {vr(VS+8*st,4)}, v{VOF}, {WS}, {so} offen offset:{off} sc1",
                f"buffer_load_dwordx4 {vr(VS+8*st+4,4)}, v{VOF}, {WS}, {so} offen offset:{off+512} sc1",
                "s_mov_b64 exec, -1"]
    def att_q():
        lds_wait(a, XW4, W_QW, Q)
        for j in range(4): a(f"ds_read_b128 {vr(Q+4*j,4)}, v{QA+j//2} offset:{(j%2)*1024}")
    def att_loads():
        a(ldk(0, "s70", 0))
        for m in range(3):
            for x in ldv(m, "s71", m*1024): a(x)
            a(ldk(m+1, "s70", (m+1)*1024))
    def c_wo():
        a(f"v_xor_b32 v6, 4096, v{WOA}\nv_xor_b32 v7, 0x8000, v{WOA}\nv_xor_b32 v8, 0x9000, v{WOA}")
        for ai in range(2):
            for j in range(8):
                for jj in range(2):
                    a(f"ds_read_b64_tr_b16 {vr(WF+4*(8*ai+j)+2*jj,2)}, v{[WOA,6,7,8][2*ai+j//4]} offset:{(j%4)*1024+jj*512}")
                if j % 4 == 3 and 8*ai+j < 15: a("s_waitcnt lgkmcnt(4)")
    oload = [f"buffer_load_dwordx4 {vr(OB+4*j,4)}, v{L16}, {WS}, s{67+j//4} offen offset:{(j%4)*1024} sc1" for j in range(8)]

    XV, WV = 16, 20
    a(f"""
    s_setprio 1
    s_sub_u32 s84, s30, 4
    s_lshl_b32 s80, s57, 7
    s_lshl_b32 s81, s84, 5
    s_add_u32 s80, s80, s81
    v_lshrrev_b32 v6, 3, v0
    v_add_u32 v6, s80, v6
    v_lshlrev_b32 v6, 10, v6
    v_and_b32 v7, 7, v0
    v_lshrrev_b32 v8, 4, v0
    v_xor_b32 v9, v7, v8
    v_lshl_add_u32 v{XV}, v9, 4, v6
    v_xor_b32 v9, 4, v9
    v_lshl_add_u32 v{XV+1}, v9, 4, v6
    v_add_u32 v{XV+1}, 7168, v{XV+1}
    v_add_u32 v{XV+2}, {2*7168}, v{XV}
    v_add_u32 v{XV+3}, {2*7168}, v{XV+1}
    s_lshl_b32 s81, s84, 4
    v_lshrrev_b32 v6, 2, v0
    v_add_u32 v6, s81, v6
    v_mul_u32_u24 v6, 3072, v6
    v_and_b32 v7, 3, v0
    v_lshl_add_u32 v6, v7, 4, v6
    s_lshl_b32 s81, s58, 6
    v_add_u32 v{WV}, s81, v6
    s_lshl_b32 s92, s84, 12
    s_lshl_b32 s93, s84, 11
    s_add_u32 s93, s93, {16384-1024}
    s_lshl_b32 s94, s59, 1
    s_add_u32 s94, s94, s60
    {"s_mov_b32 s94, 0" if "nostag" in EXP else ""}
    {f"s_lshr_b32 s94, s60, {PSH}" if STG < 8 else ""}
    {f"s_mul_i32 s95, s59, {RM}" if STG < 8 else ""}
    {"s_add_u32 s94, s95, s94" if STG < 8 else ""}
    {f"s_and_b32 s94, s94, {STG-1}" if STG < 8 else ""}
    {f"s_mul_i32 s94, s94, {STM}" if STG < 8 else ""}
    {f"s_and_b32 s95, s31, 1" if XPH else ""}
    {f"s_mul_i32 s95, s95, {XPH}" if XPH else ""}
    {f"s_add_u32 s94, s94, s95" if XPH else ""}
    {"v_and_b32 v20, 0xfff0, v16" if "wl2" in EXP else ""}
    {"v_and_b32 v16, 0xfff0, v16" if "xl2" in EXP else ""}
    {"v_and_b32 v17, 0xfff0, v17" if "xl2" in EXP else ""}
    {"v_and_b32 v18, 0xfff0, v18" if "xl2" in EXP else ""}
    {"v_and_b32 v19, 0xfff0, v19" if "xl2" in EXP else ""}
    s_waitcnt lgkmcnt(0)
    """)
    srd(a, 36, 4, 0x200000); srd(a, 40, 6, 0x180000)
    stamp(a, 1, 3)
    def dma(st):
        base = (st % NS) * SLOT
        a(f"s_add_u32 s95, s94, {st}\ns_and_b32 s95, s95, 7\ns_lshl_b32 s100, s95, 7\ns_add_u32 m0, s92, {base}\ns_mul_i32 s95, s95, 196608")
        for j in range(4): a(f"buffer_load_dwordx4 v{XV+j}, s[36:39], s100 offen offset:{j*1024} {'nt' if st < NTX else ''} lds")
        a(f"s_add_u32 m0, s93, {base}\ns_nop 0")
        for j in (1, 2): a(f"buffer_load_dwordx4 v{WV}, s[40:43], s95 offen offset:{j*1024} {'nt' if st < NTW else ''} lds")
        stamp(a, 2 + st, 3)
    dma(0); dma(1)
    issued = 2
    a(f"v_lshlrev_b32 v32, 2, v0\nv_add_u32 v32, {L_XF}, v32\nv_mov_b32 v33, 0\nds_write_b32 v32, v33")
    main = a; a = Asm()
    srd(a, 32, 28, WS_BYTES); srd(a, 52, 26, 256)
    common_setup(a, 6, 7, 8)
    BA, PW16, PW4, A0, A64, A512, U2, PV16, PT16, PTW, YST = 1, 6, 7, 8, 9, 10, 11, 12, 13, 14, 15
    UFV, GFV, P0, P1, YLD, YSW, YSR, XAD, DF, PM = 210, 211, 212, 213, 214, 215, 216, 217, 218, 224
    UK, TBW, TBR, US, SKV, GOV = 21, 24, 25, 26, 28, 29
    a(f"""
    s_lshl_b32 s91, s31, 6
    s_lshl_b32 s80, s56, 1
    s_add_u32 s91, s91, s80
    s_lshr_b32 s80, s84, 1
    s_add_u32 s91, s91, s80
    s_and_b32 s80, s91, -2
    s_lshl_b32 s80, s80, 1
    s_load_dword s89, s[20:21], s80
    v_and_b32 v32, 31, v0
    v_lshrrev_b32 v33, 5, v0
    v_and_b32 v34, 15, v0
    v_lshrrev_b32 v35, 4, v0
    v_and_b32 v36, 7, v0
    v_lshrrev_b32 v37, 3, v0
    v_min_u32 v38, 29, v32
    v_lshlrev_b32 v38, 4, v38
    v_mul_u32_u24 v39, {USZ}, v33
    v_add3_u32 v30, v38, v39, s65
    s_mul_i32 s80, s84, {4*PSL}
    s_add_u32 s80, s80, {L_OLD}
    v_add_u32 v{PW16}, s80, v{L16}
    v_add_u32 v{PW4}, s80, v{L4H}
    s_lshl_b32 s81, s63, 8
    v_lshlrev_b32 v38, 4, v35
    v_lshl_add_u32 v{A0}, v34, 2, v38
    s_sub_u32 s80, s81, 60
    v_add_u32 v{A0}, s80, v{A0}
    v_add_u32 v{A64}, 64, v{A0}
    v_add_u32 v{A512}, 512, v{A0}
    v_add_u32 v{U2}, 2, v{L16}
    v_add_u32 v{PV16}, s65, v{L16}
    s_xor_b32 s80, s84, 1
    s_lshl_b32 s82, s80, 2
    s_add_u32 s82, s82, {L_XF}
    v_mov_b32 v{PTW}, s82
    s_mul_i32 s80, s80, {PRIV}
    s_add_u32 s80, s80, {L_PRIV}
    v_add_u32 v{PT16}, s80, v{L16}
    v_and_b32 v39, 1, v0
    v_mul_u32_u24 v39, {USZ}, v39
    v_bfe_u32 v40, v0, 1, 3
    v_lshlrev_b32 v41, 6, v40
    v_sub_u32 v39, v39, v41
    s_add_u32 s80, s65, 448
    s_add_u32 s80, s80, s81
    v_add3_u32 v{BA}, v39, v38, s80
    v_and_b32 v38, 3, v0
    v_lshlrev_b32 v{GOV}, 2, v38
    v_lshlrev_b32 v38, 4, v38
    v_bfe_u32 v39, v0, 2, 2
    v_lshl_add_u32 v38, v39, 7, v38
    v_lshl_add_u32 v38, v33, 6, v38
    v_bfe_u32 v41, v0, 4, 1
    v_lshl_add_u32 v{YST}, v41, 9, v38
    v_lshlrev_b32 v{UFV}, 9, v{L4H}
    v_lshlrev_b32 v{GFV}, 11, v36
    v_mul_u32_u24 v38, {CST}, v37
    v_lshl_add_u32 v{YLD}, v36, 4, v38
    v_xor_b32 v42, v36, v35
    v_lshl_add_u32 v{US}, v42, 4, v38
    v_xor_b32 v42, 4, v42
    v_lshl_add_u32 v{US+1}, v42, 4, v38
    v_xor_b32 v38, v36, v37
    v_lshlrev_b32 v38, 4, v38
    v_lshl_add_u32 v38, v37, 7, v38
    s_add_u32 s80, s65, 6400
    v_add_u32 v{YSW}, s80, v38
    s_lshl_b32 s80, s63, 1
    v_lshl_add_u32 v38, v33, 2, s80
    v_xor_b32 v38, v38, v36
    v_lshlrev_b32 v38, 4, v38
    v_lshl_add_u32 v38, v34, 7, v38
    s_and_b32 s80, s64, 1
    s_mul_i32 s80, s80, {PRIV}
    s_add_u32 s80, s80, {L_PRIV+6400}
    v_add_u32 v{YSR}, s80, v38
    s_lshl_b32 s80, s64, 1
    v_xor_b32 v38, s80, v40
    v_lshlrev_b32 v38, 4, v38
    v_lshl_add_u32 v38, v32, 7, v38
    v_lshl_add_u32 v38, v33, 3, v38
    s_lshl_b32 s80, s63, 12
    s_add_u32 s80, s80, {L_X}
    v_add_u32 v{XAD}, s80, v38
    v_and_b32 v38, 1, v0
    v_lshl_or_b32 v39, v38, 2, v39
    v_xor_b32 v41, v41, v33
    v_lshl_or_b32 v39, v41, 3, v39
    v_bfe_u32 v38, v0, 1, 1
    v_lshlrev_b32 v38, 4, v38
    v_mov_b32 v41, 0x3f80
    v_lshlrev_b32 v38, v38, v41
    """)
    for i in range(8): a(f"v_cmp_eq_u32 vcc, {i}, v39\ns_nop 1\nv_cndmask_b32 v{PM+i}, 0, v38, vcc")
    a(f"""
    s_lshl_b32 s80, s56, 16
    s_lshl_b32 s82, s84, 14
    s_add_u32 s80, s80, s82
    s_lshl_b32 s82, s31, 7
    s_add_u32 s80, s80, s82
    v_lshlrev_b32 v38, 13, v33
    v_lshl_add_u32 v38, v32, 2, v38
    v_add_u32 v{UK+1}, s80, v38
    v_add_u32 v{UK}, -3072, v{UK+1}
    v_add_u32 v{UK+2}, 4096, v{UK+1}
    s_lshl_b32 s80, s31, 9
    v_lshl_add_u32 v{SKV}, v32, 4, s80
    s_lshl_b32 s80, s84, 1
    v_add_u32 v38, s80, v33
    v_sub_u32 v38, 7, v38
    v_xor_b32 v38, v38, v36
    v_lshlrev_b32 v38, 4, v38
    v_lshl_add_u32 v38, v32, 8, v38
    v_add_u32 v{TBW}, {TB}, v38
    s_lshl_b32 s80, s84, 11
    s_add_u32 s80, s80, {TB}
    v_add_u32 v{TBR}, s80, v{L16}
    s_lshl_b32 s10, s31, 2
    s_add_u32 s10, s10, s84
    s_mul_i32 s10, s10, {16*CST}
    s_lshl_b32 s80, s56, 7
    s_sub_u32 s10, s10, s80
    s_add_u32 s10, s10, {UW + 248*16}
    s_add_u32 s11, s10, {8*CST}
    s_lshl_b32 s87, s31, 8
    s_add_u32 s87, s87, {UF}
    s_lshr_b32 s86, s31, 1
    s_lshl_b32 s86, s86, 1
    s_and_b32 s80, s75, 1
    s_add_u32 s86, s86, s80
    s_lshr_b32 s80, s75, 1
    s_and_b32 s80, s80, 3
    s_lshl_b32 s80, s80, 6
    s_add_u32 s86, s86, s80
    s_lshl_b32 s86, s86, 8
    s_add_u32 s86, s86, {UF}
    v_lshl_add_u32 v39, v35, 2, v34
    s_waitcnt lgkmcnt(0)
    s_and_b32 s80, s91, 1
    s_lshl_b32 s80, s80, 4
    s_lshr_b32 s89, s89, s80
    s_and_b32 s89, s89, 0xffff
    v_mov_b32 v38, s89
    """)
    for i in range(4): a(f"v_cmp_eq_u32 vcc, {15-i}, v39\ns_nop 1\nv_cndmask_b32 v{DF+i}, 0, v38, vcc")
    for x in ones(38): a(x)
    for i in range(32): a(f"v_mov_b32 v{VS+i}, v38")
    defer = a.lines; a = main
    cuts = [0, HS0] + [HS0 + (len(defer) - HS0) * (n + 1) // 7 for n in range(7)]
    for n in range(1, len(cuts) - 1):
        while cuts[n] < len(defer) and ("vcc" in defer[cuts[n]] or defer[cuts[n]].startswith(("s_nop", "s_cselect", "s_addc"))): cuts[n] += 1
    a.lines += defer[:cuts[1]]
    for s_ in range(8):
        a(f"s_waitcnt vmcnt({6*(issued-1-s_)}){' lgkmcnt(0)' if s_ == 0 else ''}\ns_barrier")
        while issued < min(8, s_ + NS): dma(issued); issued += 1
        if s_ < 7: a.lines += defer[cuts[s_+1]:cuts[s_+2]]
    a("s_lshr_b32 s92, s92, 2")
    for st in range(8):
        if st == WQ1: a("s_barrier")
        a(f"s_add_u32 s95, s94, {st}\ns_and_b32 s95, s95, 7\ns_add_u32 m0, s92, {L_WQ+st*4096}\ns_mul_i32 s95, s95, 196608")
        a(f"buffer_load_dwordx4 v{WV}, s[40:43], s95 offen lds")
    if WQ1 >= 8: a("s_barrier")
    stamp(a, 10, 3)
    KR, VR, SK, GOH, KF, VF, SF, U, UP, GX, GG = 32, 43, 52, 56, 64, 86, 102, 110, 128, 144, 152
    srd(a, 40, 12, 0x200000); srd(a, 48, 14, 0x200000)
    for i in range(3): a(f"buffer_load_dword v{KR+i}, v{UK}, s[40:43], 0 offen offset:{i*1024} nt")
    for i in range(8): a(f"buffer_load_dword v{KR+3+i}, v{UK+1+i//4}, s[40:43], 0 offen offset:{(i%4)*1024} nt")
    for i in range(8): a(f"buffer_load_dword v{VR+i}, v{UK+1+i//4}, s[48:51], 0 offen offset:{(i%4)*1024} nt")
    srd(a, 40, 16, 4096); srd(a, 48, 22, 1024)
    a(f"""
    s_lshl_b32 s12, s57, 7
    s_lshl_b32 s80, s58, 3
    s_add_u32 s12, s12, s80
    s_lshl_b32 s80, s84, 1
    s_add_u32 s12, s12, s80
    s_lshl_b32 s80, s12, 10
    s_lshl_b32 s12, s12, 2
    s_add_u32 s12, s12, {GW}
    buffer_load_dwordx4 {vr(SK,4)}, v{SKV}, s[40:43], 0 offen
    buffer_load_dwordx4 {vr(GG,4)}, v{L16}, s[48:51], 0 offen
    buffer_load_dwordx4 {vr(GX,4)}, v{L16}, s[36:39], s80 offen
    buffer_load_dwordx4 {vr(GX+4,4)}, v{L16}, s[36:39], s80 offen offset:1024
    buffer_load_dword v{GOH}, v{GOV}, s[52:55], 0 offen sc1
    s_waitcnt vmcnt(24)
    s_barrier
    s_setprio 0
    """)
    stamp(a, 1); stamp(a, 11, 3)
    a(f"ds_write_b128 v30, {vr(Z4,4)} offset:4096")
    srd(a, 40, 24, 0x200000)
    a(f"""
    s_mul_i32 s13, s91, {CST}
    s_lshl_b32 s80, s63, 11
    s_add_u32 s7, s13, s80
    s_add_u32 s7, s7, {YW}
    s_add_u32 s13, s13, {UW}
    s_mov_b32 s88, s7
    s_add_u32 s89, s7, 1024
    s_and_b32 s4, s64, 1
    s_lshl_b32 s4, s4, 1
    s_lshl_b32 s5, s57, 2
    s_add_u32 s4, s4, s5
    s_lshl_b32 s4, s4, 15
    s_lshl_b32 s5, s61, 10
    s_add_u32 s4, s4, s5
    s_add_u32 s4, s4, {OW}
    s_add_u32 s5, s4, 0x8000
    s_mov_b32 s8, 1
    s_lshl_b32 s14, s75, 1
    s_add_u32 s14, s14, s63
    s_lshl_b32 s14, s14, 7
    s_add_u32 s14, s14, {GW}
    s_lshl_b32 s15, s76, 2
    s_add_u32 s15, s15, s84
    s_mul_i32 s15, s15, {16*CST}
    s_lshl_b32 s82, s75, 7
    s_add_u32 s15, s15, s82
    s_add_u32 s15, s15, {YW}
    s_add_u32 s16, s15, {8*CST}
    s_lshl_b32 s17, s76, 8
    s_add_u32 s17, s17, {CF}
    s_lshl_b32 s82, s91, 12
    s_add_u32 s82, s82, s80
    s_add_u32 s92, s18, s82
    s_addc_u32 s93, s19, 0
    s_mov_b32 s83, 99
    s_mov_b32 s82, 2
    s_mov_b32 s6, 0xffff0000
    s_waitcnt vmcnt(4)
    """)
    stamp(a, 2)
    a(f"buffer_load_dword v57, v{KF2}, {WS}, s74 offen sc1")
    for i in range(11): a(f"v_lshlrev_b32 v{KF+2*i}, 16, v{KR+i}\nv_and_b32 v{KF+2*i+1}, s6, v{KR+i}")
    for i in range(8): a(f"v_lshlrev_b32 v{VF+2*i}, 16, v{VR+i}\nv_and_b32 v{VF+2*i+1}, s6, v{VR+i}")
    for ch in range(2):
        for t in range(4):
            src = SK + 2*ch + t//2
            a(f"v_lshlrev_b32 v{SF+2*t+ch}, 16, v{src}" if t % 2 == 0 else f"v_and_b32 v{SF+2*t+ch}, s6, v{src}")
    for i in range(8):
        u = vr(U+2*i, 2)
        a(f"v_pk_mul_f32 {u}, {vr(KF+2*i,2)}, {vr(SF+6,2)}")
        for t in (2, 1, 0): a(f"v_pk_fma_f32 {u}, {vr(KF+2*(i+3-t),2)}, {vr(SF+2*t,2)}, {u}")
        a(f"v_pk_mul_f32 {u}, {u}, {vr(VF+2*i,2)}")
    for ch in range(2):
        for i in range(4): a(f"v_cvt_pk_bf16_f32 v{KR+4*ch+i}, v{U+2*(7-2*i)+ch}, v{U+2*(6-2*i)+ch}")
    a(f"""
    ds_write_b128 v{TBW}, {vr(KR,4)}
    ds_write_b128 v{TBW}, {vr(KR+4,4)} offset:128
    v_mov_b32 v48, 0
    v_mov_b32 v49, 0
    s_waitcnt vmcnt(0) lgkmcnt(0)
    {mark(W_TB)}
    """)

    for i in range(4):
        a(f"v_dot2_f32_bf16 v48, v{GX+i}, v{GG+i}, v48\nv_dot2_f32_bf16 v49, v{GX+4+i}, v{GG+i}, v49")
    a("s_nop 2")
    for d in ("row_shr:1 row_mask:0xf bank_mask:0xf bound_ctrl:0", "row_shr:2 row_mask:0xf bank_mask:0xf bound_ctrl:0",
              "row_shr:4 row_mask:0xf bank_mask:0xf bound_ctrl:0", "row_shr:8 row_mask:0xf bank_mask:0xf bound_ctrl:0",
              "row_bcast:15 row_mask:0xa bank_mask:0xf", "row_bcast:31 row_mask:0xc bank_mask:0xf"):
        a(f"v_add_f32_dpp v48, v48, v48 {d}\nv_add_f32_dpp v49, v49, v49 {d}\ns_nop 0")
    a(f"""
    v_cvt_pk_bf16_f32 v50, v48, v49
    v_lshlrev_b32 v48, 16, v50
    v_and_b32 v49, s6, v50
    v_mul_f32 v48, {f32(-LOG2E)}, v48
    v_mul_f32 v49, {f32(-LOG2E)}, v49
    v_exp_f32 v48, v48
    v_exp_f32 v49, v49
    s_nop 0
    v_add_f32 v48, 1.0, v48
    v_add_f32 v49, 1.0, v49
    v_rcp_f32 v48, v48
    v_rcp_f32 v49, v49
    s_nop 0
    v_cvt_pk_bf16_f32 v50, v48, v49
    v_lshlrev_b32 v{UP+8}, 16, v50
    v_and_b32 v{UP+9}, s6, v50
    v_mov_b32 v{UP+10}, v{US}
    v_mov_b32 v{UP+11}, v{US+1}
    """)
    all_set(a, late, GOH, GOV, "0", "s[52:55]")
    lds_wait(a, XW4, W_TB, 56)
    a(f"ds_read_b128 {vr(UP,4)}, v{TBR}\nds_read_b128 {vr(UP+4,4)}, v{TBR} offset:1024")
    stamp(a, 3); stamp(a, 12, 3)
    all_set(a, late, 57, KF2, "s74")
    att_loads()
    a("s_waitcnt lgkmcnt(0)")
    a(f"""
    buffer_store_dwordx4 {vr(UP,4)}, v{UP+10}, {WS}, s10 offen sc1
    buffer_store_dwordx4 {vr(UP+4,4)}, v{UP+11}, {WS}, s11 offen sc1
    s_mov_b32 exec_lo, 0
    s_mov_b32 exec_hi, 0x80000000
    buffer_store_dwordx2 {vr(UP+8,2)}, v{VZ}, {WS}, s12 offen sc1
    s_mov_b64 exec, -1
    """)
    stamp(a, 4); stamp(a, 13, 3)
    att_q()
    lds_wait(a, XW4, W_QR, 56)
    delay(a, "hgo")
    a("s_setprio 1")
    stamp(a, 5); stamp(a, 6)
    for i in range(12): a(f"s_load_dword s100, s[92:93], {i*128}")

    a("s_branch B_go" if not HW12 else "s_branch B_goh")

    a.label("A_compute")
    XA, WA, AK, AV, AQ, XF, FR, FQ, GO = 6, [14, 15, 1], 20, 36, 48, 64, 192, [208, 212, 216, 28, 32], 19
    a(f"""
    v_and_b32 v20, 31, v0
    v_lshrrev_b32 v21, 5, v0
    v_bfe_u32 v22, v0, 1, 3
    v_xor_b32 v22, v22, v21
    s_lshl_b32 s80, s30, 12
    v_lshlrev_b32 v20, 7, v20
    v_lshl_add_u32 v20, v22, 4, v20
    v_add_u32 v{XA}, s80, v20
    """)
    for ks in range(1, 4): a(f"v_xor_b32 v{XA+ks}, {ks*32}, v{XA}")
    for ks in range(4): a(f"v_add_u32 v{XA+4+ks}, {2*SLOT}, v{XA+ks}")
    a(f"""
    v_bfe_u32 v20, v0, 2, 2
    v_lshl_add_u32 v20, v21, 3, v20
    v_lshlrev_b32 v20, 6, v20
    v_bfe_u32 v22, v0, 4, 1
    v_lshl_add_u32 v20, v22, 5, v20
    v_and_b32 v23, 3, v0
    v_lshl_add_u32 v20, v23, 3, v20
    v_add_u32 v{WA[0]}, 16384, v20
    v_add_u32 v{WA[1]}, {16384+2*SLOT}, v20
    v_add_u32 v{WA[2]}, {L_WQ}, v20
    v_lshlrev_b32 v228, 2, v23
    v_mov_b32 v55, v22
    s_waitcnt lgkmcnt(0)
    """)
    srd(a, 32, 28, WS_BYTES); srd(a, 52, 26, 256)
    a(f"""
    s_cmp_lg_u32 s2, 0
    s_cbranch_scc1 A_noclear
    s_lshl_b32 s80, s30, 14
    s_add_u32 s80, s80, {FW}
    v_lshlrev_b32 v24, 8, v0
    v_mov_b32 v28, 0
    v_mov_b32 v29, 0
    v_mov_b32 v30, 0
    v_mov_b32 v31, 0
    v_mov_b32 v25, 1
    buffer_store_dwordx4 v[28:31], v24, {WS}, s80 offen sc1
    s_lshl_b32 s80, s30, 2
    s_waitcnt vmcnt(0)
    s_mov_b64 exec, 1
    buffer_store_dword v25, v28, s[52:55], s80 offen sc1
    s_mov_b64 exec, -1
    """)
    a.label("A_noclear")
    main = a; a = Asm()
    srd(a, 36, 4, 0x200000); srd(a, 40, 24, 0x200000)
    common_setup(a, 52, 53, 54)
    a(f"""
    v_and_b32 v16, 0x33, v0
    v_bfe_u32 v17, v0, 2, 1
    v_lshl_or_b32 v16, v17, 3, v16
    v_bfe_u32 v17, v0, 3, 1
    v_lshl_or_b32 v16, v17, 2, v16
    v_lshlrev_b32 v16, 4, v16
    v_lshl_add_u32 v17, v55, 16, v{VOF}
    s_lshl_b32 s80, s30, 10
    s_add_u32 s80, s80, {L_QX}
    v_add_u32 v18, s80, v{L16}
    s_lshl_b32 s10, s58, 17
    s_lshl_b32 s80, s57, 2
    s_add_u32 s81, s80, s30
    s_lshl_b32 s81, s81, 10
    s_add_u32 s10, s10, s81
    s_add_u32 s12, s10, {VW}
    s_add_u32 s10, s10, {KW}
    s_add_u32 s11, s10, 0x10000
    s_mov_b32 s13, {f32(0.25*LOG2E)}
    s_lshl_b32 s81, s64, 1
    s_add_u32 s80, s80, s81
    s_lshl_b32 s80, s80, 15
    s_lshl_b32 s82, s61, 10
    s_add_u32 s80, s80, s82
    s_add_u32 s86, s80, {OW}
    s_add_u32 s87, s86, 0x8000
    s_mov_b32 s8, 99
    s_lshl_b32 s82, s63, 2
    s_add_u32 s82, s82, s81
    s_mul_i32 s14, s82, {PSL}
    s_add_u32 s14, s14, {L_OLD}
    s_xor_b32 s16, s30, 2
    s_mul_i32 s15, s30, {2*PSL}
    s_mul_i32 s16, s16, {2*PSL}
    s_add_u32 s15, s15, {L_YNG}
    s_add_u32 s16, s16, {L_YNG}
    s_mov_b32 s83, {CDROP}
    s_mov_b32 s82, 99
    s_mov_b32 s92, s18
    s_mov_b32 s93, s19
    """)
    for x in ones(229): a(x)
    defer = a.lines; a = main
    cuts = [CS0 + (len(defer) - CS0) * n // 28 for n in range(29)]
    for n in range(28):
        while cuts[n] < len(defer) and ("vcc" in defer[cuts[n]] or defer[cuts[n]].startswith(("s_nop", "s_cselect", "s_addc"))): cuts[n] += 1
    a.lines += defer[:cuts[0]]
    a("s_barrier")
    stamp(a, 1); stamp(a, 1, 3); stamp(a, 2, 4)
    def reads(g):
        st, ks = g >> 2, g & 3
        slot = st % NS
        bs, off = slot // 2, (slot % 2) * SLOT
        f = FR + 8 * (g % 3)
        r = [f"ds_read_b128 {vr(XF+4*g,4)}, v{XA+4*bs+ks} offset:{off}"]
        for ty in range(2):
            for j in range(2):
                r.append(f"ds_read_b64_tr_b16 {vr(f+4*ty+2*j,2)}, v{WA[bs]} offset:{off+ks*2048+ty*1024+j*256}")
        return r
    for r in reads(0) + reads(1): a(r)
    for g in range(32):
        nxt = reads(g + 2) if g + 2 < 32 else []
        if nxt and (g + 2) % 4 == 0:
            a("s_waitcnt lgkmcnt(0)\ns_barrier")
            stamp(a, 1 + (g + 2) // 4, 3)
        else:
            a(f"s_waitcnt lgkmcnt({5 if g < 31 else 0})")
        f, x = FR + 8 * (g % 3), XF + 4 * g
        if "nord" in EXP: nxt = []
        if "nomm" not in EXP: a(f"{M32} {vr(AK,16)}, {vr(f,4)}, {vr(x,4)}, {'0' if g == 0 else vr(AK,16)}")
        for r in nxt[0:3]: a(r)
        if "nomm" not in EXP: a(f"{M32} {vr(AV,16)}, {vr(x,4)}, {vr(f+4,4)}, {'0' if g == 0 else vr(AV,16)}")
        for r in nxt[3:5]: a(r)
        if g < 28: a.lines += defer[cuts[g]:cuts[g+1]]
    stamp(a, 2); stamp(a, 9, 3); stamp(a, 3, 4)
    delay(a, "kv")
    a("s_setprio 3\ns_nop 9")
    for i in range(8): a(f"v_cvt_pk_bf16_f32 v{AK+i}, v{AK+2*i}, v{AK+2*i+1}")
    a(f"buffer_store_dwordx4 {vr(AK,4)}, v16, {WS}, s10 offen sc1")
    a(f"buffer_store_dwordx4 {vr(AK+4,4)}, v16, {WS}, s11 offen sc1")
    for i in range(8): a(f"v_cvt_pk_bf16_f32 v{AV+i}, v{AV+2*i}, v{AV+2*i+1}")
    a(f"buffer_store_dwordx4 {vr(AV,4)}, v17, {WS}, s12 offen sc1")
    a(f"buffer_store_dwordx4 {vr(AV+4,4)}, v17, {WS}, s12 offen offset:512 sc1")
    a(f"buffer_load_dword v{GO}, v228, s[52:55], 0 offen sc1\ns_barrier")
    stamp(a, 3); stamp(a, 10, 3)
    a(f"""
    v_add_u32 v6, s14, v{L16}
    v_add_u32 v7, s14, v{L4H}
    v_add_u32 v8, s15, v{L16}
    v_add_u32 v9, s15, v{L4H}
    v_add_u32 v10, s16, v{L16}
    v_add_u32 v11, s16, v{L4H}
    """)
    for i in range(16, 32): a(f"v_mov_b32 v{VS+i}, v229")
    a("s_waitcnt vmcnt(0)")
    all_set(a, late, GO, 228, "0", "s[52:55]")
    arrive(a, 0, 12)
    stamp(a, 4); stamp(a, 12, 3)
    a("s_barrier")
    stamp(a, 11, 3)
    order = [28, 29, 30, 31] + list(range(28))
    qrd = lambda n: [f"ds_read_b64_tr_b16 {vr(FQ[n%5]+2*j,2)}, v{WA[2]} offset:{order[n]*1024+j*256}" for j in range(2)]
    for n in range(4):
        for r in qrd(n): a(r)
    for n in range(32):
        if n == KFG: a(f"buffer_load_dword v12, v{KF2}, {WS}, s74 offen sc1")
        a(f"s_waitcnt lgkmcnt({min(6, 2*(31-n))})")
        a(f"{M32} {vr(AQ,16)}, {vr(FQ[n%5],4)}, {vr(XF+4*order[n],4)}, {'0' if n == 0 else vr(AQ,16)}")
        if n + 4 < 32:
            for r in qrd(n + 4): a(r)
        if 4 <= n < 20: a(f"v_mov_b32 v{VS+n-4}, v229")
    a("s_nop 11")
    for i in range(16): a(f"v_mul_f32 v{AQ+i}, s13, v{AQ+i}")
    for i in range(8): a(f"v_cvt_pk_bf16_f32 v{AQ+i}, v{AQ+2*i}, v{AQ+2*i+1}")
    a(f"""
    ds_write_b128 v18, {vr(AQ,4)}
    ds_write_b128 v18, {vr(AQ+4,4)} offset:4096
    s_waitcnt lgkmcnt(0)
    {mark(W_QW)}
    s_waitcnt vmcnt(0)
    """)
    all_set(a, late, 12, KF2, "s74")
    stamp(a, 5); stamp(a, 13, 3)
    att_loads()
    att_q()
    a(f"s_waitcnt lgkmcnt(0)\n{mark(W_QR)}\ns_setprio 2")
    stamp(a, 6); stamp(a, 14, 3)

    if HW12:
        a("s_mov_b32 s21, 0\ns_branch B_go")
        a.label("B_goh")
        a("s_mov_b32 s21, 1")
    a.label("B_go")
    for j in range(4): a(f"{M32} {vr(ACC+16*j,16)}, {vr(Z4,4)}, {vr(Z4,4)}, 0")
    a(f"{M32} {vr(S+48,16)}, {vr(Z4,4)}, {vr(Z4,4)}, 0")
    a("s_add_u32 s70, s70, 4096\ns_add_u32 s71, s71, 3072\ns_mov_b32 s84, 3")
    qk = lambda j, st: f"{M32} {vr(S+16*j,16)}, {vr(KS+4*st,4)}, {vr(Q+4*j,4)}, 0"
    pv = lambda j, st, s: f"{SM} {vr(ACC+16*j,16)}, {vr(VS+8*st+4*s,4)}, {vr(S+16*j+8*s,8)}, v{IDX}"
    if HW12:
        a("s_waitcnt vmcnt(12)\ns_cmp_lg_u32 s21, 0\ns_cbranch_scc1 B_k0\ns_waitcnt vmcnt(9)")
        a.label("B_k0")
    else: a("s_waitcnt vmcnt(9)")
    a(qk(0, 0)); a(qk(1, 0))
    for i in range(4): a(f"v_mov_b32 v{Z4+i}, -1")
    a("s_nop 6")
    if STAMP: a("s_mov_b32 s21, 0")
    stamp(a, 7)
    wodma = lambda m: [f"s_add_u32 m0, s77, {m*1024}", f"s_add_u32 s85, s78, {m*16384}", f"buffer_load_dwordx4 v{WOV}, s[44:47], s85 offen lds"]
    xdma = ["s_mov_b32 m0, s79", "s_nop 0", f"buffer_load_dwordx4 v{XOV}, s[36:39], 0 offen lds"]
    def body(last, extras, waits):
        for m in range(4):
            for j in range(4):
                jp, mp = (j - 1) % 4, (m if j else (m - 1) % 4)
                ins = {}
                def put(p, x): ins.setdefault(p, []).extend(x if isinstance(x, list) else [x])
                if j == 1 and waits[m] is not None: put(1, f"s_waitcnt vmcnt({waits[m]})")
                put(1, pv(jp, mp, 0))
                put(6, pv(jp, mp, 1))
                if j == 0 and (not last or m == 0): put(8, ldv((m + 3) % 4, "s71", m*1024))
                if not (last and m == 3 and j >= 2): put(11, qk((j + 2) % 4, m if j < 2 else (m + 1) % 4))
                if j == 1 and not last: put(13, ldk(m, "s70", m*1024))
                if j == 2 and not last:
                    if m < 2: put(8, wodma(m))
                    if m == 2: put(8, ["s_cmp_eq_u32 s84, 1", "s_cbranch_scc1 B_x"] + wodma(2) + ["s_branch B_xd", "B_x:"] + xdma + ["B_xd:"])
                    if m == 3: put(8, ["s_cmp_le_u32 s84, s8", "s_cbranch_scc1 B_nocl"] + [f"buffer_store_dwordx4 {vr(Z4,4)}, v{L16}, {WS}, s{r} offen sc1" for r in (88, 89)]
                                   + ["s_mov_b32 s88, s4", "s_mov_b32 s89, s5", "B_nocl:"])
                if not last and m == 1 and j == 3: put(4, (["s_cmp_lg_u32 s84, 3", "s_cbranch_scc1 B_nof"] if F1 else []) + [f"buffer_load_dword v{QA+1}, v{KFV}, {WS}, s74 offen sc1"] + (["B_nof:"] if F1 else []))
                if not last and m == 3 and j == 3: put(3, (["s_cmp_lg_u32 s84, 2", "s_cbranch_scc1 B_nof2"] if F1 else []) + ["s_waitcnt vmcnt(7)", lambda: all_set(a, late, QA + 1, KFV, "s74")] + (["B_nof2:"] if F1 else []))
                for p, x in extras.get((m, j), []): put(p, x)
                for e in range(16):
                    for x in ins.get(e, []):
                        if callable(x): x()
                        else: a(x)
                    a(f"v_exp_f32 v{S+16*j+e}, v{S+16*j+e}")
    a(".p2align 6")
    a.label("B_loop")
    body(False, {(3, 1): [(14, ["s_add_u32 s77, s77, 3072", "s_add_u32 s78, s78, 49152"])],
                 (3, 2): [(14, ["s_add_u32 s70, s70, 4096", "s_add_u32 s71, s71, 4096", "s_sub_u32 s84, s84, 1"])],
                 (CDT, 0): [(3, ["s_cmp_lg_u32 s84, s83", "s_cbranch_scc1 B_keep", "s_setprio 0", "B_keep:"])],
                 (3, 3): [(8, ["s_cmp_lg_u32 s84, s82", "s_cbranch_scc1 B_nouf", lambda: arrive(a, 1, QA)]
                              + [f"s_load_dword s100, s[92:93], {i*128}" for i in range(12, 16)] + ["B_nouf:"]),
                          (14, "s_cmp_lg_u32 s84, 0")]}, [8, 9, 10, 11] if F1 else [8, 9, 11, 12])
    a("s_cbranch_scc1 B_loop")
    stamp(a, 8)
    a("s_cmp_lt_u32 s30, 4\ns_cbranch_scc1 B_final")

    CA = 32
    ABUF, BBUF = [96, 160], [128, 64]
    a(f"""
    s_lshl_b32 s80, s91, 12
    s_add_u32 s92, s18, s80
    s_addc_u32 s93, s19, 0
    s_mov_b32 s94, 4096
    s_mov_b32 s95, 0x20000
    buffer_load_dword v{P0}, v{UFV}, {WS}, s87 offen sc1
    buffer_load_dword v{P1}, v{GFV}, {WS}, s86 offen sc1
    """)
    def lda(rr):
        b = ABUF[rr % 2]
        o = []
        if rr == 0:
            o.append(f"buffer_load_dword v{b}, v{A0}, s[92:95], 0 offen")
            for i in range(1, 4): o.append(f"v_add_u32 v{A0}, 4, v{A0}\nbuffer_load_dword v{b+i}, v{A0}, s[92:95], 0 offen")
        else:
            o.append(f"buffer_load_dwordx4 {vr(b,4)}, v{A64}, s[92:95], 0 offen offset:{64*(rr-1)}")
        for aa in range(1, 8):
            o.append(f"buffer_load_dwordx4 {vr(b+4*aa,4)}, v{A512}, s[92:95], 0 offen offset:{512*(aa-1)+64*rr}")
        return o
    ldb = lambda rr: [f"ds_read_b128 {vr(BBUF[rr%2]+4*bb,4)}, v{BA} offset:{64*rr+512*(7-bb)}" for bb in range(8)]
    udma = lambda rho, q: [f"s_add_u32 m0, s65, {rho*USZ}", "s_nop 0",
                           f"buffer_load_dwordx4 v{L16 if rho else U2}, {WS}, s13 offen offset:{q*1024} sc1 lds",
                           f"buffer_load_dwordx4 v{L16 if rho else U2}, {WS}, s13 offen offset:{q*1024+1024} sc1 lds"]
    wrh = lambda j: [f"ds_write_b128 v{PW16}, {vr(ACC+16*j,4)} offset:{j*PSL}", f"ds_write_b128 v{PW16}, {vr(ACC+16*j+4,4)} offset:{j*PSL+1024}",
                     f"ds_write_b32 v{PW4}, v{ACC+16*j+8} offset:{j*PSL+2048}"]
    LA0, LA1 = lda(0), lda(1)
    exh = {(0, 0): [(3, lambda: arrive(a, 2, QA))],
           (1, 1): [(3, [mark(W_LH), lambda: all_set(a, late, P0, UFV, "s87"), lambda: all_set(a, late, P1, GFV, "s86")]),
                    (8, udma(1, 0)), (13, udma(1, 2))],
           (1, 2): [(4, udma(0, 0)), (13, udma(0, 2))],
           (1, 3): [(4, f"buffer_load_dword v{G}, v{L4H}, {WS}, s14 offen sc1")],
           (3, 1): [(9 + i, LA1[i]) for i in range(4)],
           (3, 2): [(3 + i, wrh(0)[i]) for i in range(3)] + [(8 + i, LA1[4 + i]) for i in range(4)],
           (3, 3): [(0, LA0[0:4])] + [(3 + i, wrh(1)[i]) for i in range(3)] + [(7 + i, LA0[4 + i]) for i in range(7)]}
    body(True, exh, [12 if F1 else 13, 2, None, 9])
    a(f"""
    s_waitcnt vmcnt(19)
    s_mov_b64 exec, 1
    ds_write_b16 v{PV16}, v{VZ} offset:4094
    s_mov_b64 exec, -1
    {pv(3,3,0)}
    {pv(3,3,1)}
    s_setprio {CVP}
    """)
    stamp(a, 9)
    for x in ldb(0) + wrh(2): a(x)
    a("s_nop 0")
    for x in wrh(3): a(x)
    a(f"s_waitcnt lgkmcnt(0)\n{mark(W_PO)}")
    for rr in range(4):
        ab, bb_ = ABUF[rr % 2], BBUF[rr % 2]
        nb = ldb(rr + 1) if rr < 3 else []
        mm = lambda aa, b, c=None: f"{M16} {vr(CA+4*(aa+b),4)}, {vr(ab+4*aa,4)}, {vr(bb_+4*b,4)}, {c or vr(CA+4*(aa+b),4)}"
        a(f"s_waitcnt vmcnt({[0, 8, 8, 0][rr]}){' lgkmcnt(0)' if rr else ''}")
        if rr == CVR: a("s_setprio 1")
        if rr == 3:
            a(f"buffer_load_dword v{P0}, v{UFV}, {WS}, s17 offen sc1\nbuffer_load_dword v{P1}, v{CFV}, {WS}, s101 offen sc1")
        if rr == 0:
            a("s_cmp_lg_u32 s63, 0\ns_cbranch_scc1 CV_nodiag")
            for b in range(8): a(f"{M16} {vr(CA+4*b,4)}, {vr(DF,4)}, {vr(bb_+4*b,4)}, 0")
            for b in range(8): a(mm(0, b))
            a("s_branch CV_row1")
            a.label("CV_nodiag")
            for b in range(8): a(mm(0, b, "0"))
            a.label("CV_row1")
        cnt = 0
        na = lda(rr + 2) if rr < 2 else []
        for aa in range(8):
            for b in range(8 - aa):
                if rr == 0 and aa == 0: continue
                a(mm(aa, b))
                cnt += 1
                if cnt % 3 == 0 and nb: a(nb.pop(0))
            if na: a(na.pop(0))
    stamp(a, 11)
    XI, YP = 96, 128
    delay(a, "conv")
    a(f"s_setprio {XP}")
    a("s_cmp_lg_u32 s63, 0\ns_cbranch_scc1 CV_odd")
    for odd in range(2):
        if odd: a.label("CV_odd")
        a("s_nop 4" if not odd else "s_nop 0")
        for n in range(4): a(f"ds_write_b128 v{PV16}, {vr(CA+16*(1-odd)+4*n,4)} offset:{n*1024}")
        a(f"s_waitcnt lgkmcnt(0)\n{mark(W_XCH)}")
        lds_wait(a, PTW, W_XCH, XI)
        for n in range(4): a(f"ds_read_b128 {vr(XI+4*n,4)}, v{PT16} offset:{n*1024}")
        for n in range(4):
            c = CA + 16*odd + 4*n
            a(f"s_waitcnt lgkmcnt({3-n})")
            a(f"v_pk_add_f32 {vr(c,2)}, {vr(c,2)}, {vr(XI+4*n,2)}\nv_pk_add_f32 {vr(c+2,2)}, {vr(c+2,2)}, {vr(XI+4*n+2,2)}")
            a(f"v_cvt_pk_bf16_f32 v{YP+2*n}, v{c}, v{c+1}\nv_cvt_pk_bf16_f32 v{YP+2*n+1}, v{c+2}, v{c+3}")
        if not odd: a("s_branch CV_st")
    a.label("CV_st")
    a("s_nop 0")
    for p in range(2):
        a(f"v_permlane16_swap_b32 v{YP+4*p}, v{YP+4*p+2}\nv_permlane16_swap_b32 v{YP+4*p+1}, v{YP+4*p+3}")
        a(f"buffer_store_dwordx4 {vr(YP+4*p,4)}, v{YST}, {WS}, s7 offen offset:{1024*p} sc1")
    a("s_waitcnt vmcnt(2)")
    all_set(a, late, P0, UFV, "s17"); all_set(a, late, P1, CFV, "s101")
    yload = [f"buffer_load_dwordx4 {vr(YA+4*q,4)}, v{YLD}, {WS}, s{15+q} offen sc1" for q in range(2)]
    a(f"s_setprio {XP2}")
    stamp(a, 12)
    lds_wait(a, XW8, W_LH, 9)
    a(f"""
    v_xor_b32 v9, 16, v{XAD}
    v_xor_b32 v10, 64, v{XAD}
    v_xor_b32 v11, 80, v{XAD}
    ds_read_b64 {vr(XR,2)}, v{XAD}
    ds_read_b64 {vr(XR+2,2)}, v9
    ds_read_b64 {vr(XR+4,2)}, v10
    ds_read_b64 {vr(XR+6,2)}, v11
    v_sub_f32 v{G+1}, 1.0, v{G}
    ds_write_b32 v{XGA}, v{G} offset:2048
    """)
    c_wo()
    a(f"v_xor_b32 v9, 16, v{YSR}\nv_mov_b32 v{G+2}, v{G+1}\nv_mov_b32 v{G+3}, v{G+1}")
    for i in range(8):
        a(f"v_lshlrev_b32 v{XG+2*i}, 16, v{XR+i}\nv_and_b32 v{XG+2*i+1}, s6, v{XR+i}")
        a(f"v_pk_mul_f32 {vr(XG+2*i,2)}, {vr(XG+2*i,2)}, {vr(G+2,2)}")
    for x in yload: a(x)
    def ystage():
        a(f"""
        ds_write_b128 v{YSW}, {vr(YA,4)}
        ds_write_b128 v{YSW}, {vr(YA+4,4)} offset:1024
        s_waitcnt lgkmcnt(0)
        {mark(W_YS)}
        """)
        stamp(a, 10)
        lds_wait(a, XW4, W_YS, 10)
        for b in (1, 0):
            for sg in range(2): a(f"ds_read_b128 {vr(YF+8*b+4*sg,4)}, v{[YSR, 9][sg]} offset:{(1-b)*2*PRIV}")
        for b in (1, 0):
            a(f"s_waitcnt lgkmcnt({2*b})")
            a(f"{M32} {vr(YA+16*b,16)}, {vr(YF+8*b,4)}, {vr(PM,4)}, 0")
            a(f"{M32} {vr(YA+16*b,16)}, {vr(YF+8*b+4,4)}, {vr(PM+4,4)}, {vr(YA+16*b,16)}")
    def xymul():
        for i in range(4): a(f"v_pk_mul_f32 {vr(YA+16+2*i,2)}, {vr(YA+16+2*i,2)}, {vr(XG+8+2*i,2)}")
        a(f"ds_write_b128 v{XYA}, {vr(YA+16,4)}\nds_write_b128 v{XYA}, {vr(YA+20,4)} offset:1024\ns_nop 0")
        for i in range(4): a(f"v_pk_mul_f32 {vr(YA+2*i,2)}, {vr(YA+2*i,2)}, {vr(XG+2*i,2)}")
    if YSM:
        a(f"s_mov_b32 s90, {SPIN}")
        a.label("Y_try")
        a(f"""
        ds_read_b32 v11, v{XW4} offset:{W_OL}
        s_waitcnt vmcnt(0)
        v_max3_u32 v10, v{YA}, v{YA+1}, v{YA+2}
        v_max3_u32 v10, v{YA+3}, v{YA+4}, v10
        v_max3_u32 v10, v{YA+5}, v{YA+6}, v10
        v_max_u32 v10, v{YA+7}, v10
        v_cmp_eq_u32 vcc, -1, v10
        s_sub_u32 s90, s90, 1
        s_cbranch_scc1 Y_have
        s_cmp_eq_u64 vcc, 0
        s_cbranch_scc1 Y_have
        """)
        for x in yload: a(x)
        a("s_waitcnt lgkmcnt(0)\nv_cmp_eq_u32 vcc, 1, v11\ns_nop 0\ns_cmp_eq_u64 vcc, exec\ns_cbranch_scc0 Y_try\ns_setprio 3")
        stamp(a, 13)
        for x in oload: a(x)
        a("s_waitcnt vmcnt(8)")
        fresh(a, late, list(range(YA, YA+8)), yload, 10)
        ystage()
        a("s_nop 9")
        xymul()
        a("s_branch C_mm")
        a.label("Y_have")
    else:
        a("s_waitcnt vmcnt(0)")
        fresh(a, late, list(range(YA, YA+8)), yload, 10)
    if YSM == 2:
        a(f"""
        s_waitcnt lgkmcnt(0)
        v_cmp_eq_u32 vcc, 1, v11
        s_nop 0
        s_cmp_eq_u64 vcc, exec
        s_cbranch_scc0 Y_norm
        s_setprio 3
        """)
        stamp(a, 13)
        for x in oload: a(x)
        ystage()
        a("s_nop 9")
        xymul()
        a("s_branch C_mm")
        a.label("Y_norm")
    ystage()
    a("s_setprio 0")
    lds_wait(a, XW4, W_OL, 10)
    a("s_setprio 3")
    stamp(a, 13)
    for x in oload: a(x)
    xymul()
    a("s_branch C_mm")

    a.label("B_final")
    delay(a, "fin")
    rdp = lambda dst, a16, off: [f"ds_read_b128 {vr(dst,4)}, v{a16} offset:{off}", f"ds_read_b128 {vr(dst+4,4)}, v{a16} offset:{off+1024}",
                                 f"ds_read_b32 v{dst+8}, v{a16+1} offset:{off+2048}"]
    wrp = lambda j: [f"ds_write_b128 v8, {vr(ACC+16*j,4)} offset:{j*PSL}", f"ds_write_b128 v8, {vr(ACC+16*j+4,4)} offset:{j*PSL+1024}",
                     f"ds_write_b32 v9, v{ACC+16*j+8} offset:{j*PSL+2048}"]
    PA, PB = [208, 176, 160, 186], [96, 112]
    r0 = rdp(PA[0], 6, 0); r1 = rdp(PA[1], 6, 8*PSL); r2 = rdp(PA[2], 6, PSL); r3 = rdp(PA[3], 6, 9*PSL)
    w0, w1 = wrp(0), wrp(1)
    def add9(d, s_):
        return [f"v_pk_add_f32 {vr(d+2*i,2)}, {vr(d+2*i,2)}, {vr(s_+2*i,2)}" for i in range(4)] + [f"v_add_f32 v{d+8}, v{d+8}, v{s_+8}"]
    ex = {(1, 1): [(3, mark(W_LC))],
          (2, 2): [(8, f"buffer_load_dword v13, v{CFV}, {WS}, s101 offen sc1")],
          (3, 0): [(9, [lambda: lds_wait(a, XW4, W_PO, 12), "s_setprio 3"]), (12, r0[0]), (13, r0[1]), (14, r0[2])],
          (3, 1): [(3, r1[0]), (4, r1[1]), (8, r1[2]), (9, r2[0]), (13, r2[1]), (14, r2[2])],
          (3, 2): [(2, r3[0]), (3, w0[0]), (4, r3[1]), (8, w0[1]), (9, r3[2]), (10, w0[2])],
          (3, 3): [(3, w1[0]), (4, w1[1]), (5, w1[2]), (9, ["s_waitcnt lgkmcnt(0)", mark(W_PY)]),
                   (12, [lambda: lds_wait(a, XW4, W_PY, 12)] + rdp(PB[0], 10, 0)), (13, rdp(PB[1], 10, PSL))]}
    body(True, ex, [10 if F1 else 11, 5, 2, 0])
    stamp(a, 9)
    O2, O3 = ACC + 32, ACC + 48
    for x in add9(PA[0], PA[1])[:2]: a(x)
    a(f"{pv(3,3,0)}\n{pv(3,3,1)}")
    for x in add9(PA[0], PA[1])[2:] + add9(O2, PA[0]) + add9(PA[2], PA[3]): a(x)
    a("s_waitcnt lgkmcnt(0)")
    a(mark(W_PR))
    for x in add9(O2, PB[0]) + add9(PA[2], PB[1]) + add9(O3, PA[2]): a(x)
    a(f"v_mov_b32 v14, 0\nv_mov_b32 v15, 0")
    for o in (O2, O3):
        for i in range(4): a(f"v_pk_fma_f32 v[14:15], {vr(o+2*i,2)}, 0, v[14:15] op_sel_hi:[1,0,1]")
    a(f"""
    v_add_f32 v14, v14, v15
    v_min_f32 v15, v{O2+8}, v{O3+8}
    v_add_f32 v14, v14, v{O2+8}
    v_add_f32 v14, v14, v{O3+8}
    v_cmp_lt_f32 vcc, {f32(2.0**-60)}, v15
    s_mov_b64 s[92:93], vcc
    v_cmp_gt_f32 vcc, {f32(2.0**60)}, v14
    s_and_b64 s[92:93], s[92:93], vcc
    s_cmp_eq_u64 s[92:93], exec
    s_cbranch_scc0 B_slow
    """)
    a.label("B_fin")
    delay(a, "ost")
    a(f"v_rcp_f32 v14, v{O2+8}\nv_rcp_f32 v12, v{O3+8}\ns_nop 0")
    for jj, (o, r) in enumerate(((O2, 14), (O3, 12))):
        for i in range(4): a(f"v_pk_mul_f32 {vr(o+2*i,2)}, {vr(o+2*i,2)}, {vr(r,2)} op_sel_hi:[1,0]")
        for i in range(4): a(f"v_cvt_pk_bf16_f32 v{208+4*jj+i}, v{o+2*i}, v{o+2*i+1}")
        a(f"buffer_store_dwordx4 {vr(208+4*jj,4)}, v{L16}, {WS}, s{86+jj} offen sc1")
    stamp(a, 10)
    all_set(a, late, 13, CFV, "s101")
    if not OLATE:
        for x in oload: a(x)
    stamp(a, 11)
    lds_wait(a, XW8, W_LH, 12)
    c_wo()
    lds_wait(a, XW4, W_PR, 12)
    if HOL: a(mark(W_OL))
    if OLATE:
        for x in oload: a(x)
    stamp(a, 13)

    a.label("C_mm")
    for j in range(8):
        a(f"s_waitcnt vmcnt({7-j})")
        fresh(a, late, list(range(OB+4*j, OB+4*j+4)), oload[j:], 6, 7 - j)
        for ai in (1, 0):
            a(f"{M32} {vr(AC+16*ai,16)}, {vr(WF+4*(8*ai+j),4)}, {vr(OB+4*j,4)}, {'0' if j == 0 else vr(AC+16*ai,16)}")
    stamp(a, 14)
    a("s_nop 10")
    for r in ((2, 3, 1) if "norb" not in EXP else ()):
        a(f"ds_write_b128 v{RBA+r}, {vr(AC+8*r,4)}\nds_write_b128 v{RBA+r}, {vr(AC+8*r+4,4)} offset:1024")
    a(f"s_cmp_lt_u32 s30, 4\ns_waitcnt lgkmcnt(0)\ns_barrier\ns_cbranch_scc0 C_havexy")
    a(f"ds_read_b128 {vr(YA,4)}, v{XYA}\nds_read_b128 {vr(YA+4,4)}, v{XYA} offset:1024\nds_read_b32 v{G}, v{XGA} offset:2048")
    a.label("C_havexy")
    for r in range(6 if "norb" not in EXP else 0): a(f"ds_read_b128 {vr(RD+4*r,4)}, v{RBA} offset:{r*1024}")
    for r in range(3):
        a(f"s_waitcnt lgkmcnt({4-2*r})")
        for i in range(4): a(f"v_pk_add_f32 {vr(AC+2*i,2)}, {vr(AC+2*i,2)}, {vr(RD+8*r+2*i,2)}")
    for i in range(4): a(f"v_pk_fma_f32 {vr(AC+2*i,2)}, {vr(AC+2*i,2)}, {vr(G,2)}, {vr(YA+2*i,2)} op_sel_hi:[1,0,1]")
    for i in range(4): a(f"v_cvt_pk_bf16_f32 v{PK4+i}, v{AC+2*i}, v{AC+2*i+1}")
    a(f"""
    s_nop 0
    v_permlane32_swap_b32 v{PK4}, v{PK4+2}
    v_permlane32_swap_b32 v{PK4+1}, v{PK4+3}
    buffer_store_dwordx4 {vr(PK4,4)}, v{OUTV}, s[40:43], s69 offen
    """)
    if STAMP: a("s_waitcnt vmcnt(0)")
    stamp(a, 15)
    if STAMP: a("v_writelane_b32 v255, s21, 40")
    stamp_flush(a)
    a("s_endpgm")

    a.label("B_slow")
    a(f"""
    s_add_u32 s70, s66, {KW}
    s_add_u32 s71, s66, {VW}
    s_mov_b32 s84, 0
    v_mov_b32 v208, 0xff800000
    v_mov_b32 v209, 0xff800000
    """)
    a.label("B_slow1")
    a(f"""
    s_add_u32 s85, s70, s84
    {ldk(0, "s85", 0)}
    s_waitcnt vmcnt(0)
    {M32} {vr(S,16)}, {vr(KS,4)}, {vr(Q+8,4)}, 0
    {M32} {vr(S+16,16)}, {vr(KS,4)}, {vr(Q+12,4)}, 0
    s_nop 11
    """)
    for jj in range(2):
        for i in range(8): a(f"v_max3_f32 v{208+jj}, v{S+16*jj+2*i}, v{S+16*jj+2*i+1}, v{208+jj}")
    a("""
    s_add_u32 s84, s84, 1024
    s_cmp_lt_u32 s84, 0x10000
    s_cbranch_scc1 B_slow1
    v_mov_b32 v210, v208
    v_mov_b32 v211, v209
    s_nop 1
    v_permlane32_swap_b32 v208, v210
    v_permlane32_swap_b32 v209, v211
    v_max_f32 v208, v208, v210
    v_max_f32 v209, v209, v211
    s_mov_b32 s84, 0
    """)
    for jj in range(2):
        for i in range(16): a(f"v_sub_f32 v{S+32+16*jj+i}, 0, v{208+jj}\nv_mov_b32 v{ACC+32+16*jj+i}, 0")
    for i in range(8): a(f"v_mov_b32 v{VS+i}, 0x3f803f80")
    a.label("B_slow2")
    a(f"s_add_u32 s85, s70, s84\ns_add_u32 s89, s71, s84\n{ldk(0, 's85', 0)}")
    for x in ldv(0, "s89", 0): a(x)
    a(f"""
    s_waitcnt vmcnt(0)
    {M32} {vr(S,16)}, {vr(KS,4)}, {vr(Q+8,4)}, {vr(S+32,16)}
    {M32} {vr(S+16,16)}, {vr(KS,4)}, {vr(Q+12,4)}, {vr(S+48,16)}
    s_nop 11
    """)
    for i in range(32): a(f"v_exp_f32 v{S+i}, v{S+i}")
    a("s_nop 1")
    for jj in range(2):
        for s in range(2):
            a(f"{SM} {vr(ACC+32+16*jj,16)}, {vr(VS+4*s,4)}, {vr(S+16*jj+8*s,8)}, v{IDX}")
    a("""
    s_add_u32 s84, s84, 1024
    s_cmp_lt_u32 s84, 0x10000
    s_cbranch_scc1 B_slow2
    s_nop 11
    s_branch B_fin
    """)
    a.lines += late.lines
    a.label("K_end")
    a("s_endpgm")
    return a

def build():
    ref = open(f"cdna_kernels/{NAME}.s.ref").read().split("\n")
    head = [l for l in ref if l.startswith(";") and "@launch" not in l]
    t = kernel().text()
    bad = check(t)
    head += """; One launch, 256 workgroups of 8 waves (one per CU), three phases with hand-offs through d_ws:
;   A  waves 4-7 stage x / wqkv into LDS, waves 0-3 compute k, v (published, write-through) and q (kept on chip);
;      waves 4-7 then compute the gate and u = shiftconv(k) * v (published channel-major)
;   B  attention for 128 tokens x 2 heads, keys split over four waves per head; exp2 results feed a sparse MFMA as raw
;      fp32 (high halves selected), a ones row of v gives the row sums; waves 4-7 also run the long causal convolution
;      of two channels as Toeplitz MFMAs; waves 0-3 combine, check the softmax range and normalise
;   C  64 x 64 output tile: g * (o @ wo) + (1 - g) * x * y
; Flags live in d_ws, are cleared by workgroup 0 and released through d_debug; o and y are reset to all-ones first and
; consumers reload what has not arrived yet. Every wait is bounded.""".split("\n")
    out = "\n".join(head) + f"\n; @launch grid=(256,1,1) block=(512,1,1) lds={LDS}\n"
    out += f'.amdgcn_target "amdgcn-amd-amdhsa--gfx950"\n.text\n.globl {NAME}_kernel\n.p2align 8\n.type {NAME}_kernel,@function\n' + t
    out += f""".section .rodata,"a"
.p2align 6
.amdhsa_kernel {NAME}_kernel
  .amdhsa_next_free_vgpr 256
  .amdhsa_next_free_sgpr 102
  .amdhsa_accum_offset 256
  .amdhsa_group_segment_fixed_size 0
  .amdhsa_kernarg_size 104
  .amdhsa_user_sgpr_count 2
  .amdhsa_user_sgpr_kernarg_segment_ptr 1
  .amdhsa_system_sgpr_workgroup_id_x 1
  .amdhsa_float_denorm_mode_32 3
.end_amdhsa_kernel
"""
    return out, bad

if __name__ == "__main__":
    out, bad = build()
    for b in bad: print("HAZARD", b)
    path = sys.argv[1] if len(sys.argv) > 1 else "fused.s"
    open(path, "w").write(out)
    print("wrote", path, len(out), "bytes;", len(bad), "hazards; lds", LDS)
```

```python
import sys
src, dst, wave, st, mode = sys.argv[1], sys.argv[2], int(sys.argv[3]), int(sys.argv[4]), sys.argv[5]
base = int(sys.argv[6]) if len(sys.argv) > 6 else -1
scale = int(sys.argv[7]) if len(sys.argv) > 7 else 1
NAME = "gated_mix__mha_block__ssm_conv_h3__prompt"
TW = 0xF00000
s = open(src).read()
line = [l for l in s.split("\n") if l.startswith("; @launch")][0]
s = s.replace(line, line.replace("@launch ", f"@launch kernel={NAME}_kernel ") + "\n; @launch kernel=probe_kernel grid=(1,1,1) block=(256,1,1) lds=64")
op = {"min": "ds_min_u32", "max": "ds_max_u32", "avg": "ds_add_u32"}[mode]
k = f""".globl probe_kernel
.p2align 8
.type probe_kernel,@function
probe_kernel:
    s_cmp_ge_u32 s2, 1
    s_cbranch_scc1 P_end
    s_load_dwordx2 s[4:5], s[0:1], 96
    s_mov_b32 s6, 0x1400000
    s_mov_b32 s7, 0x20000
    v_lshlrev_b32 v1, 11, v0
    s_mov_b32 s8, {TW}
    s_mov_b32 s9, {TW + wave*256 + st*8}
    v_mov_b32 v5, 0
    v_mov_b32 v6, -1
    v_mov_b32 v7, {-1 if mode == 'min' else 0}
    ds_write_b64 v5, v[6:7]
    s_waitcnt lgkmcnt(0)
    s_barrier
    buffer_load_dword v3, v1, s[4:7], s8 offen offset:4
    buffer_load_dword v4, v1, s[4:7], s9 offen offset:4
    s_mov_b32 s9, {TW + wave*256 + max(base, 0)*8}
    buffer_load_dword v8, v1, s[4:7], s9 offen offset:4
    s_waitcnt vmcnt(0)
    ds_min_u32 v5, v3
    s_waitcnt lgkmcnt(0)
    s_barrier
    ds_read_b32 v6, v5
    s_waitcnt lgkmcnt(0)
    v_sub_u32 v4, v4, {'v6' if base < 0 else 'v8'}
    v_mul_u32_u24 v4, {scale}, v4
    {op} v5, v4 offset:4
    s_waitcnt lgkmcnt(0)
    s_barrier
    ds_read_b64 v[6:7], v5
    s_waitcnt lgkmcnt(0)
    v_readfirstlane_b32 s10, v6
    v_readfirstlane_b32 s11, v7
    s_lshr_b32 s11, s11, {8 if mode == 'avg' else 0}
    s_min_u32 s11, s11, 10000
    s_add_u32 s11, s11, 6000
P_loop:
    s_memrealtime s[12:13]
    s_waitcnt lgkmcnt(0)
    s_sub_u32 s12, s12, s10
    s_cmp_gt_u32 s12, 100000
    s_cbranch_scc1 P_end
    s_cmp_lt_u32 s12, s11
    s_cbranch_scc1 P_loop
P_end:
    s_endpgm
"""
s = s.replace('.section .rodata,"a"\n', k + '.section .rodata,"a"\n')
s += """.p2align 6
.amdhsa_kernel probe_kernel
  .amdhsa_next_free_vgpr 16
  .amdhsa_next_free_sgpr 32
  .amdhsa_accum_offset 16
  .amdhsa_group_segment_fixed_size 0
  .amdhsa_kernarg_size 104
  .amdhsa_user_sgpr_count 2
  .amdhsa_user_sgpr_kernarg_segment_ptr 1
  .amdhsa_system_sgpr_workgroup_id_x 1
.end_amdhsa_kernel
"""
open(dst, "w").write(s)
```
